```python
import torch

def _softmax(x, axis=-1):
    return torch.softmax(x, dim=axis)
def _gelu(x):
    return torch.nn.functional.gelu(x, approximate="tanh")
def _silu(x):
    return torch.nn.functional.silu(x)
def _sigmoid(x):
    return torch.sigmoid(x)
def _layernorm(x, axis=-1, eps=1e-5):
    m = x.mean(dim=axis, keepdim=True)
    v = x.var(dim=axis, keepdim=True, unbiased=False)
    return (x - m) / torch.sqrt(v + eps)
def _scatter_add(tgt, idx, src, axis=0):
    return tgt.clone().index_add_(axis, idx, src)
def _segment_sum(src, seg, n):
    out = torch.zeros((n,) + src.shape[1:], dtype=src.dtype)
    return out.index_add_(0, seg, src)
def _pad(x, pw):
    flat = tuple(v for pair in reversed(pw) for v in pair)
    return torch.nn.functional.pad(x, flat)

kernel_name = 'parallel_sum__sliding_local_dilated__mixer_token_mlp__prompt'

def setup_inputs():

    _w = (lambda a: (lambda t: t.to(torch.bfloat16) if t.is_floating_point() else t)(torch.as_tensor(a)))
    def _A_setup():
        B, S, D = 1, 2048, 448
        return {
            "x": _w((lambda *s: torch.randn(*s, dtype=torch.bfloat16) * 0.05)(B, S, D)),
            "wqkv": _w((lambda *s: torch.randn(*s, dtype=torch.bfloat16) * 0.05)(D, 3 * D)),
            "wo": _w((lambda *s: torch.randn(*s, dtype=torch.bfloat16) * 0.05)(D, D)),
        }
    _A_in = _A_setup()

    def _B_setup():
        B, S, D, F = 1, 2048, 448, 1792
        return {
            "x": _w((lambda *s: torch.randn(*s, dtype=torch.bfloat16) * 0.05)(B, S, D)),
            "w1": _w((lambda *s: torch.randn(*s, dtype=torch.bfloat16) * 1.6)(S, F) * (S ** -0.5)),
            "b1": _w((lambda *s: torch.randn(*s, dtype=torch.bfloat16) * 12.8)(F) * 0.02),
            "w2": _w((lambda *s: torch.randn(*s, dtype=torch.bfloat16) * 0.4)(F, S) * (F ** -0.5)),
            "b2": _w((lambda *s: torch.randn(*s, dtype=torch.bfloat16) * 6.4)(S) * 0.02),
        }
    _B_in = _B_setup()

    return {
        "A_x": _A_in["x"],
        "A_wqkv": _A_in["wqkv"],
        "A_wo": _A_in["wo"],
        "B_x": _B_in["x"],
        "B_w1": _B_in["w1"],
        "B_b1": _B_in["b1"],
        "B_w2": _B_in["w2"],
        "B_b2": _B_in["b2"],
    }

def reference(A_x, A_wqkv, A_wo, B_x, B_w1, B_b1, B_w2, B_b2):
    def _A_ref(x, wqkv, wo):
        B, S, D = x.shape
        H = 16; Dh = D // H
        W, dil = 8, 2
        qkv = (lambda x, *d: x.permute(*d))((x @ wqkv).reshape(B, S, 3, H, Dh), 2, 0, 3, 1, 4)
        q, k, v = qkv[0], qkv[1], qkv[2]
        scale = Dh ** -0.5
        pos = torch.arange(S)
        off = torch.arange(W) * dil
        idx = pos[:, None] - off[None, :]
        mask = idx >= 0
        idx_c = torch.where(mask, idx, 0).reshape(-1)
        kg = k[:, :, idx_c, :].reshape(B, H, S, W, Dh)
        vg = v[:, :, idx_c, :].reshape(B, H, S, W, Dh)
        logits = torch.einsum("bhsd,bhswd->bhsw", q, kg) * scale
        logits = torch.where(mask[None, None, :, :], logits, -1e9)
        attn = _softmax(logits, axis=-1)
        o = torch.einsum("bhsw,bhswd->bhsd", attn, vg)
        return (lambda x, *d: x.permute(*d))(o, 0, 2, 1, 3).reshape(B, S, D) @ wo

    def _B_ref(x, w1, b1, w2, b2):
        B, S, D = x.shape
        h = _layernorm(x, axis=-1)
        u = torch.einsum("bsd,sf->bdf", h, w1) + b1
        u = _gelu(u)
        y = torch.einsum("bdf,fs->bds", u, w2) + b2
        return (lambda x, *d: x.permute(*d))(y, 0, 2, 1)

    x = A_x
    xn = _layernorm(x, axis=-1)
    return x + _A_ref(xn, A_wqkv, A_wo) + _B_ref(xn, B_w1, B_b1, B_w2, B_b2)
```

```python
import re

_REG = re.compile(r'^(-|abs\()?([vas])(\d+|\[(\d+):(\d+)\])\)?$')

TRANS = ('v_exp_f32', 'v_log_f32', 'v_rcp_f32', 'v_rsq_f32', 'v_sqrt_f32')


def regs_of(tok):
    tok = tok.strip()
    if tok == 'vcc':
        return {('s', 'vcc')}
    if tok == 'exec':
        return {('s', 'exec')}
    if tok == 'm0':
        return {('s', 'm0')}
    m = _REG.match(tok)
    if not m:
        return set()
    kind = m.group(2)
    if m.group(4) is not None:
        return {(kind, i) for i in range(int(m.group(4)), int(m.group(5)) + 1)}
    return {(kind, int(m.group(3)))}


def split_ops(s):
    out, depth, cur = [], 0, ''
    for ch in s:
        if ch in '[(':
            depth += 1
        if ch in '])':
            depth -= 1
        if ch == ',' and depth == 0:
            out.append(cur.strip())
            cur = ''
        else:
            cur += ch
    if cur.strip():
        out.append(cur.strip())
    return out


class Ins:
    __slots__ = ('text', 'op', 'cls', 'wr', 'rd', 'srcA', 'srcB', 'srcC', 'states', 'dpp', 'wide_store', 'dma')

    def __init__(self, text):
        self.text = text
        t = text.split(';')[0].strip()
        parts = t.split(None, 1)
        self.op = op = parts[0]
        rest = parts[1] if len(parts) > 1 else ''
        ops = split_ops(rest)
        mods = []
        if ops:
            toks = ops[-1].split()
            ops[-1] = toks[0]
            mods = toks[1:]
        self.wr, self.rd = set(), set()
        self.srcA = self.srcB = self.srcC = set()
        self.states = 1
        self.dpp = op.endswith('_dpp')
        self.wide_store = set()
        self.dma = False
        R = [regs_of(o) for o in ops]
        if op.startswith('v_mfma'):
            self.cls = 'sgemm' if op.endswith('_f32') and 'x4_f32' in op else 'xdl'
            self.wr = R[0]
            self.srcA, self.srcB, self.srcC = R[1], R[2], R[3]
            self.rd = R[1] | R[2] | R[3]
        elif op.startswith('v_'):
            self.cls = 'valu'
            if op.startswith('v_permlane') and 'swap' in op:
                self.wr = R[0] | R[1]
                self.rd = R[0] | R[1]
            else:
                self.wr = set(R[0])
                k = 1
                if op.startswith(('v_add_co', 'v_sub_co', 'v_addc_co')):
                    self.wr |= R[1]
                    k = 2
                for r in R[k:]:
                    self.rd |= r
                if op.startswith(('v_fmac', 'v_mac')) or self.dpp:
                    self.rd |= R[0]
        elif op.startswith('ds_'):
            self.cls = 'ds'
            if op.startswith(('ds_read', 'ds_bpermute')):
                self.wr = R[0]
                for r in R[1:]:
                    self.rd |= r
            else:
                for r in R:
                    self.rd |= r
        elif op.startswith(('buffer_', 'global_')):
            self.cls = 'vmem'
            if op in ('buffer_inv', 'buffer_wbl2'):
                pass
            elif 'lds' in mods:
                self.dma = True
                for r in R:
                    self.rd |= r
                self.rd |= {('s', 'm0')}
            elif '_load' in op:
                self.wr = R[0]
                for r in R[1:]:
                    self.rd |= r
                if 'd16' in op:
                    self.rd |= R[0]
            else:
                for r in R:
                    self.rd |= r
                if op.endswith(('x4', 'x3')):
                    self.wide_store = R[0] if op.startswith('buffer') else R[1]
        elif op.startswith('s_'):
            self.cls = 'salu'
            if op == 's_nop':
                self.states = int(ops[0], 0) + 1
            elif op.startswith(('s_cmp', 's_waitcnt', 's_barrier', 's_cbranch', 's_branch', 's_endpgm', 's_sleep', 's_setprio')):
                for r in R:
                    self.rd |= r
            else:
                self.wr = R[0] if R else set()
                for r in R[1:]:
                    self.rd |= r
        else:
            raise ValueError('unknown op ' + text)


def vg(s):
    return {r for r in s if r[0] in 'va'}


def sg(s):
    return {r for r in s if r[0] == 's'}


class Asm:
    def __init__(self):
        self.lines = []
        self.hist = []
        self.vm_n = 0
        self.vm_done = 0
        self.lg_n = 0
        self.lg_done = 0
        self.pvm = {}
        self.plg = {}
        self.nnop = 0

    def raw(self, text):
        self.lines.append(text)

    def comment(self, text):
        self.lines.append('    ; ' + text)

    def label(self, name):
        self.lines.append(name + ':')

    def _push(self, ins):
        self.lines.append('    ' + ins.text)
        self.hist.append(ins)
        if len(self.hist) > 24:
            self.hist.pop(0)

    def wait(self, vm=None, lg=None):
        parts = []
        if vm is not None and vm > self.vm_done:
            n = min(self.vm_n - vm, 63)
            parts.append(f'vmcnt({n})')
            self.vm_done = self.vm_n - n
        if lg is not None and lg > self.lg_done:
            n = min(self.lg_n - lg, 15)
            parts.append(f'lgkmcnt({n})')
            self.lg_done = self.lg_n - n
        if parts:
            self._push(Ins('s_waitcnt ' + ' '.join(parts)))

    def wait_all(self, vm=True, lg=True, force=False):
        parts = []
        if vm and (force or self.vm_done < self.vm_n):
            parts.append('vmcnt(0)')
            self.vm_done = self.vm_n
        if lg and (force or self.lg_done < self.lg_n):
            parts.append('lgkmcnt(0)')
            self.lg_done = self.lg_n
        if parts:
            self._push(Ins('s_waitcnt ' + ' '.join(parts)))

    def _need(self, ins):
        need = 0
        dist = 0
        mf = ins.cls in ('xdl', 'sgemm')
        rdv, wrv = vg(ins.rd), vg(ins.wr)
        for p in reversed(self.hist):
            req = 0
            pw = vg(p.wr)
            if p.cls == 'valu':
                if mf and pw & rdv:
                    req = max(req, 2)
                if ins.cls == 'valu':
                    if p.op.replace('_e32', '').replace('_e64', '') in TRANS and pw & rdv:
                        req = max(req, 1)
                    if ins.op.startswith(('v_readfirstlane', 'v_readlane')) and pw & rdv:
                        req = max(req, 1)
                    if (ins.dpp or ins.op.startswith('v_permlane')) and pw & rdv:
                        req = max(req, 2)
                    if sg(p.wr) & sg(ins.rd):
                        req = max(req, 2)
                if ins.cls == 'vmem' and sg(p.wr) & sg(ins.rd):
                    req = max(req, 5)
                if ins.cls == 'salu' and sg(p.wr) & sg(ins.rd):
                    req = max(req, 1)
            elif p.cls in ('xdl', 'sgemm'):
                lat = 8 if p.cls == 'xdl' else 10
                if mf:
                    if pw & (vg(ins.srcA) | vg(ins.srcB)):
                        req = max(req, lat)
                    c = vg(ins.srcC)
                    if pw & c and not (pw == c and p.cls == ins.cls):
                        req = max(req, lat)
                    if pw & wrv and not (pw == c and p.cls == ins.cls):
                        req = max(req, lat)
                elif ins.cls in ('valu', 'vmem', 'ds'):
                    if pw & (rdv | wrv):
                        req = max(req, lat)
                    if ins.cls == 'valu' and p.cls == 'xdl' and vg(p.srcC) & wrv:
                        req = max(req, 3)
            elif p.cls == 'salu':
                if ins.dma and ('s', 'm0') in p.wr:
                    req = max(req, 1)
            elif p.cls == 'vmem':
                if p.wide_store & wrv:
                    req = max(req, 2)
            need = max(need, req - dist)
            dist += p.states
            if dist >= 12:
                break
        return need

    def __call__(self, text):
        ins = Ins(text)
        touched = vg(ins.rd) | vg(ins.wr)
        v = max([self.pvm.get(r, 0) for r in touched], default=0)
        l = max([self.plg.get(r, 0) for r in touched], default=0)
        self.wait(vm=v or None, lg=l or None)
        n = self._need(ins)
        if n > 0:
            self.nnop += n
            self._push(Ins(f's_nop {n - 1}'))
        self._push(ins)
        if ins.cls == 'vmem':
            self.vm_n += 1
            for r in ins.wr:
                self.pvm[r] = self.vm_n
            return self.vm_n
        if ins.cls == 'ds':
            self.lg_n += 1
            for r in ins.wr:
                self.plg[r] = self.lg_n
            return self.lg_n
        return None

    def many(self, text):
        for line in text.strip().split('\n'):
            line = line.strip()
            if line and not line.startswith(';'):
                self(line)

    def pad(self, n=12):
        self._push(Ins(f's_nop {n - 1}'))

    def text(self):
        return '\n'.join(self.lines) + '\n'


class Regs:
    def __init__(self, kind, start, end):
        self.kind, self.next, self.end = kind, start, end
        self.hi = start

    def alloc(self, n=1, align=None):
        if align is None:
            align = 2 if n > 1 else 1
        self.next = (self.next + align - 1) // align * align
        r = self.next
        self.next += n
        assert self.next <= self.end, f'out of {self.kind} regs'
        self.hi = max(self.hi, self.next)
        return r

    def mark(self):
        return self.next

    def reset(self, m):
        self.next = m


def v(i, n=1):
    return f'v{i}' if n == 1 else f'v[{i}:{i + n - 1}]'


def a(i, n=1):
    return f'a{i}' if n == 1 else f'a[{i}:{i + n - 1}]'


def s(i, n=1):
    return f's{i}' if n == 1 else f's[{i}:{i + n - 1}]'
```

```python
import sys, os, math, struct
sys.path.insert(0, os.path.dirname(os.path.abspath(__file__)))
from emit import Asm, Regs, v, a, s

NAME = 'parallel_sum__sliding_local_dilated__mixer_token_mlp__prompt'

DEF = dict(
    stamps=0,
    g1map=0,
    fmap=0,
    ph=4,
    df=6,
    rot=1,
    codepf=1,
    spin=20000,
)


def f32(x):
    return '0x%08x' % struct.unpack('<I', struct.pack('<f', x))[0]


H_OFF = 0
U_OFF = 2 << 20
O_OFF = 4 << 20
HF_OFF = 6 << 20
UF_OFF = HF_OFF + 0x2000
OF_OFF = HF_OFF + 0x4000
ST_OFF = 7 << 20
WS_SIZE = 8 << 20
OOB = 0x10000000

TILE = 14336
T1B = TILE
T0B = 5 * TILE
SPB = 9 * TILE
MISC = SPB + 28672
LDS_SIZE = 163840
SLOT = 16384
NSLOT = 10

X, WQ, WO, W1, W2, WS, OUT, B1, B2, DBG = 8, 12, 16, 20, 24, 28, 32, 36, 40, 44
sW, sI, sJ, sFT, sD, sS, sD2, sG1, sF, sNon = 48, 49, 50, 51, 52, 53, 54, 55, 56, 57
sT0, sT1, sT2, sT3 = 4, 5, 6, 7
sM = 58
sA, sB, sC, sE = 59, 60, 61, 62
sCnt = 63
sMask = 64
sStamp = 80


def srd(r):
    return s(r, 4)


def lanemask(fn):
    m = 0
    for l in range(64):
        if fn(l):
            m |= 1 << l
    return m


def build(**kw):
    P = dict(DEF)
    P.update(kw)
    e = Asm()
    V = Regs('v', 1, 256)
    nst = [0]

    def stamp(name=''):
        if not P['stamps']:
            return
        k = nst[0]
        nst[0] += 1
        assert k < 20
        e(f's_memrealtime s[{sT2}:{sT3}]')
        e.wait_all(vm=False, lg=True, force=True)
        e(f's_mov_b32 s{sStamp + k}, s{sT2}')

    def setmask(r, m):
        e(f's_mov_b32 s{r}, 0x{m & 0xffffffff:08x}')
        e(f's_mov_b32 s{r + 1}, 0x{m >> 32:08x}')

    def dma(sr, voff, soff, m0base, m0add, off=0, mod='', setm0=True):
        if setm0:
            e(f's_add_u32 m0, s{m0base}, {m0add}')
        o = f' offset:{off}' if off else ''
        return e(f'buffer_load_dwordx4 v{voff}, {srd(sr)}, s{soff} offen{o}{mod} lds')

    def mfma(d, A, B, c=None):
        e(f'v_mfma_f32_16x16x32_bf16 {v(d, 4)}, {A}, {B}, {v(d, 4) if c is None else c}')

    def mfma32(d, A, B):
        e(f'v_mfma_f32_16x16x4_f32 {v(d, 4)}, v{A}, v{B}, 0')

    npoll = [0]

    def poll(voff, soff, vtmp, sleep):
        k = npoll[0]
        npoll[0] += 1
        e(f's_mov_b32 s{sCnt}, 0')
        e.label(f'L_poll{k}')
        e(f'buffer_load_dword v{vtmp}, v{voff}, {srd(WS)}, s{soff} offen sc1')
        e(f's_add_u32 s{sCnt}, s{sCnt}, 1')
        e.wait_all(vm=True, lg=False, force=True)
        e(f'v_cmp_ne_u32 vcc, s{sNon}, v{vtmp}')
        e(f's_cbranch_vccz L_pollok{k}')
        e(f's_sleep {sleep}')
        e(f's_cmp_lt_u32 s{sCnt}, {P["spin"]}')
        e(f's_cbranch_scc1 L_poll{k}')
        e.label(f'L_pollok{k}')

    e('s_cmp_ge_u32 s2, 256')
    e('s_cbranch_scc1 L_end')
    for r, off in ((X, 0), (WQ, 8), (WS, 80), (DBG, 72), (W1, 32), (WO, 16), (W2, 48), (OUT, 64), (B1, 40), (B2, 56)):
        e(f's_load_dwordx2 {s(r, 2)}, s[0:1], {off}')
    sClk = sMask + 14
    e(f's_memrealtime s[{sClk}:{sClk + 1}]')
    vLane = V.alloc()
    vL15 = V.alloc()
    vG = V.alloc()
    vL16 = V.alloc()
    t0, t1, t2, t3 = [V.alloc() for _ in range(4)]
    tp = V.alloc(2)
    if P['codepf']:
        e(f's_getpc_b64 s[{sT0}:{sT0 + 1}]')
        e.label('L_pc')
        e(f's_and_b32 s3, s2, 0xf8')
        e(f'v_lshrrev_b32 v{t0}, 5, v0')
        e(f'v_add_lshl_u32 v{t0}, s3, v{t0}, 7')
        e(f'v_min_u32 v{t0}, L_end-L_pc-4, v{t0}')
        vPF = V.alloc()
        e(f'global_load_dword v{vPF}, v{t0}, s[{sT0}:{sT0 + 1}]')
    e(f'v_and_b32 v{vLane}, 63, v0')
    e(f'v_lshrrev_b32 v{t0}, 6, v0')
    e(f'v_and_b32 v{vL15}, 15, v0')
    e(f'v_readfirstlane_b32 s{sW}, v{t0}')
    e(f'v_lshrrev_b32 v{vG}, 4, v{vLane}')
    e(f'v_lshlrev_b32 v{vL16}, 4, v{vLane}')
    for r, n in ((X, 2048 * 896), (WQ, 448 * 2688), (WO, 448 * 896), (W1, 2048 * 3584), (W2, 1792 * 4096),
                 (WS, WS_SIZE), (OUT, 2048 * 896), (B1, 3584), (B2, 4096), (DBG, 256)):
        e(f's_mov_b32 s{r + 2}, {n}')
        e(f's_mov_b32 s{r + 3}, 0x20000')
    sXcd, sIdx = sC, sE
    e(f's_and_b32 s{sXcd}, s2, 7')
    e(f's_lshr_b32 s{sIdx}, s2, 3')
    e(f's_lshr_b32 s{sT2}, s{sXcd}, 1')
    e(f's_and_b32 s{sT3}, s{sXcd}, 1')
    e(f's_lshl_b32 s{sI}, s{sT2}, 2')
    e(f's_lshr_b32 s3, s{sIdx}, 3')
    e(f's_add_u32 s{sI}, s{sI}, s3')
    e(f's_lshl_b32 s{sJ}, s{sT3}, 3')
    e(f's_and_b32 s3, s{sIdx}, 7')
    e(f's_add_u32 s{sJ}, s{sJ}, s3')
    vXA, vXB, vXH = V.alloc(), V.alloc(), V.alloc()
    vR8 = V.alloc()
    vC8 = V.alloc()
    e(f'v_lshrrev_b32 v{vR8}, 3, v{vLane}')
    e(f'v_and_b32 v{vC8}, 7, v{vLane}')
    e(f'v_xor_b32 v{t0}, v{vC8}, v{vG}')
    e(f'v_lshlrev_b32 v{t0}, 4, v{t0}')
    e(f'v_mul_u32_u24 v{t1}, 896, v{vR8}')
    e(f'v_add_u32 v{vXA}, v{t0}, v{t1}')
    e(f'v_xor_b32 v{t0}, 64, v{t0}')
    e(f'v_add_u32 v{t0}, 7168, v{t0}')
    e(f'v_add_u32 v{vXB}, v{t0}, v{t1}')
    sX0, sL0 = sMask, sMask + 1
    e(f's_lshl_b32 s3, s{sI}, 2')
    e(f's_add_u32 s3, s3, s{sW}')
    e(f's_mul_i32 s{sX0}, s3, {32 * 896}')
    e(f's_mul_i32 s{sL0}, s{sW}, {TILE}')
    e.wait_all(vm=False, lg=True, force=True)
    if P['stamps']:
        e(f's_mov_b32 s{sStamp}, s{sClk}')
        nst[0] = 1
    e(f's_lshl_b32 s3, s{sW}, 8')
    e(f's_add_u32 s3, s3, s2')
    e(f's_cmp_lt_u32 s3, 8')
    e(f's_cselect_b32 s3, 0, {OOB}')
    e(f's_or_b32 s{sClk}, s{sClk}, 1')
    e(f'v_mov_b32 v{tp}, s{sClk}')
    e(f'v_mov_b32 v{tp + 1}, 0')
    e(f'v_lshlrev_b32 v{t2}, 8, v{vLane}')
    e(f'buffer_atomic_cmpswap {v(tp, 2)}, v{t2}, {srd(DBG)}, s3 offen sc1')
    tokX = {}
    for t, base in ((0, T0B), (1, T1B)):
        if t == 1:
            e(f's_add_u32 s{sX0}, s{sX0}, {16 * 896}')
        for st in range(7):
            for rg in range(2):
                tokX[t] = dma(X, vXB if rg else vXA, sX0, sL0, base + st * 1920 + rg * 1024, off=st * 128)
    e(f's_lshl_b32 s3, s{sI}, 7')
    e(f's_max_u32 s3, s3, 16')
    e(f's_sub_u32 s3, s3, 16')
    e(f's_mul_i32 s{sX0}, s3, 896')
    e(f's_lshr_b32 s{sT0}, s{sW}, 1')
    e(f's_and_b32 s{sT1}, s{sW}, 1')
    e(f's_lshl_b32 s3, s{sT0}, 9')
    e(f's_add_u32 s{sX0}, s{sX0}, s3')
    e(f's_cmp_eq_u32 s{sT1}, 1')
    e(f's_cselect_b64 vcc, -1, 0')
    e(f'v_cndmask_b32 v{vXH}, v{vXA}, v{vXB}, vcc')
    sH = sMask + 2
    e(f's_lshl_b32 s{sH}, s{sT0}, 13')
    e(f's_lshl_b32 s3, s{sT1}, 10')
    e(f's_add_u32 s{sH}, s{sH}, s3')
    for n in range(4):
        if n == 3:
            e(f's_cmp_eq_u32 s{sT0}, 1')
            e(f's_cselect_b32 s{sH}, {MISC - 3 * 1920}, s{sH}')
        tokH = dma(X, vXH, sX0, sH, n * 1920, off=n * 128)
    vW = V.alloc()
    vR4 = V.alloc()
    vC4 = V.alloc()
    e(f'v_bfe_u32 v{vR4}, v{vLane}, 2, 2')
    e(f'v_and_b32 v{vC4}, 3, v{vLane}')
    e(f'v_and_b32 v{t0}, 1, v{vG}')
    e(f'v_lshlrev_b32 v{t0}, 1, v{t0}')
    e(f'v_xor_b32 v{t0}, v{t0}, v{vC4}')
    e(f'v_lshlrev_b32 v{t0}, 4, v{t0}')
    e(f'v_min_u32 v{t0}, 40, v{t0}')
    e(f'v_lshl_add_u32 v{t1}, v{vG}, 3, v{vR4}')
    e(f'v_mul_u32_u24 v{t1}, 2688, v{t1}')
    e(f'v_add_u32 v{vW}, v{t0}, v{t1}')
    sWb, sSp = sMask + 3, sMask + 4
    e(f's_lshl_b32 s3, s{sT0}, 3')
    e(f's_add_u32 s3, s3, s{sT1}')
    e(f's_mul_i32 s{sWb}, s3, {4 * 2688}')
    e(f's_mul_i32 s3, s{sJ}, 56')
    e(f's_add_u32 s{sWb}, s{sWb}, s3')
    e(f's_mul_i32 s{sSp}, s{sW}, 7168')
    tokW = {}

    def wdma(n):
        st, part = divmod(n, 3)
        e(f's_add_u32 s3, s{sWb}, {st * 64 * 2688 + part * 896}')
        if n < 7:
            tokW[n] = dma(WQ, vW, 3, sSp, SPB + n * 1024)
        else:
            tokW[n] = dma(WQ, vW, 3, sL0, T0B + (n - 7) * 1024)

    def wchunk(n, w):
        return SPB + w * 7168 + n * 1024 if n < 7 else T0B + w * TILE + (n - 7) * 1024

    for n in range(7):
        wdma(n)

    e(f's_mul_i32 s3, s{sT3}, 25')
    e(f's_add_u32 s3, s3, s{sIdx}')
    e(f's_mul_i32 s{sFT}, s3, 37')
    e(f's_lshr_b32 s{sFT}, s{sFT}, 8')
    e(f's_mul_i32 s{sD}, s{sFT}, 7')
    e(f's_sub_u32 s{sD}, s3, s{sD}')
    if P['g1map'] == 1:
        e(f's_mov_b32 s3, s{sFT}')
        e(f's_mov_b32 s{sFT}, s{sD}')
        e(f's_mov_b32 s{sD}, s3')
    e(f's_mul_i32 s3, s{sT2}, 7')
    e(f's_add_u32 s{sFT}, s{sFT}, s3')
    e(f's_add_u32 s3, s{sIdx}, s{sT3}')
    e(f's_cmp_lt_u32 s3, 25')
    e(f's_cselect_b32 s{sG1}, 1, 0')
    e(f's_cselect_b32 s{W1 + 2}, {2048 * 3584}, 0')
    e(f's_cmp_lt_u32 s{sIdx}, 28')
    e(f's_cselect_b32 s{sF}, 1, 0')
    if P['fmap'] == 0:
        e(f's_mul_i32 s{sS}, s{sIdx}, 37')
        e(f's_lshr_b32 s{sS}, s{sS}, 8')
        e(f's_mul_i32 s3, s{sS}, 7')
        e(f's_sub_u32 s{sD2}, s{sIdx}, s3')
        e(f's_lshl_b32 s3, s{sXcd}, 2')
        e(f's_add_u32 s{sS}, s{sS}, s3')
    else:
        e(f's_mul_i32 s3, s{sT3}, 28')
        e(f's_add_u32 s3, s3, s{sIdx}')
        e(f's_lshr_b32 s{sD2}, s3, 3')
        e(f's_and_b32 s{sS}, s3, 7')
        e(f's_lshl_b32 s3, s{sT2}, 3')
        e(f's_add_u32 s{sS}, s{sS}, s3')
    e(f's_lshl_b32 s{sM}, s{sW}, 12')

    vPat = [[V.alloc() for _ in range(4)] for _ in range(3)]
    vPatW = [V.alloc() for _ in range(3)]
    vLin = [vL16, V.alloc(), V.alloc()]
    vSw = V.alloc()
    vD1 = [V.alloc() for _ in range(4)]
    e(f'v_lshrrev_b32 v{t0}, 2, v{vLane}')
    e(f'v_lshlrev_b32 v{t0}, 7, v{t0}')
    e(f'v_lshl_add_u32 v{t0}, v{vC4}, 3, v{t0}')
    e(f'v_and_b32 v{t1}, 3, v{vR8}')
    e(f'v_lshl_add_u32 v{vPat[0][0]}, v{t1}, 5, v{t0}')
    for t in range(1, 4):
        e(f'v_xor_b32 v{vPat[0][t]}, {32 * t}, v{vPat[0][0]}')
    e(f's_lshl_b32 s3, s{sW}, 5')
    e(f'v_xor_b32 v{vPatW[0]}, s3, v{vPat[0][0]}')
    for b in (1, 2):
        for t in range(4):
            e(f'v_add_u32 v{vPat[b][t]}, {65536 * b}, v{vPat[0][t]}')
        e(f'v_add_u32 v{vPatW[b]}, {65536 * b}, v{vPatW[0]}')
        e(f'v_add_u32 v{vLin[b]}, {65536 * b}, v{vL16}')
    e(f'v_lshlrev_b32 v{t0}, 1, v{vG}')
    e(f'v_xor_b32 v{t0}, v{t0}, v{vC8}')
    e(f'v_lshlrev_b32 v{vSw}, 4, v{t0}')
    e(f'v_mul_u32_u24 v{t0}, 3584, v{vR8}')
    e(f'v_add_u32 v{vD1[0]}, v{t0}, v{vSw}')
    for q in range(1, 4):
        e(f'v_add_u32 v{vD1[q]}, {q * (8 * 3584 - 1024)}, v{vD1[0]}')
    gemm_mark = V.mark()

    vOnes = V.alloc(4)
    vOneF, vSelG0 = V.alloc(), V.alloc()
    vSel = [V.alloc(4), V.alloc(4)]
    vXr = [[V.alloc(), V.alloc()] for _ in range(3)]
    vXd = [V.alloc(), V.alloc()]
    vWr = [[V.alloc(), V.alloc()] for _ in range(2)]
    vOnesAddr = V.alloc()
    for r in range(4):
        e(f'v_mov_b32 v{vOnes + r}, 0x3f803f80')
    e(f'v_mov_b32 v{vOneF}, 1.0')
    e(f'v_cmp_gt_u32 vcc, 16, v{vLane}')
    e(f'v_cndmask_b32 v{vSelG0}, 0, v{vOneF}, vcc')
    e(f'v_lshrrev_b32 v{t0}, 1, v{vL15}')
    e(f'v_xor_b32 v{t1}, v{t0}, v{vG}')
    e(f'v_lshlrev_b32 v{t1}, 4, v{t1}')
    e(f'v_lshl_add_u32 v{t1}, v{vL15}, 7, v{t1}')
    e(f'v_add_u32 v{t2}, s{sL0}, v{t1}')
    e(f'v_cmp_eq_u32 vcc, 0, v{vL15}')
    e(f'v_add_u32 v{vXr[1][0]}, {T0B}, v{t2}')
    e(f'v_add_u32 v{vXr[2][0]}, {T1B}, v{t2}')
    e(f'v_cndmask_b32 v{vXr[0][0]}, v{t2}, v{t1}, vcc')
    for t in range(3):
        e(f'v_xor_b32 v{vXr[t][1]}, 64, v{vXr[t][0]}')
    e(f's_min_u32 s3, s{sJ}, 13')
    e(f's_and_b32 s{sT2}, s3, 1')
    e(f's_lshl_b32 s{sT2}, s{sT2}, 6')
    e(f's_lshr_b32 s3, s3, 1')
    e(f's_lshl_b32 s3, s3, 11')
    for t in range(2):
        e(f'v_xor_b32 v{vXd[t]}, s{sT2}, v{vXr[1 + t][0]}')
        e(f'v_add_u32 v{vXd[t]}, s3, v{vXd[t]}')
    e(f'v_lshlrev_b32 v{t1}, 2, v{vG}')
    e(f'v_sub_u32 v{t0}, v{t0}, v{t1}')
    e(f'v_and_b32 v{t1}, 1, v{vLane}')
    e(f'v_lshlrev_b32 v{t1}, 4, v{t1}')
    e(f'v_mov_b32 v{t2}, 0x3f80')
    e(f'v_lshlrev_b32 v{t1}, v{t1}, v{t2}')
    for z in range(2):
        for r in range(4):
            e(f'v_cmp_eq_i32 vcc, {r - 8 * z}, v{t0}')
            e(f'v_cndmask_b32 v{vSel[z] + r}, 0, v{t1}, vcc')
    e(f'v_lshrrev_b32 v{t0}, 2, v{vLane}')
    e(f'v_lshlrev_b32 v{t0}, 6, v{t0}')
    e(f'v_and_b32 v{t1}, 1, v{vG}')
    e(f'v_lshl_add_u32 v{t0}, v{t1}, 5, v{t0}')
    e(f'v_add_u32 v{t0}, 65536, v{t0}')
    e(f'v_lshl_add_u32 v{vWr[0][0]}, v{vC4}, 3, v{t0}')
    e(f'v_lshrrev_b32 v{t1}, 1, v{vC4}')
    e(f'v_xor_b32 v{t1}, v{t1}, v{vC4}')
    e(f'v_xor_b32 v{t0}, 32, v{t0}')
    e(f'v_lshl_add_u32 v{vWr[0][1]}, v{t1}, 3, v{t0}')
    for t in range(2):
        e(f'v_add_u32 v{vWr[1][t]}, 65536, v{vWr[0][t]}')
    e(f's_sub_u32 s{sT2}, 3, s{sT0}')
    e(f's_lshl_b32 s3, s{sT0}, 13')
    e(f's_cmp_eq_u32 s{sT1}, 1')
    e(f's_cselect_b32 s{sT2}, 0, s{sT2}')
    e(f's_cselect_b32 s3, {MISC + 2048}, s3')
    e(f'v_min_u32 v{t0}, s{sT2}, v{vR8}')
    e(f'v_lshlrev_b32 v{t0}, 11, v{t0}')
    e(f'v_lshl_add_u32 v{t0}, v{vC8}, 4, v{t0}')
    e(f'v_add_u32 v{vOnesAddr}, s3, v{t0}')
    sDg = sMask + 6
    for r in range(4):
        setmask(sDg + 2 * r, lanemask(lambda l: (l & 15) == 4 * (l >> 4) + r))

    def xf(t, ks):
        return a((t * 14 + ks) * 4, 4)

    vGr = [V.alloc(4) for _ in range(3)]
    vSm = [V.alloc(4) for _ in range(3)]
    aDyn = [200, 204]

    def read_tile(t):
        for ks in range(14):
            e(f'ds_read_b128 {xf(t, ks)}, v{vXr[t][ks & 1]} offset:{(ks >> 1) * 2048}')

    def stat_mfma(t):
        for ks in range(14):
            mfma(vGr[t], xf(t, ks), xf(t, ks), c='0' if ks == 0 else None)
            mfma(vSm[t], v(vOnes, 4), xf(t, ks), c='0' if ks == 0 else None)

    e.wait(vm=tokX[0])
    stamp('T0 landed')
    e(f'ds_read_b128 {a(aDyn[0], 4)}, v{vXd[0]}')
    read_tile(1)
    stat_mfma(1)
    for n in range(7, 12):
        wdma(n)
    e.wait(vm=tokX[1])
    e(f'ds_read_b128 {a(aDyn[1], 4)}, v{vXd[1]}')
    read_tile(2)
    stat_mfma(2)
    e.wait(vm=tokH)
    e(f'ds_write_b128 v{vOnesAddr}, {v(vOnes, 4)}')
    e.wait_all(vm=False, lg=True)
    e('s_barrier')
    stamp('x landed')
    read_tile(0)
    vXT = [[V.alloc(4), V.alloc(4)] for _ in range(2)]
    for t in range(2):
        for z in range(2):
            mfma(vXT[t][z], a(aDyn[t], 4), v(vSel[z], 4), c='0')

    vAT = [V.alloc() for _ in range(3)]
    vBT = [V.alloc() for _ in range(3)]
    vAV = [V.alloc(4) for _ in range(3)]
    vBV = [V.alloc(4) for _ in range(3)]
    vA2 = [V.alloc(4) for _ in range(2)]
    vB2 = [V.alloc(4) for _ in range(2)]
    vSS = vGr
    vTm = [[V.alloc() for _ in range(4)] for _ in range(3)]
    sEps, sInv = sMask + 14, sMask + 15
    e(f's_mov_b32 s{sEps}, {f32(1e-5)}')
    e(f's_mov_b32 s{sInv}, {f32(1.0 / 448)}')

    def stats(ts, with_h):
        for t in ts:
            d = vTm[t][0]
            e(f'v_cndmask_b32 v{d}, 0, v{vGr[t]}, {s(sDg, 2)}')
            for r in range(1, 4):
                e(f'v_cndmask_b32 v{d}, v{d}, v{vGr[t] + r}, {s(sDg + 2 * r, 2)}')
        for t in ts:
            mfma32(vSS[t], vOneF, vTm[t][0])
        for t in ts:
            e(f'v_mul_f32 v{vTm[t][1]}, s{sInv}, v{vSm[t]}')
        for t in ts:
            e(f'v_mul_f32 v{vTm[t][2]}, v{vTm[t][1]}, v{vTm[t][1]}')
        for t in ts:
            e(f'v_fma_f32 v{vTm[t][2]}, v{vSS[t]}, s{sInv}, -v{vTm[t][2]}')
        for t in ts:
            e(f'v_max_f32 v{vTm[t][2]}, 0, v{vTm[t][2]}')
        for t in ts:
            e(f'v_add_f32 v{vTm[t][3]}, s{sEps}, v{vTm[t][2]}')
        for t in ts:
            e(f'v_rsq_f32 v{vAT[t]}, v{vTm[t][3]}')
        for t in ts:
            e(f'v_mul_f32_e64 v{vBT[t]}, -v{vTm[t][1]}, v{vAT[t]}')
        if with_h:
            for t in ts:
                e(f'v_mul_f32 v{vTm[t][3]}, v{vAT[t]}, v{vAT[t]}')
            for t in ts:
                e(f'v_fma_f32 v{vTm[t][3]}, v{vTm[t][3]}, v{vTm[t][2]}, s{sEps}')
            for t in ts:
                e(f'v_rsq_f32 v{vTm[t][3]}, v{vTm[t][3]}')
            for t in ts:
                e(f'v_mul_f32 v{vTm[t][1]}, v{vAT[t]}, v{vTm[t][3]}')
                e(f'v_mul_f32 v{vTm[t][2]}, v{vBT[t]}, v{vTm[t][3]}')
            for t in ts:
                mfma32(vA2[t - 1], vTm[t][1], vSelG0)
                mfma32(vB2[t - 1], vTm[t][2], vSelG0)

    stats((1, 2), True)
    vHf = [V.alloc(4), V.alloc(4)]
    for z in range(2):
        for t in range(2):
            for r in range(4):
                e(f'v_fma_f32 v{vXT[t][z] + r}, v{vXT[t][z] + r}, v{vA2[t] + r}, v{vB2[t] + r}')
            for r in range(2):
                e(f'v_cvt_pk_bf16_f32 v{vHf[z] + 2 * t + r}, v{vXT[t][z] + 2 * r}, v{vXT[t][z] + 2 * r + 1}')
    sK32 = sA
    e(f's_lshl_b32 s{sK32}, s{sI}, 2')
    e(f's_add_u32 s{sK32}, s{sK32}, s{sW}')
    e(f's_lshl_b32 s3, s{sJ}, 7')
    e(f's_add_u32 s3, s3, s{sK32}')
    e(f's_lshl_b32 s3, s3, 10')
    e(f's_cmp_lt_u32 s{sJ}, 14')
    e(f's_cselect_b32 s{sB}, 0, {OOB}')
    e(f's_add_u32 s3, s3, s{sB}')
    e(f'buffer_store_dwordx4 {v(vHf[0], 4)}, v{vL16}, {srd(WS)}, s3 offen sc1')
    e(f's_add_u32 s3, s3, 65536')
    tokHst = e(f'buffer_store_dwordx4 {v(vHf[1], 4)}, v{vL16}, {srd(WS)}, s3 offen sc1')
    vNon = V.alloc()
    vZero = V.alloc()
    e(f'v_mov_b32 v{vZero}, 0')
    e(f'buffer_load_dword v{vNon}, v{vZero}, {srd(DBG)}, 0 offen sc1')
    for n in range(12, 21):
        wdma(n)
    stamp('h stored')
    stat_mfma(0)
    stats((0,), False)
    for t in range(3):
        mfma32(vAV[t], vAT[t], vSelG0)
        mfma32(vBV[t], vBT[t], vSelG0)

    vQ = [[V.alloc(4), V.alloc(4)] for _ in range(3)]
    vK = [[V.alloc(4), V.alloc(4)] for _ in range(3)]
    vV = [[V.alloc(4), V.alloc(4)] for _ in range(3)]
    NWF = 8
    aWf = [168 + 4 * k for k in range(NWF)]
    sW1o, sHo = sC, sE
    rot16 = sT3

    def w1_setup():
        if P['rot']:
            e(f's_mul_i32 s{rot16}, s{sD}, 37')
            e(f's_lshr_b32 s{rot16}, s{rot16}, 4')
        else:
            e(f's_mov_b32 s{rot16}, 0')

    sW1b = sMask + 5

    def slot_of(q):
        return (q % NSLOT) * SLOT

    tokS = {}

    def w1_dma(q):
        e(f's_add_u32 s3, s{sRot}, {q}')
        e(f's_and_b32 s3, s3, 15')
        e(f's_mul_i32 s3, s3, {128 * 3584}')
        e(f's_add_u32 s3, s3, s{sW1b}')
        for k in range(4):
            tokS[q] = dma(W1, vD1[k], 3, sM, slot_of(q), off=k * 1024, setm0=(k == 0))

    sRot = sC
    if P['rot']:
        e(f's_mul_i32 s{sRot}, s{sD}, 37')
        e(f's_lshr_b32 s{sRot}, s{sRot}, 4')
    else:
        e(f's_mov_b32 s{sRot}, 0')
    e(f's_mul_i32 s{sW1b}, s{sW}, {32 * 3584}')
    e(f's_lshl_b32 s3, s{sFT}, 7')
    e(f's_add_u32 s{sW1b}, s{sW1b}, s3')

    frs = [(ks, part, t) for ks in range(14) for part in range(3) for t in range(2)]

    def wread(i):
        ks, part, t = frs[i]
        if part == 0 and t == 0 and ks % 2 == 0:
            st = ks // 2
            e.wait(vm=tokW[3 * st + 2])
            if st == 0:
                e.wait_all(vm=False, lg=True)
            e('s_barrier')
            if st == 0:
                stamp('W0')
                for q in range(4):
                    w1_dma(q)
            if st == 4:
                e(f'v_readfirstlane_b32 s{sNon}, v{vNon}')
                e(f's_cmp_lg_u32 s{sNon}, 0')
                e(f's_cbranch_scc1 L_nonce_ok')
                e(f's_mov_b32 s{sCnt}, 0')
                e.label('L_nonce')
                e.raw(f'    buffer_load_dword v{vNon}, v{vZero}, {srd(DBG)}, 0 offen sc1')
                e.raw(f'    s_add_u32 s{sCnt}, s{sCnt}, 1')
                e.raw(f'    s_waitcnt vmcnt(0)')
                e.raw(f'    v_readfirstlane_b32 s{sNon}, v{vNon}')
                e.raw(f'    s_cmp_ge_u32 s{sCnt}, {P["spin"]}')
                e.raw(f'    s_cbranch_scc1 L_nonce_ok')
                e.raw(f'    s_cmp_eq_u32 s{sNon}, 0')
                e.raw(f'    s_cbranch_scc1 L_nonce')
                e.label('L_nonce_ok')
                e(f's_lshl_b32 s3, s{sJ}, 6')
                e(f's_add_u32 s3, s3, s{sK32}')
                e(f's_lshl_b32 s3, s3, 2')
                e(f's_add_u32 s3, s3, s{sB}')
                e(f's_add_u32 s3, s3, {HF_OFF}')
                e(f'v_lshlrev_b32 v{vFl}, 24, v{vLane}')
                e(f'buffer_store_dword v{vNon}, v{vFl}, {srd(WS)}, s3 offen sc1')
                stamp('hflag')
        n = 3 * (ks // 2) + part
        for h in range(2):
            ad = wchunk(n, 2 * (ks & 1) + h)
            b = 1 if ad >= 131072 else 0
            e(f'ds_read_b64_tr_b16 {a(aWf[i % NWF] + 2 * h, 2)}, v{vWr[b][t]} offset:{ad - 65536 * (b + 1)}')

    vFl = t3
    DFW = 4
    for i in range(DFW):
        wread(i)
    for i, (ks, part, t) in enumerate(frs):
        wf = a(aWf[i % NWF], 4)
        c = '0' if ks == 0 else None
        if part == 0:
            mfma(vQ[1][t], wf, xf(1, ks), c)
            if i + DFW < len(frs):
                wread(i + DFW)
            mfma(vQ[2][t], wf, xf(2, ks), c)
            mfma(vQ[0][t], wf, v(vOnes, 4), c)
        elif part == 1:
            mfma(vK[0][t], wf, xf(0, ks), c)
            if i + DFW < len(frs):
                wread(i + DFW)
            mfma(vK[1][t], wf, xf(1, ks), c)
            mfma(vK[2][t], wf, xf(2, ks), c)
        else:
            mfma(vV[0][t], xf(0, ks), wf, c)
            if i + DFW < len(frs):
                wread(i + DFW)
            mfma(vV[1][t], xf(1, ks), wf, c)
            mfma(vV[2][t], xf(2, ks), wf, c)
    e.wait_all(vm=False, lg=True)
    e('s_barrier')
    stamp('qkv done')
    for q in range(4, NSLOT):
        w1_dma(q)

    m_att = V.mark()
    vCk = [vHf[0], vHf[1]]
    vCv = [vGr[0], vGr[1]]
    sPar, sCur0, sCur1, sG3, sInvd = sMask + 6, sMask + 8, sMask + 10, sMask + 12, sMask
    par = lambda l: l & 1
    cur = lambda l, z: 4 * (l >> 4) + 2 * z + (l & 1) <= (l & 15)
    setmask(sPar, lanemask(par))
    setmask(sCur0, lanemask(lambda l: cur(l, 0)))
    setmask(sCur1, lanemask(lambda l: cur(l, 1)))
    setmask(sG3, lanemask(lambda l: (l >> 4) == 3))
    e(f's_cmp_eq_u32 s{sK32}, 0')
    e(f's_cselect_b64 {s(sInvd, 2)}, 0, -1')
    for n in range(2):
        mfma32(vCv[n], vSelG0, vV[0][n])
    for n in range(2):
        for r in range(4):
            e(f'v_mov_b32_dpp v{vCk[n] + r}, v{vK[0][n] + r} row_newbcast:0 row_mask:0xf bank_mask:0xf')
    vQf = [None, vSel[0], vSel[1]]
    vKf = [vA2[0], vA2[1], vGr[2]]
    vVf = [vSm[0], vSm[0] + 6]

    def norm_T(acc, cs, t, dst):
        for n in range(2):
            for r in range(4):
                e(f'v_mul_f32 v{acc[n] + r}, v{vAT[t]}, v{acc[n] + r}')
                e(f'v_fmac_f32 v{acc[n] + r}, v{vBT[t]}, v{cs[n] + r}')
            for r in range(2):
                e(f'v_cvt_pk_bf16_f32 v{dst + 2 * n + r}, v{acc[n] + 2 * r}, v{acc[n] + 2 * r + 1}')

    for t in (1, 2):
        norm_T(vQ[t], vQ[0], t, vQf[t])
        for r in (2, 3):
            e(f'v_cndmask_b32 v{vQf[t] + r}, v{vQf[t] + r}, 0, {s(sG3, 2)}')
    for t in range(3):
        norm_T(vK[t], vCk, t, vKf[t])
    vS = [[vXT[0][0], vXT[0][1]], [vXT[1][0], vXT[1][1]]]
    for t in (1, 2):
        mfma(vS[t - 1][0], v(vKf[t - 1], 4), v(vQf[t], 4), '0')
        mfma(vS[t - 1][1], v(vKf[t], 4), v(vQf[t], 4), '0')
    for n in range(2):
        for t in range(3):
            for r in range(4):
                e(f'v_mul_f32 v{vV[t][n] + r}, v{vAV[t] + r}, v{vV[t][n] + r}')
                e(f'v_fmac_f32 v{vV[t][n] + r}, v{vBV[t] + r}, v{vCv[n]}')
            for r in range(2):
                e(f'v_cvt_pk_bf16_f32 v{vVf[n] + 2 * t + r}, v{vV[t][n] + 2 * r}, v{vV[t][n] + 2 * r + 1}')
    vMk = vOnes
    vNeg = vOnesAddr
    e(f'v_mov_b32 v{t0}, 0xffff')
    e(f'v_mov_b32 v{t1}, 0xffff0000')
    e(f'v_cndmask_b32 v{t0}, v{t0}, v{t1}, {s(sPar, 2)}')
    for z, sc in ((0, sCur0), (1, sCur1)):
        e(f'v_cndmask_b32 v{vMk + z}, v{t0}, 0, {s(sc, 2)}')
        e(f'v_cndmask_b32 v{vMk + 2 + z}, 0, v{t0}, {s(sc, 2)}')
    e(f'v_mov_b32 v{vNeg}, {f32(-1e30)}')
    sC1 = sEps
    e(f's_mov_b32 s{sC1}, {f32(28 ** -0.5 * math.log2(math.e))}')
    L = [[vTm[0][0], vTm[0][1]], [vTm[1][0], vTm[1][1]]]
    Mx = [vTm[0][2], vTm[1][2]]
    Tm = [vTm[0][3], vTm[1][3]]
    T = range(2)
    for z, sc in ((0, sCur0), (1, sCur1)):
        for t in T:
            e(f'v_cndmask_b32 v{L[t][z]}, v{vS[t][0] + 2 * z}, v{vS[t][0] + 2 * z + 1}, {s(sPar, 2)}')
            if t == 0:
                e(f'v_cndmask_b32 v{L[t][z]}, v{vNeg}, v{L[t][z]}, {s(sInvd, 2)}')
            e(f'v_cndmask_b32 v{Tm[t]}, v{vS[t][1] + 2 * z}, v{vS[t][1] + 2 * z + 1}, {s(sPar, 2)}')
            e(f'v_cndmask_b32 v{L[t][z]}, v{L[t][z]}, v{Tm[t]}, {s(sc, 2)}')
    for t in T:
        e(f'v_max_f32 v{Mx[t]}, v{L[t][0]}, v{L[t][1]}')
    for sw in ('v_permlane16_swap_b32', 'v_permlane32_swap_b32'):
        for t in T:
            e(f'v_mov_b32 v{Tm[t]}, v{Mx[t]}')
        for t in T:
            e(f'{sw} v{Mx[t]}, v{Tm[t]}')
        for t in T:
            e(f'v_max_f32 v{Mx[t]}, v{Mx[t]}, v{Tm[t]}')
    for t in T:
        for z in range(2):
            e(f'v_sub_f32 v{L[t][z]}, v{L[t][z]}, v{Mx[t]}')
    for t in T:
        for z in range(2):
            e(f'v_mul_f32 v{L[t][z]}, s{sC1}, v{L[t][z]}')
    for t in T:
        for z in range(2):
            e(f'v_exp_f32 v{L[t][z]}, v{L[t][z]}')
    for t in T:
        e(f'v_add_f32 v{Mx[t]}, v{L[t][0]}, v{L[t][1]}')
    for sw in ('v_permlane16_swap_b32', 'v_permlane32_swap_b32'):
        for t in T:
            e(f'v_mov_b32 v{Tm[t]}, v{Mx[t]}')
        for t in T:
            e(f'{sw} v{Mx[t]}, v{Tm[t]}')
        for t in T:
            e(f'v_add_f32 v{Mx[t]}, v{Mx[t]}, v{Tm[t]}')
    for t in T:
        e(f'v_rcp_f32 v{Mx[t]}, v{Mx[t]}')
    for t in T:
        for z in range(2):
            e(f'v_mul_f32 v{L[t][z]}, v{L[t][z]}, v{Mx[t]}')
    for t in T:
        for z in range(2):
            e(f'v_cvt_pk_bf16_f32 v{L[t][z]}, v{L[t][z]}, v{L[t][z]}')
    vPf = [vB2[0], vB2[1]]
    for t in T:
        for k in range(4):
            e(f'v_and_b32 v{vPf[t] + k}, v{L[t][k & 1]}, v{vMk + k}')
    vO = [[vQ[1][0], vQ[1][1]], [vQ[2][0], vQ[2][1]]]
    for t in T:
        for n in range(2):
            mfma(vO[t][n], v(vVf[n] + 2 * t, 4), v(vPf[t], 4), '0')
    vOf = [vHf[0], vHf[1]]
    e(f's_lshl_b32 s3, s{sK32}, 5')
    e(f's_add_u32 s3, s3, s{sJ}')
    e(f's_lshl_b32 s3, s3, 10')
    e(f's_add_u32 s3, s3, {O_OFF}')
    for t in T:
        for n in range(2):
            for r in range(2):
                e(f'v_cvt_pk_bf16_f32 v{vOf[t] + 2 * n + r}, v{vO[t][n] + 2 * r}, v{vO[t][n] + 2 * r + 1}')
        for r in (2, 3):
            e(f'v_cndmask_b32 v{vOf[t] + r}, v{vOf[t] + r}, 0, {s(sG3, 2)}')
        if t == 1:
            e(f's_add_u32 s3, s3, 16384')
        tokO = e(f'buffer_store_dwordx4 {v(vOf[t], 4)}, v{vL16}, {srd(WS)}, s3 offen sc1')
    stamp('attn done')

    keepNon = gemm_mark
    V.reset(gemm_mark)
    vN = V.alloc()
    e(f'v_mov_b32 v{vN}, s{sNon}')
    vAcc = [V.alloc(4) for _ in range(4)]
    NF = 8
    vFr = [V.alloc(4) for _ in range(NF)]
    vD2 = [V.alloc() for _ in range(4)]
    vDo = [V.alloc() for _ in range(2)]
    vPo = V.alloc()
    vPt = V.alloc()
    vB1 = V.alloc(8)
    vXo = [V.alloc(4), V.alloc(4)]
    vBo = [V.alloc(), V.alloc()]
    vOo = V.alloc()
    vU = [V.alloc(4), V.alloc(4)]
    vE = [V.alloc(4) for _ in range(4)]
    vWof = [V.alloc(4) for _ in range(2)]
    sOfl = sMask
    e(f's_lshl_b32 s{sOfl}, s{sK32}, 5')
    e(f's_add_u32 s{sOfl}, s{sOfl}, s{sJ}')
    e(f's_lshl_b32 s{sOfl}, s{sOfl}, 2')
    e(f's_add_u32 s{sOfl}, s{sOfl}, {OF_OFF}')

    def oflag():
        e.wait(vm=tokO)
        e(f'buffer_store_dword v{vN}, v{vFl}, {srd(WS)}, s{sOfl} offen sc1')

    sW2b, sUb, sOb, sWob, sRot2, sUfl = sMask + 1, sMask + 2, sMask + 3, sMask + 4, sMask + 6, sMask + 7
    e(f'v_lshl_add_u32 v{vD2[0]}, v{vR8}, 12, v{vSw}')
    for q in range(1, 4):
        e(f'v_add_u32 v{vD2[q]}, {q * (8 * 4096 - 1024)}, v{vD2[0]}')
    e(f'v_mul_u32_u24 v{t0}, 896, v{vR8}')
    e(f'v_add_u32 v{vDo[0]}, v{t0}, v{vSw}')
    e(f'v_add_u32 v{vDo[1]}, {8 * 896 - 1024}, v{vDo[0]}')
    e(f'v_lshl_add_u32 v{vOo}, v{vC8}, 4, v{t0}')
    e(f's_lshl_b32 s{sW2b}, s{sW}, 17')
    e(f's_lshl_b32 s3, s{sS}, 7')
    e(f's_add_u32 s{sW2b}, s{sW2b}, s3')
    e(f's_lshl_b32 s3, s{sD2}, 2')
    e(f's_add_u32 s3, s3, s{sW}')
    e(f's_mul_i32 s{sUb}, s3, 57344')
    e(f's_add_u32 s{sUb}, s{sUb}, {U_OFF}')
    e(f's_lshl_b32 s3, s{sS}, 2')
    e(f's_add_u32 s3, s3, s{sW}')
    e(f's_lshl_b32 s{sOb}, s3, 14')
    e(f's_add_u32 s{sOb}, s{sOb}, {O_OFF - 2048}')
    e(f's_mul_i32 s{sWob}, s{sT0}, {28 * 896}')
    e(f's_mul_i32 s3, s{sT1}, {16 * 896}')
    e(f's_add_u32 s{sWob}, s{sWob}, s3')
    e(f's_lshl_b32 s3, s{sD2}, 7')
    e(f's_add_u32 s{sWob}, s{sWob}, s3')
    if P['rot']:
        e(f's_lshl_b32 s{sRot2}, s{sD2}, 1')
    else:
        e(f's_mov_b32 s{sRot2}, 0')

    def o_dma(n):
        q = 16 + n
        e(f's_add_u32 s3, s{sWob}, {n * 56 * 896}')
        dma(WO, vDo[0], 3, sM, slot_of(q))
        dma(WO, vDo[1], 3, sM, 0, off=1024, setm0=False)
        e(f's_add_u32 s3, s{sOb}, {n * 2048}')
        dma(WS, vL16, 3, sM, 0, off=2048, mod=' sc1', setm0=False)
        tokS[q] = dma(WS, vL16, 3, sM, 0, off=3072, mod=' sc1', setm0=False)

    def rot14(n):
        e(f's_add_u32 s3, s{sRot2}, {n}')
        e(f's_sub_u32 s{sT2}, s3, 14')
        e(f's_cmp_ge_u32 s3, 14')
        e(f's_cselect_b32 s3, s{sT2}, s3')

    def w2_dma(n):
        q = 24 + n
        rot14(n)
        e(f's_lshl_b32 s3, s3, 19')
        e(f's_add_u32 s3, s3, s{sW2b}')
        for k in range(4):
            tokS[q] = dma(W2, vD2[k], 3, sM, slot_of(q), off=k * 1024, setm0=(k == 0))

    def stage_dma(q):
        if q < 16:
            w1_dma(q)
        elif q < 24:
            o_dma(q - 16)
        elif q < 38:
            w2_dma(q - 24)

    def poll_o():
        e(f's_lshl_b32 s3, s{sS}, 1')
        e(f's_add_u32 s3, s3, s{sT0}')
        e(f's_lshl_b32 s3, s3, 7')
        e(f's_add_u32 s3, s3, {OF_OFF}')
        e(f'v_lshlrev_b32 v{vPo}, 2, v{vL15}')
        poll(vPo, 3, vPt, 8)

    e(f's_cmp_eq_u32 s{sG1}, 0')
    e(f's_cbranch_scc1 L_nog1')

    e(f'v_lshlrev_b32 v{t0}, 3, v{vG}')
    e(f's_lshl_b32 s3, s{sFT}, 7')
    for T_ in range(4):
        e(f'buffer_load_dwordx2 {v(vB1 + 2 * T_, 2)}, v{t0}, {srd(B1)}, s3 offen offset:{32 * T_}')
    e(f's_lshl_b32 s3, s{sD}, 1')
    e(f's_add_u32 s3, s3, s{sT0}')
    e(f's_lshl_b32 s3, s3, 8')
    e(f's_add_u32 s3, s3, {HF_OFF}')
    e(f'v_lshlrev_b32 v{vPo}, 2, v{vLane}')
    poll(vPo, 3, vPt, 4)
    stamp('h ok')
    oflag()
    sHb = sE
    e(f's_lshl_b32 s3, s{sD}, 2')
    e(f's_add_u32 s3, s3, s{sW}')
    e(f's_lshl_b32 s{sHb}, s3, 16')
    e(f's_mul_i32 s{sA}, s3, 57344')
    e(f's_lshl_b32 s{sUfl}, s3, 5')
    e(f's_add_u32 s{sUfl}, s{sUfl}, s{sFT}')
    e(f's_lshl_b32 s{sUfl}, s{sUfl}, 2')
    e(f's_add_u32 s{sUfl}, s{sUfl}, {UF_OFF}')
    e(f's_lshl_b32 s3, s{sFT}, 11')
    e(f's_add_u32 s{sA}, s{sA}, s3')
    e(f's_add_u32 s{sA}, s{sA}, {U_OFF}')

    def bf(n, ks):
        return a(((n % 16) * 4 + ks) * 4, 4)

    def h_load(n):
        e(f's_add_u32 s3, s{sRot}, {n}')
        e(f's_and_b32 s3, s3, 15')
        e(f's_lshl_b32 s3, s3, 12')
        e(f's_add_u32 s3, s3, s{sHb}')
        for ks in range(4):
            e(f'buffer_load_dwordx4 {bf(n, ks)}, v{vL16}, {srd(WS)}, s3 offen offset:{ks * 1024} sc1')

    def u_load(n):
        rot14(n)
        e(f's_lshl_b32 s3, s3, 12')
        e(f's_add_u32 s3, s3, s{sUb}')
        for ks in range(4):
            e(f'buffer_load_dwordx4 {bf(n, ks)}, v{vL16}, {srd(WS)}, s3 offen offset:{ks * 1024} sc1')

    PH, DF = P['ph'], P['df']
    for n in range(PH):
        h_load(n)
    for T_ in range(4):
        e(f'v_lshlrev_b32 v{vAcc[T_]}, 16, v{vB1 + 2 * T_}')
        e(f'v_and_b32 v{vAcc[T_] + 1}, 0xffff0000, v{vB1 + 2 * T_}')
        e(f'v_lshlrev_b32 v{vAcc[T_] + 2}, 16, v{vB1 + 2 * T_ + 1}')
        e(f'v_and_b32 v{vAcc[T_] + 3}, 0xffff0000, v{vB1 + 2 * T_ + 1}')

    def tr_gemm(q0, nstage, at_stage, swap):
        items = [(n, ks, t) for n in range(nstage) for ks in range(4) for t in range(4)]

        def rd(i):
            n, ks, t = items[i]
            q = q0 + n
            if ks == 0 and t == 0:
                e.wait(vm=tokS[q])
                e('s_barrier')
                at_stage(n)
            for h in range(2):
                ad = slot_of(q) + ks * 4096 + h * 2048
                e(f'ds_read_b64_tr_b16 {v(vFr[i % NF] + 2 * h, 2)}, v{vPat[ad >> 16][t]} offset:{ad & 65535}')
        for i in range(DF):
            rd(i)
        for i, (n, ks, t) in enumerate(items):
            if swap:
                mfma(vAcc[t], bf(n, ks), v(vFr[i % NF], 4))
            else:
                mfma(vAcc[t], v(vFr[i % NF], 4), bf(n, ks))
            if i + DF < len(items):
                rd(i + DF)

    NPRE = 4

    def g1_stage(n):
        if n + PH < 16:
            h_load(n + PH)
        if n >= 2 and n + 8 < 16:
            w1_dma(n + 8)
        if n == 16 - NPRE:
            poll_o()
        if n >= 16 - NPRE:
            o_dma(n - (16 - NPRE))

    tr_gemm(0, 16, g1_stage, False)
    stamp('g1 done')
    c0 = -2.0 * math.sqrt(2.0 / math.pi) * math.log2(math.e)
    sG0, sG1c = sMask + 8, sMask + 9
    e(f's_mov_b32 s{sG1c}, {f32(c0 * 0.044715)}')
    e(f'v_mov_b32 v{t0}, {f32(c0)}')
    for half in range(2):
        rs = [(T_, r) for T_ in (2 * half, 2 * half + 1) for r in range(4)]
        for T_, r in rs:
            e(f'v_mul_f32 v{vE[T_] + r}, v{vAcc[T_] + r}, v{vAcc[T_] + r}')
        for T_, r in rs:
            e(f'v_fma_f32 v{vE[T_] + r}, v{vE[T_] + r}, s{sG1c}, v{t0}')
        for T_, r in rs:
            e(f'v_mul_f32 v{vE[T_] + r}, v{vE[T_] + r}, v{vAcc[T_] + r}')
        for T_, r in rs:
            e(f'v_exp_f32 v{vE[T_] + r}, v{vE[T_] + r}')
        for T_, r in rs:
            e(f'v_add_f32 v{vE[T_] + r}, 1.0, v{vE[T_] + r}')
        for T_, r in rs:
            e(f'v_rcp_f32 v{vE[T_] + r}, v{vE[T_] + r}')
        for T_, r in rs:
            e(f'v_mul_f32 v{vE[T_] + r}, v{vE[T_] + r}, v{vAcc[T_] + r}')
        for k in range(4):
            T_ = 2 * half + (k >> 1)
            e(f'v_cvt_pk_bf16_f32 v{vU[half] + k}, v{vE[T_] + 2 * (k & 1)}, v{vE[T_] + 2 * (k & 1) + 1}')
        tokU = e(f'buffer_store_dwordx4 {v(vU[half], 4)}, v{vL16}, {srd(WS)}, s{sA} offen offset:{half * 1024} sc1')
    stamp('u stored')
    e('s_branch L_f')

    save = (e.vm_n, e.vm_done, e.lg_n, e.lg_done, dict(e.pvm), dict(e.plg), dict(tokS), nst[0])
    e.label('L_nog1')
    e.wait_all(force=True)
    e(f'buffer_store_dword v{vN}, v{vFl}, {srd(WS)}, s{sOfl} offen sc1')
    e(f's_cmp_eq_u32 s{sF}, 0')
    e(f's_cbranch_scc1 L_fin')
    e(f's_mov_b32 s{sUfl}, {OOB}')
    e('s_barrier')
    poll_o()
    for n in range(NPRE):
        o_dma(n)
    e.wait_all(force=True)
    e.pad(4)
    e.vm_n, e.vm_done, e.lg_n, e.lg_done, e.pvm, e.plg, tk, nst[0] = save
    tokS.clear()
    tokS.update(tk)

    e.label('L_f')
    for n in range(NPRE, 8):
        o_dma(n)
    e(f's_lshl_b32 s3, s{sS}, 2')
    e(f's_add_u32 s3, s3, s{sW}')
    e(f's_lshl_b32 s{sB}, s3, 5')
    e(f's_mul_i32 s{sA}, s3, {16 * 896}')
    e(f's_lshl_b32 s3, s{sD2}, 7')
    e(f's_add_u32 s{sA}, s{sA}, s3')
    e(f's_add_u32 s{sE}, s{sA}, {8 * 896}')
    e(f'v_lshlrev_b32 v{t0}, 1, v{vR8}')
    items = [(n, hh, T_) for n in range(8) for hh in range(2) for T_ in range(4)]

    def ord_(i):
        n, hh, T_ = items[i]
        q = 16 + n
        if hh == 0 and T_ == 0:
            e.wait(vm=tokS[q])
            if n == NPRE:
                e(f'buffer_store_dword v{vN}, v{vFl}, {srd(WS)}, s{sUfl} offen sc1')
                stamp('uflag')
            e('s_barrier')
            stage_dma(q + 8)
        if T_ == 0:
            for h in range(2):
                ad = slot_of(q) + (2 * hh + h) * 4096
                e(f'ds_read_b64_tr_b16 {v(vWof[hh] + 2 * h, 2)}, v{vPatW[ad >> 16]} offset:{ad & 65535}')
        ad = slot_of(q) + T_ * 4096 + 2048 + hh * 1024
        e(f'ds_read_b128 {v(vFr[i % NF], 4)}, v{vLin[ad >> 16]} offset:{ad & 65535}')

    DO = 4
    for i in range(DO):
        ord_(i)
    for i, (n, hh, T_) in enumerate(items):
        mfma(vAcc[T_], v(vWof[hh], 4), v(vFr[i % NF], 4), '0' if i < 4 else None)
        if i + DO < len(items):
            ord_(i + DO)
    e.wait_all(vm=False, lg=True)
    e('s_barrier')
    stamp('o part done')
    stage_dma(32)
    stage_dma(33)
    for q_ in range(2):
        e(f'buffer_load_dwordx4 {v(vXo[q_], 4)}, v{vOo}, {srd(X)}, s{sE if q_ else sA} offen')
        e(f'buffer_load_ushort v{vBo[q_]}, v{t0}, {srd(B2)}, s{sB} offen offset:{16 * q_}')
    e(f's_lshl_b32 s3, s{sD2}, 2')
    e(f's_add_u32 s3, s3, s{sW}')
    e(f's_lshl_b32 s3, s3, 7')
    e(f's_add_u32 s3, s3, {UF_OFF}')
    e(f'v_min_u32 v{vPo}, 27, v{vLane}')
    e(f'v_lshlrev_b32 v{vPo}, 2, v{vPo}')
    poll(vPo, 3, vPt, 8)
    stamp('u ok')
    for n in range(PH):
        u_load(n)

    def f_stage(n):
        if n + PH < 14:
            u_load(n + PH)
        if n >= 2 and n + 8 < 14:
            w2_dma(n + 8)

    tr_gemm(24, 14, f_stage, True)
    stamp('f done')
    vEw, vEr0, vEr1 = t1, t2, vPo
    e(f's_lshl_b32 s3, s{sW}, 2')
    e(f'v_add_u32 v{vEw}, s3, v{vG}')
    e(f'v_xor_b32 v{vEw}, v{vEw}, v{vC8}')
    e(f'v_lshlrev_b32 v{vEw}, 4, v{vEw}')
    e(f'v_lshl_add_u32 v{vEw}, v{vL15}, 8, v{vEw}')
    e(f'v_lshlrev_b32 v{vEr0}, 1, v{vC8}')
    e(f'v_xor_b32 v{vEr0}, v{vEr0}, v{vR8}')
    e(f'v_lshlrev_b32 v{vEr0}, 4, v{vEr0}')
    e(f'v_lshl_add_u32 v{vEr0}, v{vR8}, 8, v{vEr0}')
    e(f'v_add_u32 v{vEr0}, s{sM}, v{vEr0}')
    e(f'v_xor_b32 v{vEr1}, 16, v{vEr0}')
    for T_ in range(4):
        e(f'ds_write_b128 v{vEw}, {v(vAcc[T_], 4)} offset:{T_ * 4096}')
    for q_ in range(2):
        e(f'v_lshlrev_b32 v{vBo[q_]}, 16, v{vBo[q_]}')
        for k in range(4):
            d = vFr[2 * q_ + (k >> 1)] + 2 * (k & 1)
            e(f'v_lshlrev_b32 v{d}, 16, v{vXo[q_] + k}')
            e(f'v_and_b32 v{d + 1}, 0xffff0000, v{vXo[q_] + k}')
            e(f'v_add_f32 v{d}, v{d}, v{vBo[q_]}')
            e(f'v_add_f32 v{d + 1}, v{d + 1}, v{vBo[q_]}')
    e.wait_all(vm=False, lg=True)
    e('s_barrier')
    for q_ in range(2):
        e(f'ds_read_b128 {v(vE[2 * q_], 4)}, v{vEr0} offset:{q_ * 2048}')
        e(f'ds_read_b128 {v(vE[2 * q_ + 1], 4)}, v{vEr1} offset:{q_ * 2048}')
    for q_ in range(2):
        for k in range(2):
            for r in range(4):
                e(f'v_add_f32 v{vE[2 * q_ + k] + r}, v{vE[2 * q_ + k] + r}, v{vFr[2 * q_ + k] + r}')
            for r in range(2):
                e(f'v_cvt_pk_bf16_f32 v{vU[q_] + 2 * k + r}, v{vE[2 * q_ + k] + 2 * r}, v{vE[2 * q_ + k] + 2 * r + 1}')
        e(f'buffer_store_dwordx4 {v(vU[q_], 4)}, v{vOo}, {srd(OUT)}, s{sE if q_ else sA} offen')
    e.label('L_fin')
    if P['stamps']:
        e.wait_all(force=True)
        k = nst[0]
        e(f's_memrealtime s[{sT2}:{sT3}]')
        e.wait_all(vm=False, lg=True, force=True)
        e(f's_mov_b32 s{sStamp + 19}, s{sT2}')
        e(f's_lshl_b32 s3, s2, 2')
        e(f's_add_u32 s3, s3, s{sW}')
        e(f's_lshl_b32 s3, s3, 7')
        e(f's_add_u32 s3, s3, {ST_OFF}')
        for k in range(20):
            e(f'v_mov_b32 v{t0}, s{sStamp + k}')
            e(f'buffer_store_dword v{t0}, v{vFl}, {srd(WS)}, s3 offen offset:{4 * k}')
    e.label('L_end')
    e('s_endpgm')

    hdr = open(os.path.join(os.path.dirname(os.path.abspath(__file__)), '..', NAME + '.s.ref')).read().split('; Override launch')[0]
    out = hdr + f"""; Generated by gen/gen.py (hand-written generator).
; @launch grid=(256,1,1) block=(256,1,1) lds={LDS_SIZE}
.amdgcn_target "amdgcn-amd-amdhsa--gfx950"
.text
.globl {NAME}_kernel
.p2align 8
.type {NAME}_kernel,@function
{NAME}_kernel:
""" + e.text() + f""".section .rodata,"a"
.p2align 6
.amdhsa_kernel {NAME}_kernel
  .amdhsa_next_free_vgpr 512
  .amdhsa_next_free_sgpr 102
  .amdhsa_accum_offset 256
  .amdhsa_group_segment_fixed_size 0
  .amdhsa_kernarg_size 88
  .amdhsa_user_sgpr_count 2
  .amdhsa_user_sgpr_kernarg_segment_ptr 1
  .amdhsa_system_sgpr_workgroup_id_x 1
.end_amdhsa_kernel
"""
    sys.stderr.write(f'vgpr hi {V.hi}, nops {e.nnop}, lines {len(e.lines)}\n')
    return out


if __name__ == '__main__':
    kw = {}
    path = os.path.join(os.path.dirname(os.path.abspath(__file__)), '..', NAME + '.s')
    for arg in sys.argv[1:]:
        k, val = arg.split('=')
        if k == 'out':
            path = val
        else:
            kw[k] = int(val)
    open(path, 'w').write(build(**kw))
```

```python
import sys, os, math, struct
sys.path.insert(0, os.path.dirname(os.path.abspath(__file__)))
from emit import Asm, Regs, v, a, s

NAME = 'parallel_sum__sliding_local_dilated__mixer_token_mlp__prompt'

DEF = dict(
    stamps=0,
    g1map=0,
    fmap=0,
    ph=4,
    df=6,
    rot=1,
    codepf=1,
    spin=20000,
    dbgspan=0,
)


def f32(x):
    return '0x%08x' % struct.unpack('<I', struct.pack('<f', x))[0]


H_OFF = 0
U_OFF = 2 << 20
O_OFF = 4 << 20
HF_OFF = 6 << 20
UF_OFF = HF_OFF + 0x2000
OF_OFF = HF_OFF + 0x4000
ST_OFF = 7 << 20
WS_SIZE = 8 << 20
OOB = 0x10000000

TILE = 14336
T1B = TILE
T0B = 5 * TILE
SPB = 9 * TILE
MISC = SPB + 28672
LDS_SIZE = 163840
SLOT = 16384
NSLOT = 10

X, WQ, WO, W1, W2, WS, OUT, B1, B2, DBG = 8, 12, 16, 20, 24, 28, 32, 36, 40, 44
sW, sI, sJ, sFT, sD, sS, sD2, sG1, sF, sNon = 48, 49, 50, 51, 52, 53, 54, 55, 56, 57
sT0, sT1, sT2, sT3 = 4, 5, 6, 7
sM = 58
sA, sB, sC, sE = 59, 60, 61, 62
sCnt = 63
sMask = 64
sStamp = 80


def srd(r):
    return s(r, 4)


def lanemask(fn):
    m = 0
    for l in range(64):
        if fn(l):
            m |= 1 << l
    return m


def build(**kw):
    P = dict(DEF)
    P.update(kw)
    e = Asm()
    V = Regs('v', 1, 256)
    nst = [0]

    def stamp(name=''):
        if not P['stamps']:
            return
        k = nst[0]
        nst[0] += 1
        assert k < 17
        e(f's_memrealtime s[{sT2}:{sT3}]')
        e.wait_all(vm=False, lg=True, force=True)
        e(f's_mov_b32 s{sStamp + k}, s{sT2}')

    def setmask(r, m):
        e(f's_mov_b32 s{r}, 0x{m & 0xffffffff:08x}')
        e(f's_mov_b32 s{r + 1}, 0x{m >> 32:08x}')

    def dma(sr, voff, soff, m0base, m0add, off=0, mod='', setm0=True):
        if setm0:
            e(f's_add_u32 m0, s{m0base}, {m0add}')
        o = f' offset:{off}' if off else ''
        return e(f'buffer_load_dwordx4 v{voff}, {srd(sr)}, s{soff} offen{o}{mod} lds')

    def mfma(d, A, B, c=None):
        e(f'v_mfma_f32_16x16x32_bf16 {v(d, 4)}, {A}, {B}, {v(d, 4) if c is None else c}')

    def mfma32(d, A, B):
        e(f'v_mfma_f32_16x16x4_f32 {v(d, 4)}, v{A}, v{B}, 0')

    npoll = [0]

    def poll(voff, soff, vtmp, sleep):
        k = npoll[0]
        npoll[0] += 1
        e(f's_mov_b32 s{sCnt}, 0')
        e.label(f'L_poll{k}')
        e(f'buffer_load_dword v{vtmp}, v{voff}, {srd(WS)}, s{soff} offen sc1')
        e(f's_add_u32 s{sCnt}, s{sCnt}, 1')
        e.wait_all(vm=True, lg=False, force=True)
        e(f'v_cmp_ne_u32 vcc, s{sNon}, v{vtmp}')
        e(f's_cbranch_vccz L_pollok{k}')
        e(f's_sleep {sleep}')
        e(f's_cmp_lt_u32 s{sCnt}, {P["spin"]}')
        e(f's_cbranch_scc1 L_poll{k}')
        e.label(f'L_pollok{k}')

    e('s_cmp_ge_u32 s2, 256')
    e('s_cbranch_scc1 L_end')
    for r, off in ((X, 0), (WQ, 8), (WS, 80), (DBG, 72), (W1, 32), (WO, 16), (W2, 48), (OUT, 64), (B1, 40), (B2, 56)):
        e(f's_load_dwordx2 {s(r, 2)}, s[0:1], {off}')
    sClk = sMask + 14
    e(f's_memrealtime s[{sClk}:{sClk + 1}]')
    vLane = V.alloc()
    vL15 = V.alloc()
    vG = V.alloc()
    vL16 = V.alloc()
    t0, t1, t2, t3 = [V.alloc() for _ in range(4)]
    tp = V.alloc(2)
    if P['codepf']:
        e(f's_getpc_b64 s[{sT0}:{sT0 + 1}]')
        e.label('L_pc')
        e(f's_and_b32 s3, s2, 0xf8')
        e(f'v_lshrrev_b32 v{t0}, 5, v0')
        e(f'v_add_lshl_u32 v{t0}, s3, v{t0}, 7')
        e(f'v_min_u32 v{t0}, L_end-L_pc-4, v{t0}')
        vPF = V.alloc()
        e(f'global_load_dword v{vPF}, v{t0}, s[{sT0}:{sT0 + 1}]')
    e(f'v_and_b32 v{vLane}, 63, v0')
    e(f'v_lshrrev_b32 v{t0}, 6, v0')
    e(f'v_and_b32 v{vL15}, 15, v0')
    e(f'v_readfirstlane_b32 s{sW}, v{t0}')
    e(f'v_lshrrev_b32 v{vG}, 4, v{vLane}')
    e(f'v_lshlrev_b32 v{vL16}, 4, v{vLane}')
    for r, n in ((X, 2048 * 896), (WQ, 448 * 2688), (WO, 448 * 896), (W1, 2048 * 3584), (W2, 1792 * 4096),
                 (WS, WS_SIZE), (OUT, 2048 * 896), (B1, 3584), (B2, 4096), (DBG, 256)):
        e(f's_mov_b32 s{r + 2}, {n}')
        e(f's_mov_b32 s{r + 3}, 0x20000')
    sXcd, sIdx = sC, sE
    e(f's_and_b32 s{sXcd}, s2, 7')
    e(f's_lshr_b32 s{sIdx}, s2, 3')
    e(f's_lshr_b32 s{sT2}, s{sXcd}, 1')
    e(f's_and_b32 s{sT3}, s{sXcd}, 1')
    e(f's_lshl_b32 s{sI}, s{sT2}, 2')
    e(f's_lshr_b32 s3, s{sIdx}, 3')
    e(f's_add_u32 s{sI}, s{sI}, s3')
    e(f's_lshl_b32 s{sJ}, s{sT3}, 3')
    e(f's_and_b32 s3, s{sIdx}, 7')
    e(f's_add_u32 s{sJ}, s{sJ}, s3')
    vXA, vXB, vXH = V.alloc(), V.alloc(), V.alloc()
    vR8 = V.alloc()
    vC8 = V.alloc()
    e(f'v_lshrrev_b32 v{vR8}, 3, v{vLane}')
    e(f'v_and_b32 v{vC8}, 7, v{vLane}')
    e(f'v_xor_b32 v{t0}, v{vC8}, v{vG}')
    e(f'v_lshlrev_b32 v{t0}, 4, v{t0}')
    e(f'v_mul_u32_u24 v{t1}, 896, v{vR8}')
    e(f'v_add_u32 v{vXA}, v{t0}, v{t1}')
    e(f'v_xor_b32 v{t0}, 64, v{t0}')
    e(f'v_add_u32 v{t0}, 7168, v{t0}')
    e(f'v_add_u32 v{vXB}, v{t0}, v{t1}')
    sX0, sL0 = sMask, sMask + 1
    e(f's_lshl_b32 s3, s{sI}, 2')
    e(f's_add_u32 s3, s3, s{sW}')
    e(f's_mul_i32 s{sX0}, s3, {32 * 896}')
    e(f's_mul_i32 s{sL0}, s{sW}, {TILE}')
    e.wait_all(vm=False, lg=True, force=True)
    if P['stamps'] or P['dbgspan']:
        e(f's_mov_b32 s{sStamp}, s{sClk}')
        nst[0] = 1
    if P['stamps']:
        e(f's_memtime s[0:1]')
        e.wait_all(vm=False, lg=True, force=True)
        e(f's_mov_b32 s{sStamp + 17}, s0')
    e(f's_lshl_b32 s3, s{sW}, 8')
    e(f's_add_u32 s3, s3, s2')
    e(f's_cmp_lt_u32 s3, 8')
    e(f's_cselect_b32 s3, 0, {OOB}')
    e(f's_or_b32 s{sClk}, s{sClk}, 1')
    e(f'v_mov_b32 v{tp}, s{sClk}')
    e(f'v_mov_b32 v{tp + 1}, 0')
    e(f'v_lshlrev_b32 v{t2}, 8, v{vLane}')
    e(f'buffer_atomic_cmpswap {v(tp, 2)}, v{t2}, {srd(DBG)}, s3 offen sc1')
    tokX = {}
    for t, base in ((0, T0B), (1, T1B)):
        if t == 1:
            e(f's_add_u32 s{sX0}, s{sX0}, {16 * 896}')
        for st in range(7):
            for rg in range(2):
                tokX[t] = dma(X, vXB if rg else vXA, sX0, sL0, base + st * 1920 + rg * 1024, off=st * 128)
    e(f's_lshl_b32 s3, s{sI}, 7')
    e(f's_max_u32 s3, s3, 16')
    e(f's_sub_u32 s3, s3, 16')
    e(f's_mul_i32 s{sX0}, s3, 896')
    e(f's_lshr_b32 s{sT0}, s{sW}, 1')
    e(f's_and_b32 s{sT1}, s{sW}, 1')
    e(f's_lshl_b32 s3, s{sT0}, 9')
    e(f's_add_u32 s{sX0}, s{sX0}, s3')
    e(f's_cmp_eq_u32 s{sT1}, 1')
    e(f's_cselect_b64 vcc, -1, 0')
    e(f'v_cndmask_b32 v{vXH}, v{vXA}, v{vXB}, vcc')
    sH = sMask + 2
    e(f's_lshl_b32 s{sH}, s{sT0}, 13')
    e(f's_lshl_b32 s3, s{sT1}, 10')
    e(f's_add_u32 s{sH}, s{sH}, s3')
    for n in range(4):
        if n == 3:
            e(f's_cmp_eq_u32 s{sT0}, 1')
            e(f's_cselect_b32 s{sH}, {MISC - 3 * 1920}, s{sH}')
        tokH = dma(X, vXH, sX0, sH, n * 1920, off=n * 128)
    vW = V.alloc()
    vR4 = V.alloc()
    vC4 = V.alloc()
    e(f'v_bfe_u32 v{vR4}, v{vLane}, 2, 2')
    e(f'v_and_b32 v{vC4}, 3, v{vLane}')
    e(f'v_and_b32 v{t0}, 1, v{vG}')
    e(f'v_lshlrev_b32 v{t0}, 1, v{t0}')
    e(f'v_xor_b32 v{t0}, v{t0}, v{vC4}')
    e(f'v_lshlrev_b32 v{t0}, 4, v{t0}')
    e(f'v_min_u32 v{t0}, 40, v{t0}')
    e(f'v_lshl_add_u32 v{t1}, v{vG}, 3, v{vR4}')
    e(f'v_mul_u32_u24 v{t1}, 2688, v{t1}')
    e(f'v_add_u32 v{vW}, v{t0}, v{t1}')
    sWb, sSp = sMask + 3, sMask + 4
    e(f's_lshl_b32 s3, s{sT0}, 3')
    e(f's_add_u32 s3, s3, s{sT1}')
    e(f's_mul_i32 s{sWb}, s3, {4 * 2688}')
    e(f's_mul_i32 s3, s{sJ}, 56')
    e(f's_add_u32 s{sWb}, s{sWb}, s3')
    e(f's_mul_i32 s{sSp}, s{sW}, 7168')
    tokW = {}

    def wdma(n):
        st, part = divmod(n, 3)
        e(f's_add_u32 s3, s{sWb}, {st * 64 * 2688 + part * 896}')
        if n < 7:
            tokW[n] = dma(WQ, vW, 3, sSp, SPB + n * 1024)
        else:
            tokW[n] = dma(WQ, vW, 3, sL0, T0B + (n - 7) * 1024)

    def wchunk(n, w):
        return SPB + w * 7168 + n * 1024 if n < 7 else T0B + w * TILE + (n - 7) * 1024

    for n in range(7):
        wdma(n)

    e(f's_mul_i32 s3, s{sT3}, 25')
    e(f's_add_u32 s3, s3, s{sIdx}')
    e(f's_mul_i32 s{sFT}, s3, 37')
    e(f's_lshr_b32 s{sFT}, s{sFT}, 8')
    e(f's_mul_i32 s{sD}, s{sFT}, 7')
    e(f's_sub_u32 s{sD}, s3, s{sD}')
    if P['g1map'] == 1:
        e(f's_mov_b32 s3, s{sFT}')
        e(f's_mov_b32 s{sFT}, s{sD}')
        e(f's_mov_b32 s{sD}, s3')
    e(f's_mul_i32 s3, s{sT2}, 7')
    e(f's_add_u32 s{sFT}, s{sFT}, s3')
    e(f's_add_u32 s3, s{sIdx}, s{sT3}')
    e(f's_cmp_lt_u32 s3, 25')
    e(f's_cselect_b32 s{sG1}, 1, 0')
    e(f's_cselect_b32 s{W1 + 2}, {2048 * 3584}, 0')
    e(f's_cmp_lt_u32 s{sIdx}, 28')
    e(f's_cselect_b32 s{sF}, 1, 0')
    if P['fmap'] == 0:
        e(f's_mul_i32 s{sS}, s{sIdx}, 37')
        e(f's_lshr_b32 s{sS}, s{sS}, 8')
        e(f's_mul_i32 s3, s{sS}, 7')
        e(f's_sub_u32 s{sD2}, s{sIdx}, s3')
        e(f's_lshl_b32 s3, s{sXcd}, 2')
        e(f's_add_u32 s{sS}, s{sS}, s3')
    else:
        e(f's_mul_i32 s3, s{sT3}, 28')
        e(f's_add_u32 s3, s3, s{sIdx}')
        e(f's_lshr_b32 s{sD2}, s3, 3')
        e(f's_and_b32 s{sS}, s3, 7')
        e(f's_lshl_b32 s3, s{sT2}, 3')
        e(f's_add_u32 s{sS}, s{sS}, s3')
    e(f's_lshl_b32 s{sM}, s{sW}, 12')

    vPat = [[V.alloc() for _ in range(4)] for _ in range(3)]
    vPatW = [V.alloc() for _ in range(3)]
    vLin = [vL16, V.alloc(), V.alloc()]
    vSw = V.alloc()
    vD1 = [V.alloc() for _ in range(4)]
    e(f'v_lshrrev_b32 v{t0}, 2, v{vLane}')
    e(f'v_lshlrev_b32 v{t0}, 7, v{t0}')
    e(f'v_lshl_add_u32 v{t0}, v{vC4}, 3, v{t0}')
    e(f'v_and_b32 v{t1}, 3, v{vR8}')
    e(f'v_lshl_add_u32 v{vPat[0][0]}, v{t1}, 5, v{t0}')
    for t in range(1, 4):
        e(f'v_xor_b32 v{vPat[0][t]}, {32 * t}, v{vPat[0][0]}')
    e(f's_lshl_b32 s3, s{sW}, 5')
    e(f'v_xor_b32 v{vPatW[0]}, s3, v{vPat[0][0]}')
    for b in (1, 2):
        for t in range(4):
            e(f'v_add_u32 v{vPat[b][t]}, {65536 * b}, v{vPat[0][t]}')
        e(f'v_add_u32 v{vPatW[b]}, {65536 * b}, v{vPatW[0]}')
        e(f'v_add_u32 v{vLin[b]}, {65536 * b}, v{vL16}')
    e(f'v_lshlrev_b32 v{t0}, 1, v{vG}')
    e(f'v_xor_b32 v{t0}, v{t0}, v{vC8}')
    e(f'v_lshlrev_b32 v{vSw}, 4, v{t0}')
    e(f'v_mul_u32_u24 v{t0}, 3584, v{vR8}')
    e(f'v_add_u32 v{vD1[0]}, v{t0}, v{vSw}')
    for q in range(1, 4):
        e(f'v_add_u32 v{vD1[q]}, {q * (8 * 3584 - 1024)}, v{vD1[0]}')
    gemm_mark = V.mark()

    vOnes = V.alloc(4)
    vOneF, vSelG0 = V.alloc(), V.alloc()
    vSel = [V.alloc(4), V.alloc(4)]
    vXr = [[V.alloc(), V.alloc()] for _ in range(3)]
    vXd = [V.alloc(), V.alloc()]
    vWr = [[V.alloc(), V.alloc()] for _ in range(2)]
    vOnesAddr = V.alloc()
    for r in range(4):
        e(f'v_mov_b32 v{vOnes + r}, 0x3f803f80')
    e(f'v_mov_b32 v{vOneF}, 1.0')
    e(f'v_cmp_gt_u32 vcc, 16, v{vLane}')
    e(f'v_cndmask_b32 v{vSelG0}, 0, v{vOneF}, vcc')
    e(f'v_lshrrev_b32 v{t0}, 1, v{vL15}')
    e(f'v_xor_b32 v{t1}, v{t0}, v{vG}')
    e(f'v_lshlrev_b32 v{t1}, 4, v{t1}')
    e(f'v_lshl_add_u32 v{t1}, v{vL15}, 7, v{t1}')
    e(f'v_add_u32 v{t2}, s{sL0}, v{t1}')
    e(f'v_cmp_eq_u32 vcc, 0, v{vL15}')
    e(f'v_add_u32 v{vXr[1][0]}, {T0B}, v{t2}')
    e(f'v_add_u32 v{vXr[2][0]}, {T1B}, v{t2}')
    e(f'v_cndmask_b32 v{vXr[0][0]}, v{t2}, v{t1}, vcc')
    for t in range(3):
        e(f'v_xor_b32 v{vXr[t][1]}, 64, v{vXr[t][0]}')
    e(f's_min_u32 s3, s{sJ}, 13')
    e(f's_and_b32 s{sT2}, s3, 1')
    e(f's_lshl_b32 s{sT2}, s{sT2}, 6')
    e(f's_lshr_b32 s3, s3, 1')
    e(f's_lshl_b32 s3, s3, 11')
    for t in range(2):
        e(f'v_xor_b32 v{vXd[t]}, s{sT2}, v{vXr[1 + t][0]}')
        e(f'v_add_u32 v{vXd[t]}, s3, v{vXd[t]}')
    e(f'v_lshlrev_b32 v{t1}, 2, v{vG}')
    e(f'v_sub_u32 v{t0}, v{t0}, v{t1}')
    e(f'v_and_b32 v{t1}, 1, v{vLane}')
    e(f'v_lshlrev_b32 v{t1}, 4, v{t1}')
    e(f'v_mov_b32 v{t2}, 0x3f80')
    e(f'v_lshlrev_b32 v{t1}, v{t1}, v{t2}')
    for z in range(2):
        for r in range(4):
            e(f'v_cmp_eq_i32 vcc, {r - 8 * z}, v{t0}')
            e(f'v_cndmask_b32 v{vSel[z] + r}, 0, v{t1}, vcc')
    e(f'v_lshrrev_b32 v{t0}, 2, v{vLane}')
    e(f'v_lshlrev_b32 v{t0}, 6, v{t0}')
    e(f'v_and_b32 v{t1}, 1, v{vG}')
    e(f'v_lshl_add_u32 v{t0}, v{t1}, 5, v{t0}')
    e(f'v_add_u32 v{t0}, 65536, v{t0}')
    e(f'v_lshl_add_u32 v{vWr[0][0]}, v{vC4}, 3, v{t0}')
    e(f'v_lshrrev_b32 v{t1}, 1, v{vC4}')
    e(f'v_xor_b32 v{t1}, v{t1}, v{vC4}')
    e(f'v_xor_b32 v{t0}, 32, v{t0}')
    e(f'v_lshl_add_u32 v{vWr[0][1]}, v{t1}, 3, v{t0}')
    for t in range(2):
        e(f'v_add_u32 v{vWr[1][t]}, 65536, v{vWr[0][t]}')
    e(f's_sub_u32 s{sT2}, 3, s{sT0}')
    e(f's_lshl_b32 s3, s{sT0}, 13')
    e(f's_cmp_eq_u32 s{sT1}, 1')
    e(f's_cselect_b32 s{sT2}, 0, s{sT2}')
    e(f's_cselect_b32 s3, {MISC + 2048}, s3')
    e(f'v_min_u32 v{t0}, s{sT2}, v{vR8}')
    e(f'v_lshlrev_b32 v{t0}, 11, v{t0}')
    e(f'v_lshl_add_u32 v{t0}, v{vC8}, 4, v{t0}')
    e(f'v_add_u32 v{vOnesAddr}, s3, v{t0}')
    sDg = sMask + 6
    for r in range(4):
        setmask(sDg + 2 * r, lanemask(lambda l: (l & 15) == 4 * (l >> 4) + r))

    def xf(t, ks):
        return a((t * 14 + ks) * 4, 4)

    vGr = [V.alloc(4) for _ in range(3)]
    vSm = [V.alloc(4) for _ in range(3)]
    aDyn = [200, 204]

    def read_tile(t):
        for ks in range(14):
            e(f'ds_read_b128 {xf(t, ks)}, v{vXr[t][ks & 1]} offset:{(ks >> 1) * 2048}')

    def stat_mfma(t):
        for ks in range(14):
            mfma(vGr[t], xf(t, ks), xf(t, ks), c='0' if ks == 0 else None)
            mfma(vSm[t], v(vOnes, 4), xf(t, ks), c='0' if ks == 0 else None)

    e.wait(vm=tokX[0])
    stamp('T0 landed')
    e(f'ds_read_b128 {a(aDyn[0], 4)}, v{vXd[0]}')
    read_tile(1)
    stat_mfma(1)
    for n in range(7, 12):
        wdma(n)
    e.wait(vm=tokX[1])
    e(f'ds_read_b128 {a(aDyn[1], 4)}, v{vXd[1]}')
    read_tile(2)
    stat_mfma(2)
    e.wait(vm=tokH)
    e(f'ds_write_b128 v{vOnesAddr}, {v(vOnes, 4)}')
    e.wait_all(vm=False, lg=True)
    e('s_barrier')
    stamp('x landed')
    read_tile(0)
    vXT = [[V.alloc(4), V.alloc(4)] for _ in range(2)]
    for t in range(2):
        for z in range(2):
            mfma(vXT[t][z], a(aDyn[t], 4), v(vSel[z], 4), c='0')

    vAT = [V.alloc() for _ in range(3)]
    vBT = [V.alloc() for _ in range(3)]
    vAV = [V.alloc(4) for _ in range(3)]
    vBV = [V.alloc(4) for _ in range(3)]
    vA2 = [V.alloc(4) for _ in range(2)]
    vB2 = [V.alloc(4) for _ in range(2)]
    vSS = vGr
    vTm = [[V.alloc() for _ in range(4)] for _ in range(3)]
    sEps, sInv = sMask + 14, sMask + 15
    e(f's_mov_b32 s{sEps}, {f32(1e-5)}')
    e(f's_mov_b32 s{sInv}, {f32(1.0 / 448)}')

    def stats(ts, with_h):
        for t in ts:
            d = vTm[t][0]
            e(f'v_cndmask_b32 v{d}, 0, v{vGr[t]}, {s(sDg, 2)}')
            for r in range(1, 4):
                e(f'v_cndmask_b32 v{d}, v{d}, v{vGr[t] + r}, {s(sDg + 2 * r, 2)}')
        for t in ts:
            mfma32(vSS[t], vOneF, vTm[t][0])
        for t in ts:
            e(f'v_mul_f32 v{vTm[t][1]}, s{sInv}, v{vSm[t]}')
        for t in ts:
            e(f'v_mul_f32 v{vTm[t][2]}, v{vTm[t][1]}, v{vTm[t][1]}')
        for t in ts:
            e(f'v_fma_f32 v{vTm[t][2]}, v{vSS[t]}, s{sInv}, -v{vTm[t][2]}')
        for t in ts:
            e(f'v_max_f32 v{vTm[t][2]}, 0, v{vTm[t][2]}')
        for t in ts:
            e(f'v_add_f32 v{vTm[t][3]}, s{sEps}, v{vTm[t][2]}')
        for t in ts:
            e(f'v_rsq_f32 v{vAT[t]}, v{vTm[t][3]}')
        for t in ts:
            e(f'v_mul_f32_e64 v{vBT[t]}, -v{vTm[t][1]}, v{vAT[t]}')
        if with_h:
            for t in ts:
                e(f'v_mul_f32 v{vTm[t][3]}, v{vAT[t]}, v{vAT[t]}')
            for t in ts:
                e(f'v_fma_f32 v{vTm[t][3]}, v{vTm[t][3]}, v{vTm[t][2]}, s{sEps}')
            for t in ts:
                e(f'v_rsq_f32 v{vTm[t][3]}, v{vTm[t][3]}')
            for t in ts:
                e(f'v_mul_f32 v{vTm[t][1]}, v{vAT[t]}, v{vTm[t][3]}')
                e(f'v_mul_f32 v{vTm[t][2]}, v{vBT[t]}, v{vTm[t][3]}')
            for t in ts:
                mfma32(vA2[t - 1], vTm[t][1], vSelG0)
                mfma32(vB2[t - 1], vTm[t][2], vSelG0)

    stats((1, 2), True)
    vHf = [V.alloc(4), V.alloc(4)]
    for z in range(2):
        for t in range(2):
            for r in range(4):
                e(f'v_fma_f32 v{vXT[t][z] + r}, v{vXT[t][z] + r}, v{vA2[t] + r}, v{vB2[t] + r}')
            for r in range(2):
                e(f'v_cvt_pk_bf16_f32 v{vHf[z] + 2 * t + r}, v{vXT[t][z] + 2 * r}, v{vXT[t][z] + 2 * r + 1}')
    sK32 = sA
    e(f's_lshl_b32 s{sK32}, s{sI}, 2')
    e(f's_add_u32 s{sK32}, s{sK32}, s{sW}')
    e(f's_lshl_b32 s3, s{sJ}, 7')
    e(f's_add_u32 s3, s3, s{sK32}')
    e(f's_lshl_b32 s3, s3, 10')
    e(f's_cmp_lt_u32 s{sJ}, 14')
    e(f's_cselect_b32 s{sB}, 0, {OOB}')
    e(f's_add_u32 s3, s3, s{sB}')
    e(f'buffer_store_dwordx4 {v(vHf[0], 4)}, v{vL16}, {srd(WS)}, s3 offen sc1')
    e(f's_add_u32 s3, s3, 65536')
    tokHst = e(f'buffer_store_dwordx4 {v(vHf[1], 4)}, v{vL16}, {srd(WS)}, s3 offen sc1')
    vNon = V.alloc()
    vZero = V.alloc()
    e(f'v_mov_b32 v{vZero}, 0')
    e(f'buffer_load_dword v{vNon}, v{vZero}, {srd(DBG)}, 0 offen sc1')
    for n in range(12, 21):
        wdma(n)
    stamp('h stored')
    stat_mfma(0)
    stats((0,), False)
    for t in range(3):
        mfma32(vAV[t], vAT[t], vSelG0)
        mfma32(vBV[t], vBT[t], vSelG0)

    vQ = [[V.alloc(4), V.alloc(4)] for _ in range(3)]
    vK = [[V.alloc(4), V.alloc(4)] for _ in range(3)]
    vV = [[V.alloc(4), V.alloc(4)] for _ in range(3)]
    NWF = 8
    aWf = [168 + 4 * k for k in range(NWF)]
    sW1o, sHo = sC, sE
    rot16 = sT3

    def w1_setup():
        if P['rot']:
            e(f's_mul_i32 s{rot16}, s{sD}, 37')
            e(f's_lshr_b32 s{rot16}, s{rot16}, 4')
        else:
            e(f's_mov_b32 s{rot16}, 0')

    sW1b = sMask + 5

    def slot_of(q):
        return (q % NSLOT) * SLOT

    tokS = {}

    def w1_dma(q):
        e(f's_add_u32 s3, s{sRot}, {q}')
        e(f's_and_b32 s3, s3, 15')
        e(f's_mul_i32 s3, s3, {128 * 3584}')
        e(f's_add_u32 s3, s3, s{sW1b}')
        for k in range(4):
            tokS[q] = dma(W1, vD1[k], 3, sM, slot_of(q), off=k * 1024, setm0=(k == 0))

    sRot = sC
    if P['rot']:
        e(f's_mul_i32 s{sRot}, s{sD}, 37')
        e(f's_lshr_b32 s{sRot}, s{sRot}, 4')
    else:
        e(f's_mov_b32 s{sRot}, 0')
    e(f's_mul_i32 s{sW1b}, s{sW}, {32 * 3584}')
    e(f's_lshl_b32 s3, s{sFT}, 7')
    e(f's_add_u32 s{sW1b}, s{sW1b}, s3')

    frs = [(ks, part, t) for ks in range(14) for part in range(3) for t in range(2)]

    def wread(i):
        ks, part, t = frs[i]
        if part == 0 and t == 0 and ks % 2 == 0:
            st = ks // 2
            e.wait(vm=tokW[3 * st + 2])
            if st == 0:
                e.wait_all(vm=False, lg=True)
            e('s_barrier')
            if st == 0:
                stamp('W0')
                for q in range(4):
                    w1_dma(q)
            if st == 4:
                e(f'v_readfirstlane_b32 s{sNon}, v{vNon}')
                e(f's_cmp_lg_u32 s{sNon}, 0')
                e(f's_cbranch_scc1 L_nonce_ok')
                e(f's_mov_b32 s{sCnt}, 0')
                e.label('L_nonce')
                e.raw(f'    buffer_load_dword v{vNon}, v{vZero}, {srd(DBG)}, 0 offen sc1')
                e.raw(f'    s_add_u32 s{sCnt}, s{sCnt}, 1')
                e.raw(f'    s_waitcnt vmcnt(0)')
                e.raw(f'    v_readfirstlane_b32 s{sNon}, v{vNon}')
                e.raw(f'    s_cmp_ge_u32 s{sCnt}, {P["spin"]}')
                e.raw(f'    s_cbranch_scc1 L_nonce_ok')
                e.raw(f'    s_cmp_eq_u32 s{sNon}, 0')
                e.raw(f'    s_cbranch_scc1 L_nonce')
                e.label('L_nonce_ok')
                e(f's_lshl_b32 s3, s{sJ}, 6')
                e(f's_add_u32 s3, s3, s{sK32}')
                e(f's_lshl_b32 s3, s3, 2')
                e(f's_add_u32 s3, s3, s{sB}')
                e(f's_add_u32 s3, s3, {HF_OFF}')
                e(f'v_lshlrev_b32 v{vFl}, 24, v{vLane}')
                e(f'buffer_store_dword v{vNon}, v{vFl}, {srd(WS)}, s3 offen sc1')
                stamp('hflag')
        n = 3 * (ks // 2) + part
        for h in range(2):
            ad = wchunk(n, 2 * (ks & 1) + h)
            b = 1 if ad >= 131072 else 0
            e(f'ds_read_b64_tr_b16 {a(aWf[i % NWF] + 2 * h, 2)}, v{vWr[b][t]} offset:{ad - 65536 * (b + 1)}')

    vFl = t3
    DFW = 4
    for i in range(DFW):
        wread(i)
    for i, (ks, part, t) in enumerate(frs):
        wf = a(aWf[i % NWF], 4)
        c = '0' if ks == 0 else None
        if part == 0:
            mfma(vQ[1][t], wf, xf(1, ks), c)
            if i + DFW < len(frs):
                wread(i + DFW)
            mfma(vQ[2][t], wf, xf(2, ks), c)
            mfma(vQ[0][t], wf, v(vOnes, 4), c)
        elif part == 1:
            mfma(vK[0][t], wf, xf(0, ks), c)
            if i + DFW < len(frs):
                wread(i + DFW)
            mfma(vK[1][t], wf, xf(1, ks), c)
            mfma(vK[2][t], wf, xf(2, ks), c)
        else:
            mfma(vV[0][t], xf(0, ks), wf, c)
            if i + DFW < len(frs):
                wread(i + DFW)
            mfma(vV[1][t], xf(1, ks), wf, c)
            mfma(vV[2][t], xf(2, ks), wf, c)
    e.wait_all(vm=False, lg=True)
    e('s_barrier')
    stamp('qkv done')
    for q in range(4, NSLOT):
        w1_dma(q)

    m_att = V.mark()
    vCk = [vHf[0], vHf[1]]
    vCv = [vGr[0], vGr[1]]
    sPar, sCur0, sCur1, sG3, sInvd = sMask + 6, sMask + 8, sMask + 10, sMask + 12, sMask
    par = lambda l: l & 1
    cur = lambda l, z: 4 * (l >> 4) + 2 * z + (l & 1) <= (l & 15)
    setmask(sPar, lanemask(par))
    setmask(sCur0, lanemask(lambda l: cur(l, 0)))
    setmask(sCur1, lanemask(lambda l: cur(l, 1)))
    setmask(sG3, lanemask(lambda l: (l >> 4) == 3))
    e(f's_cmp_eq_u32 s{sK32}, 0')
    e(f's_cselect_b64 {s(sInvd, 2)}, 0, -1')
    for n in range(2):
        mfma32(vCv[n], vSelG0, vV[0][n])
    for n in range(2):
        for r in range(4):
            e(f'v_mov_b32_dpp v{vCk[n] + r}, v{vK[0][n] + r} row_newbcast:0 row_mask:0xf bank_mask:0xf')
    vQf = [None, vSel[0], vSel[1]]
    vKf = [vA2[0], vA2[1], vGr[2]]
    vVf = [vSm[0], vSm[0] + 6]

    def norm_T(acc, cs, t, dst):
        for n in range(2):
            for r in range(4):
                e(f'v_mul_f32 v{acc[n] + r}, v{vAT[t]}, v{acc[n] + r}')
                e(f'v_fmac_f32 v{acc[n] + r}, v{vBT[t]}, v{cs[n] + r}')
            for r in range(2):
                e(f'v_cvt_pk_bf16_f32 v{dst + 2 * n + r}, v{acc[n] + 2 * r}, v{acc[n] + 2 * r + 1}')

    for t in (1, 2):
        norm_T(vQ[t], vQ[0], t, vQf[t])
        for r in (2, 3):
            e(f'v_cndmask_b32 v{vQf[t] + r}, v{vQf[t] + r}, 0, {s(sG3, 2)}')
    for t in range(3):
        norm_T(vK[t], vCk, t, vKf[t])
    vS = [[vXT[0][0], vXT[0][1]], [vXT[1][0], vXT[1][1]]]
    for t in (1, 2):
        mfma(vS[t - 1][0], v(vKf[t - 1], 4), v(vQf[t], 4), '0')
        mfma(vS[t - 1][1], v(vKf[t], 4), v(vQf[t], 4), '0')
    for n in range(2):
        for t in range(3):
            for r in range(4):
                e(f'v_mul_f32 v{vV[t][n] + r}, v{vAV[t] + r}, v{vV[t][n] + r}')
                e(f'v_fmac_f32 v{vV[t][n] + r}, v{vBV[t] + r}, v{vCv[n]}')
            for r in range(2):
                e(f'v_cvt_pk_bf16_f32 v{vVf[n] + 2 * t + r}, v{vV[t][n] + 2 * r}, v{vV[t][n] + 2 * r + 1}')
    vMk = vOnes
    vNeg = vOnesAddr
    e(f'v_mov_b32 v{t0}, 0xffff')
    e(f'v_mov_b32 v{t1}, 0xffff0000')
    e(f'v_cndmask_b32 v{t0}, v{t0}, v{t1}, {s(sPar, 2)}')
    for z, sc in ((0, sCur0), (1, sCur1)):
        e(f'v_cndmask_b32 v{vMk + z}, v{t0}, 0, {s(sc, 2)}')
        e(f'v_cndmask_b32 v{vMk + 2 + z}, 0, v{t0}, {s(sc, 2)}')
    e(f'v_mov_b32 v{vNeg}, {f32(-1e30)}')
    sC1 = sEps
    e(f's_mov_b32 s{sC1}, {f32(28 ** -0.5 * math.log2(math.e))}')
    L = [[vTm[0][0], vTm[0][1]], [vTm[1][0], vTm[1][1]]]
    Mx = [vTm[0][2], vTm[1][2]]
    Tm = [vTm[0][3], vTm[1][3]]
    T = range(2)
    for z, sc in ((0, sCur0), (1, sCur1)):
        for t in T:
            e(f'v_cndmask_b32 v{L[t][z]}, v{vS[t][0] + 2 * z}, v{vS[t][0] + 2 * z + 1}, {s(sPar, 2)}')
            if t == 0:
                e(f'v_cndmask_b32 v{L[t][z]}, v{vNeg}, v{L[t][z]}, {s(sInvd, 2)}')
            e(f'v_cndmask_b32 v{Tm[t]}, v{vS[t][1] + 2 * z}, v{vS[t][1] + 2 * z + 1}, {s(sPar, 2)}')
            e(f'v_cndmask_b32 v{L[t][z]}, v{L[t][z]}, v{Tm[t]}, {s(sc, 2)}')
    for t in T:
        e(f'v_max_f32 v{Mx[t]}, v{L[t][0]}, v{L[t][1]}')
    for sw in ('v_permlane16_swap_b32', 'v_permlane32_swap_b32'):
        for t in T:
            e(f'v_mov_b32 v{Tm[t]}, v{Mx[t]}')
        for t in T:
            e(f'{sw} v{Mx[t]}, v{Tm[t]}')
        for t in T:
            e(f'v_max_f32 v{Mx[t]}, v{Mx[t]}, v{Tm[t]}')
    for t in T:
        for z in range(2):
            e(f'v_sub_f32 v{L[t][z]}, v{L[t][z]}, v{Mx[t]}')
    for t in T:
        for z in range(2):
            e(f'v_mul_f32 v{L[t][z]}, s{sC1}, v{L[t][z]}')
    for t in T:
        for z in range(2):
            e(f'v_exp_f32 v{L[t][z]}, v{L[t][z]}')
    for t in T:
        e(f'v_add_f32 v{Mx[t]}, v{L[t][0]}, v{L[t][1]}')
    for sw in ('v_permlane16_swap_b32', 'v_permlane32_swap_b32'):
        for t in T:
            e(f'v_mov_b32 v{Tm[t]}, v{Mx[t]}')
        for t in T:
            e(f'{sw} v{Mx[t]}, v{Tm[t]}')
        for t in T:
            e(f'v_add_f32 v{Mx[t]}, v{Mx[t]}, v{Tm[t]}')
    for t in T:
        e(f'v_rcp_f32 v{Mx[t]}, v{Mx[t]}')
    for t in T:
        for z in range(2):
            e(f'v_mul_f32 v{L[t][z]}, v{L[t][z]}, v{Mx[t]}')
    for t in T:
        for z in range(2):
            e(f'v_cvt_pk_bf16_f32 v{L[t][z]}, v{L[t][z]}, v{L[t][z]}')
    vPf = [vB2[0], vB2[1]]
    for t in T:
        for k in range(4):
            e(f'v_and_b32 v{vPf[t] + k}, v{L[t][k & 1]}, v{vMk + k}')
    vO = [[vQ[1][0], vQ[1][1]], [vQ[2][0], vQ[2][1]]]
    for t in T:
        for n in range(2):
            mfma(vO[t][n], v(vVf[n] + 2 * t, 4), v(vPf[t], 4), '0')
    vOf = [vHf[0], vHf[1]]
    e(f's_lshl_b32 s3, s{sK32}, 5')
    e(f's_add_u32 s3, s3, s{sJ}')
    e(f's_lshl_b32 s3, s3, 10')
    e(f's_add_u32 s3, s3, {O_OFF}')
    for t in T:
        for n in range(2):
            for r in range(2):
                e(f'v_cvt_pk_bf16_f32 v{vOf[t] + 2 * n + r}, v{vO[t][n] + 2 * r}, v{vO[t][n] + 2 * r + 1}')
        for r in (2, 3):
            e(f'v_cndmask_b32 v{vOf[t] + r}, v{vOf[t] + r}, 0, {s(sG3, 2)}')
        if t == 1:
            e(f's_add_u32 s3, s3, 16384')
        tokO = e(f'buffer_store_dwordx4 {v(vOf[t], 4)}, v{vL16}, {srd(WS)}, s3 offen sc1')
    stamp('attn done')

    keepNon = gemm_mark
    V.reset(gemm_mark)
    vN = V.alloc()
    e(f'v_mov_b32 v{vN}, s{sNon}')
    vAcc = [V.alloc(4) for _ in range(4)]
    NF = 8
    vFr = [V.alloc(4) for _ in range(NF)]
    vD2 = [V.alloc() for _ in range(4)]
    vDo = [V.alloc() for _ in range(2)]
    vPo = V.alloc()
    vPt = V.alloc()
    vB1 = V.alloc(8)
    vXo = [V.alloc(4), V.alloc(4)]
    vBo = [V.alloc(), V.alloc()]
    vOo = V.alloc()
    vU = [V.alloc(4), V.alloc(4)]
    vE = [V.alloc(4) for _ in range(4)]
    vWof = [V.alloc(4) for _ in range(2)]
    sOfl = sMask
    e(f's_lshl_b32 s{sOfl}, s{sK32}, 5')
    e(f's_add_u32 s{sOfl}, s{sOfl}, s{sJ}')
    e(f's_lshl_b32 s{sOfl}, s{sOfl}, 2')
    e(f's_add_u32 s{sOfl}, s{sOfl}, {OF_OFF}')

    def oflag():
        e.wait(vm=tokO)
        e(f'buffer_store_dword v{vN}, v{vFl}, {srd(WS)}, s{sOfl} offen sc1')

    sW2b, sUb, sOb, sWob, sRot2, sUfl = sMask + 1, sMask + 2, sMask + 3, sMask + 4, sMask + 6, sMask + 7
    e(f'v_lshl_add_u32 v{vD2[0]}, v{vR8}, 12, v{vSw}')
    for q in range(1, 4):
        e(f'v_add_u32 v{vD2[q]}, {q * (8 * 4096 - 1024)}, v{vD2[0]}')
    e(f'v_mul_u32_u24 v{t0}, 896, v{vR8}')
    e(f'v_add_u32 v{vDo[0]}, v{t0}, v{vSw}')
    e(f'v_add_u32 v{vDo[1]}, {8 * 896 - 1024}, v{vDo[0]}')
    e(f'v_lshl_add_u32 v{vOo}, v{vC8}, 4, v{t0}')
    e(f's_lshl_b32 s{sW2b}, s{sW}, 17')
    e(f's_lshl_b32 s3, s{sS}, 7')
    e(f's_add_u32 s{sW2b}, s{sW2b}, s3')
    e(f's_lshl_b32 s3, s{sD2}, 2')
    e(f's_add_u32 s3, s3, s{sW}')
    e(f's_mul_i32 s{sUb}, s3, 57344')
    e(f's_add_u32 s{sUb}, s{sUb}, {U_OFF}')
    e(f's_lshl_b32 s3, s{sS}, 2')
    e(f's_add_u32 s3, s3, s{sW}')
    e(f's_lshl_b32 s{sOb}, s3, 14')
    e(f's_add_u32 s{sOb}, s{sOb}, {O_OFF - 2048}')
    e(f's_mul_i32 s{sWob}, s{sT0}, {28 * 896}')
    e(f's_mul_i32 s3, s{sT1}, {16 * 896}')
    e(f's_add_u32 s{sWob}, s{sWob}, s3')
    e(f's_lshl_b32 s3, s{sD2}, 7')
    e(f's_add_u32 s{sWob}, s{sWob}, s3')
    if P['rot']:
        e(f's_lshl_b32 s{sRot2}, s{sD2}, 1')
    else:
        e(f's_mov_b32 s{sRot2}, 0')

    def o_dma(n):
        q = 16 + n
        e(f's_add_u32 s3, s{sWob}, {n * 56 * 896}')
        dma(WO, vDo[0], 3, sM, slot_of(q))
        dma(WO, vDo[1], 3, sM, 0, off=1024, setm0=False)
        e(f's_add_u32 s3, s{sOb}, {n * 2048}')
        dma(WS, vL16, 3, sM, 0, off=2048, mod=' sc1', setm0=False)
        tokS[q] = dma(WS, vL16, 3, sM, 0, off=3072, mod=' sc1', setm0=False)

    def rot14(n):
        e(f's_add_u32 s3, s{sRot2}, {n}')
        e(f's_sub_u32 s{sT2}, s3, 14')
        e(f's_cmp_ge_u32 s3, 14')
        e(f's_cselect_b32 s3, s{sT2}, s3')

    def w2_dma(n):
        q = 24 + n
        rot14(n)
        e(f's_lshl_b32 s3, s3, 19')
        e(f's_add_u32 s3, s3, s{sW2b}')
        for k in range(4):
            tokS[q] = dma(W2, vD2[k], 3, sM, slot_of(q), off=k * 1024, setm0=(k == 0))

    def stage_dma(q):
        if q < 16:
            w1_dma(q)
        elif q < 24:
            o_dma(q - 16)
        elif q < 38:
            w2_dma(q - 24)

    def poll_o():
        e(f's_lshl_b32 s3, s{sS}, 1')
        e(f's_add_u32 s3, s3, s{sT0}')
        e(f's_lshl_b32 s3, s3, 7')
        e(f's_add_u32 s3, s3, {OF_OFF}')
        e(f'v_lshlrev_b32 v{vPo}, 2, v{vL15}')
        poll(vPo, 3, vPt, 8)

    e(f's_cmp_eq_u32 s{sG1}, 0')
    e(f's_cbranch_scc1 L_nog1')

    e(f'v_lshlrev_b32 v{t0}, 3, v{vG}')
    e(f's_lshl_b32 s3, s{sFT}, 7')
    for T_ in range(4):
        e(f'buffer_load_dwordx2 {v(vB1 + 2 * T_, 2)}, v{t0}, {srd(B1)}, s3 offen offset:{32 * T_}')
    e(f's_lshl_b32 s3, s{sD}, 1')
    e(f's_add_u32 s3, s3, s{sT0}')
    e(f's_lshl_b32 s3, s3, 8')
    e(f's_add_u32 s3, s3, {HF_OFF}')
    e(f'v_lshlrev_b32 v{vPo}, 2, v{vLane}')
    poll(vPo, 3, vPt, 4)
    stamp('h ok')
    oflag()
    sHb = sE
    e(f's_lshl_b32 s3, s{sD}, 2')
    e(f's_add_u32 s3, s3, s{sW}')
    e(f's_lshl_b32 s{sHb}, s3, 16')
    e(f's_mul_i32 s{sA}, s3, 57344')
    e(f's_lshl_b32 s{sUfl}, s3, 5')
    e(f's_add_u32 s{sUfl}, s{sUfl}, s{sFT}')
    e(f's_lshl_b32 s{sUfl}, s{sUfl}, 2')
    e(f's_add_u32 s{sUfl}, s{sUfl}, {UF_OFF}')
    e(f's_lshl_b32 s3, s{sFT}, 11')
    e(f's_add_u32 s{sA}, s{sA}, s3')
    e(f's_add_u32 s{sA}, s{sA}, {U_OFF}')

    def bf(n, ks):
        return a(((n % 16) * 4 + ks) * 4, 4)

    def h_load(n):
        e(f's_add_u32 s3, s{sRot}, {n}')
        e(f's_and_b32 s3, s3, 15')
        e(f's_lshl_b32 s3, s3, 12')
        e(f's_add_u32 s3, s3, s{sHb}')
        for ks in range(4):
            e(f'buffer_load_dwordx4 {bf(n, ks)}, v{vL16}, {srd(WS)}, s3 offen offset:{ks * 1024} sc1')

    def u_load(n):
        rot14(n)
        e(f's_lshl_b32 s3, s3, 12')
        e(f's_add_u32 s3, s3, s{sUb}')
        for ks in range(4):
            e(f'buffer_load_dwordx4 {bf(n, ks)}, v{vL16}, {srd(WS)}, s3 offen offset:{ks * 1024} sc1')

    PH, DF = P['ph'], P['df']
    for n in range(PH):
        h_load(n)
    for T_ in range(4):
        e(f'v_lshlrev_b32 v{vAcc[T_]}, 16, v{vB1 + 2 * T_}')
        e(f'v_and_b32 v{vAcc[T_] + 1}, 0xffff0000, v{vB1 + 2 * T_}')
        e(f'v_lshlrev_b32 v{vAcc[T_] + 2}, 16, v{vB1 + 2 * T_ + 1}')
        e(f'v_and_b32 v{vAcc[T_] + 3}, 0xffff0000, v{vB1 + 2 * T_ + 1}')

    def tr_gemm(q0, nstage, at_stage, swap):
        items = [(n, ks, t) for n in range(nstage) for ks in range(4) for t in range(4)]

        def rd(i):
            n, ks, t = items[i]
            q = q0 + n
            if ks == 0 and t == 0:
                e.wait(vm=tokS[q])
                e('s_barrier')
                at_stage(n)
            for h in range(2):
                ad = slot_of(q) + ks * 4096 + h * 2048
                e(f'ds_read_b64_tr_b16 {v(vFr[i % NF] + 2 * h, 2)}, v{vPat[ad >> 16][t]} offset:{ad & 65535}')
        for i in range(DF):
            rd(i)
        for i, (n, ks, t) in enumerate(items):
            if swap:
                mfma(vAcc[t], bf(n, ks), v(vFr[i % NF], 4))
            else:
                mfma(vAcc[t], v(vFr[i % NF], 4), bf(n, ks))
            if i + DF < len(items):
                rd(i + DF)

    NPRE = 4

    def g1_stage(n):
        if n + PH < 16:
            h_load(n + PH)
        if n >= 2 and n + 8 < 16:
            w1_dma(n + 8)
        if n == 16 - NPRE:
            poll_o()
        if n >= 16 - NPRE:
            o_dma(n - (16 - NPRE))

    tr_gemm(0, 16, g1_stage, False)
    stamp('g1 done')
    c0 = -2.0 * math.sqrt(2.0 / math.pi) * math.log2(math.e)
    sG0, sG1c = sMask + 8, sMask + 9
    e(f's_mov_b32 s{sG1c}, {f32(c0 * 0.044715)}')
    e(f'v_mov_b32 v{t0}, {f32(c0)}')
    for half in range(2):
        rs = [(T_, r) for T_ in (2 * half, 2 * half + 1) for r in range(4)]
        for T_, r in rs:
            e(f'v_mul_f32 v{vE[T_] + r}, v{vAcc[T_] + r}, v{vAcc[T_] + r}')
        for T_, r in rs:
            e(f'v_fma_f32 v{vE[T_] + r}, v{vE[T_] + r}, s{sG1c}, v{t0}')
        for T_, r in rs:
            e(f'v_mul_f32 v{vE[T_] + r}, v{vE[T_] + r}, v{vAcc[T_] + r}')
        for T_, r in rs:
            e(f'v_exp_f32 v{vE[T_] + r}, v{vE[T_] + r}')
        for T_, r in rs:
            e(f'v_add_f32 v{vE[T_] + r}, 1.0, v{vE[T_] + r}')
        for T_, r in rs:
            e(f'v_rcp_f32 v{vE[T_] + r}, v{vE[T_] + r}')
        for T_, r in rs:
            e(f'v_mul_f32 v{vE[T_] + r}, v{vE[T_] + r}, v{vAcc[T_] + r}')
        for k in range(4):
            T_ = 2 * half + (k >> 1)
            e(f'v_cvt_pk_bf16_f32 v{vU[half] + k}, v{vE[T_] + 2 * (k & 1)}, v{vE[T_] + 2 * (k & 1) + 1}')
        tokU = e(f'buffer_store_dwordx4 {v(vU[half], 4)}, v{vL16}, {srd(WS)}, s{sA} offen offset:{half * 1024} sc1')
    stamp('u stored')
    e('s_branch L_f')

    save = (e.vm_n, e.vm_done, e.lg_n, e.lg_done, dict(e.pvm), dict(e.plg), dict(tokS), nst[0])
    e.label('L_nog1')
    e.wait_all(force=True)
    e(f'buffer_store_dword v{vN}, v{vFl}, {srd(WS)}, s{sOfl} offen sc1')
    e(f's_cmp_eq_u32 s{sF}, 0')
    e(f's_cbranch_scc1 L_fin')
    e(f's_mov_b32 s{sUfl}, {OOB}')
    e('s_barrier')
    poll_o()
    for n in range(NPRE):
        o_dma(n)
    e.wait_all(force=True)
    e.pad(4)
    e.vm_n, e.vm_done, e.lg_n, e.lg_done, e.pvm, e.plg, tk, nst[0] = save
    tokS.clear()
    tokS.update(tk)

    e.label('L_f')
    for n in range(NPRE, 8):
        o_dma(n)
    e(f's_lshl_b32 s3, s{sS}, 2')
    e(f's_add_u32 s3, s3, s{sW}')
    e(f's_lshl_b32 s{sB}, s3, 5')
    e(f's_mul_i32 s{sA}, s3, {16 * 896}')
    e(f's_lshl_b32 s3, s{sD2}, 7')
    e(f's_add_u32 s{sA}, s{sA}, s3')
    e(f's_add_u32 s{sE}, s{sA}, {8 * 896}')
    e(f'v_lshlrev_b32 v{t0}, 1, v{vR8}')
    items = [(n, hh, T_) for n in range(8) for hh in range(2) for T_ in range(4)]

    def ord_(i):
        n, hh, T_ = items[i]
        q = 16 + n
        if hh == 0 and T_ == 0:
            e.wait(vm=tokS[q])
            if n == NPRE:
                e(f'buffer_store_dword v{vN}, v{vFl}, {srd(WS)}, s{sUfl} offen sc1')
                stamp('uflag')
            e('s_barrier')
            stage_dma(q + 8)
        if T_ == 0:
            for h in range(2):
                ad = slot_of(q) + (2 * hh + h) * 4096
                e(f'ds_read_b64_tr_b16 {v(vWof[hh] + 2 * h, 2)}, v{vPatW[ad >> 16]} offset:{ad & 65535}')
        ad = slot_of(q) + T_ * 4096 + 2048 + hh * 1024
        e(f'ds_read_b128 {v(vFr[i % NF], 4)}, v{vLin[ad >> 16]} offset:{ad & 65535}')

    DO = 4
    for i in range(DO):
        ord_(i)
    for i, (n, hh, T_) in enumerate(items):
        mfma(vAcc[T_], v(vWof[hh], 4), v(vFr[i % NF], 4), '0' if i < 4 else None)
        if i + DO < len(items):
            ord_(i + DO)
    e.wait_all(vm=False, lg=True)
    e('s_barrier')
    stamp('o part done')
    stage_dma(32)
    stage_dma(33)
    for q_ in range(2):
        e(f'buffer_load_dwordx4 {v(vXo[q_], 4)}, v{vOo}, {srd(X)}, s{sE if q_ else sA} offen')
        e(f'buffer_load_ushort v{vBo[q_]}, v{t0}, {srd(B2)}, s{sB} offen offset:{16 * q_}')
    e(f's_lshl_b32 s3, s{sD2}, 2')
    e(f's_add_u32 s3, s3, s{sW}')
    e(f's_lshl_b32 s3, s3, 7')
    e(f's_add_u32 s3, s3, {UF_OFF}')
    e(f'v_min_u32 v{vPo}, 27, v{vLane}')
    e(f'v_lshlrev_b32 v{vPo}, 2, v{vPo}')
    poll(vPo, 3, vPt, 8)
    stamp('u ok')
    for n in range(PH):
        u_load(n)

    def f_stage(n):
        if n + PH < 14:
            u_load(n + PH)
        if n >= 2 and n + 8 < 14:
            w2_dma(n + 8)

    tr_gemm(24, 14, f_stage, True)
    stamp('f done')
    vEw, vEr0, vEr1 = t1, t2, vPo
    e(f's_lshl_b32 s3, s{sW}, 2')
    e(f'v_add_u32 v{vEw}, s3, v{vG}')
    e(f'v_xor_b32 v{vEw}, v{vEw}, v{vC8}')
    e(f'v_lshlrev_b32 v{vEw}, 4, v{vEw}')
    e(f'v_lshl_add_u32 v{vEw}, v{vL15}, 8, v{vEw}')
    e(f'v_lshlrev_b32 v{vEr0}, 1, v{vC8}')
    e(f'v_xor_b32 v{vEr0}, v{vEr0}, v{vR8}')
    e(f'v_lshlrev_b32 v{vEr0}, 4, v{vEr0}')
    e(f'v_lshl_add_u32 v{vEr0}, v{vR8}, 8, v{vEr0}')
    e(f'v_add_u32 v{vEr0}, s{sM}, v{vEr0}')
    e(f'v_xor_b32 v{vEr1}, 16, v{vEr0}')
    for T_ in range(4):
        e(f'ds_write_b128 v{vEw}, {v(vAcc[T_], 4)} offset:{T_ * 4096}')
    for q_ in range(2):
        e(f'v_lshlrev_b32 v{vBo[q_]}, 16, v{vBo[q_]}')
        for k in range(4):
            d = vFr[2 * q_ + (k >> 1)] + 2 * (k & 1)
            e(f'v_lshlrev_b32 v{d}, 16, v{vXo[q_] + k}')
            e(f'v_and_b32 v{d + 1}, 0xffff0000, v{vXo[q_] + k}')
            e(f'v_add_f32 v{d}, v{d}, v{vBo[q_]}')
            e(f'v_add_f32 v{d + 1}, v{d + 1}, v{vBo[q_]}')
    e.wait_all(vm=False, lg=True)
    e('s_barrier')
    for q_ in range(2):
        e(f'ds_read_b128 {v(vE[2 * q_], 4)}, v{vEr0} offset:{q_ * 2048}')
        e(f'ds_read_b128 {v(vE[2 * q_ + 1], 4)}, v{vEr1} offset:{q_ * 2048}')
    for q_ in range(2):
        for k in range(2):
            for r in range(4):
                e(f'v_add_f32 v{vE[2 * q_ + k] + r}, v{vE[2 * q_ + k] + r}, v{vFr[2 * q_ + k] + r}')
            for r in range(2):
                e(f'v_cvt_pk_bf16_f32 v{vU[q_] + 2 * k + r}, v{vE[2 * q_ + k] + 2 * r}, v{vE[2 * q_ + k] + 2 * r + 1}')
        e(f'buffer_store_dwordx4 {v(vU[q_], 4)}, v{vOo}, {srd(OUT)}, s{sE if q_ else sA} offen')
    e.label('L_fin')
    if P['stamps']:
        e.wait_all(force=True)
        k = nst[0]
        e(f's_memrealtime s[{sT2}:{sT3}]')
        e.wait_all(vm=False, lg=True, force=True)
        e(f's_mov_b32 s{sStamp + 19}, s{sT2}')
        e(f's_memtime s[0:1]')
        e.wait_all(vm=False, lg=True, force=True)
        e(f's_mov_b32 s{sStamp + 18}, s0')
        e(f's_lshl_b32 s3, s2, 2')
        e(f's_add_u32 s3, s3, s{sW}')
        e(f's_lshl_b32 s3, s3, 7')
        e(f's_add_u32 s3, s3, {ST_OFF}')
        for k in range(20):
            e(f'v_mov_b32 v{t0}, s{sStamp + k}')
            e(f'buffer_store_dword v{t0}, v{vFl}, {srd(WS)}, s3 offen offset:{4 * k}')
    if P['dbgspan']:
        e.wait_all(force=True)
        e(f's_memrealtime s[{sT2}:{sT3}]')
        e.wait_all(vm=False, lg=True, force=True)
        e(f's_not_b32 s3, s{sStamp}')
        e(f'v_mov_b32 v{t0}, s3')
        e(f'v_mov_b32 v{t1}, s{sT2}')
        e(f's_cmp_eq_u32 s{sW}, 0')
        e(f's_cselect_b32 s3, 0, {OOB}')
        e(f'buffer_atomic_umax v{t0}, v{vFl}, {srd(DBG)}, s3 offen offset:8 sc1')
        e(f'buffer_atomic_umax v{t1}, v{vFl}, {srd(DBG)}, s3 offen offset:12 sc1')
    e.label('L_end')
    e('s_endpgm')

    hdr = open(os.path.join(os.path.dirname(os.path.abspath(__file__)), '..', NAME + '.s.ref')).read().split('; Override launch')[0]
    out = hdr + f"""; Generated by gen/gen.py (hand-written generator).
; @launch grid=(256,1,1) block=(256,1,1) lds={LDS_SIZE}
.amdgcn_target "amdgcn-amd-amdhsa--gfx950"
.text
.globl {NAME}_kernel
.p2align 8
.type {NAME}_kernel,@function
{NAME}_kernel:
""" + e.text() + f""".section .rodata,"a"
.p2align 6
.amdhsa_kernel {NAME}_kernel
  .amdhsa_next_free_vgpr 512
  .amdhsa_next_free_sgpr 102
  .amdhsa_accum_offset 256
  .amdhsa_group_segment_fixed_size 0
  .amdhsa_kernarg_size 88
  .amdhsa_user_sgpr_count 2
  .amdhsa_user_sgpr_kernarg_segment_ptr 1
  .amdhsa_system_sgpr_workgroup_id_x 1
.end_amdhsa_kernel
"""
    sys.stderr.write(f'vgpr hi {V.hi}, nops {e.nnop}, lines {len(e.lines)}\n')
    return out


if __name__ == '__main__':
    kw = {}
    path = os.path.join(os.path.dirname(os.path.abspath(__file__)), '..', NAME + '.s')
    for arg in sys.argv[1:]:
        k, val = arg.split('=')
        if k == 'out':
            path = val
        else:
            kw[k] = int(val)
    open(path, 'w').write(build(**kw))
```

```python
import re

_REG = re.compile(r'^(-|abs\()?([vas])(\d+|\[(\d+):(\d+)\])\)?$')

TRANS = ('v_exp_f32', 'v_log_f32', 'v_rcp_f32', 'v_rsq_f32', 'v_sqrt_f32')


def regs_of(tok):
    tok = tok.strip()
    if tok == 'vcc':
        return {('s', 'vcc')}
    if tok == 'exec':
        return {('s', 'exec')}
    if tok == 'm0':
        return {('s', 'm0')}
    m = _REG.match(tok)
    if not m:
        return set()
    kind = m.group(2)
    if m.group(4) is not None:
        return {(kind, i) for i in range(int(m.group(4)), int(m.group(5)) + 1)}
    return {(kind, int(m.group(3)))}


def split_ops(s):
    out, depth, cur = [], 0, ''
    for ch in s:
        if ch in '[(':
            depth += 1
        if ch in '])':
            depth -= 1
        if ch == ',' and depth == 0:
            out.append(cur.strip())
            cur = ''
        else:
            cur += ch
    if cur.strip():
        out.append(cur.strip())
    return out


class Ins:
    __slots__ = ('text', 'op', 'cls', 'wr', 'rd', 'srcA', 'srcB', 'srcC', 'states', 'dpp', 'wide_store', 'dma')

    def __init__(self, text):
        self.text = text
        t = text.split(';')[0].strip()
        parts = t.split(None, 1)
        self.op = op = parts[0]
        rest = parts[1] if len(parts) > 1 else ''
        ops = split_ops(rest)
        mods = []
        if ops:
            toks = ops[-1].split()
            ops[-1] = toks[0]
            mods = toks[1:]
        self.wr, self.rd = set(), set()
        self.srcA = self.srcB = self.srcC = set()
        self.states = 1
        self.dpp = op.endswith('_dpp')
        self.wide_store = set()
        self.dma = False
        R = [regs_of(o) for o in ops]
        if op.startswith('v_mfma'):
            self.cls = 'sgemm' if op.endswith('_f32') and 'x4_f32' in op else 'xdl'
            self.wr = R[0]
            self.srcA, self.srcB, self.srcC = R[1], R[2], R[3]
            self.rd = R[1] | R[2] | R[3]
        elif op.startswith('v_'):
            self.cls = 'valu'
            if op.startswith('v_permlane') and 'swap' in op:
                self.wr = R[0] | R[1]
                self.rd = R[0] | R[1]
            else:
                self.wr = set(R[0])
                k = 1
                if op.startswith(('v_add_co', 'v_sub_co', 'v_addc_co')):
                    self.wr |= R[1]
                    k = 2
                for r in R[k:]:
                    self.rd |= r
                if op.startswith(('v_fmac', 'v_mac')) or self.dpp:
                    self.rd |= R[0]
        elif op.startswith('ds_'):
            self.cls = 'ds'
            if op.startswith(('ds_read', 'ds_bpermute')):
                self.wr = R[0]
                for r in R[1:]:
                    self.rd |= r
            else:
                for r in R:
                    self.rd |= r
        elif op.startswith(('buffer_', 'global_')):
            self.cls = 'vmem'
            if op in ('buffer_inv', 'buffer_wbl2'):
                pass
            elif 'lds' in mods:
                self.dma = True
                for r in R:
                    self.rd |= r
                self.rd |= {('s', 'm0')}
            elif '_load' in op:
                self.wr = R[0]
                for r in R[1:]:
                    self.rd |= r
                if 'd16' in op:
                    self.rd |= R[0]
            else:
                for r in R:
                    self.rd |= r
                if op.endswith(('x4', 'x3')):
                    self.wide_store = R[0] if op.startswith('buffer') else R[1]
        elif op.startswith('s_'):
            self.cls = 'salu'
            if op == 's_nop':
                self.states = int(ops[0], 0) + 1
            elif op.startswith(('s_cmp', 's_waitcnt', 's_barrier', 's_cbranch', 's_branch', 's_endpgm', 's_sleep', 's_setprio')):
                for r in R:
                    self.rd |= r
            else:
                self.wr = R[0] if R else set()
                for r in R[1:]:
                    self.rd |= r
        else:
            raise ValueError('unknown op ' + text)


def vg(s):
    return {r for r in s if r[0] in 'va'}


def sg(s):
    return {r for r in s if r[0] == 's'}


class Asm:
    def __init__(self):
        self.lines = []
        self.hist = []
        self.vm_n = 0
        self.vm_done = 0
        self.lg_n = 0
        self.lg_done = 0
        self.pvm = {}
        self.plg = {}
        self.nnop = 0
        self.bg = []
        self.tok = {}
        self.credit = 0
        self.in_bg = False
        self.bg_on = True

    def raw(self, text):
        self.lines.append(text)

    def comment(self, text):
        self.lines.append('    ; ' + text)

    def label(self, name):
        self.lines.append(name + ':')

    def _push(self, ins):
        self.lines.append('    ' + ins.text)
        self.hist.append(ins)
        if len(self.hist) > 24:
            self.hist.pop(0)

    def wait(self, vm=None, lg=None):
        parts = []
        if vm is not None and vm > self.vm_done:
            n = min(self.vm_n - vm, 63)
            parts.append(f'vmcnt({n})')
            self.vm_done = self.vm_n - n
        if lg is not None and lg > self.lg_done:
            while self.lg_n - lg < self.smem_out:
                self._push(Ins(self.dummy_ds))
                self.lg_n += 1
            n = min(self.lg_n - lg, 15)
            parts.append(f'lgkmcnt({n})')
            self.lg_done = self.lg_n - n
        if parts:
            self._push(Ins('s_waitcnt ' + ' '.join(parts)))

    def wait_all(self, vm=True, lg=True, force=False):
        parts = []
        if vm and (force or self.vm_done < self.vm_n):
            parts.append('vmcnt(0)')
            self.vm_done = self.vm_n
        if lg and not force and self.smem_out:
            self.wait(lg=self.lg_n)
        elif lg and (force or self.lg_done < self.lg_n):
            parts.append('lgkmcnt(0)')
            self.lg_done = self.lg_n
            self.smem_out = 0
        if parts:
            self._push(Ins('s_waitcnt ' + ' '.join(parts)))

    def _need(self, ins):
        need = 0
        dist = 0
        mf = ins.cls in ('xdl', 'sgemm')
        rdv, wrv = vg(ins.rd), vg(ins.wr)
        for p in reversed(self.hist):
            req = 0
            pw = vg(p.wr)
            if p.cls == 'valu':
                if p.op.startswith('v_dot') and ins.op != p.op and pw & (rdv | wrv):
                    req = max(req, 3)
                if mf and pw & rdv:
                    req = max(req, 2)
                if ins.cls == 'valu':
                    if p.op.replace('_e32', '').replace('_e64', '') in TRANS and pw & rdv:
                        req = max(req, 1)
                    if ins.op.startswith(('v_readfirstlane', 'v_readlane')) and pw & rdv:
                        req = max(req, 1)
                    if (ins.dpp or ins.op.startswith('v_permlane')) and pw & rdv:
                        req = max(req, 2)
                    if sg(p.wr) & sg(ins.rd):
                        req = max(req, 2)
                if ins.cls == 'vmem' and sg(p.wr) & sg(ins.rd):
                    req = max(req, 5)
                if ins.cls == 'salu' and sg(p.wr) & sg(ins.rd):
                    req = max(req, 1)
            elif p.cls in ('xdl', 'sgemm'):
                big = '32x32' in p.op
                lat = (12 if big else 8) if p.cls == 'xdl' else 10
                if mf:
                    if pw & (vg(ins.srcA) | vg(ins.srcB)):
                        req = max(req, lat)
                    c = vg(ins.srcC)
                    if pw & c and not (pw == c and p.cls == ins.cls):
                        req = max(req, lat)
                    if pw & wrv and not (pw == c and p.cls == ins.cls):
                        req = max(req, lat)
                elif ins.cls in ('valu', 'vmem', 'ds'):
                    if pw & (rdv | wrv):
                        req = max(req, lat)
                    if ins.cls == 'valu' and p.cls == 'xdl' and vg(p.srcC) & wrv:
                        req = max(req, 7 if big else 3)
            elif p.cls == 'salu':
                if ins.dma and ('s', 'm0') in p.wr:
                    req = max(req, 1)
            elif p.cls == 'vmem':
                if p.wide_store & wrv:
                    req = max(req, 2)
            need = max(need, req - dist)
            dist += p.states
            if dist >= 13:
                break
        return need

    def __call__(self, text):
        ins = Ins(text)
        if ins.cls == 'salu':
            uses = ins.op.startswith(('s_cselect', 's_cbranch_scc', 's_addc'))
            sets = ins.op.startswith(('s_cmp', 's_add', 's_sub', 's_and', 's_or', 's_xor', 's_lsh', 's_min', 's_max', 's_not', 's_bfe'))
            if uses:
                assert self.scc_owner == self.in_bg, 'SCC clobbered by the other stream: ' + text
            if sets:
                if not self.in_bg:
                    self.bg_settle()
                self.scc_owner = self.in_bg
        touched = vg(ins.rd) | vg(ins.wr)
        v = max([self.pvm.get(r, 0) for r in touched], default=0)
        l = max([self.plg.get(r, 0) for r in touched], default=0)
        self.wait(vm=v or None, lg=l or None)
        n = self._need(ins)
        if n > 0:
            self.nnop += n
            self._push(Ins(f's_nop {n - 1}'))
        self._push(ins)
        ret = None
        if ins.cls == 'vmem':
            self.vm_n += 1
            for r in ins.wr:
                self.pvm[r] = self.vm_n
            ret = self.vm_n
        if ins.cls == 'ds':
            self.lg_n += 1
            for r in ins.wr:
                self.plg[r] = self.lg_n
            ret = self.lg_n
        self._tick(ins)
        return ret

    def bg_add(self, key, fn, gap):
        self.bg.append((key, fn, gap))

    def _bg_pop(self):
        key, fn, gap = self.bg.pop(0)
        self.in_bg = True
        for ins in fn:
            t = self(ins)
        self.in_bg = False
        if key is not None:
            self.tok[key] = t
        self.credit = max(min(self.credit, 0), -31) + gap

    def bg_step(self):
        if not self.bg:
            return False
        key, fn, gap = self.bg[0]
        if len(fn) > 1:
            self.in_bg = True
            self(fn[0])
            self.in_bg = False
            self.bg[0] = (key, fn[1:], gap)
            return True
        if self.credit <= 0:
            self._bg_pop()
            return True
        return False

    def bg_settle(self):
        for i, (key, fn, gap) in enumerate(self.bg):
            if fn[0].startswith('s_cselect'):
                self.in_bg = True
                self(fn[0])
                self.in_bg = False
                self.bg[i] = (key, fn[1:], gap)

    def bg_flush(self, key=None):
        if key is not None and not any(k == key for k, _, _ in self.bg):
            return
        while self.bg:
            k = self.bg[0][0]
            self._bg_pop()
            if key is not None and k == key:
                break

    def need(self, key):
        self.bg_flush(key)
        self.wait(vm=self.tok[key])

    def _tick(self, ins):
        if self.in_bg:
            return
        c = {'xdl': 16, 'sgemm': 32}.get(ins.cls, 4)
        if '32x32' in ins.op:
            c = 32
        if ins.op.replace('_e32', '').replace('_e64', '') in TRANS:
            c = 8
        if ins.cls == 'ds' and self.ds_free:
            c = 0
        self.credit -= c
        if self.bg_on and self.bg and self.credit <= 0 and ins.cls in ('valu', 'xdl', 'sgemm', 'ds') and not sg(ins.wr):
            self._bg_pop()

    ds_free = False
    smem_out = 0
    dummy_ds = None
    scc_owner = False

    def many(self, text):
        for line in text.strip().split('\n'):
            line = line.strip()
            if line and not line.startswith(';'):
                self(line)

    def merge(self, main, fill, per=1, every=1):
        fill = list(fill)
        for i, t in enumerate(main):
            self(t)
            if (i + 1) % every == 0:
                for _ in range(per):
                    if fill:
                        self(fill.pop(0))
        for t in fill:
            self(t)

    def pad(self, n=12):
        self._push(Ins(f's_nop {n - 1}'))

    def text(self):
        return '\n'.join(self.lines) + '\n'


class Regs:
    def __init__(self, kind, start, end):
        self.kind, self.next, self.end = kind, start, end
        self.hi = start

    def alloc(self, n=1, align=None):
        if align is None:
            align = 2 if n > 1 else 1
        self.next = (self.next + align - 1) // align * align
        r = self.next
        self.next += n
        assert self.next <= self.end, f'out of {self.kind} regs'
        self.hi = max(self.hi, self.next)
        return r

    def mark(self):
        return self.next

    def reset(self, m):
        self.next = m


def v(i, n=1):
    return f'v{i}' if n == 1 else f'v[{i}:{i + n - 1}]'


def a(i, n=1):
    return f'a{i}' if n == 1 else f'a[{i}:{i + n - 1}]'


def s(i, n=1):
    return f's{i}' if n == 1 else f's[{i}:{i + n - 1}]'
```

```python
import sys, os, math, struct
sys.path.insert(0, os.path.dirname(os.path.abspath(__file__)))
from emit import Asm, Regs, v, a, s

NAME = 'parallel_sum__sliding_local_dilated__mixer_token_mlp__prompt'

DEF = dict(
    stamps=0,
    probe=-1,
    cyc=0,
    gpub=11,
    gfq=13,
    gck=112,
    xdel=3,
    mid=0,
    ggap=52,
    gpause=0,
    fpause=0,
    upause=0,
    gflush=0,
    hsc=1,
    hwarm=0,
    cglc=0,
    wfq=5,
    nt1=3,
    align=0,
    rpos=1,
    gord=1,
    ntw=2,
    ph=3,
    hinit=3,
    hgap=56,
    hpos=3,
    qrd=4,
    ureq=10,
    wck=58,
    ock=80,
    hold=2,
    df=6,
    w1pre=4,
    w1mid=4,
    w1flag=24,
    w1chk=8,
    hlead=1,
    qrot=0,
    ppub=11,
    pfq=14,
    pck=118,
    ofq=8,
    pu=3,
    xrot=2,
    qg1=56,
    ust=2,
    qgap=52,
    hsleep=4,
    rmask=7,
    pread=0,
    xp=0,
    ogap=48,
    fgap=56,
    agap=56,
    uo=2,
    hrep=8,
    touch=2,
    codepf=1,
    spin=20000,
)


def f32(x):
    return '0x%08x' % struct.unpack('<I', struct.pack('<f', x))[0]


H_OFF = 0
U_OFF = 2 << 20
O_OFF = 4 << 20
RS_OFF = 6 << 20
CN_OFF = RS_OFF + 0x10000
GF_OFF = RS_OFF + 0x20000
PF_OFF = RS_OFF + 0x30000
WP_OFF = 8 << 20
FL_OFF = 10 << 20
HF_OFF = FL_OFF
ST_OFF = 11 << 20
P_OFF = 12 << 20
G_OFF = 16 << 20
WS_SIZE = 20 << 20
OOB = 0x10000000

LDS_SIZE = 163840
SLOT = 16384
NSLOT = 10
PH_B = 9 * SLOT
PR_B = PH_B + 8192
EPI_B = 8 * SLOT
EXC_B = 2 * SLOT

X, WQ, WO, W1, W2, WS, OUT, B1, B2, DBG = 8, 12, 16, 20, 24, 28, 32, 36, 40, 44
sGsW, sGsH = 0, 1
sKh, sNh, sT2, sT3 = 4, 5, 6, 7
sW, sK32, sJ, sFT, sD, sS, sD2, sG1, sF, sNon, sM, sM3, sCnt, sBg = range(48, 62)
sXs, sWs, sGs2, sGsU, sRo, sUst, sUfl, sOfl = range(62, 70)
sPar, sCur0, sCur1, sInvd, sGc, sOne = 70, 72, 74, 76, 78, 80
sOs, sC1, sMh, sIdx = 82, 83, 100, 101
sOne1, sGfl, sUck, sOck = B1, B1 + 1, B1 + 2, B1 + 3
sChk, sWck = WQ + 2, WQ + 3
sPfl = sG1
sStamp = 84


def srd(r):
    return s(r, 4)


def lanemask(fn):
    m = 0
    for l in range(64):
        if fn(l):
            m |= 1 << l
    return m


def build(**kw):
    P = dict(DEF)
    P.update(kw)
    assert P['wck'] <= 64 and P['ock'] <= 80 and P['df'] == 6
    e = Asm()
    V = Regs('v', 1, 256)
    nst = [0]
    npr = [0]
    ntr = [0]

    def stamp(name='', sets=(1,)):
        if P['probe'] >= 0 and 1 in sets:
            npr[0] += 1
            if npr[0] == P['probe']:
                e.comment(f'probe {name}')
                e(f's_memrealtime s[{sT2}:{sT3}]')
                e.wait_all(vm=False, lg=True, force=True)
                e(f's_mov_b32 s{sStamp}, s{sT2}')
        if P['stamps'] == 20:
            if sets in ((1,), (1, 4), (4,), (1, 2, 4), (1, 2, 9), (1, 2, 5, 9), (9, 20), (20,), (1, 5, 7), (1, 3), (1, 3, 8), (3, 20), (1, 5, 6, 7)):
                k = ntr[0]
                ntr[0] += 1
                p = 86 + 2 * (k % 3)
                if k >= 2:
                    q = 86 + 2 * ((k - 2) % 3)
                    e.raw(f'    v_writelane_b32 v{252 + (k - 2) // 64}, s{q}, {(k - 2) % 64}')
                e.raw(f'    s_memtime s[{p}:{p + 1}]')
            return
        if P['stamps'] not in sets:
            return
        k = nst[0]
        nst[0] += 1
        assert k < 13
        if k > 1:
            e(f's_mov_b32 s{sStamp + k - 1}, s{WQ}')
        e(f'{"s_memtime" if P["cyc"] else "s_memrealtime"} s[{WQ}:{WQ + 1}]')

    def setmask(r, m):
        return [f's_mov_b32 s{r}, 0x{m & 0xffffffff:08x}', f's_mov_b32 s{r + 1}, 0x{m >> 32:08x}']

    def run(lst):
        for t in lst:
            e.many(t)

    def merge(main, fill, per=1, every=1):
        fill = list(fill)
        for i, t in enumerate(main):
            e.many(t)
            if (i + 1) % every == 0:
                for _ in range(per):
                    if fill:
                        e.many(fill.pop(0))
        return fill

    def bg_dma(key, pre, sr, voff, soff, off, gap, mod=''):
        o = f' offset:{off}' if off else ''
        e.bg_add(key, list(pre) + [f'buffer_load_dwordx4 v{voff}, {srd(sr)}, s{soff} offen{o}{mod} lds'], gap)

    def bg_ins(key, pre, ins, gap):
        e.bg_add(key, list(pre) + [ins], gap)

    def mf16(d, A, B, c=None):
        return f'v_mfma_f32_16x16x32_bf16 {v(d, 4)}, {A}, {B}, {v(d, 4) if c is None else c}'

    def mf32(d, A, B, c=None):
        return f'v_mfma_f32_32x32x16_bf16 {v(d, 16)}, {A}, {B}, {v(d, 16) if c is None else c}'

    def mfs(d, A, B):
        return f'v_mfma_f32_16x16x4_f32 {v(d, 4)}, v{A}, v{B}, 0'

    npoll = [0]

    def flag_load(voff, vdst, n=1):
        return f'buffer_load_dword{"x2" if n == 2 else ""} {v(vdst, n)}, v{voff}, {srd(WS)}, 0 offen sc1'

    def flag_check(voff, vdst, sleep, n=1):
        k = npoll[0]
        npoll[0] += 1
        on, e.bg_on = e.bg_on, False
        e.bg_settle()
        cmp_ = [f'v_cmp_ne_u32 vcc, s{sNon}, v{vdst}'] if n == 1 else \
               [f'v_xor_b32 v{vdst}, s{sNon}, v{vdst}', f'v_xor_b32 v{vdst + 1}, s{sNon}, v{vdst + 1}',
                f'v_or_b32 v{vdst}, v{vdst}, v{vdst + 1}', f'v_cmp_ne_u32 vcc, 0, v{vdst}']
        run(cmp_)
        e(f's_cbranch_vccz L_pollok{k}')
        e.raw(f'    s_mov_b32 s{sCnt}, 0')
        e.label(f'L_poll{k}')
        e.raw(f'    s_sleep {sleep}')
        e.raw('    ' + flag_load(voff, vdst, n))
        e.raw(f'    s_add_u32 s{sCnt}, s{sCnt}, 1')
        e.raw(f'    s_waitcnt vmcnt(0)')
        for t in cmp_:
            e.raw('    ' + t)
        e.raw(f'    s_cbranch_vccz L_pollok{k}')
        e.raw(f'    s_cmp_lt_u32 s{sCnt}, {P["spin"]}')
        e.raw(f'    s_cbranch_scc1 L_poll{k}')
        e.label(f'L_pollok{k}')
        e.bg_on = on

    nsg = [0]

    def signal(soff, wg, base=WS):
        k = nsg[0]
        nsg[0] += 1
        if wg:
            e(f's_cmp_lg_u32 s{sW}, 0')
            e(f's_cbranch_scc1 L_sig{k}')
        e(f's_atomic_add s{sOne1}, s[{base}:{base + 1}], s{soff}')
        if wg:
            e.label(f'L_sig{k}')
        e.smem_out += 1

    def cnt_req(soff, base=WS):
        e(f's_load_dword s{sChk}, s[{base}:{base + 1}], s{soff}' + (' glc' if P['cglc'] else ''))
        e.smem_out += 1

    def cnt_check(soff, target, sleep, base=WS, unless0=None):
        k = npoll[0]
        npoll[0] += 1
        e.wait_all(vm=False, lg=True, force=True)
        if unless0 is not None:
            e(f's_cmp_eq_u32 s{unless0}, 0')
            e(f's_cbranch_scc1 L_pollok{k}')
        e(f's_cmp_ge_u32 s{sChk}, {target}')
        e(f's_cbranch_scc1 L_pollok{k}')
        e.raw(f'    s_mov_b32 s{sCnt}, 0')
        e.label(f'L_poll{k}')
        e.raw(f'    s_sleep {sleep}')
        e.raw(f'    buffer_load_dword v{vFv}, off, {srd(base)}, s{soff} sc1')
        e.raw(f'    s_add_u32 s{sCnt}, s{sCnt}, 1')
        e.raw(f'    s_waitcnt vmcnt(0)')
        e.raw(f'    v_readfirstlane_b32 s{sChk}, v{vFv}')
        e.raw(f'    s_nop 0')
        e.raw(f'    s_cmp_ge_u32 s{sChk}, {target}')
        e.raw(f'    s_cbranch_scc1 L_pollok{k}')
        e.raw(f'    s_cmp_lt_u32 s{sCnt}, {P["spin"]}')
        e.raw(f'    s_cbranch_scc1 L_poll{k}')
        e.label(f'L_pollok{k}')

    def wrap(r, step, n):
        return [f's_add_u32 s{r}, s{r}, {step}', f's_cmp_eq_u32 s{r}, {step * n}', f's_cselect_b32 s{r}, 0, s{r}']

    FORD = [7, 0, 1, 2, 3, 4, 5, 6, 8, 9]

    def slot_of(q):
        k = q % NSLOT
        if q >= 30:
            k = FORD.index(k)
        if q >= 20:
            k = (0, 1, 4, 5, 2, 3, 6, 7, 8, 9)[k]
        return k * SLOT

    def pop(n):
        for _ in range(n):
            if e.bg:
                e._bg_pop()

    def publish(tok, soff):
        e.wait(vm=tok)
        return e(f'buffer_store_dword v{vNon}, v{vFl}, {srd(WS)}, s{soff} offen sc1')

    def publish_wg(soff):
        return e(f'buffer_store_dword v{vNon}, v{vF0}, {srd(WS)}, s{soff} offen sc1')

    vLane, vL15, vG, vL16, vR8, vC8, vR4, vC4, vHi, vL31, vFl, vNon, vF0 = [V.alloc() for _ in range(13)]
    t0, t1, t2, t3 = [V.alloc() for _ in range(4)]
    vFv = V.alloc(2)
    vFoH, vPst, vGs2, vGst, vDum = [V.alloc() for _ in range(5)]
    vCa = [V.alloc(), V.alloc()]
    vAs = [[V.alloc(), V.alloc()], [V.alloc(), V.alloc()]]
    e.dummy_ds = f'ds_read_b32 v{vDum}, v{vL16}'
    vPat = [[V.alloc(), V.alloc()] for _ in range(3)]
    vPatW = [V.alloc() for _ in range(3)]
    vOr = [[V.alloc(), V.alloc()] for _ in range(3)]
    vLin = [vL16, V.alloc(), V.alloc()]
    vD1 = [V.alloc() for _ in range(4)]
    vD2 = [V.alloc() for _ in range(4)]
    vDo = [V.alloc() for _ in range(2)]
    vOd = [V.alloc() for _ in range(2)]
    vXd = [V.alloc() for _ in range(3)]
    vXr = [[V.alloc(), V.alloc()] for _ in range(3)]
    vRs, vRsa = V.alloc(), V.alloc()
    vHo, vUo, vWp, vEx, vBa, vSw, vNeg = [V.alloc() for _ in range(7)]
    vOo = [V.alloc(), V.alloc()]
    vEw = [V.alloc() for _ in range(4)]
    vEr = [V.alloc() for _ in range(4)]
    vBo = [V.alloc(), V.alloc()]
    vXo = [V.alloc(4), V.alloc(4)]
    vMk = V.alloc(4)
    vC0 = V.alloc(2)
    vSt = [V.alloc(4), V.alloc(4)]
    NF = 8
    vFr = [V.alloc(4) for _ in range(NF)]
    vAcc = [V.alloc(16), V.alloc(16)]
    vBig = V.alloc(76)
    vE = vBig

    e('s_cmp_ge_u32 s2, 256')
    e('s_cbranch_scc1 L_end')
    for r, off in ((X, 0), (W1, 32), (WS, 80), (DBG, 72), (WQ, 8), (WO, 16), (W2, 48), (OUT, 64), (B1, 40), (B2, 56)):
        e(f's_load_dwordx2 {s(r, 2)}, s[0:1], {off}')
    sClk = 78
    e(f's_memrealtime s[{sClk}:{sClk + 1}]')
    if P['codepf']:
        e(f's_getpc_b64 s[6:7]')
        e.label('L_pc')
        e(f's_and_b32 s3, s2, 0xf8')
        e(f'v_lshrrev_b32 v{t0}, 5, v0')
        e(f'v_add_lshl_u32 v{t0}, s3, v{t0}, 7')
        e(f'v_min_u32 v{t0}, L_end-L_pc-4, v{t0}')
        e(f'global_load_dword v{vFv}, v{t0}, s[6:7]')
    vX = vBig
    vF = vBig + 8
    vG2 = vBig + 24
    vAB = vBig + 40
    vS_, vQ_, vT_, vU_ = vBig + 44, vBig + 45, vBig + 46, vBig + 47
    vLw, vLh, vLx, vHs = vBig + 48, vBig + 49, vBig + 50, vBig + 51
    tp = vBig + 52
    vFr8, vLr, vRo = vBig + 54, vBig + 55, vBig + 56
    sHrd = sC1
    e.many(f"""
        v_lshrrev_b32 v{t0}, 6, v0
        v_and_b32 v{vL31}, 31, v0
        v_readfirstlane_b32 s{sW}, v{t0}
        v_bfe_u32 v{vHi}, v0, 5, 1
        v_mul_u32_u24 v{t1}, 896, v{vHi}
        v_lshl_add_u32 v{t1}, v{vL31}, 4, v{t1}
        v_cmp_gt_u32 vcc, 28, v{vL31}
        v_mov_b32 v{t2}, {OOB}
        s_mov_b32 s{X + 2}, {2048 * 896}
        s_mov_b32 s{X + 3}, 0x20000
        v_cndmask_b32 v{t1}, v{t2}, v{t1}, vcc
        s_lshr_b32 s{sKh}, s{sW}, 1
        s_and_b32 s{sNh}, s{sW}, 1
        s_and_b32 s3, s2, 0xfe
        s_add_u32 s3, s3, s{sKh}
        s_lshl_b32 s3, s3, 1
        s_and_b32 s{sCnt}, s2, 1
        s_add_u32 s3, s3, s{sCnt}
        s_lshl_b32 s3, s3, 1
        s_add_u32 s3, s3, s{sNh}
        s_mul_i32 s3, s3, {2 * 896}
    """)
    e.wait_all(vm=False, lg=True, force=True)
    if P['stamps']:
        e(f's_memtime s[0:1]')
        e.wait_all(vm=False, lg=True, force=True)
        e(f's_mov_b32 s{sStamp + 13}, s0')
    e(f'buffer_load_dwordx4 {v(vX, 4)}, v{t1}, {srd(X)}, s3 offen')
    e(f'buffer_load_dwordx4 {v(vX + 4, 4)}, v{t1}, {srd(X)}, s3 offen offset:448')
    if P['stamps'] or P['probe'] >= 0:
        e(f's_mov_b32 s{sStamp}, s{sClk}')
        nst[0] = 1
    sPair, sOdd, sXcd = sT2, sT3, sBg
    e.many(f"""
        v_and_b32 v{vLane}, 63, v0
        s_mov_b32 s{DBG + 2}, 256
        s_mov_b32 s{DBG + 3}, 0x20000
        s_lshl_b32 s3, s{sW}, 8
        s_add_u32 s3, s3, s2
        s_cmp_lt_u32 s3, 8
        s_cselect_b32 s3, 0, {OOB}
        s_or_b32 s{sClk}, s{sClk}, 1
        v_mov_b32 v{tp}, s{sClk}
        v_mov_b32 v{tp + 1}, 0
        v_lshlrev_b32 v{vFl}, 25, v{vLane}
        v_lshrrev_b32 v{vF0}, 4, v0
        v_lshlrev_b32 v{vF0}, 23, v{vF0}
        v_add_lshl_u32 v{vF0}, v{vF0}, v{vL31}, 2
        buffer_atomic_cmpswap {v(tp, 2)}, v{vFl}, {srd(DBG)}, s3 offen sc1
        s_bfe_u32 s{sPair}, s2, 0x20001
        s_and_b32 s{sOdd}, s2, 1
        s_and_b32 s{sXcd}, s2, 7
        s_lshr_b32 s{sIdx}, s2, 3
        s_mul_i32 s{sD}, s{sOdd}, 25
        s_add_u32 s{sD}, s{sD}, s{sIdx}
        s_mul_i32 s{sFT}, s{sD}, 37
        s_lshr_b32 s{sFT}, s{sFT}, 8
        s_mul_i32 s3, s{sFT}, 7
        s_sub_u32 s{sD}, s{sD}, s3
    """)
    e.many(f"""
        s_and_b32 s3, s{sPair}, 1
        s_mul_i32 s3, s3, 6
        s_add_u32 s{sFT}, s{sFT}, s3
        s_add_u32 s{sFT}, s{sFT}, 1
        s_add_u32 s3, s3, s{sFT}
        s_cmp_eq_u32 s3, 7
        s_cselect_b32 s{sFT}, 0, s{sFT}
        s_lshr_b32 s{sM3}, s{sPair}, 1
        s_lshl_b32 s{sFT}, s{sFT}, 1
        s_add_u32 s{sFT}, s{sFT}, s{sM3}
        s_max_u32 s{sCnt}, s{sIdx}, 25
        s_sub_u32 s{sCnt}, s{sCnt}, 25
        s_add_u32 s3, s{sIdx}, s{sOdd}
        s_cmp_lt_u32 s3, 25
        s_cselect_b32 s{sG1}, 1, 0
        s_cselect_b32 s{sD}, s{sD}, s{sCnt}
        s_mov_b32 s{W1 + 2}, {2048 * 3584}
        s_mov_b32 s{W1 + 3}, 0x20000
        s_lshl_b32 s3, s{sD}, 1
        s_sub_u32 s{sCnt}, s3, 7
        s_cmp_ge_u32 s3, 7
        s_cselect_b32 s3, s{sCnt}, s3
        s_and_b32 s3, s3, {P['rmask']}
        s_mul_i32 s{sCnt}, s{sXcd}, {P['xrot']}
        s_add_u32 s3, s3, s{sCnt}
        s_and_b32 s3, s3, 7
        s_mul_i32 s{sGsW}, s3, {128 * 3584}
        s_lshl_b32 s{sGsH}, s3, 13
        s_lshl_b32 s{sM}, s{sW}, 12
        v_lshrrev_b32 v{vG}, 4, v{vLane}
        v_lshrrev_b32 v{vR8}, 3, v{vLane}
        v_and_b32 v{vC8}, 7, v{vLane}
        v_and_b32 v{t0}, 1, v{vG}
        v_lshlrev_b32 v{t1}, 2, v{t0}
        v_xor_b32 v{t1}, v{t1}, v{vC8}
        v_lshlrev_b32 v{vSw}, 4, v{t1}
        s_cmp_eq_u32 s{sG1}, 0
        s_cbranch_scc1 L_nog1
    """)
    save0 = (e.vm_n, e.vm_done, e.lg_n, e.lg_done, dict(e.pvm), dict(e.plg), dict(e.tok))
    e.many(f"""
        v_mul_u32_u24 v{t1}, 3584, v{vR8}
        s_lshl_b32 s3, s{sM3}, 5
        s_add_u32 s3, s3, s{sW}
        s_mul_i32 s3, s3, {32 * 3584}
        s_lshl_b32 s{sCnt}, s{sFT}, 7
        s_add_u32 s3, s3, s{sCnt}
        v_add3_u32 v{vD1[0]}, v{t1}, v{vSw}, s3
        v_add_u32 v{vD1[1]}, {1 * (8 * 3584 - 1024)}, v{vD1[0]}
        v_add_u32 v{vD1[2]}, {2 * (8 * 3584 - 1024)}, v{vD1[0]}
        v_add_u32 v{vD1[3]}, {3 * (8 * 3584 - 1024)}, v{vD1[0]}
    """)

    def w1_dma(q, gap):
        for k in range(4):
            pre = [f's_add_u32 m0, s{sM}, {slot_of(q)}'] + wrap(sGsW, 128 * 3584, 8) * (0 if P['xp'] & 8192 else ({0: 0} if P['gord'] else {8: 0, 0: 0, 9: 2}).get(q, 1)) if k == 0 else []
            if q in ((0, 8) if P['gord'] else (0, 9)):
                pre = pre + [f'v_xor_b32 v{vD1[k]}, 128, v{vD1[k]}']
            bg_dma(('s', q, k), pre, W1, vD1[k], sGsW, k * 1024, gap)

    vB1 = vBig + 64
    e.many(f"""
        s_mov_b32 s{B1 + 2}, 3584
        s_mov_b32 s{B1 + 3}, 0x20000
        v_lshlrev_b32 v{t0}, 3, v{vHi}
        s_lshl_b32 s3, s{sFT}, 1
        s_add_u32 s3, s3, s{sKh}
        s_lshl_b32 s3, s3, 6
    """)
    for j in range(4):
        e(f'buffer_load_dwordx2 {v(vB1 + 2 * j, 2)}, v{t0}, {srd(B1)}, s3 offen offset:{16 * j}')
    e.bg_on = False
    for q in (range(9) if P['gord'] else (8, 0, 1, 2, 3, 4, 5, 6, 7)):
        w1_dma(q, 64)
    pop(P['w1pre'])
    sHs0, sHs1, sHfl, sEps, sInv, sOnes = 70, 71, 74, 75, 76, 77
    sRs, sHf2 = 72, 73
    def res_loads():
        for q_ in range(2):
            e(f'buffer_load_dwordx4 {v(vXo[q_], 4)}, v{vOo[q_]}, {srd(X)}, 0 offen')
            e(f'buffer_load_ushort v{vBo[q_]}, v{vBa}, {srd(B2)}, 0 offen offset:{16 * q_}')

    def p0_body(sets):
        e.many(f"""
            s_mul_i32 s{sS}, s{sIdx}, 37
            s_lshr_b32 s{sS}, s{sS}, 8
            s_mul_i32 s{sD2}, s{sS}, 7
            s_sub_u32 s{sD2}, s{sIdx}, s{sD2}
            s_and_b32 s{sS}, s{sS}, 3
            s_lshl_b32 s3, s{sPair}, 2
            s_add_u32 s{sS}, s{sS}, s3
            s_lshl_b32 s{sS}, s{sS}, 1
            s_add_u32 s{sS}, s{sS}, s{sOdd}
        """)
        e.many(f"""
            s_mov_b32 s{B2 + 2}, 4096
            s_mov_b32 s{B2 + 3}, 0x20000
            s_lshl_b32 s3, s{sS}, 2
            s_add_u32 s3, s3, s{sW}
            s_lshl_b32 s{sCnt}, s3, 5
            v_lshl_add_u32 v{vBa}, v{vR8}, 1, s{sCnt}
            s_mul_i32 s3, s3, {16 * 896}
            s_lshl_b32 s{sCnt}, s{sD2}, 7
            s_add_u32 s3, s3, s{sCnt}
            v_mul_u32_u24 v{t1}, 896, v{vR8}
            v_lshl_add_u32 v{t1}, v{vC8}, 4, v{t1}
            v_add_u32 v{vOo[0]}, s3, v{t1}
            v_add_u32 v{vOo[1]}, {8 * 896}, v{vOo[0]}
        """)
        if P['rpos'] == 0:
            res_loads()
        e.many(f"""
            s_cmp_lt_u32 s{sIdx}, 28
            s_cselect_b32 s{sF}, 1, 0
            s_lshl_b32 s{sJ}, s{sOdd}, 3
            s_and_b32 s3, s{sIdx}, 7
            s_add_u32 s{sJ}, s{sJ}, s3
            s_lshr_b32 s{sCnt}, s{sIdx}, 3
            s_lshl_b32 s{sK32}, s{sPair}, 2
            s_add_u32 s{sK32}, s{sK32}, s{sCnt}
            s_lshl_b32 s{sK32}, s{sK32}, 2
            s_add_u32 s{sK32}, s{sK32}, s{sW}
            s_mul_i32 s{sCnt}, s{sCnt}, {2 * P['qrot']}
            s_add_u32 s3, s3, s{sCnt}
            s_sub_u32 s{sCnt}, s3, 7
            s_cmp_ge_u32 s3, 7
            s_cselect_b32 s3, s{sCnt}, s3
            s_lshl_b32 s{sXs}, s3, 18
            s_mul_i32 s{sWs}, s3, 12288
            s_mov_b32 s{WS + 2}, {WS_SIZE}
            s_mov_b32 s{WS + 3}, 0x20000
            s_mov_b32 s{sEps}, {f32(1e-5)}
            s_mov_b32 s{sInv}, {f32(1.0 / 448)}
            s_mov_b32 s{sOnes}, 0x3f803f80
            v_lshlrev_b32 v{vL16}, 4, v{vLane}
            v_bfe_u32 v{vR4}, v{vLane}, 2, 2
            v_and_b32 v{vC4}, 3, v{vLane}
            v_mul_u32_u24 v{t0}, 960, v{vHi}
            v_lshl_add_u32 v{t0}, v{vL31}, 4, v{t0}
            s_mul_i32 s3, s{sW}, 1920
            s_add_u32 s3, s3, {PH_B}
            v_add_u32 v{vLw}, s3, v{t0}
            v_mul_u32_u24 v{t0}, 960, v{vR4}
            v_lshl_add_u32 v{t0}, v{vG}, 5, v{t0}
            v_lshl_add_u32 v{t0}, v{vC4}, 3, v{t0}
            s_lshl_b32 s3, s{sW}, 8
            s_add_u32 s3, s3, {PH_B}
            v_add_u32 v{vLh}, s3, v{t0}
            s_lshl_b32 s3, s{sW}, 3
            s_add_u32 s3, s3, {PR_B}
            v_lshl_add_u32 v{vLx}, v{vHi}, 2, s3
            v_lshlrev_b32 v{vLr}, 2, v{vC8}
            v_and_b32 v{vL15}, 15, v{vLane}
            v_lshlrev_b32 v{vRo}, 14, v{vG}
            v_add_lshl_u32 v{vRo}, v{vRo}, v{vL15}, 2
            v_add_u32 v{vLr}, {PR_B}, v{vLr}
            v_lshlrev_b32 v{t0}, 17, v{vHi}
            v_lshl_add_u32 v{vHs}, v{vL31}, 4, v{t0}
            s_cmp_eq_u32 s{sW}, 3
            s_cselect_b32 s{sCnt}, {OOB}, 0
            s_lshl_b32 s{sHs0}, s{sW}, 10
            s_add_u32 s{sHs0}, s{sHs0}, s2
            s_lshl_b32 s{sHs0}, s{sHs0}, 9
            s_add_u32 s{sHs1}, s{sHs0}, 262144
            s_add_u32 s{sHs1}, s{sHs1}, s{sCnt}
            s_xor_b32 s{sCnt}, s{sCnt}, {OOB}
            s_lshl_b32 s{sRs}, s2, 7
            s_add_u32 s{sRs}, s{sRs}, s{sCnt}
            s_add_u32 s{sRs}, s{sRs}, {RS_OFF}
            s_lshr_b32 s{sHfl}, s2, 2
            s_lshl_b32 s{sHfl}, s{sHfl}, 5
            s_and_b32 s3, s2, 3
            s_add_u32 s{sHfl}, s{sHfl}, s3
            s_lshl_b32 s{sHfl}, s{sHfl}, 2
            s_add_u32 s{sHfl}, s{sHfl}, {HF_OFF}
            v_cmp_gt_u32 vcc, {P['hrep']}, v0
            v_lshlrev_b32 v{vFr8}, 13, v0
            v_mov_b32 v{t0}, {OOB}
            s_and_b32 s3, s2, {P['hrep'] - 1}
            s_lshl_b32 s3, s3, 13
            s_add_u32 s3, s3, {HF_OFF}
            v_lshrrev_b32 v{t1}, 2, v0
            v_lshl_add_u32 v{t1}, v{t1}, 7, s3
            v_lshl_add_u32 v{vFoH}, v{vC4}, 2, v{t1}
            v_cndmask_b32 v{vFr8}, v{t0}, v{vFr8}, vcc
            v_mov_b32 v{t3}, 0
        """)
        if P['hsc']:
            e(f's_lshl_b32 s3, s{sW}, 14')
            e(f's_add_u32 s{sHfl}, s{sHfl}, s3')
            e(f's_add_u32 s{sHf2}, s{sHfl}, 8192')
            if P['hwarm']:
                e(f's_mov_b32 s{sOs}, 0')
                e(f's_atomic_swap s{sOs}, s[{WS}:{WS + 1}], s{sHfl}')
                e(f's_atomic_swap s{sOs}, s[{WS}:{WS + 1}], s{sHf2}')
        if P['pread'] and sets == (6,):
            e(flag_load(vFoH, vFv + 1))
        for k in range(8):
            e(f'v_dot2_f32_bf16 v{vS_}, v{vX + k}, s{sOnes}, {"0" if k == 0 else "v%d" % vS_}')
            if k == 0:
                stamp('x landed', sets)
            e(f'v_dot2_f32_bf16 v{vQ_}, v{vX + k}, v{vX + k}, {"0" if k == 0 else "v%d" % vQ_}')
        unp = []
        for k in range(8):
            unp += [f'v_lshlrev_b32 v{vF + 2 * k}, 16, v{vX + k}', f'v_and_b32 v{vF + 2 * k + 1}, 0xffff0000, v{vX + k}']
        e(f'buffer_load_dword v{vNon}, v{t3}, {srd(DBG)}, 0 offen sc1')
        run(unp[:2])
        unp = unp[2:]
        for ctl in ('quad_perm:[1,0,3,2]', 'quad_perm:[2,3,0,1]', 'row_half_mirror', 'row_mirror'):
            for r in (vS_, vQ_):
                e(f'v_add_f32_dpp v{r}, v{r}, v{r} {ctl} row_mask:0xf bank_mask:0xf')
            e(unp.pop(0))
        e(f'v_mov_b32 v{vT_}, v{vS_}')
        e(f'v_mov_b32 v{vU_}, v{vQ_}')
        e(unp.pop(0))
        e(f'v_permlane16_swap_b32 v{vS_}, v{vT_}')
        e(f'v_permlane16_swap_b32 v{vQ_}, v{vU_}')
        e.many(f"""
            v_add_f32 v{vS_}, v{vS_}, v{vT_}
            v_add_f32 v{vQ_}, v{vQ_}, v{vU_}
            v_mul_f32_e64 v{vS_}, -v{vS_}, s{sInv}
            v_mul_f32 v{vT_}, v{vS_}, v{vS_}
            v_fma_f32 v{vQ_}, v{vQ_}, s{sInv}, -v{vT_}
            v_max_f32 v{vQ_}, 0, v{vQ_}
            v_add_f32 v{vT_}, s{sEps}, v{vQ_}
            v_rsq_f32 v{vAB}, v{vT_}
        """)
        e(unp.pop(0))
        e.many(f"""
            v_mul_f32 v{vT_}, v{vAB}, v{vAB}
            v_fma_f32 v{vU_}, v{vT_}, v{vQ_}, s{sEps}
            v_rsq_f32 v{vT_}, v{vU_}
            v_mul_f32 v{vAB + 1}, v{vS_}, v{vAB}
            v_mul_f32 v{vAB + 2}, v{vAB}, v{vT_}
            v_mul_f32 v{vAB + 3}, v{vAB + 1}, v{vT_}
            v_mul_f32 v{vU_}, v{vU_}, v{vT_}
            ds_write_b32 v{vLx}, v{vU_}
        """)
        run(unp)

        def normalise(ab, base):
            for hf in range(2):
                for k in range(4 * hf, 4 * hf + 4):
                    e(f'v_pk_fma_f32 {v(vG2 + 2 * k, 2)}, {v(vF + 2 * k, 2)}, {v(ab, 2)}, {v(ab, 2)} op_sel:[0,0,1] op_sel_hi:[1,0,1]')
                for k in range(4 * hf, 4 * hf + 4):
                    e(f'v_cvt_pk_bf16_f32 v{vX + k}, v{vG2 + 2 * k}, v{vG2 + 2 * k + 1}')
                e(f'ds_write_b128 v{vLw}, {v(vX + 4 * hf, 4)} offset:{base + 448 * hf}')

        normalise(vAB + 2, 0)
        e.wait_all(vm=False, lg=True, force=True)
        e('s_barrier')
        for z in range(2):
            for h in range(2):
                e(f'ds_read_b64_tr_b16 {v(vSt[z] + 2 * h, 2)}, v{vLh} offset:{z * 128 + h * 3840}')
        e(f'ds_read_b32 v{vU_}, v{vLr}')
        for z in range(2):
            e(f'buffer_store_dwordx4 {v(vSt[z], 4)}, v{vHs}, {srd(WS)}, s{sHs0 + z} offen sc1')
        e(f'v_cmp_gt_u32 vcc, 16, v{vLane}')
        e(f'v_cndmask_b32 v{vU_}, 0, v{vU_}, vcc')
        tokH = e(f'buffer_store_dword v{vU_}, v{vRo}, {srd(WS)}, s{sRs} offen sc1')
        stamp('h stored', sets)
        return tokH

    tokH = p0_body((1, 4))

    pop(P['w1mid'])

    setup = []
    for r, n in ((WO, 448 * 896), (W2, 1792 * 4096), (OUT, 2048 * 896)):
        setup.append(f's_mov_b32 s{r + 2}, {n}\ns_mov_b32 s{r + 3}, 0x20000')
    setup += f"""s_mov_b32 s{sOne1}, 1
        v_lshl_add_u32 v{t1}, v{vHi}, 2, v{vR4}
        v_lshlrev_b32 v{t1}, 7, v{t1}
        v_lshl_add_u32 v{t1}, v{vC4}, 3, v{t1}
        v_and_b32 v{t2}, 2, v{vR4}
        v_and_b32 v{t0}, 1, v{vG}
        v_add_u32 v{t2}, v{t2}, v{t0}
        v_lshl_add_u32 v{t1}, v{t2}, 5, v{t1}
        s_mul_i32 s3, s{sKh}, {8192 + 64}
        v_xor_b32 v{vPat[0][0]}, s3, v{t1}
        v_xor_b32 v{vPat[0][1]}, 64, v{vPat[0][0]}
        v_add_u32 v{vPat[1][0]}, 65536, v{vPat[0][0]}
        v_add_u32 v{vPat[1][1]}, 65536, v{vPat[0][1]}
        v_add_u32 v{vPat[2][0]}, 131072, v{vPat[0][0]}
        v_add_u32 v{vPat[2][1]}, 131072, v{vPat[0][1]}
        s_lshl_b32 s{sT2}, s{sD}, 1
        s_add_u32 s{sT2}, s{sT2}, s{sNh}
        s_lshl_b32 s3, s{sT2}, 1
        s_add_u32 s3, s3, s{sM3}
        s_lshl_b32 s3, s3, 4
        s_add_u32 s3, s3, s{sKh}
        s_lshl_b32 s3, s3, 12
        v_add_u32 v{vHo}, s3, v{vL16}
        s_xor_b32 s{sGfl}, s{sFT}, 1
        s_lshl_b32 s{sGfl}, s{sGfl}, 3
        s_add_u32 s{sGfl}, s{sGfl}, s{sD}
        s_lshl_b32 s3, s{sGfl}, 14
        s_add_u32 s3, s3, s{sM}
        s_add_u32 s3, s3, {G_OFF + (OOB if P['xp'] & 1024 else 0)}
        v_add_u32 v{vGst}, s3, v{vL16}
        s_lshl_b32 s{sGfl}, s{sGfl}, 5
        s_add_u32 s{sGfl}, s{sGfl}, s{sNh}
        s_lshl_b32 s{sGfl}, s{sGfl}, 2
        s_add_u32 s{sGfl}, s{sGfl}, {GF_OFF}
        s_mul_i32 s{sUst}, s{sT2}, 56
        s_lshl_b32 s3, s{sFT}, 1
        s_add_u32 s3, s3, s{sKh}
        s_add_u32 s{sUst}, s{sUst}, s3
        s_lshl_b32 s{sUst}, s{sUst}, 11
        s_add_u32 s{sUst}, s{sUst}, {U_OFF + (OOB if P['xp'] & 2048 else 0)}
        v_add_u32 v{vEx}, s{sM}, v{vL16}
        s_lshl_b32 s{sUfl}, s{sD}, 2
        s_and_b32 s3, s{sFT}, 1
        s_add_u32 s{sUfl}, s{sUfl}, s3
        s_cmp_ge_u32 s{sFT}, 14
        s_cselect_b32 s3, 2, 0
        s_add_u32 s{sUfl}, s{sUfl}, s3
        s_lshl_b32 s{sUfl}, s{sUfl}, 7
        s_add_u32 s{sUfl}, s{sUfl}, {CN_OFF}
        v_add_u32 v{vLin[1]}, 65536, v{vL16}
        v_add_u32 v{vLin[2]}, 131072, v{vL16}
        s_mul_i32 s{sM3}, s{sW}, 3072
        s_mul_i32 s3, s{sJ}, 86016
        s_add_u32 s3, s3, s{sM3}
        s_add_u32 s3, s3, {WP_OFF}
        v_add_u32 v{vWp}, s3, v{vL16}
        v_lshlrev_b32 v{t1}, 7, v{vHi}
        v_xor_b32 v{t1}, v{t1}, v{vL16}
        s_lshl_b32 s3, s{sK32}, 11
        v_add_u32 v{vXd[0]}, s3, v{t1}
        v_add_u32 v{vXd[1]}, {131072 - 2048}, v{vXd[0]}
        s_lshr_b32 s3, s{sK32}, 2
        s_lshl_b32 s3, s3, 3
        s_max_u32 s3, s3, 1
        s_sub_u32 s3, s3, 1
        s_lshl_b32 s3, s3, 10
        s_lshl_b32 s{sT2}, s{sNh}, 17
        s_add_u32 s3, s3, s{sT2}
        s_lshl_b32 s{sT2}, s{sKh}, 28
        s_add_u32 s3, s3, s{sT2}
        v_add_u32 v{vXd[2]}, s3, v{t1}
        s_lshl_b32 s{sMh}, s{sNh}, 1
        s_add_u32 s{sMh}, s{sMh}, s{sKh}
        s_lshl_b32 s{sMh}, s{sMh}, 10
        v_and_b32 v{t1}, 1, v{vLane}
        v_mul_u32_u24 v{t1}, {512 + 128}, v{t1}
        v_lshrrev_b32 v{t2}, 2, v{vLane}
        v_lshlrev_b32 v{t2}, 4, v{t2}
        v_xor_b32 v{t1}, v{t1}, v{t2}
        v_bfe_u32 v{t2}, v{vLane}, 1, 1
        v_lshl_add_u32 v{t1}, v{t2}, 3, v{t1}
        s_add_u32 s3, s{sM}, 12288
        v_add_u32 v{vXr[0][0]}, s3, v{t1}
        s_sub_u32 s3, s3, 3072
        s_cmp_eq_u32 s{sW}, 0
        s_cselect_b32 s3, 28672, s3
        v_add_u32 v{vXr[0][1]}, s3, v{t1}
        v_add_u32 v{vXr[1][0]}, 65536, v{vXr[0][0]}
        v_add_u32 v{vXr[1][1]}, 65536, v{vXr[0][1]}
        v_add_u32 v{vXr[2][0]}, 131072, v{vXr[0][0]}
        v_add_u32 v{vXr[2][1]}, 131072, v{vXr[0][1]}
        s_lshl_b32 s3, s{sK32}, 1
        v_min_u32 v{t1}, 2, v{vG}
        v_add_u32 v{t1}, s3, v{t1}
        v_max_u32 v{t1}, 1, v{t1}
        v_lshlrev_b32 v{t1}, 1, v{t1}
        v_and_b32 v{t2}, 1, v{vR4}
        v_add_lshl_u32 v{t1}, v{t1}, v{t2}, 7
        v_lshrrev_b32 v{t2}, 1, v{vR4}
        v_lshl_add_u32 v{t2}, v{t2}, 2, v{vC4}
        v_lshl_add_u32 v{t1}, v{t2}, 2, v{t1}
        v_add_u32 v{vRsa}, {RS_OFF - 256}, v{t1}
        s_min_u32 s{sWck}, s{sW}, 2
        s_lshl_b32 s{sWck}, s{sWck}, 6
        s_add_u32 s{sWck}, s{sWck}, 64
        s_lshl_b32 s{sOs}, s{sK32}, 5
        s_add_u32 s{sOs}, s{sOs}, s{sJ}
        s_lshl_b32 s{sOs}, s{sOs}, 10
        s_add_u32 s{sOs}, s{sOs}, {O_OFF + (OOB if P['xp'] & 4096 else 0)}
        s_lshr_b32 s{sOfl}, s{sK32}, 2
        s_lshl_b32 s{sOfl}, s{sOfl}, 1
        s_and_b32 s3, s{sJ}, 1
        s_add_u32 s{sOfl}, s{sOfl}, s3
        s_lshl_b32 s{sOfl}, s{sOfl}, 7
        s_add_u32 s{sOfl}, s{sOfl}, {CN_OFF + 32 * 128}
        s_and_b32 s{sT3}, s{sS}, 1
        s_mul_i32 s3, s{sT3}, 28
        s_add_u32 s3, s3, s{sW}
        s_lshl_b32 s3, s3, 17
        s_xor_b32 s{sT2}, s{sS}, 1
        s_lshl_b32 s{sPfl}, s{sT2}, 3
        s_lshl_b32 s{sT2}, s{sS}, 7
        s_add_u32 s3, s3, s{sT2}
        v_lshlrev_b32 v{t1}, 12, v{vR8}
        v_add3_u32 v{vD2[0]}, v{t1}, v{vSw}, s3
        v_add_u32 v{vD2[1]}, {1 * (8 * 4096 - 1024)}, v{vD2[0]}
        v_add_u32 v{vD2[2]}, {2 * (8 * 4096 - 1024)}, v{vD2[0]}
        v_add_u32 v{vD2[3]}, {3 * (8 * 4096 - 1024)}, v{vD2[0]}
        v_mul_u32_u24 v{t1}, 896, v{vR8}
        s_mul_i32 s3, s{sKh}, {28 * 896}
        s_mul_i32 s{sT2}, s{sNh}, {16 * 896}
        s_add_u32 s3, s3, s{sT2}
        s_lshl_b32 s{sT2}, s{sD2}, 7
        s_add_u32 s3, s3, s{sT2}
        v_add3_u32 v{vDo[0]}, v{t1}, v{vSw}, s3
        v_add_u32 v{vDo[1]}, {8 * 896 - 1024}, v{vDo[0]}
        s_lshl_b32 s{sT2}, s{sS}, 1
        s_add_u32 s{sT2}, s{sT2}, s{sNh}
        s_and_b32 s3, s{sS}, 30
        s_add_u32 s3, s3, s{sKh}
        s_lshl_b32 s3, s3, 7
        s_add_u32 s{sOck}, s3, {CN_OFF + 32 * 128}
        s_lshl_b32 s3, s{sT2}, 5
        s_add_u32 s3, s3, s{sKh}
        s_lshl_b32 s3, s3, 10
        s_add_u32 s3, s3, {O_OFF}
        v_add_u32 v{vOd[0]}, s3, v{vL16}
        v_add_u32 v{vOd[1]}, {16384 - 1024}, v{vOd[0]}
        s_xor_b32 s3, s{sKh}, s{sNh}
        s_lshl_b32 s3, s3, 6
        v_xor_b32 v{vPatW[0]}, s3, v{vPat[0][0]}
        v_add_u32 v{vPatW[1]}, 65536, v{vPatW[0]}
        v_add_u32 v{vPatW[2]}, 131072, v{vPatW[0]}
        v_lshlrev_b32 v{t0}, 10, v{t0}
        v_lshl_add_u32 v{t0}, v{vHi}, 8, v{t0}
        v_lshl_add_u32 v{t0}, v{vL15}, 4, v{t0}
        s_mul_i32 s3, s{sKh}, {3 * 4096}
        v_add_u32 v{vOr[0][0]}, s3, v{t0}
        v_xor_b32 v{vOr[0][1]}, 4096, v{vOr[0][0]}
        v_add_u32 v{vOr[1][0]}, 65536, v{vOr[0][0]}
        v_add_u32 v{vOr[1][1]}, 65536, v{vOr[0][1]}
        v_add_u32 v{vOr[2][0]}, 131072, v{vOr[0][0]}
        v_add_u32 v{vOr[2][1]}, 131072, v{vOr[0][1]}
        s_lshl_b32 s{sT2}, s{sD2}, 1
        s_add_u32 s{sT2}, s{sT2}, s{sNh}
        s_lshl_b32 s3, s{sT2}, 1
        s_add_u32 s3, s3, s{sT3}
        s_mul_i32 s3, s3, 14
        s_add_u32 s3, s3, s{sKh}
        s_lshl_b32 s3, s3, 12
        s_add_u32 s3, s3, {U_OFF}
        v_add_u32 v{vUo}, s3, v{vL16}
        s_lshl_b32 s3, s{sD2}, 1
        s_add_u32 s3, s3, s{sT3}
        s_lshl_b32 s3, s3, 1
        s_add_u32 s3, s3, s{sKh}
        s_lshl_b32 s3, s3, 7
        s_add_u32 s{sUck}, s3, {CN_OFF}
        s_and_b32 s3, s2, 6
        s_add_u32 s3, s3, s{sD2}
        s_sub_u32 s{sT2}, s3, 7
        s_cmp_ge_u32 s3, 7
        s_cselect_b32 s3, s{sT2}, s3
        s_lshl_b32 s{sGs2}, s3, 19
        s_lshl_b32 s{sGsU}, s3, 13
        s_add_u32 s{sPfl}, s{sPfl}, s{sD2}
        s_lshl_b32 s3, s{sPfl}, 14
        s_add_u32 s3, s3, s{sM}
        s_add_u32 s3, s3, {P_OFF + (OOB if P['xp'] & 512 else 0)}
        v_add_u32 v{vPst}, s3, v{vL16}
        s_lshl_b32 s{sPfl}, s{sPfl}, 5
        s_add_u32 s{sPfl}, s{sPfl}, s{sW}
        s_lshl_b32 s{sPfl}, s{sPfl}, 2
        s_add_u32 s{sPfl}, s{sPfl}, {PF_OFF}
        s_lshl_b32 s3, s{sNh}, 3
        v_add_u32 v{t0}, s3, v{vHi}
        v_xor_b32 v{t0}, v{t0}, v{vC8}
        v_lshlrev_b32 v{t0}, 4, v{t0}
        v_lshl_add_u32 v{t0}, v{vL31}, 8, v{t0}
        s_lshl_b32 s3, s{sKh}, 14
        s_add_u32 s3, s3, {EPI_B}
        v_add_u32 v{vEw[0]}, s3, v{t0}
        v_xor_b32 v{vEw[1]}, 32, v{vEw[0]}
        v_xor_b32 v{vEw[2]}, 64, v{vEw[0]}
        v_xor_b32 v{vEw[3]}, 96, v{vEw[0]}
        s_lshr_b32 s3, s{sS}, 1
        s_add_u32 s{sRo}, s3, s{sD2}
        v_lshlrev_b32 v{t0}, 1, v{vC8}
        v_xor_b32 v{t0}, v{t0}, v{vR8}
        v_lshlrev_b32 v{t0}, 4, v{t0}
        v_lshl_add_u32 v{t0}, v{vR8}, 8, v{t0}
        s_add_u32 s3, s{sM}, {EPI_B}
        v_add_u32 v{vEr[0]}, s3, v{t0}
        v_xor_b32 v{vEr[1]}, 16, v{vEr[0]}
        v_xor_b32 v{vEr[2]}, {16384 + 8192}, v{vEr[0]}
        v_xor_b32 v{vEr[3]}, {16384 + 8192 + 16}, v{vEr[0]}""".split('\n')
    par = lambda l: l & 1
    cur = lambda l, z: 4 * (l >> 4) + 2 * z + (l & 1) <= (l & 15)
    c0 = -2.0 * math.sqrt(2.0 / math.pi) * math.log2(math.e)
    setup2 = setmask(sPar, lanemask(par)) + setmask(sCur0, lanemask(lambda l: cur(l, 0))) + setmask(sCur1, lanemask(lambda l: cur(l, 1)))
    setup2 += [f's_cmp_eq_u32 s{sK32}, 0\ns_cselect_b64 {s(sInvd, 2)}, 0, -1',
               f'v_mov_b32 v{t0}, 0xffff', f'v_mov_b32 v{t1}, 0xffff0000',
               f'v_cndmask_b32 v{t0}, v{t0}, v{t1}, {s(sPar, 2)}']
    for z, sc in ((0, sCur0), (1, sCur1)):
        setup2 += [f'v_cndmask_b32 v{vMk + z}, v{t0}, 0, {s(sc, 2)}', f'v_cndmask_b32 v{vMk + 2 + z}, 0, v{t0}, {s(sc, 2)}']
    setup2 += [f'v_mov_b32 v{vNeg}, {f32(-1e30)}',
               f's_mov_b32 s{sC1}, {f32(28 ** -0.5 * math.log2(math.e))}',
               f's_mov_b32 s{sGc}, {f32(c0 * 0.044715)}\ns_mov_b32 s{sGc + 1}, {f32(c0 * 0.044715)}',
               f's_mov_b32 s{sOne}, 1.0\ns_mov_b32 s{sOne + 1}, 1.0',
               f'v_mov_b32 v{vC0}, {f32(c0)}', f'v_mov_b32 v{vC0 + 1}, {f32(c0)}']
    aSel = 248
    setup2 += [f'v_lshlrev_b32 v{t0}, 2, v{vHi}', f'v_sub_u32 v{t0}, v{vL31}, v{t0}', f'v_ashrrev_i32 v{t0}, 1, v{t0}',
               f'v_mov_b32 v{t1}, 0x3f80', f'v_cndmask_b32 v{t1}, v{t1}, 1.0, {s(sPar, 2)}']
    for k in range(8):
        setup2 += [f'v_cmp_eq_i32 vcc, {8 * (k >> 2) + 4 * ((k >> 1) & 1) + (k & 1)}, v{t0}',
                   f'v_cndmask_b32 v{t2}, 0, v{t1}, vcc\nv_accvgpr_write_b32 a{aSel + k}, v{t2}']
    NS1 = [i for i, t in enumerate(setup) if t.strip().startswith(f'v_add_u32 v{vLin[1]},')][0]

    def h_publish(tag, tokH):
        run(setup[:NS1])
        e(f'v_readfirstlane_b32 s{sNon}, v{vNon}')
        e(f's_mov_b32 s{sCnt}, 0')
        e(f's_cmp_lg_u32 s{sNon}, 0')
        e(f's_cbranch_scc1 L_nonce_ok{tag}')
        e.label(f'L_nonce{tag}')
        e.raw(f'    buffer_load_dword v{vNon}, v{t3}, {srd(DBG)}, 0 offen sc1')
        e.raw(f'    s_add_u32 s{sCnt}, s{sCnt}, 1')
        e.raw(f'    s_waitcnt vmcnt(0)')
        e.raw(f'    v_readfirstlane_b32 s{sNon}, v{vNon}')
        e.raw(f'    s_cmp_ge_u32 s{sCnt}, {P["spin"]}')
        e.raw(f'    s_cbranch_scc1 L_nonce_ok{tag}')
        e.raw(f'    s_cmp_eq_u32 s{sNon}, 0')
        e.raw(f'    s_cbranch_scc1 L_nonce{tag}')
        e.label(f'L_nonce_ok{tag}')
        e.wait(vm=tokH, lg=e.lg_n)
        e('s_barrier')
        if P['hsc']:
            assert P['hrep'] == 8
            e(f's_atomic_swap s{sNon}, s[{WS}:{WS + 1}], s{sHfl}')
            e(f's_atomic_swap s{sNon}, s[{WS}:{WS + 1}], s{sHf2}')
            e.smem_out += 2
        else:
            e(f'buffer_store_dword v{vNon}, v{vFr8}, {srd(WS)}, s{sHfl} offen sc1')
        if P['rpos'] == 1 or (P['rpos'] == 2 and tag == 'h'):
            res_loads()

    h_publish('', tokH)
    stamp('hflag', (1, 4))
    if P['xp'] & 1:
        e.wait_all(force=True)
        stamp('flag ack', (4,))
    w1_dma(9, 64)
    e.bg_on = True
    e.credit = 0
    hold = e.bg[max(0, P['w1flag'] - (40 - len(e.bg))):]
    del e.bg[len(e.bg) - len(hold):]
    run(setup[NS1:])
    for j in range(4):
        e(f'v_lshlrev_b32 v{vAcc[0] + 4 * j}, 16, v{vB1 + 2 * j}')
        e(f'v_and_b32 v{vAcc[0] + 4 * j + 1}, 0xffff0000, v{vB1 + 2 * j}')
        e(f'v_lshlrev_b32 v{vAcc[0] + 4 * j + 2}, 16, v{vB1 + 2 * j + 1}')
        e(f'v_and_b32 v{vAcc[0] + 4 * j + 3}, 0xffff0000, v{vB1 + 2 * j + 1}')

    def bf(n, j):
        return a((n * 4 + j) * 4, 4)

    def h_load(n, gap):
        for j in range(4):
            pre = [f's_add_u32 s{sGsH}, s{sGsH}, 8192', f's_and_b32 s{sGsH}, s{sGsH}, 0xffff'] if (j == 0 and n and not P['xp'] & 128) else []
            bg_ins(('h', n, j), pre, f'buffer_load_dwordx4 {bf(n, j)}, v{vHo}, {srd(WS)}, s{sGsH} offen offset:{j * 1024} sc1', gap)

    def u_load(n, gap):
        for j in range(4):
            pre = wrap(sGsU, 8192, 7) if (j == 0 and n and not P['xp'] & 64) else []
            bg_ins(('u', n, j), pre, f'buffer_load_dwordx4 {bf(n, j)}, v{vUo}, {srd(WS)}, s{sGsU} offen offset:{j * 1024} sc1', gap)

    def q_dma(st, gap):
        q = 16 + 2 * st
        b = slot_of(q)
        for k in range(3):
            pre = [f's_add_u32 m0, s{sM3}, {b}'] + (wrap(sWs, 12288, 7) if st and not P['xp'] & 8 else []) if k == 0 else []
            bg_dma(('s', q, k), pre, WS, vWp, sWs, k * 1024, gap, mod=' sc1')
        bg_dma(('s', q, 3), [f's_add_u32 m0, s{sMh}, {b + 28672}'] + (wrap(sXs, 1 << 18, 7) if st and not P['xp'] & 256 else []), WS, vXd[2], sXs, 0, gap, mod=' sc1')
        for k in range(4):
            pre = [f's_add_u32 m0, s{sM}, {b + 12288}'] if k == 0 else []
            bg_dma(('s', q + 1, k), pre, WS, vXd[k >> 1], sXs, k * 1024, gap, mod=' sc1')

    QF = 30
    fseq = [('u', n) for n in range(14)] + [('o', m) for m in range(8)]

    def f_dma(i, gap):
        kind, n = fseq[i]
        q = QF + i
        m0 = [f's_add_u32 m0, s{sM}, {slot_of(q)}']
        if kind == 'u':
            for k in range(4):
                pre = m0 + wrap(sGs2, 1 << 19, 7) * (0 if P['xp'] & 16 else {0: 0, 7: 0, 8: 2}.get(n, 1)) if k == 0 else []
                if n in (0, 8):
                    pre = pre + [f'v_xor_b32 v{vD2[k]}, 128, v{vD2[k]}']
                bg_dma(('s', q, k), pre, W2, vD2[k], sGs2, k * 1024, gap)
        else:
            step = [f's_add_u32 s{sRo}, s{sRo}, {0 if P["xp"] & 32 else 1}', f's_and_b32 s{sRo}, s{sRo}, 3']
            if n < 4:
                bg_dma(('s', q, 0), m0 + step + [f's_mul_i32 s{sBg}, s{sRo}, {112 * 896}'], WO, vDo[0], sBg, 0, gap)
                bg_dma(('s', q, 1), [], WO, vDo[1], sBg, 1024, gap)
                bg_dma(('s', q, 2), [f's_add_u32 s{sBg}, s{sBg}, {56 * 896 - 2048}'], WO, vDo[0], sBg, 2048, gap)
                bg_dma(('s', q, 3), [], WO, vDo[1], sBg, 3072, gap)
            else:
                for k in range(4):
                    pre = m0 + step + [f's_lshl_b32 s{sBg}, s{sRo}, 12'] if k == 0 else []
                    bg_dma(('s', q, k), pre, WS, vOd[k & 1], sBg, k * 1024, gap, mod=' sc1')

    def bar(qlast):
        if qlast is not None:
            e.need(('s', qlast, 3))
        if not (P['xp'] & 16384 and qlast != 5):
            e('s_barrier')

    PH, DF = P['ph'], P['df']
    vWof = [vBig + 16 + 4 * k for k in range(6)]

    def fr(x, n=4, o=0):
        return a(200 + 4 * (x % NF) + o, n)

    def tr_reads(q, j, T_, x):
        r = []
        for h in range(2):
            ad = slot_of(q) + j * 2048 + h * 1024
            r.append(f'ds_read_b64_tr_b16 {fr(x, 2, 2 * h)}, v{vPat[ad >> 16][T_]} offset:{ad & 65535}')
        return r

    def gemm32(seq, q0, at_stage, swap, fill, zero, accs, amod, padd, checks, pre=None):
        items = []
        for i, (kind, n) in enumerate(seq):
            items += [(i, kind, n, j, T_) for j in range(4 if kind != 'o' else 2) for T_ in range(2)]
        tail = [t for t in items if t[0] >= len(seq) - 2]
        items = items[:len(items) - len(tail)]
        for T_ in (1, 0):
            items += [t for t in tail if t[4] == T_] + [(None, 'P', p, 0, T_) for p in padd if p[0] == T_]
        if P['mid']:
            lo, hi = (amod - P['mid']) * 8, amod * 8
            items[lo:hi] = sorted(items[lo:hi], key=lambda t: -t[4])
        tk = {}
        left = [sum(1 for t in items if t[0] == i) for i in range(len(seq))]
        seen = set()
        lastrd = {}
        done = [-1]

        def rd(x):
            i, kind, n, j, T_ = items[x]
            if kind == 'P':
                return
            q = q0 + i
            if i not in seen:
                seen.add(i)
                while left[done[0] + 1] == 0 and e.lg_done >= lastrd[done[0] + 1]:
                    done[0] += 1
                at_stage(i, q0 + done[0])
            if pre and x in pre:
                tk[x] = pre[x]
            elif kind != 'o':
                for t in tr_reads(q, j, T_, x):
                    tk[x] = e(t)
            else:
                if (i, j) not in seen:
                    seen.add((i, j))
                    for h in range(2):
                        ad = slot_of(q0 + 14 + (n >> 1)) + h * 4096 + (n & 1) * 2048 + j * 1024
                        e(f'ds_read_b64_tr_b16 {v(vWof[(2 * n + j) % 6] + 2 * h, 2)}, v{vPatW[ad >> 16]} offset:{ad & 65535}')
                ad = slot_of(q0 + 18 + (n >> 1)) + (n & 1) * 2048 + j * 512
                tk[x] = e(f'ds_read_b128 {fr(x)}, v{vOr[ad >> 16][T_]} offset:{ad & 65535}')
            left[i] -= 1
            lastrd[i] = tk[x]
        e.ds_free = True
        for x in range(DF):
            rd(x)
        nxt = DF
        for x, (i, kind, n, j, T_) in enumerate(items):
            if x % 4 == 0:
                stamp(f'{seq[0][0]}{x}', (20,))
            if kind == 'P':
                e.bg_flush(n[1])
                e(mf32(vAcc[T_], a(aSel + 4 * n[3], 4), v(n[2], 4)))
            else:
                vm = None
                if kind != 'o':
                    e.bg_flush((kind, n % amod, j))
                    vm = e.tok[(kind, n % amod, j)]
                e.wait(vm=vm, lg=tk.get(x + 1, tk[x]) if x % 2 == 0 else None)
                c = '0' if x in zero else None
                vAc = accs(i)
                act = bf(n % amod, j) if kind != 'o' else v(vWof[(2 * n + j) % 6], 4)
                if P['xp'] & 2:
                    on, e.bg_on = e.bg_on, False
                    e(mf16(vAc[T_] + 8 * (j & 1), act, fr(x), c))
                    e.bg_on = on
                    e(mf16(vAc[T_] + 8 * (j & 1) + 4, fr(x), act, c))
                elif P['xp'] & 4:
                    e.credit -= 28
                    e(f'v_mov_b32 v{vAcc[T_]}, v{vFr[x % NF]}')
                elif swap:
                    e(mf32(vAc[T_], act, fr(x), c))
                else:
                    e(mf32(vAc[T_], fr(x), act, c))
            if x in checks:
                checks[x]()
            if not any(x < c <= x + P['hold'] for c in checks):
                for _ in range(2):
                    if nxt <= x + DF and nxt < len(items):
                        rd(nxt)
                        nxt += 1
            if fill:
                f = fill.pop(0)
                if callable(f):
                    f()
                elif f:
                    e.many(f)
        e.ds_free = False
        assert not fill

    def xf(t, ks):
        return 176 + ((ks & 1) * 3 + t) * 4

    def wf(f, ks):
        return 128 + ((ks & 1) * 6 + f) * 4

    def q_reads(ks):
        st, ksl = ks >> 1, ks & 1
        b = slot_of(16 + 2 * st)

        def xr(t):
            r = []
            for h in range(2):
                ad = b + ksl * 2048 + (1024 if t == 2 else 0) + h * 256
                r.append(f'ds_read_b64_tr_b16 {a(xf(t, ks) + 2 * h, 2)}, v{vXr[ad >> 16][1 if t == 0 else 0]} offset:{ad & 65535}')
            return r

        def wr(f):
            ad = b + (ksl * 6 + f) * 1024
            return [f'ds_read_b128 {a(wf(f, ks), 4)}, v{vLin[ad >> 16]} offset:{ad & 65535}']
        return xr(1) + wr(0) + xr(2) + wr(1) + wr(2) + xr(0) + wr(3) + wr(4) + wr(5)

    e.bg_flush()
    stamp('flag rq', (4,))
    e(flag_load(vFoH, vFv))
    e.bg = hold[:P['w1chk']]
    hold = hold[P['w1chk']:]
    assert len(hold) % 4 == 0
    e.bg_flush()
    stamp('w1 iss', (4,))
    if P['stamps'] == 4:
        e(f's_mov_b32 s{sCnt}, 0')
    flag_check(vFoH, vFv, P['hsleep'])
    if P['stamps'] == 4:
        e(f's_mov_b32 s{sStamp + 12}, s{sCnt}')
    n_iss = 10 - len(hold) // 4
    bar(min(n_iss - 3, 5))
    e.smem_out = 0
    stamp('h ok', (1, 2, 4))
    for n in range(8):
        h_load(n, P['hgap'])
        if n == 0:
            bg_ins('rs', [], f'buffer_load_dword v{vRs}, v{vRsa}, {srd(WS)}, 0 offen sc1', 0)
            if P['rpos'] == 2:
                e.bg_flush()
                res_loads()
        if n < P['hinit']:
            e.bg_flush()
        if n >= P['hpos']:
            e.bg += [(k, f, P['hgap']) for k, f, _ in hold[:4]]
            del hold[:4]
    e.bg += [(k, f, P['hgap']) for k, f, _ in hold]

    rsfill = [f'v_lshlrev_b32 v{t0}, 2, v{vL15}',
            f'v_and_b32 v{t1}, 1, v{vLane}',
            f'v_lshl_add_u32 v{t1}, v{vG}, 2, v{t1}',
            f'v_lshlrev_b32 v{t1}, 2, v{t1}',
            f'v_add_u32 v{t2}, 64, v{t1}',
            f'v_cndmask_b32 v{t3}, v{t1}, v{t2}, {s(sCur0, 2)}',
            f'v_cndmask_b32 v{t1}, v{t1}, v{t2}, {s(sCur1, 2)}']
    for t in range(2):
        rsfill += [f'ds_bpermute_b32 v{vCa[t]}, v{t0}, v{vRs} offset:{64 * (t + 1)}',
                 f'ds_bpermute_b32 v{vAs[t][0]}, v{t3}, v{vRs} offset:{64 * t}',
                 f'ds_bpermute_b32 v{vAs[t][1]}, v{t1}, v{vRs} offset:{64 * t + 8}']
    rsfill += [None] * 6 + [f'v_mul_f32 v{vCa[t]}, s{sC1}, v{vCa[t]}' for t in range(2)]

    g1bar = {3: n_iss - 1, 5: None, 7: 9, 9: 11, 11: 13, 13: 15, 14: None}
    assert n_iss >= 8
    extra = {3: (10, 11), 5: (12, 13), 7: (14, 15)}
    vGp = [vBig, vBig + 16]
    vGr = vBig + 32

    def g_check():
        cnt_check(sGfl, 2, 4)
        e(f'v_xor_b32 v{vGst}, {8 * 16384}, v{vGst}')
        e(f'v_xor_b32 v{vGs2}, 8192, v{vGst}')
        for j in (3, 2, 1, 0):
            e.bg.insert(0, (('gl', j), [f'buffer_load_dwordx4 {v(vGr + 4 * j, 4)}, v{vGs2 if j >= 2 else vGst}, {srd(WS)}, 0 offen offset:{j * 1024} sc1'], 32))

    def g1_stage(n, done):
        if n in g1bar:
            bar(g1bar[n])
        if n == P['gpub']:
            e.need(('g', 1 if P['mid'] else 3))
            signal(sGfl, False)
        if n in (0, 1, 2, 4, 6, 8, 10, 12, 14):
            stamp(f'g1 st{n}', (2, 4) if n in (1, 4) else (2,))
        if n >= 8:
            stamp(f'g1 st{n}', (9,))
        gap = P['ggap']
        if n == 14:
            assert done >= 12
        for q in extra.get(n, ()):
            assert done >= q - 10
            w1_dma(q, gap)
        if n == P['wfq']:
            cnt_req(sWck, DBG)
        if n in (9, 11, 13):
            assert done >= n - 2
            q_dma(n // 2 - 4, P['qg1'])
        if n == P['gfq']:
            e(f's_xor_b32 s{sGfl}, s{sGfl}, 1024')
            cnt_req(sGfl)

    def part_store(acc, vst, key, j, pause, flush):
        if j == 0 and flush:
            e.bg_flush()
        src = acc[j >> 1] + 8 * (j & 1)
        for r in range(4):
            e(f'v_cvt_pk_bf16_f32 v{src + r}, v{src + 2 * r}, v{src + 2 * r + 1}')
        e.bg.insert(0, ((key, j), [f'buffer_store_dwordx4 {v(src, 4)}, v{vst}, {srd(WS)}, 0 offen offset:{j * 1024} sc1'], 32))
        e.bg_flush((key, j))
        if j == (1 if P['mid'] else 3):
            e.credit = pause

    def part_fill(fl, end, acc, vst, key, pause, flush):
        st = [lambda j=j: part_store(acc, vst, key, j, pause, flush) for j in range(4)]
        if P['mid']:
            p1 = end - 4 * P['mid'] + 2
            rest = fl[p1:]
            fl = fl[:p1] + [None] * (p1 - len(fl)) + st[2:] + rest
            assert len(fl) <= end + 2
            return fl + [None] * (end + 2 - len(fl)) + st[:2]
        assert len(fl) <= end + 1
        return fl + [None] * (end + 1 - len(fl)) + st

    gf = ['\n'.join(setup2[:6] + [t for t in setup2 if f's{sC1},' in t])] + rsfill + setup2[6:]
    gf = part_fill(gf, 64, vGp, vGst, 'g', P['gpause'], P['gflush'])
    xtk = {}

    def xw(j):
        xtk[0] = e(f'ds_write_b128 v{vEx}, {v(vAcc[1] + 4 * j, 4)} offset:{EXC_B + j * 1024}')

    def xr():
        e(f'v_xor_b32 v{vEx}, 8192, v{vEx}')
        e.wait(vm=e.tok[('s', 17, 3)], lg=xtk[0])
        e('s_barrier')
        stamp('exch', (9, 20))
        q_dma(3, P['qg1'])
        for j in range(4):
            e(f'ds_read_b128 {v(vE + 4 * j, 4)}, v{vEx} offset:{EXC_B + j * 1024}')
    gf += [None] * (122 - len(gf)) + [lambda j=j: xw(j) for j in range(4)] + [None] * P['xdel'] + [xr]
    gemm32([('h', n) for n in range(16)], 0, g1_stage, False, gf, {0, 1, 65}, lambda i: vGp if i < 8 else vAcc, 8,
           [(0, ('gl', j), vGr + 4 * j, j & 1) for j in range(4)],
           {P['wck']: lambda: cnt_check(sWck, 14, 8, DBG), P['gck']: g_check})
    stamp('g1 done', (1, 2, 9))
    for half in range(2):
        ps = [8 * half + 2 * k for k in range(4)]
        A_ = lambda p: v(vAcc[0] + p, 2)
        E_ = lambda p: v(vE + p, 2)
        for p in ps:
            e(f'v_pk_add_f32 {A_(p)}, {A_(p)}, {E_(p)}')
        for p in ps:
            e(f'v_pk_mul_f32 {E_(p)}, {A_(p)}, {A_(p)}')
        for p in ps:
            e(f'v_pk_fma_f32 {E_(p)}, {E_(p)}, {s(sGc, 2)}, {v(vC0, 2)}')
        for p in ps:
            e(f'v_pk_mul_f32 {E_(p)}, {E_(p)}, {A_(p)}')
        for p in ps:
            e(f'v_exp_f32 v{vE + p}, v{vE + p}')
            e(f'v_exp_f32 v{vE + p + 1}, v{vE + p + 1}')
        for p in ps:
            e(f'v_pk_add_f32 {E_(p)}, {E_(p)}, {s(sOne, 2)}')
        for p in ps:
            e(f'v_rcp_f32 v{vE + p}, v{vE + p}')
            e(f'v_rcp_f32 v{vE + p + 1}, v{vE + p + 1}')
        for p in ps:
            e(f'v_pk_mul_f32 {E_(p)}, {E_(p)}, {A_(p)}')
        for k, p in enumerate(ps):
            e(f'v_cvt_pk_bf16_f32 v{vSt[half] + k}, v{vE + p}, v{vE + p + 1}')
    run(q_reads(0))
    e.bg_flush()
    for half in range(2):
        tokU = e(f'buffer_store_dwordx4 {v(vSt[half], 4)}, v{vL16}, {srd(WS)}, s{sUst} offen offset:{half * 1024} sc1')
    stamp('u stored', (1, 2, 5, 9))
    e('s_branch L_q')

    save = (e.vm_n, e.vm_done, e.lg_n, e.lg_done, dict(e.pvm), dict(e.plg), dict(e.tok), nst[0])
    e.label('L_nog1')
    e.vm_n, e.vm_done, e.lg_n, e.lg_done, e.pvm, e.plg, e.tok = save0
    assert not e.bg
    e.pad(2)
    vW, vWr = vBig + 60, vBig + 61
    vPk = vBig
    sPk, sPp, sPo = 79, 80, 81
    PITCH = 1056
    e.many(f"""
        s_mov_b32 s{WQ + 2}, {448 * 2688}
        s_mov_b32 s{WQ + 3}, 0x20000
        s_sub_u32 s3, s2, 200
        s_cmp_lt_u32 s3, 42
        s_cselect_b32 s{sPo}, 0, {OOB}
        s_cselect_b32 s3, s3, 0
        s_mul_i32 s{sPk}, s3, 43
        s_lshr_b32 s{sPk}, s{sPk}, 7
        s_mul_i32 s{sPp}, s{sPk}, 3
        s_sub_u32 s{sPp}, s3, s{sPp}
        v_min_u32 v{t0}, 55, v{vLane}
        s_lshl_b32 s3, s{sPk}, 2
        s_add_u32 s3, s3, s{sW}
        s_mul_i32 s3, s3, {8 * 2688}
        s_mul_i32 s{sCnt}, s{sPp}, 896
        s_add_u32 s3, s3, s{sCnt}
        s_add_u32 s3, s3, s{sPo}
        v_lshl_add_u32 v{vW}, v{t0}, 4, s3
        s_mul_i32 s{sCnt}, s{sW}, {8 * PITCH}
    """)
    for r in range(8):
        e(f's_add_u32 m0, s{sCnt}, {r * PITCH}')
        e(f's_mov_b32 s3, {r * 2688}')
        e(f'buffer_load_dwordx4 v{vW}, {srd(WQ)}, s3 offen lds')
    tokHh = p0_body((6,))
    e.many(f"""
        v_lshrrev_b32 v{t0}, 2, v{vLane}
        v_mul_u32_u24 v{t0}, {PITCH}, v{t0}
        v_lshl_add_u32 v{t0}, v{vC4}, 3, v{t0}
        s_mul_i32 s3, s{sW}, {4 * 56}
        v_add_u32 v{vWr}, s3, v{t0}
    """)
    h_publish('h', tokHh)
    stamp('hlp hflag', (6,))
    e.many(f"""
        v_cmp_gt_u32 vcc, 12, v{vL15}
        s_mul_i32 s3, s{sW}, {4 * 14}
        s_add_u32 s3, s3, s{sPk}
        s_mul_i32 s3, s3, 3
        s_add_u32 s3, s3, s{sPp}
        s_lshl_b32 s3, s3, 11
        s_add_u32 s3, s3, {WP_OFF}
        s_add_u32 s3, s3, s{sPo}
    """)
    for jj in range(4):
        for t in range(2):
            for h in range(2):
                e(f'ds_read_b64_tr_b16 {v(vPk + (2 * jj + t) * 4 + 2 * h, 2)}, v{vWr} offset:{jj * 56 + t * 32 + h * 16 * PITCH}')
    for jj in range(4):
        for r in range(4):
            d = vPk + (2 * jj + 1) * 4 + r
            e(f'v_cndmask_b32 v{d}, 0, v{d}, vcc')
        for t in range(2):
            tokP = e(f'buffer_store_dwordx4 {v(vPk + (2 * jj + t) * 4, 4)}, v{vL16}, {srd(WS)}, s3 offen offset:{t * 1024} sc1')
        e(f's_add_u32 s3, s3, 86016')
    e.many(f"""
        s_lshl_b32 s{sUst}, s{sPp}, 6
        s_add_u32 s{sUst}, s{sUst}, 64
        s_cmp_eq_u32 s{sPo}, 0
        s_cselect_b32 s{sGfl}, s{sW}, 1
        s_mov_b32 s{sUfl}, {CN_OFF + 100 * 128}
    """)
    if P['gord'] == 1:
        e.many(f"""
            s_and_b32 s3, s2, 1
            s_mul_i32 s3, s3, 3
            s_bfe_u32 s{sT2}, s2, 0x10001
            s_mul_i32 s{sT3}, s{sT2}, 6
            s_add_u32 s3, s3, s{sT3}
            s_add_u32 s3, s3, 1
            v_add_u32 v{t1}, s3, v{vC4}
            s_mul_i32 s{sT2}, s{sT2}, 64
            s_add_u32 s{sT2}, s{sT2}, 7
            v_cmp_ne_u32 vcc, s{sT2}, v{t1}
            v_lshrrev_b32 v{t2}, 2, v{vLane}
            v_mul_u32_u24 v{t2}, 3584, v{t2}
            v_cndmask_b32 v{t1}, 0, v{t1}, vcc
            v_lshl_add_u32 v{t1}, v{t1}, 8, v{t2}
            s_lshl_b32 s3, s{sD}, 2
            s_add_u32 s3, s3, s{sW}
            s_mul_i32 s3, s3, 37
            s_min_u32 s3, s3, 976
            s_mul_i32 s3, s3, 3584
            s_mul_i32 s{sT2}, s{sM3}, {1024 * 3584 + 128}
            s_add_u32 s3, s3, s{sT2}
        """)
        for k in range(P['nt1']):
            e(f'buffer_load_dword v{vBig + 44 + k}, v{t1}, {srd(W1)}, s3 offen')
            e(f's_add_u32 s3, s3, {16 * 3584}')
    run(setup[NS1:])
    run(setup2)
    e.wait(vm=tokP)
    e('s_barrier')
    e(f's_cmp_lg_u32 s{sGfl}, 0')
    e(f's_cbranch_scc1 L_nowsig')
    signal(sUst, False, DBG)
    e.label('L_nowsig')
    e(flag_load(vFoH, vFv))
    e.many(f"""
        s_cmp_eq_u32 s{sF}, 0
        s_cselect_b32 s{W2 + 2}, 0, s{W2 + 2}
        v_sub_u32 v{t0}, v{vHo}, v{vL16}
        v_lshl_add_u32 v{t0}, v{vL31}, 7, v{t0}
        s_add_u32 s3, s{sGsH}, {P['hlead'] * 8192}
        v_lshl_add_u32 v{t1}, v{vHi}, 13, s3
    """)
    flag_check(vFoH, vFv, 8)
    assert e.vm_done >= tokP
    e('s_barrier')
    e(f'buffer_load_dword v{vRs}, v{vRsa}, {srd(WS)}, 0 offen sc1')
    stamp('hlp h ok', (6,))
    if P['touch'] & 4:
        for k in range((9 - P['hlead']) // 2):
            e(f'v_and_b32 v{t1}, 0xffff, v{t1}')
            e(f'v_add_u32 v{t2}, v{t0}, v{t1}')
            e(f'v_add_u32 v{t1}, 16384, v{t1}')
            e(f'buffer_load_dword v{vBig + 40 + k}, v{t2}, {srd(WS)}, 0 offen sc1')
    if P['ntw']:
        e.many(f"""
            s_mov_b32 s{W2 + 2}, {1792 * 4096}
            s_and_b32 s3, s2, 1
            s_mul_i32 s3, s3, 7
            s_add_u32 s3, s3, s{sD}
            s_lshl_b32 s3, s3, 2
            s_add_u32 s3, s3, s{sW}
            s_lshl_b32 s3, s3, 17
            s_and_b32 s{sT2}, s2, 6
            s_lshl_b32 s{sT2}, s{sT2}, 9
            s_add_u32 s3, s3, s{sT2}
            v_lshlrev_b32 v{t0}, 12, v{vL31}
            v_lshl_add_u32 v{t0}, v{vHi}, 9, v{t0}
        """)
        for k in range(P['ntw']):
            e(f'buffer_load_dword v{vBig + 50 + k}, v{t0}, {srd(W2)}, s3 offen offset:{(3 - k) * 128}')
        e(f's_cmp_eq_u32 s{sF}, 0')
        e(f's_cselect_b32 s{W2 + 2}, 0, s{W2 + 2}')
    run([t for t in rsfill if t])
    e.wait(vm=e.vm_n - 2)
    cnt_req(sWck, DBG)
    cnt_check(sWck, 14, 16, DBG)
    e('s_barrier')
    stamp('hlp touched', (6, 7))
    if P['touch'] & 1:
        e.many(f"""
            s_max_u32 s3, s{sIdx}, 25
            s_sub_u32 s3, s3, 25
            s_lshl_b32 s3, s3, 2
            s_add_u32 s{sT3}, s3, s{sW}
            v_lshlrev_b32 v{t0}, 7, v{vLane}
            s_and_b32 s3, s{sJ}, 8
            s_mul_i32 s3, s3, 86016
            s_mul_i32 s{sT3}, s{sT3}, 3072
            s_add_u32 s3, s3, s{sT3}
            s_add_u32 s3, s3, {WP_OFF}
            v_min_u32 v{t0}, {23 * 128}, v{t0}
            buffer_load_dword v{vBig + 2}, v{t0}, {srd(WS)}, s3 offen sc1
        """)
    if P['touch'] & 32:
        e.many(f"""
            v_lshl_add_u32 v{t1}, v0, 7, s{sWs}
            s_mul_i32 s3, s{sJ}, 86016
            s_add_u32 s3, s3, {WP_OFF}
        """)
        for k in range(3):
            e(f'v_subrev_u32 v{t2}, 86016, v{t1}')
            e(f'v_min_u32 v{t2}, v{t1}, v{t2}')
            e(f'v_add_u32 v{t1}, {32768 if k == 0 else 86016 - 65536}, v{t1}')
            e(f'buffer_load_dword v{vBig + 3 + k}, v{t2}, {srd(WS)}, s3 offen sc1')
    assert not e.bg
    e.many(f"""
        s_cmp_eq_u32 s{sF}, 0
        s_cselect_b32 s3, {OOB}, 0
        v_add_u32 v{vUo}, s3, v{vUo}
    """)
    for st in range(4):
        q_dma(st, 0)
    e.bg_flush()
    e(f's_mov_b32 s3, {OOB}')
    for _ in range(2):
        e(f'buffer_store_dword v{vNon}, v{vFl}, {srd(WS)}, s3 offen')
    safe = ('s', 16, 0)
    for st in range(4):
        k = ('s', 17 + 2 * st, 3)
        if not (e.vm_n - e.tok[k] >= save[0] - save[6][k] and save[1] < save[6][k]):
            safe = k
    e.wait(vm=max(e.tok[safe], e.tok[('s', 17, 3)]), lg=e.lg_n)
    e('s_barrier')
    run(q_reads(0))
    e.wait_all(vm=False, lg=True, force=True)
    e.pad(4)
    e.vm_n, e.vm_done, e.lg_n, e.lg_done, e.pvm, e.plg, e.tok, _ = save

    e.label('L_q')
    e.smem_out = 0
    QG = P['qgap']
    vQ = [None, [vBig, vBig + 4], [vBig + 8, vBig + 12]]
    vK = [[vBig + 16 + 8 * t, vBig + 20 + 8 * t] for t in range(3)]
    vV = [[vBig + 40 + 8 * t, vBig + 44 + 8 * t] for t in range(3)]
    nf = [0]

    def f_enq(limit_q, maxn, gap):
        while nf[0] < len(fseq) and QF + nf[0] <= limit_q and nf[0] < maxn:
            f_dma(FORD[nf[0]] if nf[0] < 10 else nf[0], gap)
            nf[0] += 1

    def q_barrier(st):
        key = ('s', 17 + 2 * st, 3) if st < 7 else ('s', QF + 2, 3)
        e.bg_flush(key)
        if st == 7:
            cnt_check(sUck, 7, 8, unless0=sF)
            stamp('u ok', (1, 3))
        e.wait(vm=max(e.tok[key], tokU if st == P['ust'] else 0), lg=e.lg_n)
        if not P['xp'] & 32768:
            e('s_barrier')
        if st == P['ust']:
            signal(sUfl, True)
            stamp('uflag', (1,))
        stamp(f'Q{st}', (5, 7))
        if st == 1:
            q_dma(4, QG)
        if st == 7:
            rest, e.bg = e.bg, []
            for n in range(PH):
                u_load(n, P['agap'])
            e.bg += rest
        if st + 4 < 7:
            q_dma(st + 4, QG)
        else:
            f_enq(QF + 2 * (st - 3) + 1, 10, QG)

    e.ds_free = True
    e.bg_on = False
    for ks in range(14):
        c = '0' if ks == 0 else None
        ms = []
        for f in range(6):
            part, t = f >> 1, f & 1
            w_ = a(wf(f, ks), 4)
            if part == 0:
                ms += [mf16(vQ[k][t], w_, a(xf(k, ks), 4), c) for k in (1, 2)]
            elif part == 1:
                ms += [mf16(vK[k][t], w_, a(xf(k, ks), 4), c) for k in (1, 2, 0)]
            else:
                ms += [mf16(vV[k][t], a(xf(k, ks), 4), w_, c) for k in (1, 2, 0)]
        last = e.lg_n
        stamp(f'q{ks}', (20,))
        if ks & 1:
            q_barrier((ks + 1) >> 1)
        if ks == P['ureq']:
            e.smem_out = 0
            cnt_req(sUck)
        fpre = {}
        rds = q_reads(ks + 1) if ks < 13 else [t for x in range(DF) for t in tr_reads(QF, x >> 1, x & 1, x)]
        for i, m in enumerate(ms):
            if i == 8:
                stamp(f'q{ks}.5', (20,))
            if i == 0:
                e.wait(lg=last - 6)
            if i == 4:
                e.wait(lg=last)
            e(m)
            n = 1 if i in (3, 15) else 2
            for _ in range(2 if (ks % 2 == 0 and i < P['qrd']) else 1):
                if rds:
                    x_ = (2 * DF - len(rds)) >> 1
                    fpre[x_] = e(rds.pop(0))
                    n -= 1
            while n > 0 and e.bg_step():
                n -= 1
    e.ds_free = False
    e.bg_on = True
    stamp('qkv done', (1, 5, 6, 7))

    vQf = [None, vFr[0], vFr[1]]
    vKf = [vFr[2], vFr[3], vFr[4]]
    vPf = [vFr[5], vFr[6]]
    vVf = [vAcc[1], vAcc[1] + 6]
    vS = [[vAcc[0], vAcc[0] + 4], [vAcc[0] + 8, vAcc[0] + 12]]
    vTm = [[vBig + 64 + 4 * t + k for k in range(4)] for t in range(2)]

    def pack_T(acc, dst):
        for n in range(2):
            for r in range(2):
                e(f'v_cvt_pk_bf16_f32 v{dst + 2 * n + r}, v{acc[n] + 2 * r}, v{acc[n] + 2 * r + 1}')

    for t in (1, 2):
        pack_T(vQ[t], vQf[t])
    for t in (1, 2, 0):
        pack_T(vK[t], vKf[t])
    e(mf16(vS[0][1], v(vKf[1], 4), v(vQf[1], 4), '0'))
    e(mf16(vS[1][0], v(vKf[1], 4), v(vQf[2], 4), '0'))
    e(mf16(vS[1][1], v(vKf[2], 4), v(vQf[2], 4), '0'))
    e(mf16(vS[0][0], v(vKf[0], 4), v(vQf[1], 4), '0'))
    vnorm = []
    for n in range(2):
        for t in range(3):
            for r in range(2):
                vnorm.append(f'v_cvt_pk_bf16_f32 v{vVf[n] + 2 * t + r}, v{vV[t][n] + 2 * r}, v{vV[t][n] + 2 * r + 1}')
    run(vnorm[:6])
    vnorm = vnorm[6:]
    L = [[vTm[0][0], vTm[0][1]], [vTm[1][0], vTm[1][1]]]
    Mx = [vTm[0][2], vTm[1][2]]
    Tm = [vTm[0][3], vTm[1][3]]
    T = range(2)
    for t in (1, 0):
        for z, sc in ((0, sCur0), (1, sCur1)):
            e(f'v_cndmask_b32 v{L[t][z]}, v{vS[t][0] + 2 * z}, v{vS[t][0] + 2 * z + 1}, {s(sPar, 2)}')
            if t == 0:
                e(f'v_cndmask_b32 v{L[t][z]}, v{vNeg}, v{L[t][z]}, {s(sInvd, 2)}')
            e(f'v_cndmask_b32 v{Tm[t]}, v{vS[t][1] + 2 * z}, v{vS[t][1] + 2 * z + 1}, {s(sPar, 2)}')
            e(f'v_cndmask_b32 v{L[t][z]}, v{L[t][z]}, v{Tm[t]}, {s(sc, 2)}')
            e(f'v_mul_f32 v{L[t][z]}, v{L[t][z]}, v{vAs[t][z]}')

    def tree(op):
        for t in T:
            e(f'{op} v{Mx[t]}, v{L[t][0]}, v{L[t][1]}')
        for sw in ('v_permlane16_swap_b32', 'v_permlane32_swap_b32'):
            for t in T:
                e(f'v_mov_b32 v{Tm[t]}, v{Mx[t]}')
            if vnorm:
                e(vnorm.pop(0))
            for t in T:
                e(f'{sw} v{Mx[t]}, v{Tm[t]}')
            for t in T:
                e(f'{op} v{Mx[t]}, v{Mx[t]}, v{Tm[t]}')

    tree('v_max_f32')
    for t in T:
        e(f'v_mul_f32 v{Mx[t]}, v{vCa[t]}, v{Mx[t]}')
    for t in T:
        for z in range(2):
            e(f'v_fma_f32 v{L[t][z]}, v{L[t][z]}, v{vCa[t]}, -v{Mx[t]}')
    for t in T:
        for z in range(2):
            e(f'v_exp_f32 v{L[t][z]}, v{L[t][z]}')
    tree('v_add_f32')
    for t in T:
        e(f'v_rcp_f32 v{Mx[t]}, v{Mx[t]}')
    run(vnorm)
    for t in T:
        for z in range(2):
            e(f'v_mul_f32 v{L[t][z]}, v{L[t][z]}, v{vAs[t][z]}')
    for t in T:
        for z in range(2):
            e(f'v_mul_f32 v{L[t][z]}, v{L[t][z]}, v{Mx[t]}')
    for t in T:
        for z in range(2):
            e(f'v_cvt_pk_bf16_f32 v{L[t][z]}, v{L[t][z]}, v{L[t][z]}')
    for t in T:
        for k in range(4):
            e(f'v_and_b32 v{vPf[t] + k}, v{L[t][k & 1]}, v{vMk + k}')
    vO = [vQ[1], vQ[2]]
    for t in T:
        for n in range(2):
            e(mf16(vO[t][n], v(vVf[n] + 2 * t, 4), v(vPf[t], 4), '0'))
    e(f's_add_u32 s{sC1}, s{sOs}, 16384')
    for t in T:
        pack_T(vO[t], vSt[t])

    def o_stores():
        for t in T:
            tok = e(f'buffer_store_dwordx4 {v(vSt[t], 4)}, v{vL16}, {srd(WS)}, s{sOs + t} offen sc1')
        return tok
    e.bg_flush(('u', P['uo'], 3))
    tokO = o_stores()
    stamp('attn done', (1, 5, 7))
    e(f's_cmp_lg_u32 s{sF}, 0')
    e(f's_cbranch_scc1 L_f')
    save = (e.vm_n, e.vm_done, e.lg_n, e.lg_done, dict(e.pvm), dict(e.plg), dict(e.tok), nst[0])
    e.wait(vm=tokO)
    e('s_barrier')
    signal(sOfl, True)
    e.smem_out = 0
    if P['touch'] & 2:
        bgs, e.bg = e.bg, []
        e(f'v_lshlrev_b32 v{t1}, 7, v{vLane}')
        e(f's_lshl_b32 s3, s{sD2}, 2')
        e(f's_add_u32 s3, s3, s{sW}')
        e(f's_mul_i32 s3, s3, {196 * 128}')
        for k in range(4):
            e(f'buffer_load_dword v{vBig + k}, v{t1}, {srd(WO)}, s3 offen')
            e(f's_add_u32 s3, s3, {44 * 128}')
        e.bg = bgs
    e('s_branch L_fin')
    e.vm_n, e.vm_done, e.lg_n, e.lg_done, e.pvm, e.plg, e.tok, nst[0] = save

    e.label('L_f')
    vE2 = vBig + 40
    vAp = [vBig, vBig + 56]
    assert nf[0] == 10
    fbar = {3: 9, 5: None, 7: None, 9: 13, 11: None, 13: None, 14: 18, 16: 19, 18: 20, 20: 21}
    opub = [False]
    nu = [PH]

    def f_stage(i, done):
        if i in fbar:
            bar(None if fbar[i] is None else QF + fbar[i])
            if i == 20:
                assert done >= QF + 17
            if not opub[0] and e.vm_done >= tokO:
                opub[0] = True
                signal(sOfl, True)
        if i in (0, 2, 4, 6, 8, 10, 12, 14, 18):
            stamp(f'f st{i}', (3,))
        if i in (7, 8, 9, 10, 11, 12, 13, 14, 16, 18, 20):
            stamp(f'f st{i}', (8,))
        gap = P['fgap'] if i < 11 else P['ogap']
        if nu[0] < 7:
            u_load(nu[0], gap)
            nu[0] += 1
        if i == P['ofq']:
            cnt_req(sOck)
        if i == P['ppub']:
            e.need(('p', 1 if P['mid'] else 3))
            signal(sPfl, False)
        if i in (3, 5, 7, 9, 11, 13):
            assert done >= QF + i - 2
            f_enq(QF + i + 8, 22, gap)
        if i == P['pfq']:
            e(f's_xor_b32 s{sPfl}, s{sPfl}, 1024')
            cnt_req(sPfl)

    def p_check():
        cnt_check(sPfl, 1, 4)
        e(f'v_xor_b32 v{vPst}, {8 * 16384}, v{vPst}')
        for j in (2, 3, 0, 1):
            bg_ins(('pl', j), [], f'buffer_load_dwordx4 {v(vPr + 4 * j, 4)}, v{vPst}, {srd(WS)}, 0 offen offset:{j * 1024} sc1', 32)

    rs = []
    for q_ in range(2):
        rs.append(f'v_lshlrev_b32 v{vBo[q_]}, 16, v{vBo[q_]}')
        for k in range(4):
            d = vE2 + 8 * q_ + 2 * k
            rs += [f'v_lshlrev_b32 v{d}, 16, v{vXo[q_] + k}', f'v_and_b32 v{d + 1}, 0xffff0000, v{vXo[q_] + k}',
                   f'v_add_f32 v{d}, v{d}, v{vBo[q_]}', f'v_add_f32 v{d + 1}, v{d + 1}, v{vBo[q_]}']
    vPr = vAp[1]

    rs = part_fill(rs, 56, vAp, vPst, 'p', P['fpause'], False)
    rs += [None] * (144 - len(rs)) + [f'ds_write_b128 v{vEw[j]}, {v(vAcc[1] + 4 * j, 4)} offset:8192' for j in range(4)]
    gemm32(fseq, QF, f_stage, True, rs, {0, 1, 56, 57}, lambda i: vAp if i < 7 else vAcc, 7,
           [(j >> 1, ('pl', j), vPr + 4 * j, j & 1) for j in range(4)],
           {P['ock']: lambda: cnt_check(sOck, 8, 8), P['pck']: p_check}, fpre)
    assert opub[0] and not e.bg
    stamp('f done', (1, 3, 8))
    for j in range(4):
        e(f'ds_write_b128 v{vEw[j]}, {v(vAcc[0] + 4 * j, 4)}')
    e.wait_all(vm=False, lg=True)
    e('s_barrier')
    stamp('epi bar', (3, 20))
    for q_ in range(2):
        for k in range(4):
            e(f'ds_read_b128 {v(vFr[4 * q_ + k], 4)}, v{vEr[k]} offset:{q_ * 2048}')
    for q_ in range(2):
        for k in range(4):
            for r in (0, 2):
                d = vE2 + 8 * q_ + 4 * (k & 1) + r
                e(f'v_pk_add_f32 {v(d, 2)}, {v(d, 2)}, {v(vFr[4 * q_ + k] + r, 2)}')
        for k in range(4):
            d = vE2 + 8 * q_ + 2 * k
            e(f'v_cvt_pk_bf16_f32 v{vSt[q_] + k}, v{d}, v{d + 1}')
        e(f'buffer_store_dwordx4 {v(vSt[q_], 4)}, v{vOo[q_]}, {srd(OUT)}, 0 offen')
    e.label('L_fin')
    if P['stamps']:
        e.wait_all(force=True)
        if nst[0] > 1:
            e(f's_mov_b32 s{sStamp + nst[0] - 1}, s{WQ}')
        e(f's_memrealtime s[{sT2}:{sT3}]')
        e(f's_memtime s[0:1]')
        e.wait_all(vm=False, lg=True, force=True)
        e(f's_mov_b32 s{sStamp + 15}, s{sT2}')
        e(f's_mov_b32 s{sStamp + 14}, s0')
        e(f's_lshl_b32 s3, s2, 2')
        e(f's_add_u32 s3, s3, s{sW}')
        e(f's_lshl_b32 s3, s3, 7')
        e(f's_add_u32 s3, s3, {ST_OFF}')
        if P['stamps'] == 20:
            for k in (ntr[0] - 2, ntr[0] - 1):
                e.raw(f'    v_writelane_b32 v{252 + k // 64}, s{86 + 2 * (k % 3)}, {k % 64}')
            e(f's_sub_u32 s{sT2}, s3, {ST_OFF}')
            e(f's_lshl_b32 s{sT2}, s{sT2}, 3')
            e(f's_add_u32 s{sT2}, s{sT2}, {7 << 20}')
            e(f'v_lshlrev_b32 v{t0}, 2, v{vLane}')
            for k in range(3):
                e(f'buffer_store_dword v{252 + k}, v{t0}, {srd(WS)}, s{sT2} offen offset:{256 * k}')
        for k in range(16):
            e(f'v_mov_b32 v{t0}, s{sStamp + k}')
            e(f'buffer_store_dword v{t0}, v{vFl}, {srd(WS)}, s3 offen offset:{4 * k}')
    if P['probe'] >= 0:
        e.wait_all(force=True)
        e(f's_sub_u32 s{sCnt}, s{sStamp}, s{sNon}')
        e(f's_max_i32 s{sCnt}, s{sCnt}, 0')
        e(f's_min_i32 s{sCnt}, s{sCnt}, 4000')
        e(f's_lshl_b32 s{sCnt}, s{sCnt}, 2')
        e(f's_add_u32 s{sCnt}, s{sCnt}, 4000')
        e.label('L_fix')
        e(f's_memrealtime s[{sT2}:{sT3}]')
        e.wait_all(vm=False, lg=True, force=True)
        e(f's_sub_u32 s3, s{sT2}, s{sNon}')
        e(f's_cmp_lt_u32 s3, s{sCnt}')
        e(f's_cbranch_scc1 L_fix')
    e.label('L_end')
    e('s_endpgm')

    if P['align']:
        e.lines = align_pass(e.lines, P['align'])
    hdr = open(os.path.join(os.path.dirname(os.path.abspath(__file__)), '..', NAME + '.s.ref')).read().split('; Override launch')[0]
    out = hdr + f"""; Generated by gen/gen.py (hand-written generator).{' cyc' if P['cyc'] else ''}
; @launch grid=(256,1,1) block=(256,1,1) lds={LDS_SIZE}
.amdgcn_target "amdgcn-amd-amdhsa--gfx950"
.text
.globl {NAME}_kernel
.p2align 8
.type {NAME}_kernel,@function
{NAME}_kernel:
""" + e.text() + f""".section .rodata,"a"
.p2align 6
.amdhsa_kernel {NAME}_kernel
  .amdhsa_next_free_vgpr 512
  .amdhsa_next_free_sgpr 102
  .amdhsa_accum_offset 256
  .amdhsa_group_segment_fixed_size 0
  .amdhsa_kernarg_size 88
  .amdhsa_user_sgpr_count 2
  .amdhsa_user_sgpr_kernarg_segment_ptr 1
  .amdhsa_system_sgpr_workgroup_id_x 1
.end_amdhsa_kernel
"""
    sys.stderr.write(f'vgpr hi {V.hi}, nops {e.nnop}, lines {len(e.lines)}\n')
    return out


def align_pass(lines, minrun):
    import subprocess, tempfile, re
    with tempfile.TemporaryDirectory() as d:
        open(d + '/a.s', 'w').write('.amdgcn_target "amdgcn-amd-amdhsa--gfx950"\n.text\n' + '\n'.join(lines) + '\n')
        subprocess.run(['clang', '-x', 'assembler', '-target', 'amdgcn-amd-amdhsa', '-mcpu=gfx950', '-c', d + '/a.s', '-o', d + '/a.o'], check=True)
        dis = subprocess.run(['llvm-objdump', '-d', '--mcpu=gfx950', d + '/a.o'], capture_output=True, text=True, check=True).stdout
    sizes = [4 * len(m.group(1).split()) for m in re.finditer(r'// [0-9A-F]+: ((?:[0-9A-F]{8} ?)+)', dis)]
    idx = [i for i, l in enumerate(lines) if l.startswith('    ') and not l.strip().startswith(';')]
    assert len(idx) == len(sizes), (len(idx), len(sizes))
    ok = re.compile(r'^\s+(v_(?:mov|add|sub|subrev|mul|max|min|and|or|xor|lshlrev|lshrrev|exp|rcp|rsq|cndmask|fmac|mul_u32)_?[a-z0-9_]*) ')
    off, last, n, bad = 0, None, 0, 0
    out = list(lines)
    for k, i in enumerate(idx):
        if sizes[k] == 8 and off % 8:
            if last is not None:
                m = ok.match(out[last])
                out[last] = out[last].replace(m.group(1), m.group(1) + '_e64', 1)
                off += 4
                n += 1
            else:
                run = 0
                while k + run < len(sizes) and sizes[k + run] == 8:
                    run += 1
                if minrun > 1 and run >= minrun:
                    out[i] = '    s_nop 0\n' + out[i]
                    off += 4
                    n += 1000
                else:
                    bad += 1
        if sizes[k] == 8 and off % 8 == 0:
            last = None
        elif sizes[k] == 4 and ok.match(lines[i]):
            last = i
        off += sizes[k]
    sys.stderr.write(f'align: {n} promoted, {bad} 8-byte instructions left misaligned\n')
    return out


if __name__ == '__main__':
    kw = {}
    path = os.path.join(os.path.dirname(os.path.abspath(__file__)), '..', NAME + '.s')
    for arg in sys.argv[1:]:
        k, val = arg.split('=')
        if k == 'out':
            path = val
        else:
            kw[k] = int(val)
    open(path, 'w').write(build(**kw))
```

```python
import re

_REG = re.compile(r'^(-|abs\()?([vas])(\d+|\[(\d+):(\d+)\])\)?$')

TRANS = ('v_exp_f32', 'v_log_f32', 'v_rcp_f32', 'v_rsq_f32', 'v_sqrt_f32')


def regs_of(tok):
    tok = tok.strip()
    if tok == 'vcc':
        return {('s', 'vcc')}
    if tok == 'exec':
        return {('s', 'exec')}
    if tok == 'm0':
        return {('s', 'm0')}
    m = _REG.match(tok)
    if not m:
        return set()
    kind = m.group(2)
    if m.group(4) is not None:
        return {(kind, i) for i in range(int(m.group(4)), int(m.group(5)) + 1)}
    return {(kind, int(m.group(3)))}


def split_ops(s):
    out, depth, cur = [], 0, ''
    for ch in s:
        if ch in '[(':
            depth += 1
        if ch in '])':
            depth -= 1
        if ch == ',' and depth == 0:
            out.append(cur.strip())
            cur = ''
        else:
            cur += ch
    if cur.strip():
        out.append(cur.strip())
    return out


class Ins:
    __slots__ = ('text', 'op', 'cls', 'wr', 'rd', 'srcA', 'srcB', 'srcC', 'states', 'dpp', 'wide_store', 'dma')

    def __init__(self, text):
        self.text = text
        t = text.split(';')[0].strip()
        parts = t.split(None, 1)
        self.op = op = parts[0]
        rest = parts[1] if len(parts) > 1 else ''
        ops = split_ops(rest)
        mods = []
        if ops:
            toks = ops[-1].split()
            ops[-1] = toks[0]
            mods = toks[1:]
        self.wr, self.rd = set(), set()
        self.srcA = self.srcB = self.srcC = set()
        self.states = 1
        self.dpp = op.endswith('_dpp')
        self.wide_store = set()
        self.dma = False
        R = [regs_of(o) for o in ops]
        if op.startswith('v_mfma'):
            self.cls = 'sgemm' if op.endswith('_f32') and 'x4_f32' in op else 'xdl'
            self.wr = R[0]
            self.srcA, self.srcB, self.srcC = R[1], R[2], R[3]
            self.rd = R[1] | R[2] | R[3]
        elif op.startswith('v_'):
            self.cls = 'valu'
            if op.startswith('v_permlane') and 'swap' in op:
                self.wr = R[0] | R[1]
                self.rd = R[0] | R[1]
            else:
                self.wr = set(R[0])
                k = 1
                if op.startswith(('v_add_co', 'v_sub_co', 'v_addc_co')):
                    self.wr |= R[1]
                    k = 2
                for r in R[k:]:
                    self.rd |= r
                if op.startswith(('v_fmac', 'v_mac')) or self.dpp:
                    self.rd |= R[0]
        elif op.startswith('ds_'):
            self.cls = 'ds'
            if op.startswith(('ds_read', 'ds_bpermute')):
                self.wr = R[0]
                for r in R[1:]:
                    self.rd |= r
            else:
                for r in R:
                    self.rd |= r
        elif op.startswith(('buffer_', 'global_')):
            self.cls = 'vmem'
            if op in ('buffer_inv', 'buffer_wbl2'):
                pass
            elif 'lds' in mods:
                self.dma = True
                for r in R:
                    self.rd |= r
                self.rd |= {('s', 'm0')}
            elif '_load' in op:
                self.wr = R[0]
                for r in R[1:]:
                    self.rd |= r
                if 'd16' in op:
                    self.rd |= R[0]
            else:
                for r in R:
                    self.rd |= r
                if op.endswith(('x4', 'x3')):
                    self.wide_store = R[0] if op.startswith('buffer') else R[1]
        elif op.startswith('s_'):
            self.cls = 'salu'
            if op == 's_nop':
                self.states = int(ops[0], 0) + 1
            elif op.startswith(('s_cmp', 's_waitcnt', 's_barrier', 's_cbranch', 's_branch', 's_endpgm', 's_sleep', 's_setprio')):
                for r in R:
                    self.rd |= r
            else:
                self.wr = R[0] if R else set()
                for r in R[1:]:
                    self.rd |= r
        else:
            raise ValueError('unknown op ' + text)


def vg(s):
    return {r for r in s if r[0] in 'va'}


def sg(s):
    return {r for r in s if r[0] == 's'}


class Asm:
    def __init__(self):
        self.lines = []
        self.hist = []
        self.vm_n = 0
        self.vm_done = 0
        self.lg_n = 0
        self.lg_done = 0
        self.pvm = {}
        self.plg = {}
        self.nnop = 0
        self.cold = []
        self._stack = []
        self.bg = []
        self.tok = {}
        self.credit = 0
        self.in_bg = False
        self.bg_on = True

    def raw(self, text):
        self.lines.append(text)

    def cold_begin(self):
        self._stack.append(self.lines)
        self.lines = []

    def cold_end(self):
        self.cold += self.lines
        self.lines = self._stack.pop()

    def comment(self, text):
        self.lines.append('    ; ' + text)

    def label(self, name):
        self.lines.append(name + ':')

    def _push(self, ins):
        self.lines.append('    ' + ins.text)
        self.hist.append(ins)
        if len(self.hist) > 24:
            self.hist.pop(0)

    def wait(self, vm=None, lg=None):
        parts = []
        if vm is not None and vm > self.vm_done:
            n = min(self.vm_n - vm, 63)
            parts.append(f'vmcnt({n})')
            self.vm_done = self.vm_n - n
        if lg is not None and lg > self.lg_done:
            while self.lg_n - lg < self.smem_out:
                self._push(Ins(self.dummy_ds))
                self.lg_n += 1
            n = min(self.lg_n - lg, 15)
            parts.append(f'lgkmcnt({n})')
            self.lg_done = self.lg_n - n
        if parts:
            self._push(Ins('s_waitcnt ' + ' '.join(parts)))

    def wait_all(self, vm=True, lg=True, force=False):
        parts = []
        if vm and (force or self.vm_done < self.vm_n):
            parts.append('vmcnt(0)')
            self.vm_done = self.vm_n
        if lg and not force and self.smem_out:
            self.wait(lg=self.lg_n)
        elif lg and (force or self.lg_done < self.lg_n):
            parts.append('lgkmcnt(0)')
            self.lg_done = self.lg_n
            self.smem_out = 0
        if parts:
            self._push(Ins('s_waitcnt ' + ' '.join(parts)))

    def _need(self, ins):
        need = 0
        dist = 0
        mf = ins.cls in ('xdl', 'sgemm')
        rdv, wrv = vg(ins.rd), vg(ins.wr)
        for p in reversed(self.hist):
            req = 0
            pw = vg(p.wr)
            if p.cls == 'valu':
                if p.op.startswith('v_dot') and ins.op != p.op and pw & (rdv | wrv):
                    req = max(req, 3)
                if mf and pw & rdv:
                    req = max(req, 2)
                if ins.cls == 'valu':
                    if p.op.replace('_e32', '').replace('_e64', '') in TRANS and pw & rdv:
                        req = max(req, 1)
                    if ins.op.startswith(('v_readfirstlane', 'v_readlane')) and pw & rdv:
                        req = max(req, 1)
                    if (ins.dpp or ins.op.startswith('v_permlane')) and pw & rdv:
                        req = max(req, 2)
                    if sg(p.wr) & sg(ins.rd):
                        req = max(req, 2)
                if ins.cls == 'vmem' and sg(p.wr) & sg(ins.rd):
                    req = max(req, 5)
                if ins.cls == 'salu' and sg(p.wr) & sg(ins.rd):
                    req = max(req, 1)
            elif p.cls in ('xdl', 'sgemm'):
                big = '32x32' in p.op
                lat = (12 if big else 8) if p.cls == 'xdl' else 10
                if mf:
                    if pw & (vg(ins.srcA) | vg(ins.srcB)):
                        req = max(req, lat)
                    c = vg(ins.srcC)
                    if pw & c and not (pw == c and p.cls == ins.cls):
                        req = max(req, lat)
                    if pw & wrv and not (pw == c and p.cls == ins.cls):
                        req = max(req, lat)
                elif ins.cls in ('valu', 'vmem', 'ds'):
                    if pw & (rdv | wrv):
                        req = max(req, lat)
                    if ins.cls == 'valu' and p.cls == 'xdl' and vg(p.srcC) & wrv:
                        req = max(req, 7 if big else 3)
            elif p.cls == 'salu':
                if ins.dma and ('s', 'm0') in p.wr:
                    req = max(req, 1)
            elif p.cls == 'vmem':
                if p.wide_store & wrv:
                    req = max(req, 2)
            need = max(need, req - dist)
            dist += p.states
            if dist >= 13:
                break
        return need

    def __call__(self, text):
        ins = Ins(text)
        if ins.cls == 'salu':
            uses = ins.op.startswith(('s_cselect', 's_cbranch_scc', 's_addc'))
            sets = ins.op.startswith(('s_cmp', 's_add', 's_sub', 's_and', 's_or', 's_xor', 's_lsh', 's_min', 's_max', 's_not', 's_bfe'))
            if uses:
                assert self.scc_owner == self.in_bg, 'SCC clobbered by the other stream: ' + text
            if sets:
                if not self.in_bg:
                    self.bg_settle()
                self.scc_owner = self.in_bg
        touched = vg(ins.rd) | vg(ins.wr)
        v = max([self.pvm.get(r, 0) for r in touched], default=0)
        l = max([self.plg.get(r, 0) for r in touched], default=0)
        self.wait(vm=v or None, lg=l or None)
        n = self._need(ins)
        if n > 0:
            self.nnop += n
            self._push(Ins(f's_nop {n - 1}'))
        self._push(ins)
        ret = None
        if ins.cls == 'vmem':
            self.vm_n += 1
            for r in ins.wr:
                self.pvm[r] = self.vm_n
            ret = self.vm_n
        if ins.cls == 'ds':
            self.lg_n += 1
            for r in ins.wr:
                self.plg[r] = self.lg_n
            ret = self.lg_n
        self._tick(ins)
        return ret

    def bg_add(self, key, fn, gap):
        self.bg.append((key, fn, gap))

    def _bg_pop(self):
        key, fn, gap = self.bg.pop(0)
        self.in_bg = True
        for ins in fn:
            t = self(ins)
        self.in_bg = False
        if key is not None:
            self.tok[key] = t
        self.credit = max(min(self.credit, 0), -31) + gap

    def bg_step(self):
        if not self.bg:
            return False
        key, fn, gap = self.bg[0]
        if len(fn) > 1:
            self.in_bg = True
            self(fn[0])
            self.in_bg = False
            self.bg[0] = (key, fn[1:], gap)
            return True
        if self.credit <= 0:
            self._bg_pop()
            return True
        return False

    def bg_settle(self):
        for i, (key, fn, gap) in enumerate(self.bg):
            if fn[0].startswith('s_cselect'):
                self.in_bg = True
                self(fn[0])
                self.in_bg = False
                self.bg[i] = (key, fn[1:], gap)

    def bg_flush(self, key=None):
        if key is not None and not any(k == key for k, _, _ in self.bg):
            return
        while self.bg:
            k = self.bg[0][0]
            self._bg_pop()
            if key is not None and k == key:
                break

    def need(self, key):
        self.bg_flush(key)
        self.wait(vm=self.tok[key])

    def _tick(self, ins):
        if self.in_bg:
            return
        c = {'xdl': 16, 'sgemm': 32}.get(ins.cls, 4)
        if '32x32' in ins.op:
            c = 32
        if ins.op.replace('_e32', '').replace('_e64', '') in TRANS:
            c = 8
        if ins.cls == 'ds' and self.ds_free:
            c = 0
        self.credit -= c
        if self.bg_on and self.bg and self.credit <= 0 and ins.cls in ('valu', 'xdl', 'sgemm', 'ds') and not sg(ins.wr):
            self._bg_pop()

    ds_free = False
    smem_out = 0
    dummy_ds = None
    scc_owner = False

    def many(self, text):
        for line in text.strip().split('\n'):
            line = line.strip()
            if line and not line.startswith(';'):
                self(line)

    def merge(self, main, fill, per=1, every=1):
        fill = list(fill)
        for i, t in enumerate(main):
            self(t)
            if (i + 1) % every == 0:
                for _ in range(per):
                    if fill:
                        self(fill.pop(0))
        for t in fill:
            self(t)

    def pad(self, n=12):
        self._push(Ins(f's_nop {n - 1}'))

    def text(self):
        return '\n'.join(self.lines) + '\n'


class Regs:
    def __init__(self, kind, start, end):
        self.kind, self.next, self.end = kind, start, end
        self.hi = start

    def alloc(self, n=1, align=None):
        if align is None:
            align = 2 if n > 1 else 1
        self.next = (self.next + align - 1) // align * align
        r = self.next
        self.next += n
        assert self.next <= self.end, f'out of {self.kind} regs'
        self.hi = max(self.hi, self.next)
        return r

    def mark(self):
        return self.next

    def reset(self, m):
        self.next = m


def v(i, n=1):
    return f'v{i}' if n == 1 else f'v[{i}:{i + n - 1}]'


def a(i, n=1):
    return f'a{i}' if n == 1 else f'a[{i}:{i + n - 1}]'


def s(i, n=1):
    return f's{i}' if n == 1 else f's[{i}:{i + n - 1}]'
```

```python
import sys, os, math, struct
sys.path.insert(0, os.path.dirname(os.path.abspath(__file__)))
from emit import Asm, Regs, v, a, s

NAME = 'parallel_sum__sliding_local_dilated__mixer_token_mlp__prompt'

DEF = dict(
    stamps=0,
    probe=-1,
    cyc=0,
    gpub=11,
    gfq=13,
    gck=112,
    xdel=3,
    fqmax=2,
    iwarm=1,
    w1late=0,
    psp=0,
    ggap=52,
    gpause=0,
    fpause=0,
    upause=0,
    gflush=0,
    hsc=1,
    hwarm=0,
    cglc=0,
    wfq=5,
    nt1=3,
    align=0,
    rpos=1,
    gord=1,
    ntw=2,
    ph=3,
    hinit=3,
    hgap=56,
    hpos=5,
    qrd=0,
    ureq=10,
    wck=58,
    ock=80,
    osig=3,
    hold=0,
    df=6,
    w1pre=4,
    w1mid=4,
    w1flag=24,
    w1chk=8,
    hlead=1,
    qrot=0,
    ppub=11,
    pfq=14,
    pck=118,
    ofq=8,
    pu=3,
    xrot=2,
    qg1=56,
    ust=2,
    qgap=50,
    hsleep=4,
    rmask=7,
    pread=0,
    xp=0,
    ogap=48,
    fgap=56,
    agap=56,
    uo=2,
    hrep=8,
    touch=2,
    codepf=1,
    spin=20000,
)


def f32(x):
    return '0x%08x' % struct.unpack('<I', struct.pack('<f', x))[0]


H_OFF = 0
U_OFF = 2 << 20
O_OFF = 4 << 20
RS_OFF = 6 << 20
CN_OFF = RS_OFF + 0x10000
GF_OFF = RS_OFF + 0x20000
PF_OFF = RS_OFF + 0x30000
WP_OFF = 8 << 20
FL_OFF = 10 << 20
HF_OFF = FL_OFF
ST_OFF = 11 << 20
P_OFF = 12 << 20
G_OFF = 16 << 20
WS_SIZE = 20 << 20
OOB = 0x10000000

LDS_SIZE = 163840
SLOT = 16384
NSLOT = 10
PH_B = 9 * SLOT
PR_B = PH_B + 8192
EPI_B = 8 * SLOT
EXC_B = 2 * SLOT

X, WQ, WO, W1, W2, WS, OUT, B1, B2, DBG = 8, 12, 16, 20, 24, 28, 32, 36, 40, 44
sGsW, sGsH = 0, 1
sKh, sNh, sT2, sT3 = 4, 5, 6, 7
sW, sK32, sJ, sFT, sD, sS, sD2, sG1, sF, sNon, sM, sM3, sCnt, sBg = range(48, 62)
sXs, sWs, sGs2, sGsU, sRo, sUst, sUfl, sOfl = range(62, 70)
sPar, sCur0, sCur1, sInvd, sGc, sOne = 70, 72, 74, 76, 78, 80
sOs, sC1, sMh, sIdx = 82, 83, 100, 101
sOne1, sGfl, sUck, sOck = B1, B1 + 1, B1 + 2, B1 + 3
sChk, sWck = WQ + 2, WQ + 3
sZero = sMh
sPfl = sG1
sStamp = 84


def srd(r):
    return s(r, 4)


def lanemask(fn):
    m = 0
    for l in range(64):
        if fn(l):
            m |= 1 << l
    return m


def build(**kw):
    P = dict(DEF)
    P.update(kw)
    assert P['wck'] <= 64 and P['ock'] <= 80 and P['df'] == 6
    e = Asm()
    V = Regs('v', 1, 256)
    nst = [0]
    npr = [0]
    ntr = [0]

    def stamp(name='', sets=(1,)):
        if P['probe'] >= 0 and 1 in sets:
            npr[0] += 1
            if npr[0] == P['probe']:
                e.comment(f'probe {name}')
                e(f's_memrealtime s[{sT2}:{sT3}]')
                e.wait_all(vm=False, lg=True, force=True)
                e(f's_mov_b32 s{sStamp}, s{sT2}')
        if P['stamps'] == 20:
            if sets in ((1,), (1, 4), (4,), (1, 2, 4), (1, 2, 9), (1, 2, 5, 9), (9, 20), (20,), (1, 5, 7), (1, 3), (1, 3, 8), (3, 20), (1, 5, 6, 7)):
                k = ntr[0]
                ntr[0] += 1
                p = 86 + 2 * (k % 3)
                if k >= 2:
                    q = 86 + 2 * ((k - 2) % 3)
                    e.raw(f'    v_writelane_b32 v{254 + (k - 2) // 64}, s{q}, {(k - 2) % 64}')
                e.raw(f'    s_memtime s[{p}:{p + 1}]')
            return
        if P['stamps'] not in sets:
            return
        k = nst[0]
        nst[0] += 1
        assert k < 13
        if k > 1:
            e(f's_mov_b32 s{sStamp + k - 1}, s{WQ}')
        e(f'{"s_memtime" if P["cyc"] else "s_memrealtime"} s[{WQ}:{WQ + 1}]')

    def setmask(r, m):
        return [f's_mov_b32 s{r}, 0x{m & 0xffffffff:08x}', f's_mov_b32 s{r + 1}, 0x{m >> 32:08x}']

    def run(lst):
        for t in lst:
            e.many(t)

    def merge(main, fill, per=1, every=1):
        fill = list(fill)
        for i, t in enumerate(main):
            e.many(t)
            if (i + 1) % every == 0:
                for _ in range(per):
                    if fill:
                        e.many(fill.pop(0))
        return fill

    def bg_dma(key, pre, sr, voff, soff, off, gap, mod=''):
        o = f' offset:{off}' if off else ''
        e.bg_add(key, list(pre) + [f'buffer_load_dwordx4 v{voff}, {srd(sr)}, s{soff} offen{o}{mod} lds'], gap)

    def bg_ins(key, pre, ins, gap):
        e.bg_add(key, list(pre) + [ins], gap)

    def mf16(d, A, B, c=None):
        return f'v_mfma_f32_16x16x32_bf16 {v(d, 4)}, {A}, {B}, {v(d, 4) if c is None else c}'

    def mf32(d, A, B, c=None):
        return f'v_mfma_f32_32x32x16_bf16 {v(d, 16)}, {A}, {B}, {v(d, 16) if c is None else c}'

    def mfs(d, A, B):
        return f'v_mfma_f32_16x16x4_f32 {v(d, 4)}, v{A}, v{B}, 0'

    npoll = [0]

    def flag_load(voff, vdst, n=1):
        return f'buffer_load_dword{"x2" if n == 2 else ""} {v(vdst, n)}, v{voff}, {srd(WS)}, 0 offen sc1'

    def flag_check(voff, vdst, sleep, n=1):
        k = npoll[0]
        npoll[0] += 1
        on, e.bg_on = e.bg_on, False
        e.bg_settle()
        cmp_ = [f'v_cmp_ne_u32 vcc, s{sNon}, v{vdst}'] if n == 1 else \
               [f'v_xor_b32 v{vdst}, s{sNon}, v{vdst}', f'v_xor_b32 v{vdst + 1}, s{sNon}, v{vdst + 1}',
                f'v_or_b32 v{vdst}, v{vdst}, v{vdst + 1}', f'v_cmp_ne_u32 vcc, 0, v{vdst}']
        run(cmp_)
        e(f's_cbranch_vccnz L_pollin{k}')
        e.cold_begin()
        e.label(f'L_pollin{k}')
        e.raw(f'    s_mov_b32 s{sCnt}, 0')
        e.label(f'L_poll{k}')
        e.raw(f'    s_sleep {sleep}')
        e.raw('    ' + flag_load(voff, vdst, n))
        e.raw(f'    s_add_u32 s{sCnt}, s{sCnt}, 1')
        e.raw(f'    s_waitcnt vmcnt(0)')
        for t in cmp_:
            e.raw('    ' + t)
        e.raw(f'    s_cbranch_vccz L_pollok{k}')
        e.raw(f'    s_cmp_lt_u32 s{sCnt}, {P["spin"]}')
        e.raw(f'    s_cbranch_scc1 L_poll{k}')
        e.raw(f'    s_branch L_pollok{k}')
        e.cold_end()
        e.label(f'L_pollok{k}')
        e.bg_on = on

    nsg = [0]

    def signal(soff, wg, base=WS):
        k = nsg[0]
        nsg[0] += 1
        if wg:
            e(f's_cmp_lg_u32 s{sW}, 0')
            e(f's_cbranch_scc1 L_sig{k}')
        e(f's_atomic_add s{sOne1}, s[{base}:{base + 1}], s{soff}')
        if wg:
            e.label(f'L_sig{k}')
        e.smem_out += 1

    def cnt_req(soff, base=WS):
        e(f's_load_dword s{sChk}, s[{base}:{base + 1}], s{soff}' + (' glc' if P['cglc'] else ''))
        e.smem_out += 1

    def cnt_check(soff, target, sleep, base=WS, unless0=None):
        k = npoll[0]
        npoll[0] += 1
        e.wait_all(vm=False, lg=True, force=True)
        e(f's_cmp_ge_u32 s{sChk}, {target}')
        e(f's_cbranch_scc0 L_pollin{k}')
        e.cold_begin()
        e.label(f'L_pollin{k}')
        if unless0 is not None:
            e.raw(f'    s_cmp_eq_u32 s{unless0}, 0')
            e.raw(f'    s_cbranch_scc1 L_pollok{k}')
        e.raw(f'    s_mov_b32 s{sCnt}, 0')
        e.label(f'L_poll{k}')
        e.raw(f'    s_sleep {sleep}')
        e.raw(f'    buffer_load_dword v{vFv}, off, {srd(base)}, s{soff} sc1')
        e.raw(f'    s_add_u32 s{sCnt}, s{sCnt}, 1')
        e.raw(f'    s_waitcnt vmcnt(0)')
        e.raw(f'    v_readfirstlane_b32 s{sChk}, v{vFv}')
        e.raw(f'    s_nop 0')
        e.raw(f'    s_cmp_ge_u32 s{sChk}, {target}')
        e.raw(f'    s_cbranch_scc1 L_pollok{k}')
        e.raw(f'    s_cmp_lt_u32 s{sCnt}, {P["spin"]}')
        e.raw(f'    s_cbranch_scc1 L_poll{k}')
        e.raw(f'    s_branch L_pollok{k}')
        e.cold_end()
        e.label(f'L_pollok{k}')

    def wrap(r, step, n):
        return [f's_add_u32 s{r}, s{r}, {step}', f's_cmp_eq_u32 s{r}, {step * n}', f's_cselect_b32 s{r}, 0, s{r}']

    FORD = [7, 0, 1, 2, 3, 4, 5, 6, 8, 9]

    def slot_of(q):
        k = q % NSLOT
        if q >= 30:
            k = FORD.index(k)
        if q >= 20:
            k = (0, 1, 4, 5, 2, 3, 6, 7, 8, 9)[k]
        return k * SLOT

    def pop(n):
        for _ in range(n):
            if e.bg:
                e._bg_pop()

    def publish(tok, soff):
        e.wait(vm=tok)
        return e(f'buffer_store_dword v{vNon}, v{vFl}, {srd(WS)}, s{soff} offen sc1')

    vLane, vL15, vG, vL16, vR8, vC8, vR4, vC4, vHi, vL31, vFl, vNon = [V.alloc() for _ in range(12)]
    t0, t1, t2, t3 = [V.alloc() for _ in range(4)]
    vFv = V.alloc(2)
    vFoH, vPst, vGs2, vGst, vDum = [V.alloc() for _ in range(5)]
    vCa = [V.alloc(), V.alloc()]
    vAs = [[V.alloc(), V.alloc()], [V.alloc(), V.alloc()]]
    e.dummy_ds = f'ds_read_b32 v{vDum}, v{vL16}'
    vPat = [[V.alloc() for _ in range(4)] for _ in range(3)]
    vPatW = [[V.alloc(), V.alloc()] for _ in range(2)]
    vOr = [[V.alloc(), V.alloc()] for _ in range(3)]
    vLin = [vL16, V.alloc(), V.alloc()]
    vD1 = [V.alloc() for _ in range(4)]
    vD2 = [V.alloc() for _ in range(4)]
    vDo = [V.alloc() for _ in range(2)]
    vOd = [V.alloc() for _ in range(2)]
    vXd = [V.alloc() for _ in range(3)]
    vXr = [[V.alloc(), V.alloc()] for _ in range(3)]
    vRs, vRsa = V.alloc(), V.alloc()
    vHo, vUo, vWp, vEx, vBa, vSw, vNeg = [V.alloc() for _ in range(7)]
    vOo = [V.alloc(), V.alloc()]
    vEw = [V.alloc() for _ in range(2)]
    vEr = [V.alloc() for _ in range(4)]
    vBo = [V.alloc(), V.alloc()]
    vXo = [V.alloc(4), V.alloc(4)]
    vMk = V.alloc(4)
    vC0 = V.alloc(2)
    vSt = [V.alloc(4), V.alloc(4)]
    NF = 8
    vFr = [V.alloc(4) for _ in range(NF)]
    vAcc = [V.alloc(16), V.alloc(16)]
    vBig = V.alloc(72)
    vE = vBig

    e('s_cmp_ge_u32 s2, 256')
    e('s_cbranch_scc1 L_end')
    for r, off in ((X, 0), (W1, 32), (WS, 80), (DBG, 72), (WQ, 8), (WO, 16), (W2, 48), (OUT, 64), (B1, 40), (B2, 56)):
        e(f's_load_dwordx2 {s(r, 2)}, s[0:1], {off}')
    sClk = 78
    e(f's_memrealtime s[{sClk}:{sClk + 1}]')
    if P['codepf']:
        e(f's_getpc_b64 s[6:7]')
        e.label('L_pc')
        e(f's_and_b32 s3, s2, 0xf8')
        e(f'v_lshrrev_b32 v{t0}, 5, v0')
        e(f'v_add_lshl_u32 v{t0}, s3, v{t0}, 7')
        e(f'v_min_u32 v{t0}, L_last-L_pc, v{t0}')
        e(f'global_load_dword v{vFv}, v{t0}, s[6:7]')
    vX = vBig
    vF = vBig + 8
    vG2 = vBig + 24
    vAB = vBig + 40
    vS_, vQ_, vT_, vU_ = vBig + 44, vBig + 45, vBig + 46, vBig + 47
    vLw, vLh, vLx, vHs = vBig + 48, vBig + 49, vBig + 50, vBig + 51
    tp = vBig + 52
    vFr8, vLr, vRo = vBig + 54, vBig + 55, vBig + 56
    sHrd = sC1
    e.many(f"""
        v_lshrrev_b32 v{t0}, 6, v0
        v_and_b32 v{vL31}, 31, v0
        v_readfirstlane_b32 s{sW}, v{t0}
        v_bfe_u32 v{vHi}, v0, 5, 1
        v_mul_u32_u24 v{t1}, 896, v{vHi}
        v_lshl_add_u32 v{t1}, v{vL31}, 4, v{t1}
        v_cmp_gt_u32 vcc, 28, v{vL31}
        v_mov_b32 v{t2}, {OOB}
        s_mov_b32 s{X + 2}, {2048 * 896}
        s_mov_b32 s{X + 3}, 0x20000
        v_cndmask_b32 v{t1}, v{t2}, v{t1}, vcc
        s_lshr_b32 s{sKh}, s{sW}, 1
        s_and_b32 s{sNh}, s{sW}, 1
        s_and_b32 s3, s2, 0xfe
        s_add_u32 s3, s3, s{sKh}
        s_lshl_b32 s3, s3, 1
        s_and_b32 s{sCnt}, s2, 1
        s_add_u32 s3, s3, s{sCnt}
        s_lshl_b32 s3, s3, 1
        s_add_u32 s3, s3, s{sNh}
        s_mul_i32 s3, s3, {2 * 896}
    """)
    e.wait_all(vm=False, lg=True, force=True)
    if P['stamps'] or P['probe'] == 98:
        e(f's_memtime s[0:1]')
        e.wait_all(vm=False, lg=True, force=True)
        e(f's_mov_b32 s{sStamp + 13}, s0')
    e(f'buffer_load_dwordx4 {v(vX, 4)}, v{t1}, {srd(X)}, s3 offen')
    e(f'buffer_load_dwordx4 {v(vX + 4, 4)}, v{t1}, {srd(X)}, s3 offen offset:448')
    if P['stamps'] or P['probe'] >= 0:
        e(f's_mov_b32 s{sStamp}, s{sClk}')
        nst[0] = 1
    sPair, sOdd, sXcd = sT2, sT3, sBg
    e.many(f"""
        v_and_b32 v{vLane}, 63, v0
        s_mov_b32 s{DBG + 2}, 256
        s_mov_b32 s{DBG + 3}, 0x20000
        s_lshl_b32 s3, s{sW}, 8
        s_add_u32 s3, s3, s2
        s_cmp_lt_u32 s3, 8
        s_cselect_b32 s3, 0, {OOB}
        s_or_b32 s{sClk}, s{sClk}, 1
        v_mov_b32 v{tp}, s{sClk}
        v_mov_b32 v{tp + 1}, 0
        v_lshlrev_b32 v{vFl}, 25, v{vLane}
        buffer_atomic_cmpswap {v(tp, 2)}, v{vFl}, {srd(DBG)}, s3 offen sc1
        s_bfe_u32 s{sPair}, s2, 0x20001
        s_and_b32 s{sOdd}, s2, 1
        s_and_b32 s{sXcd}, s2, 7
        s_lshr_b32 s{sIdx}, s2, 3
        s_mul_i32 s{sD}, s{sOdd}, 25
        s_add_u32 s{sD}, s{sD}, s{sIdx}
        s_mul_i32 s{sFT}, s{sD}, 37
        s_lshr_b32 s{sFT}, s{sFT}, 8
        s_mul_i32 s3, s{sFT}, 7
        s_sub_u32 s{sD}, s{sD}, s3
    """)
    e.many(f"""
        s_and_b32 s3, s{sPair}, 1
        s_mul_i32 s3, s3, 6
        s_add_u32 s{sFT}, s{sFT}, s3
        s_add_u32 s{sFT}, s{sFT}, 1
        s_add_u32 s3, s3, s{sFT}
        s_cmp_eq_u32 s3, 7
        s_cselect_b32 s{sFT}, 0, s{sFT}
        s_lshr_b32 s{sM3}, s{sPair}, 1
        s_lshl_b32 s{sFT}, s{sFT}, 1
        s_add_u32 s{sFT}, s{sFT}, s{sM3}
        s_max_u32 s{sCnt}, s{sIdx}, 25
        s_sub_u32 s{sCnt}, s{sCnt}, 25
        s_add_u32 s3, s{sIdx}, s{sOdd}
        s_cmp_lt_u32 s3, 25
        s_cselect_b32 s{sG1}, 1, 0
        s_cselect_b32 s{sD}, s{sD}, s{sCnt}
        s_mov_b32 s{W1 + 2}, {2048 * 3584}
        s_mov_b32 s{W1 + 3}, 0x20000
        s_lshl_b32 s3, s{sD}, 1
        s_sub_u32 s{sCnt}, s3, 7
        s_cmp_ge_u32 s3, 7
        s_cselect_b32 s3, s{sCnt}, s3
        s_and_b32 s3, s3, {P['rmask']}
        s_mul_i32 s{sCnt}, s{sXcd}, {P['xrot']}
        s_add_u32 s3, s3, s{sCnt}
        s_and_b32 s3, s3, 7
        s_mul_i32 s{sGsW}, s3, {128 * 3584}
        s_lshl_b32 s{sGsH}, s3, 13
        s_lshl_b32 s{sM}, s{sW}, 12
        v_lshrrev_b32 v{vG}, 4, v{vLane}
        v_lshrrev_b32 v{vR8}, 3, v{vLane}
        v_and_b32 v{vC8}, 7, v{vLane}
        v_lshlrev_b32 v{t1}, 1, v{vG}
        v_xor_b32 v{t1}, v{t1}, v{vC8}
        v_lshlrev_b32 v{vSw}, 4, v{t1}
        s_cmp_eq_u32 s{sG1}, 0
        s_cbranch_scc1 L_nog1
    """)
    save0 = (e.vm_n, e.vm_done, e.lg_n, e.lg_done, dict(e.pvm), dict(e.plg), dict(e.tok))
    e.many(f"""
        v_mul_u32_u24 v{t1}, 3584, v{vR8}
        s_lshl_b32 s3, s{sM3}, 5
        s_add_u32 s3, s3, s{sW}
        s_mul_i32 s3, s3, {32 * 3584}
        s_lshl_b32 s{sCnt}, s{sFT}, 7
        s_add_u32 s3, s3, s{sCnt}
        v_add3_u32 v{vD1[0]}, v{t1}, v{vSw}, s3
        v_add_u32 v{vD1[1]}, {16 * 3584 - 1024}, v{vD1[0]}
        v_add_u32 v{vD1[2]}, {8 * 3584 - 2048}, v{vD1[0]}
        v_add_u32 v{vD1[3]}, {3 * (8 * 3584 - 1024)}, v{vD1[0]}
    """)

    def w1_dma(q, gap):
        for k in range(4):
            pre = [f's_add_u32 m0, s{sM}, {slot_of(q)}'] + wrap(sGsW, 128 * 3584, 8) * (0 if P['xp'] & 8192 else ({0: 0} if P['gord'] else {8: 0, 0: 0, 9: 2}).get(q, 1)) if k == 0 else []
            if q in ((0, 8) if P['gord'] else (0, 9)):
                pre = pre + [f'v_xor_b32 v{vD1[k]}, 128, v{vD1[k]}']
            bg_dma(('s', q, k), pre, W1, vD1[k], sGsW, k * 1024, gap)

    vB1 = vBig + 64
    e.many(f"""
        s_mov_b32 s{B1 + 2}, 3584
        s_mov_b32 s{B1 + 3}, 0x20000
        v_lshlrev_b32 v{t0}, 3, v{vG}
        s_lshl_b32 s3, s{sFT}, 1
        s_add_u32 s3, s3, s{sKh}
        s_lshl_b32 s3, s3, 6
    """)
    for j in range(2):
        e(f'buffer_load_dwordx2 {v(vB1 + 2 * j, 2)}, v{t0}, {srd(B1)}, s3 offen offset:{32 * j}')
    e.bg_on = False
    for q in (range(9) if P['gord'] else (8, 0, 1, 2, 3, 4, 5, 6, 7)):
        w1_dma(q, 64)
    if P['w1late'] == 0:
        pop(P['w1pre'])
    sHs0, sHs1, sHfl, sEps, sInv, sOnes = 70, 71, 74, 75, 76, 77
    sRs, sHf2 = 72, 73
    def res_loads():
        for q_ in range(2):
            e(f'buffer_load_dwordx4 {v(vXo[q_], 4)}, v{vOo[q_]}, {srd(X)}, 0 offen')
            e(f'buffer_load_ushort v{vBo[q_]}, v{vBa}, {srd(B2)}, 0 offen offset:{16 * q_}')

    def p0_body(sets):
        e.many(f"""
            s_mul_i32 s{sS}, s{sIdx}, 37
            s_lshr_b32 s{sS}, s{sS}, 8
            s_mul_i32 s{sD2}, s{sS}, 7
            s_sub_u32 s{sD2}, s{sIdx}, s{sD2}
            s_and_b32 s{sS}, s{sS}, 3
            s_lshl_b32 s3, s{sPair}, 2
            s_add_u32 s{sS}, s{sS}, s3
            s_lshl_b32 s{sS}, s{sS}, 1
            s_add_u32 s{sS}, s{sS}, s{sOdd}
        """)
        e.many(f"""
            s_mov_b32 s{B2 + 2}, 4096
            s_mov_b32 s{B2 + 3}, 0x20000
            s_lshl_b32 s3, s{sS}, 2
            s_add_u32 s3, s3, s{sW}
            s_lshl_b32 s{sCnt}, s3, 5
            v_lshl_add_u32 v{vBa}, v{vR8}, 1, s{sCnt}
            s_mul_i32 s3, s3, {16 * 896}
            s_lshl_b32 s{sCnt}, s{sD2}, 7
            s_add_u32 s3, s3, s{sCnt}
            v_mul_u32_u24 v{t1}, 896, v{vR8}
            v_lshl_add_u32 v{t1}, v{vC8}, 4, v{t1}
            v_add_u32 v{vOo[0]}, s3, v{t1}
            v_add_u32 v{vOo[1]}, {8 * 896}, v{vOo[0]}
        """)
        if P['rpos'] == 0:
            res_loads()
        if P['w1late'] == 1:
            pop(P['w1pre'])
        e.many(f"""
            s_cmp_lt_u32 s{sIdx}, 28
            s_cselect_b32 s{sF}, 1, 0
            s_lshl_b32 s{sJ}, s{sOdd}, 3
            s_and_b32 s3, s{sIdx}, 7
            s_add_u32 s{sJ}, s{sJ}, s3
            s_lshr_b32 s{sCnt}, s{sIdx}, 3
            s_lshl_b32 s{sK32}, s{sPair}, 2
            s_add_u32 s{sK32}, s{sK32}, s{sCnt}
            s_lshl_b32 s{sK32}, s{sK32}, 2
            s_add_u32 s{sK32}, s{sK32}, s{sW}
            s_mul_i32 s{sCnt}, s{sCnt}, {2 * P['qrot']}
            s_add_u32 s3, s3, s{sCnt}
            s_sub_u32 s{sCnt}, s3, 7
            s_cmp_ge_u32 s3, 7
            s_cselect_b32 s3, s{sCnt}, s3
            s_lshl_b32 s{sXs}, s3, 18
            s_mul_i32 s{sWs}, s3, 12288
            s_mov_b32 s{WS + 2}, {WS_SIZE}
            s_mov_b32 s{WS + 3}, 0x20000
            s_mov_b32 s{sEps}, {f32(1e-5)}
            s_mov_b32 s{sInv}, {f32(1.0 / 448)}
            s_mov_b32 s{sOnes}, 0x3f803f80
            v_lshlrev_b32 v{vL16}, 4, v{vLane}
            v_bfe_u32 v{vR4}, v{vLane}, 2, 2
            v_and_b32 v{vC4}, 3, v{vLane}
            v_mul_u32_u24 v{t0}, 960, v{vHi}
            v_lshl_add_u32 v{t0}, v{vL31}, 4, v{t0}
            s_mul_i32 s3, s{sW}, 1920
            s_add_u32 s3, s3, {PH_B}
            v_add_u32 v{vLw}, s3, v{t0}
            v_mul_u32_u24 v{t0}, 960, v{vR4}
            v_lshl_add_u32 v{t0}, v{vG}, 5, v{t0}
            v_lshl_add_u32 v{t0}, v{vC4}, 3, v{t0}
            s_lshl_b32 s3, s{sW}, 8
            s_add_u32 s3, s3, {PH_B}
            v_add_u32 v{vLh}, s3, v{t0}
            s_lshl_b32 s3, s{sW}, 3
            s_add_u32 s3, s3, {PR_B}
            v_lshl_add_u32 v{vLx}, v{vHi}, 2, s3
            v_lshlrev_b32 v{vLr}, 2, v{vC8}
            v_and_b32 v{vL15}, 15, v{vLane}
            v_lshlrev_b32 v{vRo}, 14, v{vG}
            v_add_lshl_u32 v{vRo}, v{vRo}, v{vL15}, 2
            v_add_u32 v{vLr}, {PR_B}, v{vLr}
            v_lshlrev_b32 v{t0}, 17, v{vHi}
            v_lshl_add_u32 v{vHs}, v{vL31}, 4, v{t0}
            s_cmp_eq_u32 s{sW}, 3
            s_cselect_b32 s{sCnt}, {OOB}, 0
            s_lshl_b32 s{sHs0}, s{sW}, 10
            s_add_u32 s{sHs0}, s{sHs0}, s2
            s_lshl_b32 s{sHs0}, s{sHs0}, 9
            s_add_u32 s{sHs1}, s{sHs0}, 262144
            s_add_u32 s{sHs1}, s{sHs1}, s{sCnt}
            s_xor_b32 s{sCnt}, s{sCnt}, {OOB}
            s_lshl_b32 s{sRs}, s2, 7
            s_add_u32 s{sRs}, s{sRs}, s{sCnt}
            s_add_u32 s{sRs}, s{sRs}, {RS_OFF}
            s_lshr_b32 s{sHfl}, s2, 2
            s_lshl_b32 s{sHfl}, s{sHfl}, 5
            s_and_b32 s3, s2, 3
            s_add_u32 s{sHfl}, s{sHfl}, s3
            s_lshl_b32 s{sHfl}, s{sHfl}, 2
            s_add_u32 s{sHfl}, s{sHfl}, {HF_OFF}
            v_cmp_gt_u32 vcc, {P['hrep']}, v0
            v_lshlrev_b32 v{vFr8}, 13, v0
            v_mov_b32 v{t0}, {OOB}
            s_and_b32 s3, s2, {P['hrep'] - 1}
            s_lshl_b32 s3, s3, 13
            s_add_u32 s3, s3, {HF_OFF}
            v_lshrrev_b32 v{t1}, 2, v0
            v_lshl_add_u32 v{t1}, v{t1}, 7, s3
            v_lshl_add_u32 v{vFoH}, v{vC4}, 2, v{t1}
            v_cndmask_b32 v{vFr8}, v{t0}, v{vFr8}, vcc
            v_mov_b32 v{t3}, 0
        """)
        if P['hsc']:
            e(f's_lshl_b32 s3, s{sW}, 14')
            e(f's_add_u32 s{sHfl}, s{sHfl}, s3')
            e(f's_add_u32 s{sHf2}, s{sHfl}, 8192')
            if P['hwarm']:
                e(f's_and_b32 s{sZero}, s2, 3')
                e(f's_cbranch_scc1 L_nowarm{len(sets)}')
                e(f's_atomic_or s{sZero}, s[{WS}:{WS + 1}], s{sHfl}')
                e(f's_atomic_or s{sZero}, s[{WS}:{WS + 1}], s{sHf2}')
                e.label(f'L_nowarm{len(sets)}')
                e.smem_out = 2
        if P['pread'] and sets == (6,):
            e(flag_load(vFoH, vFv + 1))
        if P['w1late'] == 2:
            pop(P['w1pre'])
        for k in range(8):
            e(f'v_dot2_f32_bf16 v{vS_}, v{vX + k}, s{sOnes}, {"0" if k == 0 else "v%d" % vS_}')
            if k == 0:
                stamp('x landed', sets)
            e(f'v_dot2_f32_bf16 v{vQ_}, v{vX + k}, v{vX + k}, {"0" if k == 0 else "v%d" % vQ_}')
        unp = []
        for k in range(8):
            unp += [f'v_lshlrev_b32 v{vF + 2 * k}, 16, v{vX + k}', f'v_and_b32 v{vF + 2 * k + 1}, 0xffff0000, v{vX + k}']
        e(f'buffer_load_dword v{vNon}, v{t3}, {srd(DBG)}, 0 offen sc1')
        if P['w1late'] == 3:
            pop(P['w1pre'])
        run(unp[:2])
        unp = unp[2:]
        for ctl in ('quad_perm:[1,0,3,2]', 'quad_perm:[2,3,0,1]', 'row_half_mirror', 'row_mirror'):
            for r in (vS_, vQ_):
                e(f'v_add_f32_dpp v{r}, v{r}, v{r} {ctl} row_mask:0xf bank_mask:0xf')
            e(unp.pop(0))
        e(f'v_mov_b32 v{vT_}, v{vS_}')
        e(f'v_mov_b32 v{vU_}, v{vQ_}')
        e(unp.pop(0))
        e(f'v_permlane16_swap_b32 v{vS_}, v{vT_}')
        e(f'v_permlane16_swap_b32 v{vQ_}, v{vU_}')
        e.many(f"""
            v_add_f32 v{vS_}, v{vS_}, v{vT_}
            v_add_f32 v{vQ_}, v{vQ_}, v{vU_}
            v_mul_f32_e64 v{vS_}, -v{vS_}, s{sInv}
            v_mul_f32 v{vT_}, v{vS_}, v{vS_}
            v_fma_f32 v{vQ_}, v{vQ_}, s{sInv}, -v{vT_}
            v_max_f32 v{vQ_}, 0, v{vQ_}
            v_add_f32 v{vT_}, s{sEps}, v{vQ_}
            v_rsq_f32 v{vAB}, v{vT_}
        """)
        e(unp.pop(0))
        e.many(f"""
            v_mul_f32 v{vT_}, v{vAB}, v{vAB}
            v_fma_f32 v{vU_}, v{vT_}, v{vQ_}, s{sEps}
            v_rsq_f32 v{vT_}, v{vU_}
            v_mul_f32 v{vAB + 1}, v{vS_}, v{vAB}
            v_mul_f32 v{vAB + 2}, v{vAB}, v{vT_}
            v_mul_f32 v{vAB + 3}, v{vAB + 1}, v{vT_}
            v_mul_f32 v{vU_}, v{vU_}, v{vT_}
            ds_write_b32 v{vLx}, v{vU_}
        """)
        run(unp)

        def normalise(ab, base):
            for hf in range(2):
                for k in range(4 * hf, 4 * hf + 4):
                    e(f'v_pk_fma_f32 {v(vG2 + 2 * k, 2)}, {v(vF + 2 * k, 2)}, {v(ab, 2)}, {v(ab, 2)} op_sel:[0,0,1] op_sel_hi:[1,0,1]')
                for k in range(4 * hf, 4 * hf + 4):
                    e(f'v_cvt_pk_bf16_f32 v{vX + k}, v{vG2 + 2 * k}, v{vG2 + 2 * k + 1}')
                e(f'ds_write_b128 v{vLw}, {v(vX + 4 * hf, 4)} offset:{base + 448 * hf}')

        normalise(vAB + 2, 0)
        e.wait_all(vm=False, lg=True)
        e('s_barrier')
        for z in range(2):
            for h in range(2):
                e(f'ds_read_b64_tr_b16 {v(vSt[z] + 2 * h, 2)}, v{vLh} offset:{z * 128 + h * 3840}')
        e(f'ds_read_b32 v{vU_}, v{vLr}')
        for z in range(2):
            e(f'buffer_store_dwordx4 {v(vSt[z], 4)}, v{vHs}, {srd(WS)}, s{sHs0 + z} offen sc1')
        e(f'v_cmp_gt_u32 vcc, 16, v{vLane}')
        e(f'v_cndmask_b32 v{vU_}, 0, v{vU_}, vcc')
        tokH = e(f'buffer_store_dword v{vU_}, v{vRo}, {srd(WS)}, s{sRs} offen sc1')
        stamp('h stored', sets)
        return tokH

    tokH = p0_body((1, 4))

    pop(P['w1mid'])
    if P['iwarm']:
        e('s_branch L_anchor')
        e.raw('.p2align 12')
        e.label('L_anchor')

    setup = []
    for r, n in ((WO, 448 * 896), (W2, 1792 * 4096), (OUT, 2048 * 896)):
        setup.append(f's_mov_b32 s{r + 2}, {n}\ns_mov_b32 s{r + 3}, 0x20000')
    setup += f"""s_mov_b32 s{sOne1}, 1
        v_lshrrev_b32 v{t1}, 2, v{vLane}
        v_lshlrev_b32 v{t1}, 7, v{t1}
        v_lshl_add_u32 v{t1}, v{vC4}, 3, v{t1}
        v_and_b32 v{t2}, 3, v{vR8}
        v_lshl_add_u32 v{t1}, v{t2}, 5, v{t1}
        s_mul_i32 s3, s{sKh}, {8192 + 64}
        v_xor_b32 v{vPat[0][0]}, s3, v{t1}
        v_xor_b32 v{vPat[0][1]}, 32, v{vPat[0][0]}
        v_xor_b32 v{vPat[0][2]}, 64, v{vPat[0][0]}
        v_xor_b32 v{vPat[0][3]}, 96, v{vPat[0][0]}
        v_add_u32 v{vPat[1][0]}, 65536, v{vPat[0][0]}
        v_add_u32 v{vPat[1][1]}, 65536, v{vPat[0][1]}
        v_add_u32 v{vPat[1][2]}, 65536, v{vPat[0][2]}
        v_add_u32 v{vPat[1][3]}, 65536, v{vPat[0][3]}
        v_add_u32 v{vPat[2][0]}, 131072, v{vPat[0][0]}
        v_add_u32 v{vPat[2][1]}, 131072, v{vPat[0][1]}
        v_add_u32 v{vPat[2][2]}, 131072, v{vPat[0][2]}
        v_add_u32 v{vPat[2][3]}, 131072, v{vPat[0][3]}
        s_lshl_b32 s{sT2}, s{sD}, 1
        s_add_u32 s{sT2}, s{sT2}, s{sNh}
        s_lshl_b32 s3, s{sT2}, 1
        s_add_u32 s3, s3, s{sM3}
        s_lshl_b32 s3, s3, 4
        s_add_u32 s3, s3, s{sKh}
        s_lshl_b32 s3, s3, 12
        v_lshl_add_u32 v{vHo}, v{vG}, 8, v{vL16}
        v_add_u32 v{vHo}, s3, v{vHo}
        s_xor_b32 s{sGfl}, s{sFT}, 1
        s_lshl_b32 s{sGfl}, s{sGfl}, 3
        s_add_u32 s{sGfl}, s{sGfl}, s{sD}
        s_lshl_b32 s3, s{sGfl}, 14
        s_add_u32 s3, s3, s{sM}
        s_add_u32 s3, s3, {G_OFF + (OOB if P['xp'] & 1024 else 0)}
        v_add_u32 v{vGst}, s3, v{vL16}
        s_lshl_b32 s{sGfl}, s{sGfl}, 5
        s_add_u32 s{sGfl}, s{sGfl}, s{sNh}
        s_lshl_b32 s{sGfl}, s{sGfl}, 2
        s_add_u32 s{sGfl}, s{sGfl}, {GF_OFF}
        s_mul_i32 s{sUst}, s{sT2}, 56
        s_lshl_b32 s3, s{sFT}, 1
        s_add_u32 s3, s3, s{sKh}
        s_add_u32 s{sUst}, s{sUst}, s3
        s_lshl_b32 s{sUst}, s{sUst}, 11
        s_add_u32 s{sUst}, s{sUst}, {U_OFF + (OOB if P['xp'] & 2048 else 0)}
        v_add_u32 v{vEx}, s{sM}, v{vL16}
        s_lshl_b32 s{sUfl}, s{sD}, 2
        s_and_b32 s3, s{sFT}, 1
        s_add_u32 s{sUfl}, s{sUfl}, s3
        s_cmp_ge_u32 s{sFT}, 14
        s_cselect_b32 s3, 2, 0
        s_add_u32 s{sUfl}, s{sUfl}, s3
        s_lshl_b32 s{sUfl}, s{sUfl}, 7
        s_add_u32 s{sUfl}, s{sUfl}, {CN_OFF}
        v_add_u32 v{vLin[1]}, 65536, v{vL16}
        v_add_u32 v{vLin[2]}, 131072, v{vL16}
        s_mul_i32 s{sM3}, s{sW}, 3072
        s_mul_i32 s3, s{sJ}, 86016
        s_add_u32 s3, s3, s{sM3}
        s_add_u32 s3, s3, {WP_OFF}
        v_add_u32 v{vWp}, s3, v{vL16}
        v_lshlrev_b32 v{t1}, 7, v{vHi}
        v_xor_b32 v{t1}, v{t1}, v{vL16}
        s_lshl_b32 s3, s{sK32}, 11
        v_add_u32 v{vXd[0]}, s3, v{t1}
        v_add_u32 v{vXd[1]}, {131072 - 2048}, v{vXd[0]}
        s_lshr_b32 s3, s{sK32}, 2
        s_lshl_b32 s3, s3, 3
        s_max_u32 s3, s3, 1
        s_sub_u32 s3, s3, 1
        s_lshl_b32 s3, s3, 10
        s_lshl_b32 s{sT2}, s{sNh}, 17
        s_add_u32 s3, s3, s{sT2}
        s_lshl_b32 s{sT2}, s{sKh}, 28
        s_add_u32 s3, s3, s{sT2}
        v_add_u32 v{vXd[2]}, s3, v{t1}
        s_lshl_b32 s{sMh}, s{sNh}, 1
        s_add_u32 s{sMh}, s{sMh}, s{sKh}
        s_lshl_b32 s{sMh}, s{sMh}, 10
        v_and_b32 v{t1}, 1, v{vLane}
        v_mul_u32_u24 v{t1}, {512 + 128}, v{t1}
        v_lshrrev_b32 v{t2}, 2, v{vLane}
        v_lshlrev_b32 v{t2}, 4, v{t2}
        v_xor_b32 v{t1}, v{t1}, v{t2}
        v_bfe_u32 v{t2}, v{vLane}, 1, 1
        v_lshl_add_u32 v{t1}, v{t2}, 3, v{t1}
        s_add_u32 s3, s{sM}, 12288
        v_add_u32 v{vXr[0][0]}, s3, v{t1}
        s_sub_u32 s3, s3, 3072
        s_cmp_eq_u32 s{sW}, 0
        s_cselect_b32 s3, 28672, s3
        v_add_u32 v{vXr[0][1]}, s3, v{t1}
        v_add_u32 v{vXr[1][0]}, 65536, v{vXr[0][0]}
        v_add_u32 v{vXr[1][1]}, 65536, v{vXr[0][1]}
        v_add_u32 v{vXr[2][0]}, 131072, v{vXr[0][0]}
        v_add_u32 v{vXr[2][1]}, 131072, v{vXr[0][1]}
        s_lshl_b32 s3, s{sK32}, 1
        v_min_u32 v{t1}, 2, v{vG}
        v_add_u32 v{t1}, s3, v{t1}
        v_max_u32 v{t1}, 1, v{t1}
        v_lshlrev_b32 v{t1}, 1, v{t1}
        v_and_b32 v{t2}, 1, v{vR4}
        v_add_lshl_u32 v{t1}, v{t1}, v{t2}, 7
        v_lshrrev_b32 v{t2}, 1, v{vR4}
        v_lshl_add_u32 v{t2}, v{t2}, 2, v{vC4}
        v_lshl_add_u32 v{t1}, v{t2}, 2, v{t1}
        v_add_u32 v{vRsa}, {RS_OFF - 256}, v{t1}
        s_min_u32 s{sWck}, s{sW}, 2
        s_lshl_b32 s{sWck}, s{sWck}, 6
        s_add_u32 s{sWck}, s{sWck}, 64
        s_lshl_b32 s{sOs}, s{sK32}, 5
        s_add_u32 s{sOs}, s{sOs}, s{sJ}
        s_lshl_b32 s{sOs}, s{sOs}, 10
        s_add_u32 s{sOs}, s{sOs}, {O_OFF + (OOB if P['xp'] & 4096 else 0)}
        s_lshr_b32 s{sOfl}, s{sK32}, 2
        s_lshl_b32 s{sOfl}, s{sOfl}, 1
        s_and_b32 s3, s{sJ}, 1
        s_add_u32 s{sOfl}, s{sOfl}, s3
        s_lshl_b32 s{sOfl}, s{sOfl}, 7
        s_add_u32 s{sOfl}, s{sOfl}, {CN_OFF + 32 * 128}
        s_and_b32 s{sT3}, s{sS}, 1
        s_mul_i32 s3, s{sT3}, 28
        s_add_u32 s3, s3, s{sW}
        s_lshl_b32 s3, s3, 17
        s_xor_b32 s{sT2}, s{sS}, 1
        s_lshl_b32 s{sPfl}, s{sT2}, 3
        s_lshl_b32 s{sT2}, s{sS}, 7
        s_add_u32 s3, s3, s{sT2}
        v_lshlrev_b32 v{t1}, 12, v{vR8}
        v_add3_u32 v{vD2[0]}, v{t1}, v{vSw}, s3
        v_add_u32 v{vD2[1]}, {1 * (8 * 4096 - 1024)}, v{vD2[0]}
        v_add_u32 v{vD2[2]}, {2 * (8 * 4096 - 1024)}, v{vD2[0]}
        v_add_u32 v{vD2[3]}, {3 * (8 * 4096 - 1024)}, v{vD2[0]}
        v_mul_u32_u24 v{t1}, 896, v{vR8}
        s_mul_i32 s3, s{sKh}, {28 * 896}
        s_mul_i32 s{sT2}, s{sNh}, {16 * 896}
        s_add_u32 s3, s3, s{sT2}
        s_lshl_b32 s{sT2}, s{sD2}, 7
        s_add_u32 s3, s3, s{sT2}
        v_add3_u32 v{vDo[0]}, v{t1}, v{vSw}, s3
        v_add_u32 v{vDo[1]}, {8 * 896 - 1024}, v{vDo[0]}
        s_lshl_b32 s{sT2}, s{sS}, 1
        s_add_u32 s{sT2}, s{sT2}, s{sNh}
        s_and_b32 s3, s{sS}, 30
        s_add_u32 s3, s3, s{sKh}
        s_lshl_b32 s3, s3, 7
        s_add_u32 s{sOck}, s3, {CN_OFF + 32 * 128}
        s_lshl_b32 s3, s{sT2}, 5
        s_add_u32 s3, s3, s{sKh}
        s_lshl_b32 s3, s3, 10
        s_add_u32 s3, s3, {O_OFF}
        v_add_u32 v{vOd[0]}, s3, v{vL16}
        v_add_u32 v{vOd[1]}, {16384 - 1024}, v{vOd[0]}
        s_xor_b32 s3, s{sKh}, s{sNh}
        s_lshl_b32 s3, s3, 6
        v_xor_b32 v{vPatW[0][0]}, s3, v{vPat[0][0]}
        v_xor_b32 v{vPatW[0][1]}, 32, v{vPatW[0][0]}
        v_add_u32 v{vPatW[1][0]}, 65536, v{vPatW[0][0]}
        v_add_u32 v{vPatW[1][1]}, 65536, v{vPatW[0][1]}
        s_mul_i32 s3, s{sKh}, {3 * 4096}
        v_add_u32 v{vOr[0][0]}, s3, v{vL16}
        v_xor_b32 v{vOr[0][1]}, 4096, v{vOr[0][0]}
        v_add_u32 v{vOr[1][0]}, 65536, v{vOr[0][0]}
        v_add_u32 v{vOr[1][1]}, 65536, v{vOr[0][1]}
        v_add_u32 v{vOr[2][0]}, 131072, v{vOr[0][0]}
        v_add_u32 v{vOr[2][1]}, 131072, v{vOr[0][1]}
        s_lshl_b32 s{sT2}, s{sD2}, 1
        s_add_u32 s{sT2}, s{sT2}, s{sNh}
        s_lshl_b32 s3, s{sT2}, 1
        s_add_u32 s3, s3, s{sT3}
        s_mul_i32 s3, s3, 14
        s_add_u32 s3, s3, s{sKh}
        s_lshl_b32 s3, s3, 12
        s_add_u32 s3, s3, {U_OFF}
        v_add_u32 v{vUo}, s3, v{vL16}
        s_lshl_b32 s3, s{sD2}, 1
        s_add_u32 s3, s3, s{sT3}
        s_lshl_b32 s3, s3, 1
        s_add_u32 s3, s3, s{sKh}
        s_lshl_b32 s3, s3, 7
        s_add_u32 s{sUck}, s3, {CN_OFF}
        s_and_b32 s3, s2, 6
        s_add_u32 s3, s3, s{sD2}
        s_sub_u32 s{sT2}, s3, 7
        s_cmp_ge_u32 s3, 7
        s_cselect_b32 s3, s{sT2}, s3
        s_lshl_b32 s{sGs2}, s3, 19
        s_lshl_b32 s{sGsU}, s3, 13
        s_add_u32 s{sPfl}, s{sPfl}, s{sD2}
        s_lshl_b32 s3, s{sPfl}, 14
        s_add_u32 s3, s3, s{sM}
        s_add_u32 s3, s3, {P_OFF + (OOB if P['xp'] & 512 else 0)}
        v_add_u32 v{vPst}, s3, v{vL16}
        s_lshl_b32 s{sPfl}, s{sPfl}, 5
        s_add_u32 s{sPfl}, s{sPfl}, s{sW}
        s_lshl_b32 s{sPfl}, s{sPfl}, 2
        s_add_u32 s{sPfl}, s{sPfl}, {PF_OFF}
        s_lshl_b32 s3, s{sNh}, 3
        v_add_u32 v{t0}, s3, v{vG}
        v_xor_b32 v{t0}, v{t0}, v{vC8}
        v_lshlrev_b32 v{t0}, 4, v{t0}
        v_lshl_add_u32 v{t0}, v{vL15}, 8, v{t0}
        s_lshl_b32 s3, s{sKh}, 14
        s_add_u32 s3, s3, {EPI_B}
        v_add_u32 v{vEw[0]}, s3, v{t0}
        v_xor_b32 v{vEw[1]}, 64, v{vEw[0]}
        s_lshr_b32 s3, s{sS}, 1
        s_add_u32 s{sRo}, s3, s{sD2}
        v_lshlrev_b32 v{t0}, 1, v{vC8}
        v_xor_b32 v{t0}, v{t0}, v{vR8}
        v_lshlrev_b32 v{t0}, 4, v{t0}
        v_lshl_add_u32 v{t0}, v{vR8}, 8, v{t0}
        s_add_u32 s3, s{sM}, {EPI_B}
        v_add_u32 v{vEr[0]}, s3, v{t0}
        v_xor_b32 v{vEr[1]}, 16, v{vEr[0]}
        v_xor_b32 v{vEr[2]}, {16384 + 8192}, v{vEr[0]}
        v_xor_b32 v{vEr[3]}, {16384 + 8192 + 16}, v{vEr[0]}""".split('\n')
    par = lambda l: l & 1
    cur = lambda l, z: 4 * (l >> 4) + 2 * z + (l & 1) <= (l & 15)
    c0 = -2.0 * math.sqrt(2.0 / math.pi) * math.log2(math.e)
    setup2 = setmask(sPar, lanemask(par)) + setmask(sCur0, lanemask(lambda l: cur(l, 0))) + setmask(sCur1, lanemask(lambda l: cur(l, 1)))
    setup2 += [f's_cmp_eq_u32 s{sK32}, 0\ns_cselect_b64 {s(sInvd, 2)}, 0, -1',
               f'v_mov_b32 v{t0}, 0xffff', f'v_mov_b32 v{t1}, 0xffff0000',
               f'v_cndmask_b32 v{t0}, v{t0}, v{t1}, {s(sPar, 2)}']
    for z, sc in ((0, sCur0), (1, sCur1)):
        setup2 += [f'v_cndmask_b32 v{vMk + z}, v{t0}, 0, {s(sc, 2)}', f'v_cndmask_b32 v{vMk + 2 + z}, 0, v{t0}, {s(sc, 2)}']
    setup2 += [f'v_mov_b32 v{vNeg}, {f32(-1e30)}',
               f's_mov_b32 s{sC1}, {f32(28 ** -0.5 * math.log2(math.e))}',
               f's_mov_b32 s{sGc}, {f32(c0 * 0.044715)}\ns_mov_b32 s{sGc + 1}, {f32(c0 * 0.044715)}',
               f's_mov_b32 s{sOne}, 1.0\ns_mov_b32 s{sOne + 1}, 1.0',
               f'v_mov_b32 v{vC0}, {f32(c0)}', f'v_mov_b32 v{vC0 + 1}, {f32(c0)}']
    aSel = 248
    setup2 += [f'v_lshrrev_b32 v{t0}, 1, v{vL15}', f'v_lshlrev_b32 v{t1}, 1, v{vG}', f'v_sub_u32 v{t0}, v{t0}, v{t1}',
               f'v_mov_b32 v{t1}, 0x3f80', f'v_cndmask_b32 v{t1}, v{t1}, 1.0, {s(sPar, 2)}']
    for k in range(2):
        setup2 += [f'v_cmp_eq_i32 vcc, {k}, v{t0}', f'v_accvgpr_write_b32 a{aSel + k}, 0', f'v_accvgpr_write_b32 a{aSel + 4 + k}, 0',
                   f'v_cndmask_b32 v{t2}, 0, v{t1}, vcc', f'v_accvgpr_write_b32 a{aSel + 2 + k}, v{t2}']
    NS1 = [i for i, t in enumerate(setup) if t.strip().startswith(f'v_add_u32 v{vLin[1]},')][0]

    def h_publish(tag, tokH):
        run(setup[:NS1])
        e(f'v_readfirstlane_b32 s{sNon}, v{vNon}')
        e(f's_mov_b32 s{sCnt}, 0')
        e(f's_cmp_lg_u32 s{sNon}, 0')
        e(f's_cbranch_scc0 L_nonce{tag}')
        e.cold_begin()
        e.label(f'L_nonce{tag}')
        e.raw(f'    buffer_load_dword v{vNon}, v{t3}, {srd(DBG)}, 0 offen sc1')
        e.raw(f'    s_add_u32 s{sCnt}, s{sCnt}, 1')
        e.raw(f'    s_waitcnt vmcnt(0)')
        e.raw(f'    v_readfirstlane_b32 s{sNon}, v{vNon}')
        e.raw(f'    s_cmp_ge_u32 s{sCnt}, {P["spin"]}')
        e.raw(f'    s_cbranch_scc1 L_nonce_ok{tag}')
        e.raw(f'    s_cmp_eq_u32 s{sNon}, 0')
        e.raw(f'    s_cbranch_scc1 L_nonce{tag}')
        e.raw(f'    s_branch L_nonce_ok{tag}')
        e.cold_end()
        e.label(f'L_nonce_ok{tag}')
        e.wait(vm=tokH, lg=e.lg_n)
        e('s_barrier')
        if P['hsc']:
            assert P['hrep'] == 8
            e(f's_atomic_swap s{sNon}, s[{WS}:{WS + 1}], s{sHfl}')
            e(f's_atomic_swap s{sNon}, s[{WS}:{WS + 1}], s{sHf2}')
            e.smem_out = 2
        else:
            e(f'buffer_store_dword v{vNon}, v{vFr8}, {srd(WS)}, s{sHfl} offen sc1')
        if P['rpos'] == 1 or (P['rpos'] == 2 and tag == 'h'):
            res_loads()

    h_publish('', tokH)
    stamp('hflag', (1, 4))
    if P['xp'] & 1:
        e.wait_all(force=True)
        stamp('flag ack', (4,))
    w1_dma(9, 64)
    e.bg_on = True
    e.credit = 0
    hold = e.bg[max(0, P['w1flag'] - (40 - len(e.bg))):]
    del e.bg[len(e.bg) - len(hold):]
    run(setup[NS1:])
    for j in range(4):
        b = vB1 + 2 * (j & 1)
        e(f'v_lshlrev_b32 v{vAcc[0] + 4 * j}, 16, v{b}')
        e(f'v_and_b32 v{vAcc[0] + 4 * j + 1}, 0xffff0000, v{b}')
        e(f'v_lshlrev_b32 v{vAcc[0] + 4 * j + 2}, 16, v{b + 1}')
        e(f'v_and_b32 v{vAcc[0] + 4 * j + 3}, 0xffff0000, v{b + 1}')

    def bf(n, j):
        return a((n * 4 + j) * 4, 4)

    def h_load(n, gap):
        for j in range(4):
            pre = [f's_add_u32 s{sGsH}, s{sGsH}, 8192', f's_and_b32 s{sGsH}, s{sGsH}, 0xffff'] if (j == 0 and n and not P['xp'] & 128) else []
            bg_ins(('h', n, j), pre, f'buffer_load_dwordx4 {bf(n, j)}, v{vHo}, {srd(WS)}, s{sGsH} offen offset:{(j >> 1) * 2048 + (j & 1) * 256} sc1', gap)

    def u_load(n, gap):
        for j in range(4):
            pre = wrap(sGsU, 8192, 7) if (j == 0 and n and not P['xp'] & 64) else []
            bg_ins(('u', n, j), pre, f'buffer_load_dwordx4 {bf(n, j)}, v{vUo}, {srd(WS)}, s{sGsU} offen offset:{j * 1024} sc1', gap)

    def q_dma(st, gap):
        q = 16 + 2 * st
        b = slot_of(q)
        for k in range(3):
            pre = [f's_add_u32 m0, s{sM3}, {b}'] + (wrap(sWs, 12288, 7) if st and not P['xp'] & 8 else []) if k == 0 else []
            bg_dma(('s', q, k), pre, WS, vWp, sWs, k * 1024, gap, mod=' sc1')
        bg_dma(('s', q, 3), [f's_add_u32 m0, s{sMh}, {b + 28672}'] + (wrap(sXs, 1 << 18, 7) if st and not P['xp'] & 256 else []), WS, vXd[2], sXs, 0, gap, mod=' sc1')
        for k in range(4):
            pre = [f's_add_u32 m0, s{sM}, {b + 12288}'] if k == 0 else []
            bg_dma(('s', q + 1, k), pre, WS, vXd[k >> 1], sXs, k * 1024, gap, mod=' sc1')

    QF = 30
    fseq = [('u', n) for n in range(14)] + [('o', m) for m in range(8)]

    def f_dma(i, gap):
        kind, n = fseq[i]
        q = QF + i
        m0 = [f's_add_u32 m0, s{sM}, {slot_of(q)}']
        if kind == 'u':
            for k in range(4):
                pre = m0 + wrap(sGs2, 1 << 19, 7) * (0 if P['xp'] & 16 else {0: 0, 7: 0, 8: 2}.get(n, 1)) if k == 0 else []
                if n in (0, 8):
                    pre = pre + [f'v_xor_b32 v{vD2[k]}, 128, v{vD2[k]}']
                bg_dma(('s', q, k), pre, W2, vD2[k], sGs2, k * 1024, gap)
        else:
            step = [f's_add_u32 s{sRo}, s{sRo}, {0 if P["xp"] & 32 else 1}', f's_and_b32 s{sRo}, s{sRo}, 3']
            if n < 4:
                bg_dma(('s', q, 0), m0 + step + [f's_mul_i32 s{sBg}, s{sRo}, {112 * 896}'], WO, vDo[0], sBg, 0, gap)
                bg_dma(('s', q, 1), [], WO, vDo[1], sBg, 1024, gap)
                bg_dma(('s', q, 2), [f's_add_u32 s{sBg}, s{sBg}, {56 * 896 - 2048}'], WO, vDo[0], sBg, 2048, gap)
                bg_dma(('s', q, 3), [], WO, vDo[1], sBg, 3072, gap)
            else:
                for k in range(4):
                    pre = m0 + step + [f's_lshl_b32 s{sBg}, s{sRo}, 12'] if k == 0 else []
                    bg_dma(('s', q, k), pre, WS, vOd[k & 1], sBg, k * 1024, gap, mod=' sc1')

    def bar(qlast):
        if qlast is not None:
            e.need(('s', qlast, 3))
        if not (P['xp'] & 16384 and qlast != 5):
            e('s_barrier')

    PH, DF = P['ph'], P['df']
    vWof = [vBig + 16 + 4 * k for k in range(6)]

    def fr(x, n=4, o=0):
        return a(200 + 4 * (x % NF) + o, n)

    def tr_reads(q, j, T_, x):
        r = []
        for h in range(2):
            ad = slot_of(q) + (j >> 1) * 4096 + h * 2048
            r.append(f'ds_read_b64_tr_b16 {fr(x, 2, 2 * h)}, v{vPat[ad >> 16][2 * T_ + (j & 1)]} offset:{ad & 65535}')
        return r

    def gemm32(seq, q0, at_stage, swap, fill, init, accs, amod, padd, checks, pre=None):
        items = []
        for i, (kind, n) in enumerate(seq):
            items += [(i, kind, n, j, T_) for j in range(4 if kind != 'o' else 2) for T_ in range(2)]
        tail = [t for t in items if t[0] >= len(seq) - 2]
        items = items[:len(items) - len(tail)]
        for T_ in (1, 0):
            items += [t for t in tail if t[4] == T_] + [(None, 'P', p, 0, T_) for p in padd if p[0] == T_]
        tk = {}
        left = [sum(1 for t in items if t[0] == i) for i in range(len(seq))]
        seen = set()
        init = set(init)
        lastrd = {}
        done = [-1]
        rq, fq = [], []

        def plan(x):
            i, kind, n, j, T_ = items[x]
            if kind == 'P':
                return
            r = []
            if i not in seen:
                seen.add(i)
                rq.append((x, None, False))
                if kind == 'o':
                    for cb in range(2):
                        for h in range(2):
                            ad = slot_of(q0 + 14 + (n >> 1)) + h * 4096 + (n & 1) * 2048
                            r.append(f'ds_read_b64_tr_b16 {v(vWof[(2 * n + cb) % 6] + 2 * h, 2)}, v{vPatW[ad >> 16][cb]} offset:{ad & 65535}')
            if pre and x in pre:
                tk[x] = lastrd[i] = pre[x]
                left[i] -= 1
            elif kind != 'o':
                r += tr_reads(q0 + i, j, T_, x)
            else:
                ad = slot_of(q0 + 18 + (n >> 1)) + (n & 1) * 2048 + j * 1024
                r.append(f'ds_read_b128 {fr(x)}, v{vOr[ad >> 16][T_]} offset:{ad & 65535}')
            rq.extend((x, t, t is r[-1]) for t in r)

        def rd1():
            while rq and rq[0][1] is None:
                i = items[rq.pop(0)[0]][0]
                while left[done[0] + 1] == 0 and e.lg_done >= lastrd[done[0] + 1]:
                    done[0] += 1
                at_stage(i, q0 + done[0])
            if not rq:
                return False
            x, t, last = rq.pop(0)
            tok = e(t)
            if last:
                tk[x] = lastrd[items[x][0]] = tok
                left[items[x][0]] -= 1
            return True

        def f1():
            f = fq.pop(0)
            if callable(f):
                f()
            else:
                e.many(f)
        e.ds_free = True
        e.bg_on = False
        for x in range(DF):
            plan(x)
        while rd1():
            pass
        nxt = DF
        for x, (i, kind, n, j, T_) in enumerate(items):
            if x % 4 == 0:
                stamp(f'{seq[0][0]}{x}', (20,))
            if kind == 'P':
                e.bg_flush(n[1])
                ms = [mf16(vAcc[T_] + 8 * n[3] + 4 * rt, a(aSel + 2 - 2 * rt, 4), v(n[2], 4)) for rt in range(2)]
            else:
                vm = None
                if kind != 'o':
                    key = (kind, n % amod, j | 1)
                    e.bg_flush(key)
                    vm = e.tok[key]
                while x not in tk:
                    rd1()
                e.wait(vm=vm, lg=tk.get(x + 1, tk[x]) if x % 2 == 0 else None)
                ms = []
                for cb in range(2):
                    act = bf(n % amod, (j & 2) + cb) if kind != 'o' else v(vWof[(2 * n + cb) % 6], 4)
                    d = accs(i)[T_] + (8 * (j & 1) + 4 * cb if swap else 8 * cb + 4 * (j & 1))
                    c = None if d in init else '0'
                    init.add(d)
                    ms.append(mf16(d, act, fr(x), c) if swap else mf16(d, fr(x), act, c))
            f = fill.pop(0) if fill else None
            now = callable(f)
            if isinstance(f, list):
                fq.extend(f)
            elif now or (f and 's_cmp' in f):
                fq.append(f)
            elif f:
                fq.extend(f.split('\n'))
            for k, m in enumerate(ms):
                e(m)
                slots = 1 if (k == 1 and x % 2 == 1) else 2
                if k == 0:
                    if x in checks:
                        checks[x]()
                    if not any(x < c <= x + P['hold'] for c in checks):
                        for _ in range(2):
                            if nxt <= x + DF and nxt < len(items):
                                plan(nxt)
                                nxt += 1
                if rd1():
                    slots -= 1
                if len(rq) > 2 and rd1():
                    slots -= 1
                did = False
                while (slots > 0 or e.credit < -24) and e.bg_step():
                    slots -= 1
                while fq and (slots > 0 or (k == 1 and (now or len(fq) > P['fqmax'] or not did and x % 2 == 0))):
                    f1()
                    did = True
                    slots -= 1
        while fq:
            f1()
        e.ds_free = False
        e.bg_on = True
        assert not fill and not rq

    def xf(t, ks):
        return 176 + ((ks & 1) * 3 + t) * 4

    def wf(f, ks):
        return 128 + ((ks & 1) * 6 + f) * 4

    def q_reads(ks):
        st, ksl = ks >> 1, ks & 1
        b = slot_of(16 + 2 * st)

        def xr(t):
            r = []
            for h in range(2):
                ad = b + ksl * 2048 + (1024 if t == 2 else 0) + h * 256
                r.append(f'ds_read_b64_tr_b16 {a(xf(t, ks) + 2 * h, 2)}, v{vXr[ad >> 16][1 if t == 0 else 0]} offset:{ad & 65535}')
            return r

        def wr(f):
            ad = b + (ksl * 6 + f) * 1024
            return [f'ds_read_b128 {a(wf(f, ks), 4)}, v{vLin[ad >> 16]} offset:{ad & 65535}']
        return xr(1) + wr(0) + xr(2) + wr(1) + wr(2) + xr(0) + wr(3) + wr(4) + wr(5)

    e.bg_flush()
    stamp('flag rq', (4,))
    e(flag_load(vFoH, vFv))
    e.bg = hold[:P['w1chk']]
    hold = hold[P['w1chk']:]
    assert len(hold) % 4 == 0
    e.bg_flush()
    stamp('w1 iss', (4,))
    if P['iwarm']:
        e(f's_mov_b32 s3, s{sW}')
        e('s_mov_b64 exec, 0')
        e.label('L_warm')
        e.raw(';;PADJUMPS')
        e('s_mov_b64 exec, -1')
    if P['stamps'] == 4:
        e(f's_mov_b32 s{sCnt}, 0')
    flag_check(vFoH, vFv, P['hsleep'])
    if P['stamps'] == 4:
        e(f's_mov_b32 s{sStamp + 12}, s{sCnt}')
    stamp('chk', (20,))
    n_iss = 10 - len(hold) // 4
    bar(min(n_iss - 3, 5))
    e.smem_out = 0
    stamp('h ok', (1, 2, 4))
    for n in range(8):
        h_load(n, P['hgap'])
        if n == 0:
            bg_ins('rs', [], f'buffer_load_dword v{vRs}, v{vRsa}, {srd(WS)}, 0 offen sc1', 0)
            if P['rpos'] == 2:
                e.bg_flush()
                res_loads()
        if n < P['hinit']:
            e.bg_flush()
        if n >= P['hpos']:
            e.bg += [(k, f, P['hgap']) for k, f, _ in hold[:4]]
            del hold[:4]
    e.bg += [(k, f, P['hgap']) for k, f, _ in hold]

    rsfill = [f'v_lshlrev_b32 v{t0}, 2, v{vL15}',
            f'v_and_b32 v{t1}, 1, v{vLane}',
            f'v_lshl_add_u32 v{t1}, v{vG}, 2, v{t1}',
            f'v_lshlrev_b32 v{t1}, 2, v{t1}',
            f'v_add_u32 v{t2}, 64, v{t1}',
            f'v_cndmask_b32 v{t3}, v{t1}, v{t2}, {s(sCur0, 2)}',
            f'v_cndmask_b32 v{t1}, v{t1}, v{t2}, {s(sCur1, 2)}']
    for t in range(2):
        rsfill += [f'ds_bpermute_b32 v{vCa[t]}, v{t0}, v{vRs} offset:{64 * (t + 1)}',
                 f'ds_bpermute_b32 v{vAs[t][0]}, v{t3}, v{vRs} offset:{64 * t}',
                 f'ds_bpermute_b32 v{vAs[t][1]}, v{t1}, v{vRs} offset:{64 * t + 8}']
    rsfill += [None] * 6 + [f'v_mul_f32 v{vCa[t]}, s{sC1}, v{vCa[t]}' for t in range(2)]

    g1bar = {3: n_iss - 1, 5: None, 7: 9, 9: 11, 11: 13, 13: 15, 14: None}
    assert n_iss >= 8
    extra = {3: (10, 11), 5: (12, 13), 7: (14, 15)}
    vGp = [vBig, vBig + 16]
    vGr = vBig + 32

    def g_check():
        cnt_check(sGfl, 2, 4)
        e(f'v_xor_b32 v{vGst}, {8 * 16384}, v{vGst}')
        e(f'v_xor_b32 v{vGs2}, 8192, v{vGst}')
        for j in (3, 2, 1, 0):
            e.bg.insert(0, (('gl', j), [f'buffer_load_dwordx4 {v(vGr + 4 * j, 4)}, v{vGs2 if j >= 2 else vGst}, {srd(WS)}, 0 offen offset:{j * 1024} sc1'], 32))

    def g1_stage(n, done):
        if n in g1bar:
            bar(g1bar[n])
        if n == P['gpub']:
            e.need(('g', 3))
            signal(sGfl, False)
        if n in (0, 1, 2, 4, 6, 8, 10, 12, 14):
            stamp(f'g1 st{n}', (2, 4) if n in (1, 4) else (2,))
        if n >= 8:
            stamp(f'g1 st{n}', (9,))
        gap = P['ggap']
        if n == 14:
            assert done >= 12
        for q in extra.get(n, ()):
            assert done >= q - 10
            w1_dma(q, gap)
        if n == P['wfq']:
            cnt_req(sWck, DBG)
        if n in (9, 11, 13):
            assert done >= n - 2
            q_dma(n // 2 - 4, P['qg1'])
        if n == P['gfq']:
            e(f's_xor_b32 s{sGfl}, s{sGfl}, 1024')
            cnt_req(sGfl)

    def part_fill(fl, end, acc, vst, key):
        def st(j):
            e.bg.insert(0, ((key, j), [f'buffer_store_dwordx4 {v(acc[j >> 1] + 8 * (j & 1), 4)}, v{vst}, {srd(WS)}, 0 offen offset:{j * 1024} sc1'], 32))
            e.bg_flush((key, j))
        assert len(fl) <= end + 1
        fl = fl + [None] * (end + 1 - len(fl))
        for j in range(4):
            src = acc[j >> 1] + 8 * (j & 1)
            fl += [[f'v_cvt_pk_bf16_f32 v{src + r}, v{src + 2 * r}, v{src + 2 * r + 1}' for r in range(4)] + [lambda j=j: st(j)]] + [None] * P['psp']
        return fl

    gf = ['\n'.join(setup2[:6] + [t for t in setup2 if f's{sC1},' in t])] + rsfill + setup2[6:]
    gf = part_fill(gf, 64, vGp, vGst, 'g')
    xtk = {}

    def xw(j):
        xtk[0] = e(f'ds_write_b128 v{vEx}, {v(vAcc[1] + 4 * j, 4)} offset:{EXC_B + j * 1024}')

    def xr():
        e(f'v_xor_b32 v{vEx}, 8192, v{vEx}')
        e.wait(vm=e.tok[('s', 17, 3)], lg=xtk[0])
        e('s_barrier')
        stamp('exch', (9, 20))
        q_dma(3, P['qg1'])
        for j in range(4):
            e(f'ds_read_b128 {v(vE + 4 * j, 4)}, v{vEx} offset:{EXC_B + j * 1024}')
    gf += [None] * (121 - len(gf)) + [lambda j=j: xw(j) for j in range(4)] + [None] * P['xdel'] + [xr]
    gemm32([('h', n) for n in range(16)], 0, g1_stage, False, gf, [vAcc[0] + 4 * k for k in range(4)], lambda i: vGp if i < 8 else vAcc, 8,
           [(0, ('gl', j), vGr + 4 * j, j & 1) for j in range(4)],
           {P['wck']: lambda: cnt_check(sWck, 14, 8, DBG), P['gck']: g_check})
    stamp('g1 done', (1, 2, 9))
    for half in range(2):
        ps = [8 * half + 2 * k for k in range(4)]
        A_ = lambda p: v(vAcc[0] + p, 2)
        E_ = lambda p: v(vE + p, 2)
        for p in ps:
            e(f'v_pk_add_f32 {A_(p)}, {A_(p)}, {E_(p)}')
        for p in ps:
            e(f'v_pk_mul_f32 {E_(p)}, {A_(p)}, {A_(p)}')
        for p in ps:
            e(f'v_pk_fma_f32 {E_(p)}, {E_(p)}, {s(sGc, 2)}, {v(vC0, 2)}')
        for p in ps:
            e(f'v_pk_mul_f32 {E_(p)}, {E_(p)}, {A_(p)}')
        for p in ps:
            e(f'v_exp_f32 v{vE + p}, v{vE + p}')
            e(f'v_exp_f32 v{vE + p + 1}, v{vE + p + 1}')
        for p in ps:
            e(f'v_pk_add_f32 {E_(p)}, {E_(p)}, {s(sOne, 2)}')
        for p in ps:
            e(f'v_rcp_f32 v{vE + p}, v{vE + p}')
            e(f'v_rcp_f32 v{vE + p + 1}, v{vE + p + 1}')
        for p in ps:
            e(f'v_pk_mul_f32 {E_(p)}, {E_(p)}, {A_(p)}')
        for k, p in enumerate(ps):
            e(f'v_cvt_pk_bf16_f32 v{vSt[half] + k}, v{vE + p}, v{vE + p + 1}')
    run(q_reads(0))
    e.bg_flush()
    for half in range(2):
        tokU = e(f'buffer_store_dwordx4 {v(vSt[half], 4)}, v{vL16}, {srd(WS)}, s{sUst} offen offset:{half * 1024} sc1')
    stamp('u stored', (1, 2, 5, 9))
    hist = list(e.hist)
    e.cold_begin()

    save = (e.vm_n, e.vm_done, e.lg_n, e.lg_done, dict(e.pvm), dict(e.plg), dict(e.tok), nst[0])
    e.label('L_nog1')
    e.vm_n, e.vm_done, e.lg_n, e.lg_done, e.pvm, e.plg, e.tok = save0
    assert not e.bg
    e.pad(2)
    vW, vWr = vBig + 60, vBig + 61
    vPk = vBig
    sPk, sPp, sPo = 79, 80, 81
    PITCH = 1056
    e.many(f"""
        s_mov_b32 s{WQ + 2}, {448 * 2688}
        s_mov_b32 s{WQ + 3}, 0x20000
        s_sub_u32 s3, s2, 200
        s_cmp_lt_u32 s3, 42
        s_cselect_b32 s{sPo}, 0, {OOB}
        s_cselect_b32 s3, s3, 0
        s_mul_i32 s{sPk}, s3, 43
        s_lshr_b32 s{sPk}, s{sPk}, 7
        s_mul_i32 s{sPp}, s{sPk}, 3
        s_sub_u32 s{sPp}, s3, s{sPp}
        v_min_u32 v{t0}, 55, v{vLane}
        s_lshl_b32 s3, s{sPk}, 2
        s_add_u32 s3, s3, s{sW}
        s_mul_i32 s3, s3, {8 * 2688}
        s_mul_i32 s{sCnt}, s{sPp}, 896
        s_add_u32 s3, s3, s{sCnt}
        s_add_u32 s3, s3, s{sPo}
        v_lshl_add_u32 v{vW}, v{t0}, 4, s3
        s_mul_i32 s{sCnt}, s{sW}, {8 * PITCH}
    """)
    for r in range(8):
        e(f's_add_u32 m0, s{sCnt}, {r * PITCH}')
        e(f's_mov_b32 s3, {r * 2688}')
        e(f'buffer_load_dwordx4 v{vW}, {srd(WQ)}, s3 offen lds')
    tokHh = p0_body((6,))
    e.many(f"""
        v_lshrrev_b32 v{t0}, 2, v{vLane}
        v_mul_u32_u24 v{t0}, {PITCH}, v{t0}
        v_lshl_add_u32 v{t0}, v{vC4}, 3, v{t0}
        s_mul_i32 s3, s{sW}, {4 * 56}
        v_add_u32 v{vWr}, s3, v{t0}
    """)
    h_publish('h', tokHh)
    stamp('hlp hflag', (6,))
    e.many(f"""
        v_cmp_gt_u32 vcc, 12, v{vL15}
        s_mul_i32 s3, s{sW}, {4 * 14}
        s_add_u32 s3, s3, s{sPk}
        s_mul_i32 s3, s3, 3
        s_add_u32 s3, s3, s{sPp}
        s_lshl_b32 s3, s3, 11
        s_add_u32 s3, s3, {WP_OFF}
        s_add_u32 s3, s3, s{sPo}
    """)
    for jj in range(4):
        for t in range(2):
            for h in range(2):
                e(f'ds_read_b64_tr_b16 {v(vPk + (2 * jj + t) * 4 + 2 * h, 2)}, v{vWr} offset:{jj * 56 + t * 32 + h * 16 * PITCH}')
    for jj in range(4):
        for r in range(4):
            d = vPk + (2 * jj + 1) * 4 + r
            e(f'v_cndmask_b32 v{d}, 0, v{d}, vcc')
        for t in range(2):
            tokP = e(f'buffer_store_dwordx4 {v(vPk + (2 * jj + t) * 4, 4)}, v{vL16}, {srd(WS)}, s3 offen offset:{t * 1024} sc1')
        e(f's_add_u32 s3, s3, 86016')
    e.many(f"""
        s_lshl_b32 s{sUst}, s{sPp}, 6
        s_add_u32 s{sUst}, s{sUst}, 64
        s_cmp_eq_u32 s{sPo}, 0
        s_cselect_b32 s{sGfl}, s{sW}, 1
        s_mov_b32 s{sUfl}, {CN_OFF + 100 * 128}
    """)
    if P['gord'] == 1:
        e.many(f"""
            s_and_b32 s3, s2, 1
            s_mul_i32 s3, s3, 3
            s_bfe_u32 s{sT2}, s2, 0x10001
            s_mul_i32 s{sT3}, s{sT2}, 6
            s_add_u32 s3, s3, s{sT3}
            s_add_u32 s3, s3, 1
            v_add_u32 v{t1}, s3, v{vC4}
            s_mul_i32 s{sT2}, s{sT2}, 64
            s_add_u32 s{sT2}, s{sT2}, 7
            v_cmp_ne_u32 vcc, s{sT2}, v{t1}
            v_lshrrev_b32 v{t2}, 2, v{vLane}
            v_mul_u32_u24 v{t2}, 3584, v{t2}
            v_cndmask_b32 v{t1}, 0, v{t1}, vcc
            v_lshl_add_u32 v{t1}, v{t1}, 8, v{t2}
            s_lshl_b32 s3, s{sD}, 2
            s_add_u32 s3, s3, s{sW}
            s_mul_i32 s3, s3, 37
            s_min_u32 s3, s3, 976
            s_mul_i32 s3, s3, 3584
            s_mul_i32 s{sT2}, s{sM3}, {1024 * 3584 + 128}
            s_add_u32 s3, s3, s{sT2}
        """)
        for k in range(P['nt1']):
            e(f'buffer_load_dword v{vBig + 44 + k}, v{t1}, {srd(W1)}, s3 offen')
            e(f's_add_u32 s3, s3, {16 * 3584}')
    run(setup[NS1:])
    run(setup2)
    e.wait(vm=tokP)
    e('s_barrier')
    e(f's_cmp_lg_u32 s{sGfl}, 0')
    e(f's_cbranch_scc1 L_nowsig')
    signal(sUst, False, DBG)
    e.label('L_nowsig')
    e(flag_load(vFoH, vFv))
    e.many(f"""
        s_cmp_eq_u32 s{sF}, 0
        s_cselect_b32 s{W2 + 2}, 0, s{W2 + 2}
        v_and_b32 v{t0}, 0xfffff000, v{vHo}
        v_lshl_add_u32 v{t0}, v{vL31}, 7, v{t0}
        s_add_u32 s3, s{sGsH}, {P['hlead'] * 8192}
        v_lshl_add_u32 v{t1}, v{vHi}, 13, s3
    """)
    flag_check(vFoH, vFv, 8)
    assert e.vm_done >= tokP
    e('s_barrier')
    e(f'buffer_load_dword v{vRs}, v{vRsa}, {srd(WS)}, 0 offen sc1')
    stamp('hlp h ok', (6,))
    if P['touch'] & 4:
        for k in range((9 - P['hlead']) // 2):
            e(f'v_and_b32 v{t1}, 0xffff, v{t1}')
            e(f'v_add_u32 v{t2}, v{t0}, v{t1}')
            e(f'v_add_u32 v{t1}, 16384, v{t1}')
            e(f'buffer_load_dword v{vBig + 40 + k}, v{t2}, {srd(WS)}, 0 offen sc1')
    if P['ntw']:
        e.many(f"""
            s_mov_b32 s{W2 + 2}, {1792 * 4096}
            s_and_b32 s3, s2, 1
            s_mul_i32 s3, s3, 7
            s_add_u32 s3, s3, s{sD}
            s_lshl_b32 s3, s3, 2
            s_add_u32 s3, s3, s{sW}
            s_lshl_b32 s3, s3, 17
            s_and_b32 s{sT2}, s2, 6
            s_lshl_b32 s{sT2}, s{sT2}, 9
            s_add_u32 s3, s3, s{sT2}
            v_lshlrev_b32 v{t0}, 12, v{vL31}
            v_lshl_add_u32 v{t0}, v{vHi}, 9, v{t0}
        """)
        for k in range(P['ntw']):
            e(f'buffer_load_dword v{vBig + 50 + k}, v{t0}, {srd(W2)}, s3 offen offset:{(3 - k) * 128}')
        e(f's_cmp_eq_u32 s{sF}, 0')
        e(f's_cselect_b32 s{W2 + 2}, 0, s{W2 + 2}')
    run([t for t in rsfill if t])
    e.wait(vm=e.vm_n - 2)
    cnt_req(sWck, DBG)
    cnt_check(sWck, 14, 16, DBG)
    e('s_barrier')
    stamp('hlp touched', (6, 7))
    if P['touch'] & 1:
        e.many(f"""
            s_max_u32 s3, s{sIdx}, 25
            s_sub_u32 s3, s3, 25
            s_lshl_b32 s3, s3, 2
            s_add_u32 s{sT3}, s3, s{sW}
            v_lshlrev_b32 v{t0}, 7, v{vLane}
            s_and_b32 s3, s{sJ}, 8
            s_mul_i32 s3, s3, 86016
            s_mul_i32 s{sT3}, s{sT3}, 3072
            s_add_u32 s3, s3, s{sT3}
            s_add_u32 s3, s3, {WP_OFF}
            v_min_u32 v{t0}, {23 * 128}, v{t0}
            buffer_load_dword v{vBig + 2}, v{t0}, {srd(WS)}, s3 offen sc1
        """)
    if P['touch'] & 32:
        e.many(f"""
            v_lshl_add_u32 v{t1}, v0, 7, s{sWs}
            s_mul_i32 s3, s{sJ}, 86016
            s_add_u32 s3, s3, {WP_OFF}
        """)
        for k in range(3):
            e(f'v_subrev_u32 v{t2}, 86016, v{t1}')
            e(f'v_min_u32 v{t2}, v{t1}, v{t2}')
            e(f'v_add_u32 v{t1}, {32768 if k == 0 else 86016 - 65536}, v{t1}')
            e(f'buffer_load_dword v{vBig + 3 + k}, v{t2}, {srd(WS)}, s3 offen sc1')
    assert not e.bg
    e.many(f"""
        s_cmp_eq_u32 s{sF}, 0
        s_cselect_b32 s3, {OOB}, 0
        v_add_u32 v{vUo}, s3, v{vUo}
    """)
    for st in range(4):
        q_dma(st, 0)
    e.bg_flush()
    e(f's_mov_b32 s3, {OOB}')
    for _ in range(2):
        e(f'buffer_store_dword v{vNon}, v{vFl}, {srd(WS)}, s3 offen')
    safe = ('s', 16, 0)
    for st in range(4):
        k = ('s', 17 + 2 * st, 3)
        if not (e.vm_n - e.tok[k] >= save[0] - save[6][k] and save[1] < save[6][k]):
            safe = k
    e.wait(vm=max(e.tok[safe], e.tok[('s', 17, 3)]), lg=e.lg_n)
    e('s_barrier')
    run(q_reads(0))
    e.wait_all(vm=False, lg=True, force=True)
    e.pad(4)
    e('s_branch L_q')
    e.cold_end()
    e.hist = hist
    e.vm_n, e.vm_done, e.lg_n, e.lg_done, e.pvm, e.plg, e.tok, _ = save

    e.label('L_q')
    e.smem_out = 0
    QG = P['qgap']
    vQ = [None, [vBig, vBig + 4], [vBig + 8, vBig + 12]]
    vK = [[vBig + 16 + 8 * t, vBig + 20 + 8 * t] for t in range(3)]
    vV = [[vBig + 40 + 8 * t, vBig + 44 + 8 * t] for t in range(3)]
    nf = [0]

    def f_enq(limit_q, maxn, gap):
        while nf[0] < len(fseq) and QF + nf[0] <= limit_q and nf[0] < maxn:
            f_dma(FORD[nf[0]] if nf[0] < 10 else nf[0], gap)
            nf[0] += 1

    def q_barrier(st):
        key = ('s', 17 + 2 * st, 3) if st < 7 else ('s', QF + 2, 3)
        e.bg_flush(key)
        if st == 7:
            cnt_check(sUck, 7, 8, unless0=sF)
            stamp('u ok', (1, 3))
        e.wait(vm=max(e.tok[key], tokU if st == P['ust'] else 0), lg=e.lg_n)
        if not P['xp'] & 32768:
            e('s_barrier')
        if st == P['ust']:
            signal(sUfl, True)
            stamp('uflag', (1,))
        stamp(f'Q{st}', (5, 7))
        if st == 1:
            q_dma(4, QG)
        if st == 7:
            rest, e.bg = e.bg, []
            for n in range(PH):
                u_load(n, P['agap'])
            e.bg += rest
        if st + 4 < 7:
            q_dma(st + 4, QG)
        else:
            f_enq(QF + 2 * (st - 3) + 1, 10, QG)

    e.ds_free = True
    e.bg_on = False
    for ks in range(14):
        c = '0' if ks == 0 else None
        ms = []
        for f in range(6):
            part, t = f >> 1, f & 1
            w_ = a(wf(f, ks), 4)
            if part == 0:
                ms += [mf16(vQ[k][t], w_, a(xf(k, ks), 4), c) for k in (1, 2)]
            elif part == 1:
                ms += [mf16(vK[k][t], w_, a(xf(k, ks), 4), c) for k in (1, 2, 0)]
            else:
                ms += [mf16(vV[k][t], a(xf(k, ks), 4), w_, c) for k in (1, 2, 0)]
        last = e.lg_n
        stamp(f'q{ks}', (20,))
        if ks & 1:
            q_barrier((ks + 1) >> 1)
        if ks == P['ureq']:
            e.smem_out = 0
            cnt_req(sUck)
        fpre = {}
        rds = q_reads(ks + 1) if ks < 13 else [t for x in range(DF) for t in tr_reads(QF, x >> 1, x & 1, x)]
        for i, m in enumerate(ms):
            if i == 8:
                stamp(f'q{ks}.5', (20,))
            if i == 0:
                e.wait(lg=last - 6)
            if i == 4:
                e.wait(lg=last)
            e(m)
            n = 1 if i in (3, 15) else 2
            for _ in range(2 if (ks % 2 == 0 and i < P['qrd']) else 1):
                if rds:
                    x_ = (2 * DF - len(rds)) >> 1
                    fpre[x_] = e(rds.pop(0))
                    n -= 1
            while n > 0 and e.bg_step():
                n -= 1
    e.ds_free = False
    e.bg_on = True
    stamp('qkv done', (1, 5, 6, 7))

    vQf = [None, vFr[0], vFr[1]]
    vKf = [vFr[2], vFr[3], vFr[4]]
    vPf = [vFr[5], vFr[6]]
    vVf = [vAcc[1], vAcc[1] + 6]
    vS = [[vAcc[0], vAcc[0] + 4], [vAcc[0] + 8, vAcc[0] + 12]]
    vTm = [[vBig + 64 + 4 * t + k for k in range(4)] for t in range(2)]

    def pack_T(acc, dst):
        for n in range(2):
            for r in range(2):
                e(f'v_cvt_pk_bf16_f32 v{dst + 2 * n + r}, v{acc[n] + 2 * r}, v{acc[n] + 2 * r + 1}')

    for t in (1, 2):
        pack_T(vQ[t], vQf[t])
    for t in (1, 2, 0):
        pack_T(vK[t], vKf[t])
    e(mf16(vS[0][1], v(vKf[1], 4), v(vQf[1], 4), '0'))
    e(mf16(vS[1][0], v(vKf[1], 4), v(vQf[2], 4), '0'))
    e(mf16(vS[1][1], v(vKf[2], 4), v(vQf[2], 4), '0'))
    e(mf16(vS[0][0], v(vKf[0], 4), v(vQf[1], 4), '0'))
    vnorm = []
    for n in range(2):
        for t in range(3):
            for r in range(2):
                vnorm.append(f'v_cvt_pk_bf16_f32 v{vVf[n] + 2 * t + r}, v{vV[t][n] + 2 * r}, v{vV[t][n] + 2 * r + 1}')
    run(vnorm[:6])
    vnorm = vnorm[6:]
    L = [[vTm[0][0], vTm[0][1]], [vTm[1][0], vTm[1][1]]]
    Mx = [vTm[0][2], vTm[1][2]]
    Tm = [vTm[0][3], vTm[1][3]]
    T = range(2)
    for t in (1, 0):
        for z, sc in ((0, sCur0), (1, sCur1)):
            e(f'v_cndmask_b32 v{L[t][z]}, v{vS[t][0] + 2 * z}, v{vS[t][0] + 2 * z + 1}, {s(sPar, 2)}')
            if t == 0:
                e(f'v_cndmask_b32 v{L[t][z]}, v{vNeg}, v{L[t][z]}, {s(sInvd, 2)}')
            e(f'v_cndmask_b32 v{Tm[t]}, v{vS[t][1] + 2 * z}, v{vS[t][1] + 2 * z + 1}, {s(sPar, 2)}')
            e(f'v_cndmask_b32 v{L[t][z]}, v{L[t][z]}, v{Tm[t]}, {s(sc, 2)}')
            e(f'v_mul_f32 v{L[t][z]}, v{L[t][z]}, v{vAs[t][z]}')

    def tree(op):
        for t in T:
            e(f'{op} v{Mx[t]}, v{L[t][0]}, v{L[t][1]}')
        for sw in ('v_permlane16_swap_b32', 'v_permlane32_swap_b32'):
            for t in T:
                e(f'v_mov_b32 v{Tm[t]}, v{Mx[t]}')
            if vnorm:
                e(vnorm.pop(0))
            for t in T:
                e(f'{sw} v{Mx[t]}, v{Tm[t]}')
            for t in T:
                e(f'{op} v{Mx[t]}, v{Mx[t]}, v{Tm[t]}')

    tree('v_max_f32')
    for t in T:
        e(f'v_mul_f32 v{Mx[t]}, v{vCa[t]}, v{Mx[t]}')
    for t in T:
        for z in range(2):
            e(f'v_fma_f32 v{L[t][z]}, v{L[t][z]}, v{vCa[t]}, -v{Mx[t]}')
    for t in T:
        for z in range(2):
            e(f'v_exp_f32 v{L[t][z]}, v{L[t][z]}')
    tree('v_add_f32')
    for t in T:
        e(f'v_rcp_f32 v{Mx[t]}, v{Mx[t]}')
    run(vnorm)
    for t in T:
        for z in range(2):
            e(f'v_mul_f32 v{L[t][z]}, v{L[t][z]}, v{vAs[t][z]}')
    for t in T:
        for z in range(2):
            e(f'v_mul_f32 v{L[t][z]}, v{L[t][z]}, v{Mx[t]}')
    for t in T:
        for z in range(2):
            e(f'v_cvt_pk_bf16_f32 v{L[t][z]}, v{L[t][z]}, v{L[t][z]}')
    for t in T:
        for k in range(4):
            e(f'v_and_b32 v{vPf[t] + k}, v{L[t][k & 1]}, v{vMk + k}')
    vO = [vQ[1], vQ[2]]
    for t in T:
        for n in range(2):
            e(mf16(vO[t][n], v(vVf[n] + 2 * t, 4), v(vPf[t], 4), '0'))
    e(f's_add_u32 s{sC1}, s{sOs}, 16384')
    for t in T:
        pack_T(vO[t], vSt[t])

    def o_stores():
        for t in T:
            tok = e(f'buffer_store_dwordx4 {v(vSt[t], 4)}, v{vL16}, {srd(WS)}, s{sOs + t} offen sc1')
        return tok
    e.bg_flush(('u', P['uo'], 3))
    tokO = o_stores()
    stamp('attn done', (1, 5, 7))
    e(f's_cmp_lg_u32 s{sF}, 0')
    e(f's_cbranch_scc0 L_nof')
    hist = list(e.hist)
    e.cold_begin()
    e.label('L_nof')
    save = (e.vm_n, e.vm_done, e.lg_n, e.lg_done, dict(e.pvm), dict(e.plg), dict(e.tok), nst[0])
    e.wait(vm=tokO)
    e('s_barrier')
    signal(sOfl, True)
    e.smem_out = 0
    if P['touch'] & 2:
        bgs, e.bg = e.bg, []
        e(f'v_lshlrev_b32 v{t1}, 7, v{vLane}')
        e(f's_lshl_b32 s3, s{sD2}, 2')
        e(f's_add_u32 s3, s3, s{sW}')
        e(f's_mul_i32 s3, s3, {196 * 128}')
        for k in range(4):
            e(f'buffer_load_dword v{vBig + k}, v{t1}, {srd(WO)}, s3 offen')
            e(f's_add_u32 s3, s3, {44 * 128}')
        e.bg = bgs
    e('s_branch L_fin')
    e.cold_end()
    e.hist = hist
    e.vm_n, e.vm_done, e.lg_n, e.lg_done, e.pvm, e.plg, e.tok, nst[0] = save

    e.label('L_f')
    vE2 = vBig + 40
    vAp = [vBig, vBig + 56]
    assert nf[0] == 10
    fbar = {3: 6, 5: None, 7: 9, 9: 13, 11: None, 13: None, 14: 18, 16: 19, 18: 20, 20: 21}
    opub = [False]
    nu = [PH]

    def f_stage(i, done):
        if i == P['osig']:
            e.wait(vm=tokO)
        if i in fbar:
            bar(None if fbar[i] is None else QF + fbar[i])
            if i == 20:
                assert done >= QF + 17
            if not opub[0] and e.vm_done >= tokO:
                opub[0] = True
                signal(sOfl, True)
        if i in (0, 2, 4, 6, 8, 10, 12, 14, 18):
            stamp(f'f st{i}', (3,))
        if i in (7, 8, 9, 10, 11, 12, 13, 14, 16, 18, 20):
            stamp(f'f st{i}', (8,))
        gap = P['fgap'] if i < 11 else P['ogap']
        if nu[0] < 7:
            u_load(nu[0], gap)
            nu[0] += 1
        if i == P['ofq']:
            cnt_req(sOck)
        if i == P['ppub']:
            e.need(('p', 3))
            signal(sPfl, False)
        if i in (3, 5, 7, 9, 11, 13):
            assert done >= QF + i - 2
            f_enq(QF + i + 8, 22, gap)
        if i == P['pfq']:
            e(f's_xor_b32 s{sPfl}, s{sPfl}, 1024')
            cnt_req(sPfl)

    def p_check():
        cnt_check(sPfl, 1, 4)
        e(f'v_xor_b32 v{vPst}, {8 * 16384}, v{vPst}')
        for j in (2, 3, 0, 1):
            bg_ins(('pl', j), [], f'buffer_load_dwordx4 {v(vPr + 4 * j, 4)}, v{vPst}, {srd(WS)}, 0 offen offset:{j * 1024} sc1', 32)

    rs = []
    for q_ in range(2):
        rs.append(f'v_lshlrev_b32 v{vBo[q_]}, 16, v{vBo[q_]}')
        for k in range(4):
            d = vE2 + 8 * q_ + 2 * k
            rs += [f'v_lshlrev_b32 v{d}, 16, v{vXo[q_] + k}', f'v_and_b32 v{d + 1}, 0xffff0000, v{vXo[q_] + k}',
                   f'v_add_f32 v{d}, v{d}, v{vBo[q_]}', f'v_add_f32 v{d + 1}, v{d + 1}, v{vBo[q_]}']
    vPr = vAp[1]

    rs = part_fill(rs, 56, vAp, vPst, 'p')
    rs += [None] * (143 - len(rs)) + [lambda j=j: e(f'ds_write_b128 v{vEw[j & 1]}, {v(vAcc[1] + 4 * j, 4)} offset:{8192 + (j >> 1) * 4096}') for j in range(4)]
    gemm32(fseq, QF, f_stage, True, rs, [], lambda i: vAp if i < 7 else vAcc, 7,
           [(j >> 1, ('pl', j), vPr + 4 * j, j & 1) for j in range(4)],
           {P['ock']: lambda: cnt_check(sOck, 8, 8), P['pck']: p_check}, fpre)
    assert opub[0] and not e.bg
    stamp('f done', (1, 3, 8))
    for j in range(4):
        e(f'ds_write_b128 v{vEw[j & 1]}, {v(vAcc[0] + 4 * j, 4)} offset:{(j >> 1) * 4096}')
    e.wait_all(vm=False, lg=True)
    e('s_barrier')
    stamp('epi bar', (3, 20))
    for q_ in range(2):
        for k in range(4):
            e(f'ds_read_b128 {v(vFr[4 * q_ + k], 4)}, v{vEr[k]} offset:{q_ * 2048}')
    for q_ in range(2):
        for k in range(4):
            for r in (0, 2):
                d = vE2 + 8 * q_ + 4 * (k & 1) + r
                e(f'v_pk_add_f32 {v(d, 2)}, {v(d, 2)}, {v(vFr[4 * q_ + k] + r, 2)}')
        for k in range(4):
            d = vE2 + 8 * q_ + 2 * k
            e(f'v_cvt_pk_bf16_f32 v{vSt[q_] + k}, v{d}, v{d + 1}')
        e(f'buffer_store_dwordx4 {v(vSt[q_], 4)}, v{vOo[q_]}, {srd(OUT)}, 0 offen')
    e.label('L_fin')
    if P['stamps']:
        e.wait_all(force=True)
        if nst[0] > 1:
            e(f's_mov_b32 s{sStamp + nst[0] - 1}, s{WQ}')
        e(f's_memrealtime s[{sT2}:{sT3}]')
        e(f's_memtime s[0:1]')
        e.wait_all(vm=False, lg=True, force=True)
        e(f's_mov_b32 s{sStamp + 15}, s{sT2}')
        e(f's_mov_b32 s{sStamp + 14}, s0')
        e(f's_lshl_b32 s3, s2, 2')
        e(f's_add_u32 s3, s3, s{sW}')
        e(f's_lshl_b32 s3, s3, 7')
        e(f's_add_u32 s3, s3, {ST_OFF}')
        if P['stamps'] == 20:
            for k in (ntr[0] - 2, ntr[0] - 1):
                e.raw(f'    v_writelane_b32 v{254 + k // 64}, s{86 + 2 * (k % 3)}, {k % 64}')
            e(f's_sub_u32 s{sT2}, s3, {ST_OFF}')
            e(f's_lshl_b32 s{sT2}, s{sT2}, 3')
            e(f's_add_u32 s{sT2}, s{sT2}, {7 << 20}')
            e(f'v_lshlrev_b32 v{t0}, 2, v{vLane}')
            for k in range(2):
                e(f'buffer_store_dword v{254 + k}, v{t0}, {srd(WS)}, s{sT2} offen offset:{256 * k}')
        for k in range(16):
            e(f'v_mov_b32 v{t0}, s{sStamp + k}')
            e(f'buffer_store_dword v{t0}, v{vFl}, {srd(WS)}, s3 offen offset:{4 * k}')
    if P['probe'] >= 0:
        e.wait_all(force=True)
        if P['probe'] >= 98:
            e(f'{"s_memtime" if P["probe"] == 98 else "s_memrealtime"} s[{sT2}:{sT3}]')
            e.wait_all(vm=False, lg=True, force=True)
            e(f's_mov_b32 s{sStamp}, s{sT2}')
        if P['probe'] == 98:
            e(f's_sub_u32 s{sStamp}, s{sStamp}, s{sStamp + 13}')
            e(f's_lshr_b32 s{sStamp}, s{sStamp}, 4')
            e(f's_add_u32 s{sStamp}, s{sStamp}, s{sNon}')
        e(f's_sub_u32 s{sCnt}, s{sStamp}, s{sNon}')
        e(f's_max_i32 s{sCnt}, s{sCnt}, 0')
        e(f's_min_i32 s{sCnt}, s{sCnt}, 4000')
        e(f's_lshl_b32 s{sCnt}, s{sCnt}, 2')
        e(f's_add_u32 s{sCnt}, s{sCnt}, 4000')
        e.label('L_fix')
        e(f's_memrealtime s[{sT2}:{sT3}]')
        e.wait_all(vm=False, lg=True, force=True)
        e(f's_sub_u32 s3, s{sT2}, s{sNon}')
        e(f's_cmp_lt_u32 s3, s{sCnt}')
        e(f's_cbranch_scc1 L_fix')
    e.label('L_end')
    e('s_endpgm')
    if P['iwarm']:
        e.lines = page_pads(e.lines, e.cold)
    e.lines += e.cold + ['L_last:', '    s_endpgm']

    if P['align']:
        e.lines = align_pass(e.lines, P['align'])
    hdr = open(os.path.join(os.path.dirname(os.path.abspath(__file__)), '..', NAME + '.s.ref')).read().split('; Override launch')[0]
    out = hdr + f"""; Generated by gen/gen.py (hand-written generator).{' cyc' if P['cyc'] else ''}
; @launch grid=(256,1,1) block=(256,1,1) lds={LDS_SIZE}
.amdgcn_target "amdgcn-amd-amdhsa--gfx950"
.text
.globl {NAME}_kernel
.p2align 8
.type {NAME}_kernel,@function
{NAME}_kernel:
""" + e.text() + f""".section .rodata,"a"
.p2align 6
.amdhsa_kernel {NAME}_kernel
  .amdhsa_next_free_vgpr 512
  .amdhsa_next_free_sgpr 102
  .amdhsa_accum_offset 256
  .amdhsa_group_segment_fixed_size 0
  .amdhsa_kernarg_size 88
  .amdhsa_user_sgpr_count 2
  .amdhsa_user_sgpr_kernarg_segment_ptr 1
  .amdhsa_system_sgpr_workgroup_id_x 1
.end_amdhsa_kernel
"""
    sys.stderr.write(f'vgpr hi {V.hi}, nops {e.nnop}, lines {len(e.lines)}\n')
    return out


def ins_sizes(lines):
    import subprocess, tempfile, re
    with tempfile.TemporaryDirectory() as d:
        open(d + '/a.s', 'w').write('.amdgcn_target "amdgcn-amd-amdhsa--gfx950"\n.text\n' + '\n'.join(lines) + '\n')
        subprocess.run(['clang', '-x', 'assembler', '-target', 'amdgcn-amd-amdhsa', '-mcpu=gfx950', '-c', d + '/a.s', '-o', d + '/a.o'], check=True)
        dis = subprocess.run(['llvm-objdump', '-d', '--mcpu=gfx950', d + '/a.o'], capture_output=True, text=True, check=True).stdout
    sizes = [4 * len(m.group(1).split()) for m in re.finditer(r'// [0-9A-F]+: ((?:[0-9A-F]{8} ?)+)', dis)]
    idx = [i for i, l in enumerate(lines) if l.startswith('    ') and not l.strip().startswith(';')]
    assert len(idx) == len(sizes), (len(idx), len(sizes))
    return dict(zip(idx, sizes))


def page_pads(lines, cold):
    NP = 6
    jumps = ['    s_add_u32 s3, s3, 4']
    for k in range(NP):
        jumps += [f'    s_cmp_eq_u32 s3, {k + 4}', f'    s_cbranch_scc1 L_pad{k}']
    i = lines.index(';;PADJUMPS')
    lines = lines[:i] + jumps + lines[i + 1:]
    is_al = lambda l: l.startswith('.p2align')
    sz = ins_sizes([';' if is_al(l) else l for l in lines] + cold + ['L_last:'] + [f'L_pad{k}:' for k in range(NP)])
    out, off, k = [], None, 0
    for i, l in enumerate(lines):
        if is_al(l):
            off = 0
        if off is not None and i in sz:
            if off >= 4096 * (k + 1):
                out += [f'L_pad{k}:', '    s_cbranch_execz L_warm']
                off += 4
                k += 1
            off += sz[i]
        out.append(l)
    assert k <= NP, k
    for kk in range(k, NP):
        j = out.index(f'    s_cbranch_scc1 L_pad{kk}')
        out[j] = '    s_nop 0'
    sys.stderr.write(f'{k} page pads, hot path behind the anchor {off} bytes\n')
    return out


def align_pass(lines, minrun):
    import subprocess, tempfile, re
    with tempfile.TemporaryDirectory() as d:
        open(d + '/a.s', 'w').write('.amdgcn_target "amdgcn-amd-amdhsa--gfx950"\n.text\n' + '\n'.join(lines) + '\n')
        subprocess.run(['clang', '-x', 'assembler', '-target', 'amdgcn-amd-amdhsa', '-mcpu=gfx950', '-c', d + '/a.s', '-o', d + '/a.o'], check=True)
        dis = subprocess.run(['llvm-objdump', '-d', '--mcpu=gfx950', d + '/a.o'], capture_output=True, text=True, check=True).stdout
    sizes = [4 * len(m.group(1).split()) for m in re.finditer(r'// [0-9A-F]+: ((?:[0-9A-F]{8} ?)+)', dis)]
    idx = [i for i, l in enumerate(lines) if l.startswith('    ') and not l.strip().startswith(';')]
    assert len(idx) == len(sizes), (len(idx), len(sizes))
    ok = re.compile(r'^\s+(v_(?:mov|add|sub|subrev|mul|max|min|and|or|xor|lshlrev|lshrrev|exp|rcp|rsq|cndmask|fmac|mul_u32)_?[a-z0-9_]*) ')
    off, last, n, bad = 0, None, 0, 0
    out = list(lines)
    for k, i in enumerate(idx):
        if sizes[k] == 8 and off % 8:
            if last is not None:
                m = ok.match(out[last])
                out[last] = out[last].replace(m.group(1), m.group(1) + '_e64', 1)
                off += 4
                n += 1
            else:
                run = 0
                while k + run < len(sizes) and sizes[k + run] == 8:
                    run += 1
                if minrun > 1 and run >= minrun:
                    out[i] = '    s_nop 0\n' + out[i]
                    off += 4
                    n += 1000
                else:
                    bad += 1
        if sizes[k] == 8 and off % 8 == 0:
            last = None
        elif sizes[k] == 4 and ok.match(lines[i]):
            last = i
        off += sizes[k]
    sys.stderr.write(f'align: {n} promoted, {bad} 8-byte instructions left misaligned\n')
    return out


if __name__ == '__main__':
    kw = {}
    path = os.path.join(os.path.dirname(os.path.abspath(__file__)), '..', NAME + '.s')
    for arg in sys.argv[1:]:
        k, val = arg.split('=')
        if k == 'out':
            path = val
        else:
            kw[k] = int(val)
    open(path, 'w').write(build(**kw))
```

```python
import re

_REG = re.compile(r'^(-|abs\()?([vas])(\d+|\[(\d+):(\d+)\])\)?$')

TRANS = ('v_exp_f32', 'v_log_f32', 'v_rcp_f32', 'v_rsq_f32', 'v_sqrt_f32')


def regs_of(tok):
    tok = tok.strip()
    if tok == 'vcc':
        return {('s', 'vcc')}
    if tok == 'exec':
        return {('s', 'exec')}
    if tok == 'm0':
        return {('s', 'm0')}
    m = _REG.match(tok)
    if not m:
        return set()
    kind = m.group(2)
    if m.group(4) is not None:
        return {(kind, i) for i in range(int(m.group(4)), int(m.group(5)) + 1)}
    return {(kind, int(m.group(3)))}


def split_ops(s):
    out, depth, cur = [], 0, ''
    for ch in s:
        if ch in '[(':
            depth += 1
        if ch in '])':
            depth -= 1
        if ch == ',' and depth == 0:
            out.append(cur.strip())
            cur = ''
        else:
            cur += ch
    if cur.strip():
        out.append(cur.strip())
    return out


class Ins:
    __slots__ = ('text', 'op', 'cls', 'wr', 'rd', 'srcA', 'srcB', 'srcC', 'states', 'dpp', 'wide_store', 'dma')

    def __init__(self, text):
        self.text = text
        t = text.split(';')[0].strip()
        parts = t.split(None, 1)
        self.op = op = parts[0]
        rest = parts[1] if len(parts) > 1 else ''
        ops = split_ops(rest)
        mods = []
        if ops:
            toks = ops[-1].split()
            ops[-1] = toks[0]
            mods = toks[1:]
        self.wr, self.rd = set(), set()
        self.srcA = self.srcB = self.srcC = set()
        self.states = 1
        self.dpp = op.endswith('_dpp')
        self.wide_store = set()
        self.dma = False
        R = [regs_of(o) for o in ops]
        if op.startswith('v_mfma'):
            self.cls = 'sgemm' if op.endswith('_f32') and 'x4_f32' in op else 'xdl'
            self.wr = R[0]
            self.srcA, self.srcB, self.srcC = R[1], R[2], R[3]
            self.rd = R[1] | R[2] | R[3]
        elif op.startswith('v_'):
            self.cls = 'valu'
            if op.startswith('v_permlane') and 'swap' in op:
                self.wr = R[0] | R[1]
                self.rd = R[0] | R[1]
            else:
                self.wr = set(R[0])
                k = 1
                if op.startswith(('v_add_co', 'v_sub_co', 'v_addc_co')):
                    self.wr |= R[1]
                    k = 2
                for r in R[k:]:
                    self.rd |= r
                if op.startswith(('v_fmac', 'v_mac')) or self.dpp:
                    self.rd |= R[0]
        elif op.startswith('ds_'):
            self.cls = 'ds'
            if op.startswith(('ds_read', 'ds_bpermute')):
                self.wr = R[0]
                for r in R[1:]:
                    self.rd |= r
            else:
                for r in R:
                    self.rd |= r
        elif op.startswith(('buffer_', 'global_')):
            self.cls = 'vmem'
            if op in ('buffer_inv', 'buffer_wbl2'):
                pass
            elif 'lds' in mods:
                self.dma = True
                for r in R:
                    self.rd |= r
                self.rd |= {('s', 'm0')}
            elif '_load' in op:
                self.wr = R[0]
                for r in R[1:]:
                    self.rd |= r
                if 'd16' in op:
                    self.rd |= R[0]
            else:
                for r in R:
                    self.rd |= r
                if op.endswith(('x4', 'x3')):
                    self.wide_store = R[0] if op.startswith('buffer') else R[1]
        elif op.startswith('s_'):
            self.cls = 'salu'
            if op == 's_nop':
                self.states = int(ops[0], 0) + 1
            elif op.startswith(('s_cmp', 's_waitcnt', 's_barrier', 's_cbranch', 's_branch', 's_endpgm', 's_sleep', 's_setprio')):
                for r in R:
                    self.rd |= r
            else:
                self.wr = R[0] if R else set()
                for r in R[1:]:
                    self.rd |= r
        else:
            raise ValueError('unknown op ' + text)


def vg(s):
    return {r for r in s if r[0] in 'va'}


def sg(s):
    return {r for r in s if r[0] == 's'}


class Asm:
    def __init__(self):
        self.lines = []
        self.hist = []
        self.vm_n = 0
        self.vm_done = 0
        self.lg_n = 0
        self.lg_done = 0
        self.pvm = {}
        self.plg = {}
        self.nnop = 0
        self.cold = []
        self._stack = []
        self.bg = []
        self.tok = {}
        self.credit = 0
        self.in_bg = False
        self.bg_on = True

    def raw(self, text):
        self.lines.append(text)

    def cold_begin(self):
        self._stack.append(self.lines)
        self.lines = []

    def cold_end(self):
        self.cold += self.lines
        self.lines = self._stack.pop()

    def comment(self, text):
        self.lines.append('    ; ' + text)

    def label(self, name):
        self.lines.append(name + ':')

    def _push(self, ins):
        self.lines.append('    ' + ins.text)
        self.hist.append(ins)
        if len(self.hist) > 24:
            self.hist.pop(0)

    def wait(self, vm=None, lg=None):
        parts = []
        if vm is not None and vm > self.vm_done:
            n = min(self.vm_n - vm, 63)
            parts.append(f'vmcnt({n})')
            self.vm_done = self.vm_n - n
        if lg is not None and lg > self.lg_done:
            while self.lg_n - lg < self.smem_out:
                self._push(Ins(self.dummy_ds))
                self.lg_n += 1
            n = min(self.lg_n - lg, 15)
            parts.append(f'lgkmcnt({n})')
            self.lg_done = self.lg_n - n
        if parts:
            self._push(Ins('s_waitcnt ' + ' '.join(parts)))

    def wait_all(self, vm=True, lg=True, force=False):
        parts = []
        if vm and (force or self.vm_done < self.vm_n):
            parts.append('vmcnt(0)')
            self.vm_done = self.vm_n
        if lg and not force and self.smem_out:
            self.wait(lg=self.lg_n)
        elif lg and (force or self.lg_done < self.lg_n):
            parts.append('lgkmcnt(0)')
            self.lg_done = self.lg_n
            self.smem_out = 0
        if parts:
            self._push(Ins('s_waitcnt ' + ' '.join(parts)))

    def _need(self, ins):
        need = 0
        dist = 0
        mf = ins.cls in ('xdl', 'sgemm')
        rdv, wrv = vg(ins.rd), vg(ins.wr)
        for p in reversed(self.hist):
            req = 0
            pw = vg(p.wr)
            if p.cls == 'valu':
                if p.op.startswith('v_dot') and ins.op != p.op and pw & (rdv | wrv):
                    req = max(req, 3)
                if mf and pw & rdv:
                    req = max(req, 2)
                if ins.cls == 'valu':
                    if p.op.replace('_e32', '').replace('_e64', '') in TRANS and pw & rdv:
                        req = max(req, 1)
                    if ins.op.startswith(('v_readfirstlane', 'v_readlane')) and pw & rdv:
                        req = max(req, 1)
                    if (ins.dpp or ins.op.startswith('v_permlane')) and pw & rdv:
                        req = max(req, 2)
                    if sg(p.wr) & sg(ins.rd):
                        req = max(req, 2)
                if ins.cls == 'vmem' and sg(p.wr) & sg(ins.rd):
                    req = max(req, 5)
                if ins.cls == 'salu' and sg(p.wr) & sg(ins.rd):
                    req = max(req, 1)
            elif p.cls in ('xdl', 'sgemm'):
                big = '32x32' in p.op
                lat = (12 if big else 8) if p.cls == 'xdl' else 10
                if mf:
                    if pw & (vg(ins.srcA) | vg(ins.srcB)):
                        req = max(req, lat)
                    c = vg(ins.srcC)
                    if pw & c and not (pw == c and p.cls == ins.cls):
                        req = max(req, lat)
                    if pw & wrv and not (pw == c and p.cls == ins.cls):
                        req = max(req, lat)
                elif ins.cls in ('valu', 'vmem', 'ds'):
                    if pw & (rdv | wrv):
                        req = max(req, lat)
                    if ins.cls == 'valu' and p.cls == 'xdl' and vg(p.srcC) & wrv:
                        req = max(req, 7 if big else 3)
            elif p.cls == 'salu':
                if ins.dma and ('s', 'm0') in p.wr:
                    req = max(req, 1)
            elif p.cls == 'vmem':
                if p.wide_store & wrv:
                    req = max(req, 2)
            need = max(need, req - dist)
            dist += p.states
            if dist >= 13:
                break
        return need

    def __call__(self, text):
        if text.startswith('?'):
            self.nskip += 1
            self._push(Ins(f's_cbranch_vccnz L_skip{self.nskip}'))
            self._push(Ins(text[1:]))
            self.hist[-1].states = 0
            self.lines.append(f'L_skip{self.nskip}:')
            return self.vm_n
        ins = Ins(text)
        if ins.cls == 'salu':
            uses = ins.op.startswith(('s_cselect', 's_cbranch_scc', 's_addc'))
            sets = ins.op.startswith(('s_cmp', 's_add', 's_sub', 's_and', 's_or', 's_xor', 's_lsh', 's_min', 's_max', 's_not', 's_bfe'))
            if uses:
                assert self.scc_owner == self.in_bg, 'SCC clobbered by the other stream: ' + text
            if sets:
                if not self.in_bg:
                    self.bg_settle()
                self.scc_owner = self.in_bg
        touched = vg(ins.rd) | vg(ins.wr)
        v = max([self.pvm.get(r, 0) for r in touched], default=0)
        l = max([self.plg.get(r, 0) for r in touched], default=0)
        self.wait(vm=v or None, lg=l or None)
        n = self._need(ins)
        if n > 0:
            self.nnop += n
            self._push(Ins(f's_nop {n - 1}'))
        self._push(ins)
        ret = None
        if ins.cls == 'vmem':
            self.vm_n += 1
            for r in ins.wr:
                self.pvm[r] = self.vm_n
            ret = self.vm_n
        if ins.cls == 'ds':
            self.lg_n += 1
            for r in ins.wr:
                self.plg[r] = self.lg_n
            ret = self.lg_n
        self._tick(ins)
        return ret

    def bg_add(self, key, fn, gap):
        self.bg.append((key, fn, gap))

    def _bg_pop(self):
        key, fn, gap = self.bg.pop(0)
        self.in_bg = True
        for ins in fn:
            t = self(ins)
        self.in_bg = False
        if key is not None:
            self.tok[key] = t
        self.credit = max(min(self.credit, 0), -31) + gap

    def bg_step(self):
        if not self.bg:
            return False
        key, fn, gap = self.bg[0]
        if len(fn) > 1:
            self.in_bg = True
            self(fn[0])
            self.in_bg = False
            self.bg[0] = (key, fn[1:], gap)
            return True
        if self.credit <= 0:
            self._bg_pop()
            return True
        return False

    def bg_settle(self):
        for i, (key, fn, gap) in enumerate(self.bg):
            if fn[0].startswith('s_cselect'):
                self.in_bg = True
                self(fn[0])
                self.in_bg = False
                self.bg[i] = (key, fn[1:], gap)

    def bg_flush(self, key=None):
        if key is not None and not any(k == key for k, _, _ in self.bg):
            return
        while self.bg:
            k = self.bg[0][0]
            self._bg_pop()
            if key is not None and k == key:
                break

    def need(self, key):
        self.bg_flush(key)
        self.wait(vm=self.tok[key])

    def _tick(self, ins):
        if self.in_bg:
            return
        c = {'xdl': 16, 'sgemm': 32}.get(ins.cls, 4)
        if '32x32' in ins.op:
            c = 32
        if ins.op.replace('_e32', '').replace('_e64', '') in TRANS:
            c = 8
        if ins.cls == 'ds' and self.ds_free:
            c = 0
        self.credit -= c
        if self.bg_on and self.bg and self.credit <= 0 and ins.cls in ('valu', 'xdl', 'sgemm', 'ds') and not sg(ins.wr):
            self._bg_pop()

    ds_free = False
    nskip = 0
    smem_out = 0
    dummy_ds = None
    scc_owner = False

    def many(self, text):
        for line in text.strip().split('\n'):
            line = line.strip()
            if line and not line.startswith(';'):
                self(line)

    def merge(self, main, fill, per=1, every=1):
        fill = list(fill)
        for i, t in enumerate(main):
            self(t)
            if (i + 1) % every == 0:
                for _ in range(per):
                    if fill:
                        self(fill.pop(0))
        for t in fill:
            self(t)

    def pad(self, n=12):
        self._push(Ins(f's_nop {n - 1}'))

    def text(self):
        return '\n'.join(self.lines) + '\n'


class Regs:
    def __init__(self, kind, start, end):
        self.kind, self.next, self.end = kind, start, end
        self.hi = start

    def alloc(self, n=1, align=None):
        if align is None:
            align = 2 if n > 1 else 1
        self.next = (self.next + align - 1) // align * align
        r = self.next
        self.next += n
        assert self.next <= self.end, f'out of {self.kind} regs'
        self.hi = max(self.hi, self.next)
        return r

    def mark(self):
        return self.next

    def reset(self, m):
        self.next = m


def v(i, n=1):
    return f'v{i}' if n == 1 else f'v[{i}:{i + n - 1}]'


def a(i, n=1):
    return f'a{i}' if n == 1 else f'a[{i}:{i + n - 1}]'


def s(i, n=1):
    return f's{i}' if n == 1 else f's[{i}:{i + n - 1}]'
```

```python
import sys, os, math, struct
sys.path.insert(0, os.path.dirname(os.path.abspath(__file__)))
from emit import Asm, Regs, v, a, s

NAME = 'parallel_sum__sliding_local_dilated__mixer_token_mlp__prompt'

DEF = dict(
    stamps=0,
    probe=-1,
    cyc=0,
    gpub=11,
    gfq=13,
    gck=112,
    xdel=3,
    fqmax=2,
    iwarm=1,
    w1late=0,
    oord=1,
    t1x=1,
    hskip=1,
    wopre=1,
    w2pos=0,
    rsl=1,
    rt=1,
    sl1=4,
    sl2=8,
    sl3=8,
    hspec=0,
    jitter=0,
    outsc=0,
    flazy=1,
    psp=0,
    ggap=52,
    gpause=0,
    fpause=0,
    upause=0,
    gflush=0,
    hsc=1,
    hwarm=0,
    cglc=0,
    wfq=5,
    nt1=3,
    align=0,
    rpos=1,
    gord=1,
    ntw=2,
    ph=3,
    hinit=3,
    hgap=56,
    hpos=5,
    qrd=0,
    ureq=10,
    wck=58,
    ock=80,
    osig=3,
    hold=0,
    df=6,
    w1pre=4,
    w1mid=4,
    w1flag=28,
    w1chk=4,
    hlead=1,
    qrot=0,
    ppub=11,
    pfq=14,
    pck=118,
    ofq=9,
    pu=3,
    xrot=2,
    qg1=56,
    ust=2,
    qgap=50,
    hsleep=4,
    rmask=7,
    pread=0,
    xp=0,
    ogap=48,
    fgap=60,
    agap=56,
    uo=2,
    hrep=8,
    touch=2,
    codepf=1,
    spin=20000,
)


def f32(x):
    return '0x%08x' % struct.unpack('<I', struct.pack('<f', x))[0]


H_OFF = 0
U_OFF = 2 << 20
O_OFF = 4 << 20
RS_OFF = 6 << 20
CN_OFF = RS_OFF + 0x10000
GF_OFF = RS_OFF + 0x20000
PF_OFF = RS_OFF + 0x30000
WP_OFF = 8 << 20
FL_OFF = 10 << 20
HF_OFF = FL_OFF
ST_OFF = 11 << 20
P_OFF = 12 << 20
G_OFF = 16 << 20
WS_SIZE = 20 << 20
OOB = 0x10000000

LDS_SIZE = 163840
SLOT = 16384
NSLOT = 10
PH_B = 9 * SLOT
PR_B = PH_B + 8192
EPI_B = 2 * SLOT
EXC_B = 2 * SLOT

X, WQ, WO, W1, W2, WS, OUT, B1, B2, DBG = 8, 12, 16, 20, 24, 28, 32, 36, 40, 44
sGsW, sGsH = 0, 1
sKh, sNh, sT2, sT3 = 4, 5, 6, 7
sW, sK32, sJ, sFT, sD, sS, sD2, sG1, sF, sNon, sM, sM3, sCnt, sBg = range(48, 62)
sXs, sWs, sGs2, sGsU, sRo, sUst, sUfl, sOfl = range(62, 70)
sPar, sCur0, sCur1, sInvd, sGc, sOne = 70, 72, 74, 76, 78, 80
sOs, sC1, sMh, sIdx = 82, 83, 100, 101
sOne1, sGfl, sUck, sOck = B1, B1 + 1, B1 + 2, B1 + 3
sChk, sWck = WQ + 2, WQ + 3
sZero = sMh
sR2 = sFT
sMw = X
sPfl = sG1
sStamp = 84


def srd(r):
    return s(r, 4)


def lanemask(fn):
    m = 0
    for l in range(64):
        if fn(l):
            m |= 1 << l
    return m


def build(**kw):
    P = dict(DEF)
    P.update(kw)
    assert P['wck'] <= 64 and P['df'] == 6
    assert P['rpos'] < 2
    e = Asm()
    V = Regs('v', 1, 256)
    nst = [0]
    npr = [0]
    ntr = [0]

    def stamp(name='', sets=(1,)):
        if P['probe'] >= 0 and 1 in sets:
            npr[0] += 1
            if npr[0] == P['probe']:
                e.comment(f'probe {name}')
                e(f's_memrealtime s[{sT2}:{sT3}]')
                e.wait_all(vm=False, lg=True, force=True)
                e(f's_mov_b32 s{sStamp}, s{sT2}')
        if P['jitter']:
            k = ntr[0]
            ntr[0] += 1
            e(f's_mul_i32 s{sStamp}, s{sStamp}, 1664525')
            e(f's_add_u32 s{sStamp}, s{sStamp}, 1013904223')
            e(f's_lshr_b32 s{sStamp + 1}, s{sStamp}, {32 - P["jitter"]}')
            e(f's_cbranch_scc1 L_jit{k}')
            e(f's_sleep {(8, 40, 100)[k % 3]}')
            e.label(f'L_jit{k}')
            return
        if P['stamps'] == 20:
            if sets in ((1,), (1, 4), (4,), (1, 2, 4), (1, 2, 9), (1, 2, 5, 9), (9, 20), (20,), (1, 5, 7), (1, 3), (1, 3, 8), (3, 20), (1, 5, 6, 7)):
                k = ntr[0]
                ntr[0] += 1
                p = 86 + 2 * (k % 3)
                if k >= 2:
                    q = 86 + 2 * ((k - 2) % 3)
                    e.raw(f'    v_writelane_b32 v{254 + (k - 2) // 64}, s{q}, {(k - 2) % 64}')
                e.raw(f'    s_memtime s[{p}:{p + 1}]')
            return
        if P['stamps'] not in sets:
            return
        k = nst[0]
        nst[0] += 1
        assert k < 13
        if k > 1:
            e(f's_mov_b32 s{sStamp + k - 1}, s{WQ}')
        e(f'{"s_memtime" if P["cyc"] else "s_memrealtime"} s[{WQ}:{WQ + 1}]')

    def setmask(r, m):
        return [f's_mov_b32 s{r}, 0x{m & 0xffffffff:08x}', f's_mov_b32 s{r + 1}, 0x{m >> 32:08x}']

    def run(lst):
        for t in lst:
            e.many(t)

    def merge(main, fill, per=1, every=1):
        fill = list(fill)
        for i, t in enumerate(main):
            e.many(t)
            if (i + 1) % every == 0:
                for _ in range(per):
                    if fill:
                        e.many(fill.pop(0))
        return fill

    def bg_dma(key, pre, sr, voff, soff, off, gap, mod='', half=False):
        o = f' offset:{off}' if off else ''
        e.bg_add(key, list(pre) + [('?' if half else '') + f'buffer_load_dwordx4 v{voff}, {srd(sr)}, s{soff} offen{o}{mod} lds'], gap)

    def bg_ins(key, pre, ins, gap):
        e.bg_add(key, list(pre) + [ins], gap)

    def mf16(d, A, B, c=None):
        return f'v_mfma_f32_16x16x32_bf16 {v(d, 4)}, {A}, {B}, {v(d, 4) if c is None else c}'

    def mf32(d, A, B, c=None):
        return f'v_mfma_f32_32x32x16_bf16 {v(d, 16)}, {A}, {B}, {v(d, 16) if c is None else c}'

    def mfs(d, A, B):
        return f'v_mfma_f32_16x16x4_f32 {v(d, 4)}, v{A}, v{B}, 0'

    npoll = [0]

    def flag_load(voff, vdst, n=1):
        return f'buffer_load_dword{"x2" if n == 2 else ""} {v(vdst, n)}, v{voff}, {srd(WS)}, 0 offen sc1'

    def flag_check(voff, vdst, sleep, n=1):
        k = npoll[0]
        npoll[0] += 1
        on, e.bg_on = e.bg_on, False
        e.bg_settle()
        cmp_ = [f'v_cmp_ne_u32 vcc, s{sNon}, v{vdst}'] if n == 1 else \
               [f'v_xor_b32 v{vdst}, s{sNon}, v{vdst}', f'v_xor_b32 v{vdst + 1}, s{sNon}, v{vdst + 1}',
                f'v_or_b32 v{vdst}, v{vdst}, v{vdst + 1}', f'v_cmp_ne_u32 vcc, 0, v{vdst}']
        run(cmp_)
        e(f's_cbranch_vccnz L_pollin{k}')
        e.cold_begin()
        e.label(f'L_pollin{k}')
        e.raw(f'    s_mov_b32 s{sCnt}, 0')
        e.label(f'L_poll{k}')
        e.raw(f'    s_sleep {sleep}')
        e.raw('    ' + flag_load(voff, vdst, n))
        e.raw(f'    s_add_u32 s{sCnt}, s{sCnt}, 1')
        e.raw(f'    s_waitcnt vmcnt(0)')
        for t in cmp_:
            e.raw('    ' + t)
        e.raw(f'    s_cbranch_vccz L_pollok{k}')
        e.raw(f'    s_cmp_lt_u32 s{sCnt}, {P["spin"]}')
        e.raw(f'    s_cbranch_scc1 L_poll{k}')
        e.raw(f'    s_branch L_pollok{k}')
        e.cold_end()
        e.label(f'L_pollok{k}')
        e.bg_on = on

    nsg = [0]

    def signal(soff, wg, base=WS):
        k = nsg[0]
        nsg[0] += 1
        if wg:
            e(f's_cmp_lg_u32 s{sW}, 0')
            e(f's_cbranch_scc1 L_sig{k}')
        e(f's_atomic_add s{sOne1}, s[{base}:{base + 1}], s{soff}')
        if wg:
            e.label(f'L_sig{k}')
        e.smem_out += 1

    def cnt_req(soff, base=WS):
        e(f's_load_dword s{sChk}, s[{base}:{base + 1}], s{soff}' + (' glc' if P['cglc'] else ''))
        e.smem_out += 1

    def cnt_check(soff, target, sleep, base=WS, unless0=None, few=False):
        k = npoll[0]
        npoll[0] += 1
        e.wait_all(vm=False, lg=True, force=True)
        e(f's_cmp_ge_u32 s{sChk}, {target}')
        e(f's_cbranch_scc0 L_pollin{k}')
        e.cold_begin()
        e.label(f'L_pollin{k}')
        if unless0 is not None:
            e.raw(f'    s_cmp_eq_u32 s{unless0}, 0')
            e.raw(f'    s_cbranch_scc1 L_pollok{k}')
        e.raw(f'    s_mov_b32 s{sCnt}, 0')
        if P['rt'] & 1:
            e.raw(f'    s_branch L_poll{k}a')
        e.label(f'L_poll{k}')
        e.raw(f'    s_sleep {sleep}')
        e.label(f'L_poll{k}a')
        if P['rt'] & 2 and few:
            e.raw(f'    s_load_dword s{sChk}, s[{base}:{base + 1}], s{soff} glc')
            e.raw(f'    s_add_u32 s{sCnt}, s{sCnt}, 1')
            e.raw(f'    s_waitcnt lgkmcnt(0)')
        else:
            e.raw(f'    buffer_load_dword v{vFv}, off, {srd(base)}, s{soff} sc1')
            e.raw(f'    s_add_u32 s{sCnt}, s{sCnt}, 1')
            e.raw(f'    s_waitcnt vmcnt(0)')
            e.raw(f'    v_readfirstlane_b32 s{sChk}, v{vFv}')
            e.raw(f'    s_nop 0')
        e.raw(f'    s_cmp_ge_u32 s{sChk}, {target}')
        e.raw(f'    s_cbranch_scc1 L_pollok{k}')
        e.raw(f'    s_cmp_lt_u32 s{sCnt}, {P["spin"]}')
        e.raw(f'    s_cbranch_scc1 L_poll{k}')
        e.raw(f'    s_branch L_pollok{k}')
        e.cold_end()
        e.label(f'L_pollok{k}')

    def wrap(r, step, n):
        return [f's_add_u32 s{r}, s{r}, {step}', f's_cmp_eq_u32 s{r}, {step * n}', f's_cselect_b32 s{r}, 0, s{r}']

    FORD = [7, 0, 1, 2, 3, 4, 5, 6, 8, 9]

    def slot_of(q):
        k = q % NSLOT
        if q >= 30:
            k = FORD.index(k)
        if q >= 20:
            k = (0, 1, 4, 5, 2, 3, 6, 7, 8, 9)[k]
        return k * SLOT

    def pop(n):
        for _ in range(n):
            if e.bg:
                e._bg_pop()

    def publish(tok, soff):
        e.wait(vm=tok)
        return e(f'buffer_store_dword v{vNon}, v{vFl}, {srd(WS)}, s{soff} offen sc1')

    vLane, vL15, vG, vL16, vR8, vC8, vR4, vC4, vHi, vL31, vFl, vNon = [V.alloc() for _ in range(12)]
    t0, t1, t2, t3 = [V.alloc() for _ in range(4)]
    vFv = V.alloc(2)
    vFoH, vPst, vGs2, vGst, vDum = [V.alloc() for _ in range(5)]
    vCa = [V.alloc(), V.alloc()]
    vAs = [[V.alloc(), V.alloc()], [V.alloc(), V.alloc()]]
    e.dummy_ds = f'ds_read_b32 v{vDum}, v{vL16}'
    vPat = [[V.alloc() for _ in range(4)] for _ in range(3)]
    vPatW = [[V.alloc(), V.alloc()] for _ in range(2)]
    vOr = [[V.alloc(), V.alloc()] for _ in range(3)]
    vLin = [vL16, V.alloc(), V.alloc()]
    vD1 = [V.alloc() for _ in range(4)]
    vD2 = [V.alloc() for _ in range(4)]
    vDo = [V.alloc() for _ in range(2)]
    vOd = [V.alloc() for _ in range(2)]
    vXd = [V.alloc() for _ in range(3)]
    vXr = [[V.alloc(), V.alloc()] for _ in range(3)]
    vRs, vRsa = V.alloc(), V.alloc()
    vHo, vUo, vWp, vEx, vBa, vSw, vNeg = [V.alloc() for _ in range(7)]
    vOo = [V.alloc(), V.alloc()]
    vEw = [V.alloc() for _ in range(2)]
    vEr = [V.alloc() for _ in range(4)]
    vBo = [V.alloc(), V.alloc()]
    vXo = [V.alloc(4), V.alloc(4)]
    vMk = V.alloc(4)
    vC0 = V.alloc(2)
    vSt = [V.alloc(4), V.alloc(4)]
    NF = 8
    vFr = [V.alloc(4) for _ in range(NF)]
    vAcc = [V.alloc(16), V.alloc(16)]
    vBig = V.alloc(72)
    vE = vBig

    e('s_cmp_ge_u32 s2, 256')
    e('s_cbranch_scc1 L_end')
    for r, off in ((X, 0), (W1, 32), (WS, 80), (DBG, 72), (WQ, 8), (WO, 16), (W2, 48), (OUT, 64), (B1, 40), (B2, 56)):
        e(f's_load_dwordx2 {s(r, 2)}, s[0:1], {off}')
    sClk = 78
    e(f's_memrealtime s[{sClk}:{sClk + 1}]')
    if P['codepf']:
        e(f's_getpc_b64 s[6:7]')
        e.label('L_pc')
        e(f's_and_b32 s3, s2, 0xf8')
        e(f'v_lshrrev_b32 v{t0}, 5, v0')
        e(f'v_add_lshl_u32 v{t0}, s3, v{t0}, 7')
        e(f'v_min_u32 v{t0}, L_last-L_pc, v{t0}')
        e(f'global_load_dword v{vFv}, v{t0}, s[6:7]')
    vX = vBig
    vF = vBig + 8
    vG2 = vBig + 24
    vAB = vBig + 40
    vS_, vQ_, vT_, vU_ = vBig + 44, vBig + 45, vBig + 46, vBig + 47
    vLw, vLh, vLx, vHs = vBig + 48, vBig + 49, vBig + 50, vBig + 51
    tp = vBig + 52
    vFr8, vLr, vRo = vBig + 54, vBig + 55, vBig + 56
    sHrd = sC1
    e.many(f"""
        v_lshrrev_b32 v{t0}, 6, v0
        v_and_b32 v{vL31}, 31, v0
        v_readfirstlane_b32 s{sW}, v{t0}
        v_bfe_u32 v{vHi}, v0, 5, 1
        v_mul_u32_u24 v{t1}, 896, v{vHi}
        v_lshl_add_u32 v{t1}, v{vL31}, 4, v{t1}
        v_cmp_gt_u32 vcc, 28, v{vL31}
        v_mov_b32 v{t2}, {OOB}
        s_mov_b32 s{X + 2}, {2048 * 896}
        s_mov_b32 s{X + 3}, 0x20000
        v_cndmask_b32 v{t1}, v{t2}, v{t1}, vcc
        s_lshr_b32 s{sKh}, s{sW}, 1
        s_and_b32 s{sNh}, s{sW}, 1
        s_and_b32 s3, s2, 0xfe
        s_add_u32 s3, s3, s{sKh}
        s_lshl_b32 s3, s3, 1
        s_and_b32 s{sCnt}, s2, 1
        s_add_u32 s3, s3, s{sCnt}
        s_lshl_b32 s3, s3, 1
        s_add_u32 s3, s3, s{sNh}
        s_mul_i32 s3, s3, {2 * 896}
    """)
    e.wait_all(vm=False, lg=True, force=True)
    if P['stamps'] or P['probe'] == 98:
        e(f's_memtime s[0:1]')
        e.wait_all(vm=False, lg=True, force=True)
        e(f's_mov_b32 s{sStamp + 13}, s0')
    e(f'buffer_load_dwordx4 {v(vX, 4)}, v{t1}, {srd(X)}, s3 offen')
    e(f'buffer_load_dwordx4 {v(vX + 4, 4)}, v{t1}, {srd(X)}, s3 offen offset:448')
    if P['stamps'] or P['probe'] >= 0:
        e(f's_mov_b32 s{sStamp}, s{sClk}')
        nst[0] = 1
    if P['jitter']:
        e(f's_lshl_b32 s3, s2, 2')
        e(f's_add_u32 s3, s3, s{sW}')
        e(f's_mul_i32 s3, s3, 0x9e3779b1')
        e(f's_add_u32 s{sStamp}, s3, s{sClk}')
    sPair, sOdd, sXcd = sT2, sT3, sBg
    e.many(f"""
        v_and_b32 v{vLane}, 63, v0
        s_mov_b32 s{DBG + 2}, 256
        s_mov_b32 s{DBG + 3}, 0x20000
        s_lshl_b32 s3, s{sW}, 8
        s_add_u32 s3, s3, s2
        s_cmp_lt_u32 s3, 8
        s_cselect_b32 s3, 0, {OOB}
        s_or_b32 s{sClk}, s{sClk}, 1
        v_mov_b32 v{tp}, s{sClk}
        v_mov_b32 v{tp + 1}, 0
        v_lshlrev_b32 v{vFl}, 25, v{vLane}
        buffer_atomic_cmpswap {v(tp, 2)}, v{vFl}, {srd(DBG)}, s3 offen sc1
        s_bfe_u32 s{sPair}, s2, 0x20001
        s_and_b32 s{sOdd}, s2, 1
        s_and_b32 s{sXcd}, s2, 7
        s_lshr_b32 s{sIdx}, s2, 3
        s_mul_i32 s{sD}, s{sOdd}, 25
        s_add_u32 s{sD}, s{sD}, s{sIdx}
        s_mul_i32 s{sFT}, s{sD}, 37
        s_lshr_b32 s{sFT}, s{sFT}, 8
        s_mul_i32 s3, s{sFT}, 7
        s_sub_u32 s{sD}, s{sD}, s3
    """)
    e.many(f"""
        s_and_b32 s3, s{sPair}, 1
        s_mul_i32 s3, s3, 6
        s_add_u32 s{sFT}, s{sFT}, s3
        s_add_u32 s{sFT}, s{sFT}, 1
        s_add_u32 s3, s3, s{sFT}
        s_cmp_eq_u32 s3, 7
        s_cselect_b32 s{sFT}, 0, s{sFT}
        s_lshr_b32 s{sM3}, s{sPair}, 1
        s_lshl_b32 s{sFT}, s{sFT}, 1
        s_add_u32 s{sFT}, s{sFT}, s{sM3}
        s_max_u32 s{sCnt}, s{sIdx}, 25
        s_sub_u32 s{sCnt}, s{sCnt}, 25
        s_add_u32 s3, s{sIdx}, s{sOdd}
        s_cmp_lt_u32 s3, 25
        s_cselect_b32 s{sG1}, 1, 0
        s_cselect_b32 s{sD}, s{sD}, s{sCnt}
        s_mov_b32 s{W1 + 2}, {2048 * 3584}
        s_mov_b32 s{W1 + 3}, 0x20000
        s_lshl_b32 s3, s{sD}, 1
        s_sub_u32 s{sCnt}, s3, 7
        s_cmp_ge_u32 s3, 7
        s_cselect_b32 s3, s{sCnt}, s3
        s_and_b32 s3, s3, {P['rmask']}
        s_mul_i32 s{sCnt}, s{sXcd}, {P['xrot']}
        s_add_u32 s3, s3, s{sCnt}
        s_and_b32 s3, s3, 7
        s_mul_i32 s{sGsW}, s3, {128 * 3584}
        s_lshl_b32 s{sGsH}, s3, 13
        s_lshl_b32 s{sM}, s{sW}, 12
        v_lshrrev_b32 v{vG}, 4, v{vLane}
        v_lshrrev_b32 v{vR8}, 3, v{vLane}
        v_and_b32 v{vC8}, 7, v{vLane}
        v_lshlrev_b32 v{t1}, 1, v{vG}
        v_xor_b32 v{t1}, v{t1}, v{vC8}
        v_lshlrev_b32 v{vSw}, 4, v{t1}
        s_cmp_eq_u32 s{sG1}, 0
        s_cbranch_scc1 L_nog1
    """)
    save0 = (e.vm_n, e.vm_done, e.lg_n, e.lg_done, dict(e.pvm), dict(e.plg), dict(e.tok))
    e.many(f"""
        v_mul_u32_u24 v{t1}, 3584, v{vR8}
        s_lshl_b32 s3, s{sM3}, 5
        s_add_u32 s3, s3, s{sW}
        s_mul_i32 s3, s3, {32 * 3584}
        s_lshl_b32 s{sCnt}, s{sFT}, 7
        s_add_u32 s3, s3, s{sCnt}
        v_add3_u32 v{vD1[0]}, v{t1}, v{vSw}, s3
        v_add_u32 v{vD1[1]}, {16 * 3584 - 1024}, v{vD1[0]}
        v_add_u32 v{vD1[2]}, {8 * 3584 - 2048}, v{vD1[0]}
        v_add_u32 v{vD1[3]}, {3 * (8 * 3584 - 1024)}, v{vD1[0]}
    """)

    def w1_dma(q, gap):
        for k in range(4):
            pre = [f's_add_u32 m0, s{sM}, {slot_of(q)}'] + wrap(sGsW, 128 * 3584, 8) * (0 if P['xp'] & 8192 else ({0: 0} if P['gord'] else {8: 0, 0: 0, 9: 2}).get(q, 1)) if k == 0 else []
            if q in ((0, 8) if P['gord'] else (0, 9)):
                pre = pre + [f'v_xor_b32 v{vD1[k]}, 128, v{vD1[k]}']
            bg_dma(('s', q, k), pre, W1, vD1[k], sGsW, k * 1024, gap)

    vB1 = vBig + 64
    e.many(f"""
        s_mov_b32 s{B1 + 2}, 3584
        s_mov_b32 s{B1 + 3}, 0x20000
        v_lshlrev_b32 v{t0}, 3, v{vG}
        s_lshl_b32 s3, s{sFT}, 1
        s_add_u32 s3, s3, s{sKh}
        s_lshl_b32 s3, s3, 6
    """)
    for j in range(2):
        e(f'buffer_load_dwordx2 {v(vB1 + 2 * j, 2)}, v{t0}, {srd(B1)}, s3 offen offset:{32 * j}')
    e.bg_on = False
    for q in (range(9) if P['gord'] else (8, 0, 1, 2, 3, 4, 5, 6, 7)):
        w1_dma(q, 64)
    if P['w1late'] == 0:
        pop(P['w1pre'])
    sHs0, sHs1, sHfl, sEps, sInv, sOnes = 70, 71, 74, 75, 76, 77
    sRs, sHf2 = 72, 73
    def res_loads():
        for q_ in range(2):
            e(f'buffer_load_dwordx4 {v(vXo[q_], 4)}, v{vOo[q_]}, {srd(X)}, 0 offen')
            e(f'buffer_load_ushort v{vBo[q_]}, v{vBa}, {srd(B2)}, 0 offen offset:{16 * q_}')

    def p0_body(sets):
        e.many(f"""
            s_mul_i32 s{sS}, s{sIdx}, 37
            s_lshr_b32 s{sS}, s{sS}, 8
            s_mul_i32 s{sD2}, s{sS}, 7
            s_sub_u32 s{sD2}, s{sIdx}, s{sD2}
            s_and_b32 s{sS}, s{sS}, 3
            s_lshl_b32 s3, s{sPair}, 2
            s_add_u32 s{sS}, s{sS}, s3
            s_lshl_b32 s{sS}, s{sS}, 1
            s_add_u32 s{sS}, s{sS}, s{sOdd}
        """)
        e.many(f"""
            s_mov_b32 s{B2 + 2}, 4096
            s_mov_b32 s{B2 + 3}, 0x20000
            s_lshl_b32 s3, s{sS}, 2
            s_add_u32 s3, s3, s{sW}
            s_lshl_b32 s{sCnt}, s3, 5
            v_lshl_add_u32 v{vBa}, v{vR8}, 1, s{sCnt}
            s_mul_i32 s3, s3, {16 * 896}
            s_lshl_b32 s{sCnt}, s{sD2}, 7
            s_add_u32 s3, s3, s{sCnt}
            v_mul_u32_u24 v{t1}, 896, v{vR8}
            v_lshl_add_u32 v{t1}, v{vC8}, 4, v{t1}
            v_add_u32 v{vOo[0]}, s3, v{t1}
            v_add_u32 v{vOo[1]}, {8 * 896}, v{vOo[0]}
        """)
        if P['rpos'] == 0:
            res_loads()
        if P['w1late'] == 1:
            pop(P['w1pre'])
        e.many(f"""
            s_cmp_lt_u32 s{sIdx}, 28
            s_cselect_b32 s{sF}, 1, 0
            s_lshl_b32 s{sJ}, s{sOdd}, 3
            s_and_b32 s3, s{sIdx}, 7
            s_add_u32 s{sJ}, s{sJ}, s3
            s_lshr_b32 s{sCnt}, s{sIdx}, 3
            s_lshl_b32 s{sK32}, s{sPair}, 2
            s_add_u32 s{sK32}, s{sK32}, s{sCnt}
            s_lshl_b32 s{sK32}, s{sK32}, 2
            s_add_u32 s{sK32}, s{sK32}, s{sW}
            s_mul_i32 s{sCnt}, s{sCnt}, {2 * P['qrot']}
            s_add_u32 s3, s3, s{sCnt}
            s_sub_u32 s{sCnt}, s3, 7
            s_cmp_ge_u32 s3, 7
            s_cselect_b32 s3, s{sCnt}, s3
            s_lshl_b32 s{sXs}, s3, 18
            s_mul_i32 s{sWs}, s3, 12288
            s_mov_b32 s{WS + 2}, {WS_SIZE}
            s_mov_b32 s{WS + 3}, 0x20000
            s_mov_b32 s{sEps}, {f32(1e-5)}
            s_mov_b32 s{sInv}, {f32(1.0 / 448)}
            s_mov_b32 s{sOnes}, 0x3f803f80
            v_lshlrev_b32 v{vL16}, 4, v{vLane}
            v_bfe_u32 v{vR4}, v{vLane}, 2, 2
            v_and_b32 v{vC4}, 3, v{vLane}
            v_mul_u32_u24 v{t0}, 960, v{vHi}
            v_lshl_add_u32 v{t0}, v{vL31}, 4, v{t0}
            s_mul_i32 s3, s{sW}, 1920
            s_add_u32 s3, s3, {PH_B}
            v_add_u32 v{vLw}, s3, v{t0}
            v_mul_u32_u24 v{t0}, 960, v{vR4}
            v_lshl_add_u32 v{t0}, v{vG}, 5, v{t0}
            v_lshl_add_u32 v{t0}, v{vC4}, 3, v{t0}
            s_lshl_b32 s3, s{sW}, 8
            s_add_u32 s3, s3, {PH_B}
            v_add_u32 v{vLh}, s3, v{t0}
            s_lshl_b32 s3, s{sW}, 3
            s_add_u32 s3, s3, {PR_B}
            v_lshl_add_u32 v{vLx}, v{vHi}, 2, s3
            v_lshlrev_b32 v{vLr}, 2, v{vC8}
            v_and_b32 v{vL15}, 15, v{vLane}
            v_lshlrev_b32 v{vRo}, 14, v{vG}
            v_add_lshl_u32 v{vRo}, v{vRo}, v{vL15}, 2
            v_add_u32 v{vLr}, {PR_B}, v{vLr}
            v_lshlrev_b32 v{t0}, 17, v{vHi}
            v_lshl_add_u32 v{vHs}, v{vL31}, 4, v{t0}
            s_cmp_eq_u32 s{sW}, 3
            s_cselect_b32 s{sCnt}, {OOB}, 0
            s_lshl_b32 s{sHs0}, s{sW}, 10
            s_add_u32 s{sHs0}, s{sHs0}, s2
            s_lshl_b32 s{sHs0}, s{sHs0}, 9
            s_add_u32 s{sHs1}, s{sHs0}, 262144
            s_add_u32 s{sHs1}, s{sHs1}, s{sCnt}
            s_xor_b32 s{sCnt}, s{sCnt}, {OOB}
            s_lshl_b32 s{sRs}, s2, 7
            s_add_u32 s{sRs}, s{sRs}, s{sCnt}
            s_add_u32 s{sRs}, s{sRs}, {RS_OFF}
            s_lshr_b32 s{sHfl}, s2, 2
            s_lshl_b32 s{sHfl}, s{sHfl}, 5
            s_and_b32 s3, s2, 3
            s_add_u32 s{sHfl}, s{sHfl}, s3
            s_lshl_b32 s{sHfl}, s{sHfl}, 2
            s_add_u32 s{sHfl}, s{sHfl}, {HF_OFF}
            v_cmp_gt_u32 vcc, {P['hrep']}, v0
            v_lshlrev_b32 v{vFr8}, 13, v0
            v_mov_b32 v{t0}, {OOB}
            s_and_b32 s3, s2, {P['hrep'] - 1}
            s_lshl_b32 s3, s3, 13
            s_add_u32 s3, s3, {HF_OFF}
            v_lshrrev_b32 v{t1}, 2, v0
            v_lshl_add_u32 v{t1}, v{t1}, 7, s3
            v_lshl_add_u32 v{vFoH}, v{vC4}, 2, v{t1}
            v_cndmask_b32 v{vFr8}, v{t0}, v{vFr8}, vcc
            v_mov_b32 v{t3}, 0
        """)
        if P['hsc']:
            e(f's_lshl_b32 s3, s{sW}, 14')
            e(f's_add_u32 s{sHfl}, s{sHfl}, s3')
            e(f's_add_u32 s{sHf2}, s{sHfl}, 8192')
            if P['hwarm']:
                e(f's_and_b32 s{sZero}, s2, 3')
                e(f's_cbranch_scc1 L_nowarm{len(sets)}')
                e(f's_atomic_or s{sZero}, s[{WS}:{WS + 1}], s{sHfl}')
                e(f's_atomic_or s{sZero}, s[{WS}:{WS + 1}], s{sHf2}')
                e.label(f'L_nowarm{len(sets)}')
                e.smem_out = 2
        if P['pread'] and sets == (6,):
            e(flag_load(vFoH, vFv + 1))
        if P['w1late'] == 2:
            pop(P['w1pre'])
        for k in range(8):
            e(f'v_dot2_f32_bf16 v{vS_}, v{vX + k}, s{sOnes}, {"0" if k == 0 else "v%d" % vS_}')
            if k == 0:
                stamp('x landed', sets)
            e(f'v_dot2_f32_bf16 v{vQ_}, v{vX + k}, v{vX + k}, {"0" if k == 0 else "v%d" % vQ_}')
        unp = []
        for k in range(8):
            unp += [f'v_lshlrev_b32 v{vF + 2 * k}, 16, v{vX + k}', f'v_and_b32 v{vF + 2 * k + 1}, 0xffff0000, v{vX + k}']
        e(f'buffer_load_dword v{vNon}, v{t3}, {srd(DBG)}, 0 offen sc1')
        if P['w1late'] == 3:
            pop(P['w1pre'])
        run(unp[:2])
        unp = unp[2:]
        for ctl in ('quad_perm:[1,0,3,2]', 'quad_perm:[2,3,0,1]', 'row_half_mirror', 'row_mirror'):
            for r in (vS_, vQ_):
                e(f'v_add_f32_dpp v{r}, v{r}, v{r} {ctl} row_mask:0xf bank_mask:0xf')
            e(unp.pop(0))
        e(f'v_mov_b32 v{vT_}, v{vS_}')
        e(f'v_mov_b32 v{vU_}, v{vQ_}')
        e(unp.pop(0))
        e(f'v_permlane16_swap_b32 v{vS_}, v{vT_}')
        e(f'v_permlane16_swap_b32 v{vQ_}, v{vU_}')
        e.many(f"""
            v_add_f32 v{vS_}, v{vS_}, v{vT_}
            v_add_f32 v{vQ_}, v{vQ_}, v{vU_}
            v_mul_f32_e64 v{vS_}, -v{vS_}, s{sInv}
            v_mul_f32 v{vT_}, v{vS_}, v{vS_}
            v_fma_f32 v{vQ_}, v{vQ_}, s{sInv}, -v{vT_}
            v_max_f32 v{vQ_}, 0, v{vQ_}
            v_add_f32 v{vT_}, s{sEps}, v{vQ_}
            v_rsq_f32 v{vAB}, v{vT_}
        """)
        e(unp.pop(0))
        e.many(f"""
            v_mul_f32 v{vT_}, v{vAB}, v{vAB}
            v_fma_f32 v{vU_}, v{vT_}, v{vQ_}, s{sEps}
            v_rsq_f32 v{vT_}, v{vU_}
            v_mul_f32 v{vAB + 1}, v{vS_}, v{vAB}
            v_mul_f32 v{vAB + 2}, v{vAB}, v{vT_}
            v_mul_f32 v{vAB + 3}, v{vAB + 1}, v{vT_}
            v_mul_f32 v{vU_}, v{vU_}, v{vT_}
            ds_write_b32 v{vLx}, v{vU_}
        """)
        run(unp)

        def normalise(ab, base):
            for hf in range(2):
                for k in range(4 * hf, 4 * hf + 4):
                    e(f'v_pk_fma_f32 {v(vG2 + 2 * k, 2)}, {v(vF + 2 * k, 2)}, {v(ab, 2)}, {v(ab, 2)} op_sel:[0,0,1] op_sel_hi:[1,0,1]')
                for k in range(4 * hf, 4 * hf + 4):
                    e(f'v_cvt_pk_bf16_f32 v{vX + k}, v{vG2 + 2 * k}, v{vG2 + 2 * k + 1}')
                e(f'ds_write_b128 v{vLw}, {v(vX + 4 * hf, 4)} offset:{base + 448 * hf}')

        normalise(vAB + 2, 0)
        e.wait_all(vm=False, lg=True)
        e('s_barrier')
        for z in range(2):
            for h in range(2):
                e(f'ds_read_b64_tr_b16 {v(vSt[z] + 2 * h, 2)}, v{vLh} offset:{z * 128 + h * 3840}')
        e(f'ds_read_b32 v{vU_}, v{vLr}')
        for z in range(2):
            e(f'buffer_store_dwordx4 {v(vSt[z], 4)}, v{vHs}, {srd(WS)}, s{sHs0 + z} offen sc1')
        e(f'v_cmp_gt_u32 vcc, 16, v{vLane}')
        e(f'v_cndmask_b32 v{vU_}, 0, v{vU_}, vcc')
        tokH = e(f'buffer_store_dword v{vU_}, v{vRo}, {srd(WS)}, s{sRs} offen sc1')
        stamp('h stored', sets)
        return tokH

    tokH = p0_body((1, 4))

    pop(P['w1mid'])
    if P['iwarm']:
        e('s_branch L_anchor')
        e.raw('.p2align 12')
        e.label('L_anchor')

    setup = []
    for r, n in ((WO, 448 * 896), (W2, 1792 * 4096), (OUT, 2048 * 896)):
        setup.append(f's_mov_b32 s{r + 2}, {n}\ns_mov_b32 s{r + 3}, 0x20000')
    setup += f"""s_mov_b32 s{sOne1}, 1
        v_lshrrev_b32 v{t1}, 2, v{vLane}
        v_lshlrev_b32 v{t1}, 7, v{t1}
        v_lshl_add_u32 v{t1}, v{vC4}, 3, v{t1}
        v_and_b32 v{t2}, 3, v{vR8}
        v_lshl_add_u32 v{t1}, v{t2}, 5, v{t1}
        s_mul_i32 s3, s{sKh}, {8192 + 64}
        v_xor_b32 v{vPat[0][0]}, s3, v{t1}
        v_xor_b32 v{vPat[0][1]}, 32, v{vPat[0][0]}
        v_xor_b32 v{vPat[0][2]}, 64, v{vPat[0][0]}
        v_xor_b32 v{vPat[0][3]}, 96, v{vPat[0][0]}
        v_add_u32 v{vPat[1][0]}, 65536, v{vPat[0][0]}
        v_add_u32 v{vPat[1][1]}, 65536, v{vPat[0][1]}
        v_add_u32 v{vPat[1][2]}, 65536, v{vPat[0][2]}
        v_add_u32 v{vPat[1][3]}, 65536, v{vPat[0][3]}
        v_add_u32 v{vPat[2][0]}, 131072, v{vPat[0][0]}
        v_add_u32 v{vPat[2][1]}, 131072, v{vPat[0][1]}
        v_add_u32 v{vPat[2][2]}, 131072, v{vPat[0][2]}
        v_add_u32 v{vPat[2][3]}, 131072, v{vPat[0][3]}
        s_lshl_b32 s{sT2}, s{sD}, 1
        s_add_u32 s{sT2}, s{sT2}, s{sNh}
        s_lshl_b32 s3, s{sT2}, 1
        s_add_u32 s3, s3, s{sM3}
        s_lshl_b32 s3, s3, 4
        s_add_u32 s3, s3, s{sKh}
        s_lshl_b32 s3, s3, 12
        v_lshl_add_u32 v{vHo}, v{vG}, 8, v{vL16}
        v_add_u32 v{vHo}, s3, v{vHo}
        s_xor_b32 s{sGfl}, s{sFT}, 1
        s_lshl_b32 s{sGfl}, s{sGfl}, 3
        s_add_u32 s{sGfl}, s{sGfl}, s{sD}
        s_lshl_b32 s3, s{sGfl}, 14
        s_add_u32 s3, s3, s{sM}
        s_add_u32 s3, s3, {G_OFF + (OOB if P['xp'] & 1024 else 0)}
        v_add_u32 v{vGst}, s3, v{vL16}
        s_lshl_b32 s{sGfl}, s{sGfl}, 5
        s_add_u32 s{sGfl}, s{sGfl}, s{sNh}
        s_lshl_b32 s{sGfl}, s{sGfl}, 2
        s_add_u32 s{sGfl}, s{sGfl}, {GF_OFF}
        s_mul_i32 s{sUst}, s{sT2}, 56
        s_lshl_b32 s3, s{sFT}, 1
        s_add_u32 s3, s3, s{sKh}
        s_add_u32 s{sUst}, s{sUst}, s3
        s_lshl_b32 s{sUst}, s{sUst}, 11
        s_add_u32 s{sUst}, s{sUst}, {U_OFF + (OOB if P['xp'] & 2048 else 0)}
        v_add_u32 v{vEx}, s{sM}, v{vL16}
        s_lshl_b32 s{sUfl}, s{sD}, 2
        s_and_b32 s3, s{sFT}, 1
        s_add_u32 s{sUfl}, s{sUfl}, s3
        s_cmp_ge_u32 s{sFT}, 14
        s_cselect_b32 s3, 2, 0
        s_add_u32 s{sUfl}, s{sUfl}, s3
        s_lshl_b32 s{sUfl}, s{sUfl}, 7
        s_add_u32 s{sUfl}, s{sUfl}, {CN_OFF}
        v_add_u32 v{vLin[1]}, 65536, v{vL16}
        v_add_u32 v{vLin[2]}, 131072, v{vL16}
        s_mul_i32 s{sM3}, s{sW}, 3072
        s_mul_i32 s3, s{sJ}, 86016
        s_add_u32 s3, s3, s{sM3}
        s_add_u32 s3, s3, {WP_OFF}
        v_add_u32 v{vWp}, s3, v{vL16}
        v_lshlrev_b32 v{t1}, 7, v{vHi}
        v_xor_b32 v{t1}, v{t1}, v{vL16}
        s_lshl_b32 s3, s{sK32}, 11
        v_add_u32 v{vXd[0]}, s3, v{t1}
        v_add_u32 v{vXd[1]}, {131072 - 2048}, v{vXd[0]}
        s_lshr_b32 s3, s{sK32}, 2
        s_lshl_b32 s3, s3, 3
        s_max_u32 s3, s3, 1
        s_sub_u32 s3, s3, 1
        s_lshl_b32 s3, s3, 10
        s_lshl_b32 s{sT2}, s{sNh}, 17
        s_add_u32 s3, s3, s{sT2}
        s_lshl_b32 s{sT2}, s{sKh}, 28
        s_add_u32 s3, s3, s{sT2}
        v_add_u32 v{vXd[2]}, s3, v{t1}
        s_lshl_b32 s{sMh}, s{sNh}, 1
        s_add_u32 s{sMh}, s{sMh}, s{sKh}
        s_lshl_b32 s{sMh}, s{sMh}, 10
        v_and_b32 v{t1}, 1, v{vLane}
        v_mul_u32_u24 v{t1}, {512 + 128}, v{t1}
        v_lshrrev_b32 v{t2}, 2, v{vLane}
        v_lshlrev_b32 v{t2}, 4, v{t2}
        v_xor_b32 v{t1}, v{t1}, v{t2}
        v_bfe_u32 v{t2}, v{vLane}, 1, 1
        v_lshl_add_u32 v{t1}, v{t2}, 3, v{t1}
        s_add_u32 s3, s{sM}, 12288
        v_add_u32 v{vXr[0][0]}, s3, v{t1}
        s_sub_u32 s3, s3, 3072
        s_cmp_eq_u32 s{sW}, 0
        s_cselect_b32 s3, 28672, s3
        v_add_u32 v{vXr[0][1]}, s3, v{t1}
        v_add_u32 v{vXr[1][0]}, 65536, v{vXr[0][0]}
        v_add_u32 v{vXr[1][1]}, 65536, v{vXr[0][1]}
        v_add_u32 v{vXr[2][0]}, 131072, v{vXr[0][0]}
        v_add_u32 v{vXr[2][1]}, 131072, v{vXr[0][1]}
        s_lshl_b32 s3, s{sK32}, 1
        v_min_u32 v{t1}, 2, v{vG}
        v_add_u32 v{t1}, s3, v{t1}
        v_max_u32 v{t1}, 1, v{t1}
        v_lshlrev_b32 v{t1}, 1, v{t1}
        v_and_b32 v{t2}, 1, v{vR4}
        v_add_lshl_u32 v{t1}, v{t1}, v{t2}, 7
        v_lshrrev_b32 v{t2}, 1, v{vR4}
        v_lshl_add_u32 v{t2}, v{t2}, 2, v{vC4}
        v_lshl_add_u32 v{t1}, v{t2}, 2, v{t1}
        v_add_u32 v{vRsa}, {RS_OFF - 256}, v{t1}
        s_min_u32 s{sWck}, s{sW}, 2
        s_lshl_b32 s{sWck}, s{sWck}, 6
        s_add_u32 s{sWck}, s{sWck}, 64
        s_lshl_b32 s{sOs}, s{sK32}, 5
        s_add_u32 s{sOs}, s{sOs}, s{sJ}
        s_lshl_b32 s{sOs}, s{sOs}, 10
        s_add_u32 s{sOs}, s{sOs}, {O_OFF + (OOB if P['xp'] & 4096 else 0)}
        s_lshr_b32 s{sOfl}, s{sK32}, 2
        s_lshl_b32 s{sOfl}, s{sOfl}, 1
        s_and_b32 s3, s{sJ}, 1
        s_add_u32 s{sOfl}, s{sOfl}, s3
        s_lshl_b32 s{sOfl}, s{sOfl}, 7
        s_add_u32 s{sOfl}, s{sOfl}, {CN_OFF + 32 * 128}
        s_and_b32 s{sT3}, s{sS}, 1
        s_mul_i32 s3, s{sT3}, 28
        s_add_u32 s3, s3, s{sW}
        s_lshl_b32 s3, s3, 17
        s_xor_b32 s{sT2}, s{sS}, 1
        s_lshl_b32 s{sPfl}, s{sT2}, 3
        s_lshl_b32 s{sT2}, s{sS}, 7
        s_add_u32 s3, s3, s{sT2}
        v_lshlrev_b32 v{t1}, 12, v{vR8}
        v_add3_u32 v{vD2[0]}, v{t1}, v{vSw}, s3
        v_add_u32 v{vD2[1]}, {1 * (8 * 4096 - 1024)}, v{vD2[0]}
        v_add_u32 v{vD2[2]}, {2 * (8 * 4096 - 1024)}, v{vD2[0]}
        v_add_u32 v{vD2[3]}, {3 * (8 * 4096 - 1024)}, v{vD2[0]}
        v_mul_u32_u24 v{t1}, 896, v{vR8}
        s_lshl_b32 s{sMw}, s{sW}, 2
        s_min_u32 s{sMw}, s{sMw}, 11
        s_mul_i32 s3, s{sMw}, {8 * 896}
        s_lshl_b32 s{sMw}, s{sMw}, 10
        s_lshl_b32 s{sT2}, s{sD2}, 7
        s_add_u32 s3, s3, s{sT2}
        v_add3_u32 v{vDo[0]}, v{t1}, v{vSw}, s3
        v_add_u32 v{vDo[1]}, {8 * 896 - 1024}, v{vDo[0]}
        s_lshl_b32 s{sT2}, s{sS}, 1
        s_add_u32 s{sT2}, s{sT2}, s{sNh}
        s_and_b32 s3, s{sS}, 30
        s_add_u32 s3, s3, s{sKh}
        s_lshl_b32 s3, s3, 7
        s_add_u32 s{sOck}, s3, {CN_OFF + 32 * 128}
        s_lshl_b32 s3, s{sT2}, 5
        s_add_u32 s3, s3, s{sKh}
        s_lshl_b32 s3, s3, 10
        s_add_u32 s3, s3, {O_OFF}
        v_add_u32 v{vOd[0]}, s3, v{vL16}
        v_add_u32 v{vOd[1]}, {16384 - 1024}, v{vOd[0]}
        s_lshl_b32 s3, s{sNh}, 6
        v_xor_b32 v{vPatW[0][0]}, s3, v{vPat[0][0]}
        s_mul_i32 s3, s{sKh}, {8192 - 28 * 128}
        v_subrev_u32 v{vPatW[0][0]}, s3, v{vPatW[0][0]}
        v_xor_b32 v{vPatW[0][1]}, 32, v{vPatW[0][0]}
        v_add_u32 v{vPatW[1][0]}, 65536, v{vPatW[0][0]}
        v_add_u32 v{vPatW[1][1]}, 65536, v{vPatW[0][1]}
        s_mul_i32 s3, s{sKh}, {3 * 4096}
        v_add_u32 v{vOr[0][0]}, s3, v{vL16}
        v_xor_b32 v{vOr[0][1]}, 4096, v{vOr[0][0]}
        v_add_u32 v{vOr[1][0]}, 65536, v{vOr[0][0]}
        v_add_u32 v{vOr[1][1]}, 65536, v{vOr[0][1]}
        v_add_u32 v{vOr[2][0]}, 131072, v{vOr[0][0]}
        v_add_u32 v{vOr[2][1]}, 131072, v{vOr[0][1]}
        s_lshl_b32 s{sT2}, s{sD2}, 1
        s_add_u32 s{sT2}, s{sT2}, s{sNh}
        s_lshl_b32 s3, s{sT2}, 1
        s_add_u32 s3, s3, s{sT3}
        s_mul_i32 s3, s3, 14
        s_add_u32 s3, s3, s{sKh}
        s_lshl_b32 s3, s3, 12
        s_add_u32 s3, s3, {U_OFF}
        v_add_u32 v{vUo}, s3, v{vL16}
        s_lshl_b32 s3, s{sD2}, 1
        s_add_u32 s3, s3, s{sT3}
        s_lshl_b32 s3, s3, 1
        s_add_u32 s3, s3, s{sKh}
        s_lshl_b32 s3, s3, 7
        s_add_u32 s{sUck}, s3, {CN_OFF}
        s_and_b32 s3, s2, 6
        s_add_u32 s3, s3, s{sD2}
        s_sub_u32 s{sT2}, s3, 7
        s_cmp_ge_u32 s3, 7
        s_cselect_b32 s3, s{sT2}, s3
        s_lshl_b32 s{sGs2}, s3, 19
        s_lshl_b32 s{sGsU}, s3, 13
        s_add_u32 s{sPfl}, s{sPfl}, s{sD2}
        s_lshl_b32 s3, s{sPfl}, 14
        s_add_u32 s3, s3, s{sM}
        s_add_u32 s3, s3, {P_OFF + (OOB if P['xp'] & 512 else 0)}
        v_add_u32 v{vPst}, s3, v{vL16}
        s_lshl_b32 s{sPfl}, s{sPfl}, 5
        s_add_u32 s{sPfl}, s{sPfl}, s{sW}
        s_lshl_b32 s{sPfl}, s{sPfl}, 2
        s_add_u32 s{sPfl}, s{sPfl}, {PF_OFF}
        s_lshl_b32 s3, s{sNh}, 3
        v_add_u32 v{t0}, s3, v{vG}
        v_xor_b32 v{t0}, v{t0}, v{vC8}
        v_lshlrev_b32 v{t0}, 4, v{t0}
        v_lshl_add_u32 v{t0}, v{vL15}, 8, v{t0}
        s_lshl_b32 s3, s{sKh}, 14
        s_add_u32 s3, s3, {EPI_B}
        v_add_u32 v{vEw[0]}, s3, v{t0}
        v_xor_b32 v{vEw[1]}, 64, v{vEw[0]}
        s_lshr_b32 s3, s{sS}, 1
        s_add_u32 s{sRo}, s3, s{sD2}
        s_mov_b32 s{sR2}, s{sRo}
        v_lshlrev_b32 v{t0}, 1, v{vC8}
        v_xor_b32 v{t0}, v{t0}, v{vR8}
        v_lshlrev_b32 v{t0}, 4, v{t0}
        v_lshl_add_u32 v{t0}, v{vR8}, 8, v{t0}
        s_add_u32 s3, s{sM}, {EPI_B}
        v_add_u32 v{vEr[0]}, s3, v{t0}
        v_xor_b32 v{vEr[1]}, 16, v{vEr[0]}
        v_xor_b32 v{vEr[2]}, {16384 + 8192}, v{vEr[0]}
        v_xor_b32 v{vEr[3]}, {16384 + 8192 + 16}, v{vEr[0]}""".split('\n')
    par = lambda l: l & 1
    cur = lambda l, z: 4 * (l >> 4) + 2 * z + (l & 1) <= (l & 15)
    c0 = -2.0 * math.sqrt(2.0 / math.pi) * math.log2(math.e)
    setup2 = setmask(sPar, lanemask(par)) + setmask(sCur0, lanemask(lambda l: cur(l, 0))) + setmask(sCur1, lanemask(lambda l: cur(l, 1)))
    setup2 += [f's_cmp_eq_u32 s{sK32}, 0\ns_cselect_b64 {s(sInvd, 2)}, 0, -1',
               f'v_mov_b32 v{t0}, 0xffff', f'v_mov_b32 v{t1}, 0xffff0000',
               f'v_cndmask_b32 v{t0}, v{t0}, v{t1}, {s(sPar, 2)}']
    for z, sc in ((0, sCur0), (1, sCur1)):
        setup2 += [f'v_cndmask_b32 v{vMk + z}, v{t0}, 0, {s(sc, 2)}', f'v_cndmask_b32 v{vMk + 2 + z}, 0, v{t0}, {s(sc, 2)}']
    setup2 += [f'v_mov_b32 v{vNeg}, {f32(-1e30)}',
               f's_mov_b32 s{sC1}, {f32(28 ** -0.5 * math.log2(math.e))}',
               f's_mov_b32 s{sGc}, {f32(c0 * 0.044715)}\ns_mov_b32 s{sGc + 1}, {f32(c0 * 0.044715)}',
               f's_mov_b32 s{sOne}, 1.0\ns_mov_b32 s{sOne + 1}, 1.0',
               f'v_mov_b32 v{vC0}, {f32(c0)}', f'v_mov_b32 v{vC0 + 1}, {f32(c0)}']
    aSel = 248
    setup2 += [f'v_lshrrev_b32 v{t0}, 1, v{vL15}', f'v_lshlrev_b32 v{t1}, 1, v{vG}', f'v_sub_u32 v{t0}, v{t0}, v{t1}',
               f'v_mov_b32 v{t1}, 0x3f80', f'v_cndmask_b32 v{t1}, v{t1}, 1.0, {s(sPar, 2)}']
    for k in range(2):
        setup2 += [f'v_cmp_eq_i32 vcc, {k}, v{t0}', f'v_accvgpr_write_b32 a{aSel + k}, 0', f'v_accvgpr_write_b32 a{aSel + 4 + k}, 0',
                   f'v_cndmask_b32 v{t2}, 0, v{t1}, vcc', f'v_accvgpr_write_b32 a{aSel + 2 + k}, v{t2}']
    vccset = f's_cmp_lg_u32 s{sKh}, 0\ns_cselect_b64 vcc, -1, 0'
    setup2.append(vccset)
    NS1 = [i for i, t in enumerate(setup) if t.strip().startswith(f'v_add_u32 v{vLin[1]},')][0]

    def h_publish(tag, tokH):
        run(setup[:NS1])
        e(f'v_readfirstlane_b32 s{sNon}, v{vNon}')
        e(f's_mov_b32 s{sCnt}, 0')
        e(f's_cmp_lg_u32 s{sNon}, 0')
        e(f's_cbranch_scc0 L_nonce{tag}')
        e.cold_begin()
        e.label(f'L_nonce{tag}')
        e.raw(f'    buffer_load_dword v{vNon}, v{t3}, {srd(DBG)}, 0 offen sc1')
        e.raw(f'    s_add_u32 s{sCnt}, s{sCnt}, 1')
        e.raw(f'    s_waitcnt vmcnt(0)')
        e.raw(f'    v_readfirstlane_b32 s{sNon}, v{vNon}')
        e.raw(f'    s_cmp_ge_u32 s{sCnt}, {P["spin"]}')
        e.raw(f'    s_cbranch_scc1 L_nonce_ok{tag}')
        e.raw(f'    s_cmp_eq_u32 s{sNon}, 0')
        e.raw(f'    s_cbranch_scc1 L_nonce{tag}')
        e.raw(f'    s_branch L_nonce_ok{tag}')
        e.cold_end()
        e.label(f'L_nonce_ok{tag}')
        e.wait(vm=tokH, lg=e.lg_n)
        e('s_barrier')
        if P['hsc']:
            assert P['hrep'] == 8
            e(f's_atomic_swap s{sNon}, s[{WS}:{WS + 1}], s{sHfl}')
            e(f's_atomic_swap s{sNon}, s[{WS}:{WS + 1}], s{sHf2}')
            e.smem_out = 2
        else:
            e(f'buffer_store_dword v{vNon}, v{vFr8}, {srd(WS)}, s{sHfl} offen sc1')
        if P['rpos'] == 1 or (P['rpos'] == 2 and tag == 'h'):
            res_loads()

    h_publish('', tokH)
    stamp('hflag', (1, 4))
    if P['xp'] & 1:
        e.wait_all(force=True)
        stamp('flag ack', (4,))
    w1_dma(9, 64)
    e.bg_on = True
    e.credit = 0
    hold = e.bg[max(0, P['w1flag'] - (40 - len(e.bg))):]
    del e.bg[len(e.bg) - len(hold):]
    run(setup[NS1:])
    for j in range(4):
        b = vB1 + 2 * (j & 1)
        e(f'v_lshlrev_b32 v{vAcc[0] + 4 * j}, 16, v{b}')
        e(f'v_and_b32 v{vAcc[0] + 4 * j + 1}, 0xffff0000, v{b}')
        e(f'v_lshlrev_b32 v{vAcc[0] + 4 * j + 2}, 16, v{b + 1}')
        e(f'v_and_b32 v{vAcc[0] + 4 * j + 3}, 0xffff0000, v{b + 1}')

    def bf(n, j):
        return a((n * 4 + j) * 4, 4)

    def h_load(n, gap):
        for j in range(4):
            pre = [f's_add_u32 s{sGsH}, s{sGsH}, 8192', f's_and_b32 s{sGsH}, s{sGsH}, 0xffff'] if (j == 0 and n and not P['xp'] & 128) else []
            bg_ins(('h', n, j), pre, f'buffer_load_dwordx4 {bf(n, j)}, v{vHo}, {srd(WS)}, s{sGsH} offen offset:{(j >> 1) * 2048 + (j & 1) * 256} sc1', gap)

    def u_load(n, gap):
        for j in range(4):
            pre = wrap(sGsU, 8192, 7) if (j == 0 and n and not P['xp'] & 64) else []
            bg_ins(('u', n, j), pre, f'buffer_load_dwordx4 {bf(n, j)}, v{vUo}, {srd(WS)}, s{sGsU} offen offset:{j * 1024} sc1', gap)

    def q_dma(st, gap):
        q = 16 + 2 * st
        b = slot_of(q)
        for k in range(3):
            pre = [f's_add_u32 m0, s{sM3}, {b}'] + (wrap(sWs, 12288, 7) if st and not P['xp'] & 8 else []) if k == 0 else []
            bg_dma(('s', q, k), pre, WS, vWp, sWs, k * 1024, gap, mod=' sc1')
        bg_dma(('s', q, 3), [f's_add_u32 m0, s{sMh}, {b + 28672}'] + (wrap(sXs, 1 << 18, 7) if st and not P['xp'] & 256 else []), WS, vXd[2], sXs, 0, gap // 2 if P['hskip'] else gap, mod=' sc1', half=P['hskip'])
        for k in range(4):
            pre = [f's_add_u32 m0, s{sM}, {b + 12288}'] if k == 0 else []
            bg_dma(('s', q + 1, k), pre, WS, vXd[k >> 1], sXs, k * 1024, gap, mod=' sc1')

    QF = 30
    QW, QO = ((14, 15, 16, 20), (17, 18, 19, 21)) if P['oord'] else ((14, 15, 16, 17), (18, 19, 20, 21))
    fseq = [('u', n) for n in range(14)] + [('o', m) for m in range(8)]

    def f_dma(i, gap):
        kind, n = fseq[i]
        q = QF + i
        m0 = [f's_add_u32 m0, s{sM}, {slot_of(q)}']
        if kind == 'u':
            for k in range(4):
                pre = m0 + wrap(sGs2, 1 << 19, 7) * (0 if P['xp'] & 16 else {0: 0, 7: 0, 8: 2}.get(n, 1)) if k == 0 else []
                if n in (0, 8):
                    pre = pre + [f'v_xor_b32 v{vD2[k]}, 128, v{vD2[k]}']
                bg_dma(('s', q, k), pre, W2, vD2[k], sGs2, k * 1024, gap)
        else:
            r = sRo if i in QW else sR2
            step = [f's_add_u32 s{r}, s{r}, {0 if P["xp"] & 32 else 1}', f's_and_b32 s{r}, s{r}, 3']
            if i in QW:
                m0 = [f's_add_u32 m0, s{sMw}, {slot_of(q)}']
                nxt = [f's_add_u32 s{sBg}, s{sBg}, {16 * 896 - 2048}']
                bg_dma(('s', q, 0), m0 + step + [f's_mul_i32 s{sBg}, s{sRo}, {112 * 896}'], WO, vDo[0], sBg, 0, gap)
                bg_dma(('s', q, 1), [], WO, vDo[1], sBg, 1024, gap)
                bg_dma(('s', q, 2), nxt, WO, vDo[1], sBg, 3072, gap // 2, half=True)
                bg_dma(('s', q, 3), [], WO, vDo[0], sBg, 2048, gap)
            else:
                for k in range(4):
                    pre = m0 + step + [f's_lshl_b32 s{sBg}, s{sR2}, 12'] if k == 0 else []
                    bg_dma(('s', q, k), pre, WS, vOd[k & 1], sBg, k * 1024, gap, mod=' sc1')

    def bar(qlast):
        if qlast is not None:
            e.need(('s', qlast, 3))
        if not (P['xp'] & 16384 and qlast != 5):
            e('s_barrier')

    PH, DF = P['ph'], P['df']
    vWof = [vBig + 16 + 4 * k for k in range(6)]

    def fr(x, n=4, o=0):
        return a(200 + 4 * (x % NF) + o, n)

    def tr_reads(q, j, T_, x):
        r = []
        for h in range(2):
            ad = slot_of(q) + (j >> 1) * 4096 + h * 2048
            r.append(f'ds_read_b64_tr_b16 {fr(x, 2, 2 * h)}, v{vPat[ad >> 16][2 * T_ + (j & 1)]} offset:{ad & 65535}')
        return r

    def gemm32(seq, q0, at_stage, swap, fill, init, accs, amod, padd, checks, pre=None):
        items = []
        for i, (kind, n) in enumerate(seq):
            items += [(i, kind, n, j, T_) for j in range(4 if kind != 'o' else 2) for T_ in range(2)]
        tail = [t for t in items if t[0] >= len(seq) - 2]
        items = items[:len(items) - len(tail)]
        for T_ in (1, 0):
            items += [t for t in tail if t[4] == T_] + [(None, 'P', p, 0, T_) for p in padd if p[0] == T_]
        tk = {}
        left = [sum(1 for t in items if t[0] == i) for i in range(len(seq))]
        seen = set()
        init = set(init)
        lastrd = {}
        done = [-1]
        rq, fq = [], []

        def plan(x):
            i, kind, n, j, T_ = items[x]
            if kind == 'P':
                return
            r = []
            if i not in seen:
                seen.add(i)
                rq.append((x, None, False))
                if kind == 'o':
                    for cb in range(2):
                        for h in range(2):
                            ad = slot_of(q0 + QW[n >> 1]) + h * 2048 + (n & 1) * 56 * 128
                            r.append(f'ds_read_b64_tr_b16 {v(vWof[(2 * n + cb) % 6] + 2 * h, 2)}, v{vPatW[ad >> 16][cb]} offset:{ad & 65535}')
            if pre and x in pre:
                tk[x] = lastrd[i] = pre[x]
                left[i] -= 1
            elif kind != 'o':
                r += tr_reads(q0 + i, j, T_, x)
            else:
                ad = slot_of(q0 + QO[n >> 1]) + (n & 1) * 2048 + j * 1024
                r.append(f'ds_read_b128 {fr(x)}, v{vOr[ad >> 16][T_]} offset:{ad & 65535}')
            rq.extend((x, t, t is r[-1]) for t in r)

        def rd1():
            while rq and rq[0][1] is None:
                i = items[rq.pop(0)[0]][0]
                while left[done[0] + 1] == 0 and e.lg_done >= lastrd[done[0] + 1]:
                    done[0] += 1
                at_stage(i, q0 + done[0])
            if not rq:
                return False
            x, t, last = rq.pop(0)
            tok = e(t)
            if last:
                tk[x] = lastrd[items[x][0]] = tok
                left[items[x][0]] -= 1
            return True

        def f1():
            f = fq.pop(0)
            if callable(f):
                f()
            else:
                e.many(f)
        e.ds_free = True
        e.bg_on = False
        for x in range(DF):
            plan(x)
        while rd1():
            pass
        nxt = DF
        for x, (i, kind, n, j, T_) in enumerate(items):
            if x % 4 == 0:
                stamp(f'{seq[0][0]}{x}', (20,))
            if kind == 'P':
                e.bg_flush(n[1])
                ms = [mf16(vAcc[T_] + 8 * n[3] + 4 * rt, a(aSel + 2 - 2 * rt, 4), v(n[2], 4)) for rt in range(2)]
            else:
                vm = None
                if kind != 'o':
                    key = (kind, n % amod, j | 1)
                    e.bg_flush(key)
                    vm = e.tok[key]
                while x not in tk:
                    rd1()
                e.wait(vm=vm, lg=tk.get(x + 1, tk[x]) if x % 2 == 0 else None)
                ms = []
                for cb in range(2):
                    act = bf(n % amod, (j & 2) + cb) if kind != 'o' else v(vWof[(2 * n + cb) % 6], 4)
                    d = accs(i)[T_] + (8 * (j & 1) + 4 * cb if swap else 8 * cb + 4 * (j & 1))
                    c = None if d in init else '0'
                    init.add(d)
                    ms.append(mf16(d, act, fr(x), c) if swap else mf16(d, fr(x), act, c))
            f = fill.pop(0) if fill else None
            now = callable(f)
            if isinstance(f, list):
                fq.extend(f)
            elif now or (f and 's_cmp' in f):
                fq.append(f)
            elif f:
                fq.extend(f.split('\n'))
            for k, m in enumerate(ms):
                e(m)
                slots = 1 if (k == 1 and x % 2 == 1) else 2
                if k == 0:
                    if x in checks:
                        checks[x]()
                    if not any(x < c <= x + P['hold'] for c in checks):
                        for _ in range(2):
                            if nxt <= x + DF and nxt < len(items):
                                plan(nxt)
                                nxt += 1
                if rd1():
                    slots -= 1
                if len(rq) > 2 and rd1():
                    slots -= 1
                did = False
                while (slots > 0 or e.credit < -24) and e.bg_step():
                    slots -= 1
                while fq and (slots > 0 or (k == 1 and (now or len(fq) > P['fqmax'] or not did and x % 2 == 0))):
                    f1()
                    did = True
                    slots -= 1
        while fq:
            f1()
        e.ds_free = False
        e.bg_on = True
        assert not fill and not rq

    def xf(t, ks):
        return 176 + ((ks & 1) * 3 + t) * 4

    def wf(f, ks):
        return 128 + ((ks & 1) * 6 + f) * 4

    def q_reads(ks):
        st, ksl = ks >> 1, ks & 1
        b = slot_of(16 + 2 * st)

        def xr(t):
            r = []
            for h in range(2):
                ad = b + ksl * 2048 + (1024 if t == 2 else 0) + h * 256
                r.append(f'ds_read_b64_tr_b16 {a(xf(t, ks) + 2 * h, 2)}, v{vXr[ad >> 16][1 if t == 0 else 0]} offset:{ad & 65535}')
            return r

        def wr(f):
            ad = b + (ksl * 6 + f) * 1024
            return [f'ds_read_b128 {a(wf(f, ks), 4)}, v{vLin[ad >> 16]} offset:{ad & 65535}']
        return xr(1) + wr(0) + xr(2) + wr(1) + wr(2) + xr(0) + wr(3) + wr(4) + wr(5)

    e.bg_flush()
    stamp('flag rq', (4,))
    if P['xp'] & 65536:
        e(f'buffer_load_dword v{vFv}, v{t3}, {srd(DBG)}, 0 offen sc1')
    else:
        e(flag_load(vFoH, vFv))
    e.bg = hold[:P['w1chk']]
    hold = hold[P['w1chk']:]
    assert len(hold) % 4 == 0

    def h_spec():
        if P['hspec'] & 4:
            e.many(f"""
                s_mul_i32 s3, s{sIdx}, 37
                s_lshr_b32 s3, s3, 8
                s_lshl_b32 s3, s3, 14
                s_add_u32 s3, s3, s{sGsH}
            """)
        e.many(f"""
            v_and_b32 v{t0}, 0xfffff000, v{vHo}
            v_lshl_add_u32 v{t0}, v{vL31}, 7, v{t0}
            v_lshl_add_u32 v{t1}, v{vHi}, 13, s{3 if P['hspec'] & 4 else sGsH}
            v_and_b32 v{t1}, 0xffff, v{t1}
            v_add_u32 v{t0}, v{t0}, v{t1}
            buffer_load_dword v{vDum}, v{t0}, {srd(WS)}, 0 offen sc1
        """)
        e.pvm.pop(('v', vDum))
    e.bg_on = False
    if P['hspec'] & 1:
        h_spec()
    e.bg_flush()
    if P['hspec'] & 2:
        h_spec()
    e.bg_on = True
    stamp('w1 iss', (4,))
    if P['iwarm']:
        e(f's_mov_b32 s3, s{sW}')
        e('s_mov_b64 exec, 0')
        e.label('L_warm')
        e.raw(';;PADJUMPS')
        e('s_mov_b64 exec, -1')
    if P['stamps'] == 4:
        e(f's_mov_b32 s{sCnt}, 0')
    flag_check(vFoH, vFv, P['hsleep'])
    if P['stamps'] == 4:
        e(f's_mov_b32 s{sStamp + 12}, s{sCnt}')
    stamp('chk', (20,))
    n_iss = 10 - len(hold) // 4
    bar(min(n_iss - 3, 5))
    e.smem_out = 0
    stamp('h ok', (1, 2, 4))
    for n in range(8):
        h_load(n, P['hgap'])
        if n == 0:
            bg_ins('rs', [], f'buffer_load_dword v{vRs}, v{vRsa}, {srd(WS)}, 0 offen sc1', 0)
            if P['rpos'] == 2:
                e.bg_flush()
                res_loads()
        if n < P['hinit']:
            e.bg_flush()
        if n >= P['hpos']:
            e.bg += [(k, f, P['hgap']) for k, f, _ in hold[:4]]
            del hold[:4]
    e.bg += [(k, f, P['hgap']) for k, f, _ in hold]

    rsfill = [f'v_lshlrev_b32 v{t0}, 2, v{vL15}',
            f'v_and_b32 v{t1}, 1, v{vLane}',
            f'v_lshl_add_u32 v{t1}, v{vG}, 2, v{t1}',
            f'v_lshlrev_b32 v{t1}, 2, v{t1}',
            f'v_add_u32 v{t2}, 64, v{t1}',
            f'v_cndmask_b32 v{t3}, v{t1}, v{t2}, {s(sCur0, 2)}',
            f'v_cndmask_b32 v{t1}, v{t1}, v{t2}, {s(sCur1, 2)}']
    for t in range(2):
        rsfill += [f'ds_bpermute_b32 v{vCa[t]}, v{t0}, v{vRs} offset:{64 * (t + 1)}',
                 f'ds_bpermute_b32 v{vAs[t][0]}, v{t3}, v{vRs} offset:{64 * t}',
                 f'ds_bpermute_b32 v{vAs[t][1]}, v{t1}, v{vRs} offset:{64 * t + 8}']
    rsfill += [None] * 6 + [f'v_mul_f32 v{vCa[t]}, s{sC1}, v{vCa[t]}' for t in range(2)]

    g1bar = {3: n_iss - 1, 5: None, 7: 9, 9: 11, 11: 13, 13: 15, 14: None}
    assert n_iss >= 8
    extra = {3: (10, 11), 5: (12, 13), 7: (14, 15)}
    vGp = [vBig, vBig + 16]
    vGr = vBig + 32

    def g_check():
        cnt_check(sGfl, 2, P['sl1'], few=True)
        e(f'v_xor_b32 v{vGst}, {8 * 16384}, v{vGst}')
        e(f'v_xor_b32 v{vGs2}, 8192, v{vGst}')
        for j in (3, 2, 1, 0):
            e.bg.insert(0, (('gl', j), [f'buffer_load_dwordx4 {v(vGr + 4 * j, 4)}, v{vGs2 if j >= 2 else vGst}, {srd(WS)}, 0 offen offset:{j * 1024} sc1'], 32))

    def g1_stage(n, done):
        if n in g1bar:
            bar(g1bar[n])
        if n == P['gpub']:
            e.need(('g', 3))
            signal(sGfl, False)
        if n in (0, 1, 2, 4, 6, 8, 10, 12, 14):
            stamp(f'g1 st{n}', (2, 4) if n in (1, 4) else (2,))
        if n >= 8:
            stamp(f'g1 st{n}', (9,))
        gap = P['ggap']
        if n == 14:
            assert done >= 12
        for q in extra.get(n, ()):
            assert done >= q - 10
            w1_dma(q, gap)
        if n == P['wfq']:
            cnt_req(sWck, DBG)
        if n in (9, 11, 13):
            assert done >= n - 2
            q_dma(n // 2 - 4, P['qg1'])
        if n == P['gfq']:
            e(f's_xor_b32 s{sGfl}, s{sGfl}, 1024')
            cnt_req(sGfl)

    def part_fill(fl, end, acc, vst, key):
        def st(j):
            e.bg.insert(0, ((key, j), [f'buffer_store_dwordx4 {v(acc[j >> 1] + 8 * (j & 1), 4)}, v{vst}, {srd(WS)}, 0 offen offset:{j * 1024} sc1'], 32))
            e.bg_flush((key, j))
        assert len(fl) <= end + 1
        fl = fl + [None] * (end + 1 - len(fl))
        for j in range(4):
            src = acc[j >> 1] + 8 * (j & 1)
            fl += [[f'v_cvt_pk_bf16_f32 v{src + r}, v{src + 2 * r}, v{src + 2 * r + 1}' for r in range(4)] + [lambda j=j: st(j)]] + [None] * P['psp']
        return fl

    gf = ['\n'.join(setup2[:6] + [t for t in setup2 if f's{sC1},' in t])] + rsfill + setup2[6:]
    gf = part_fill(gf, 64, vGp, vGst, 'g')
    xtk = {}

    def xw(j):
        xtk[0] = e(f'ds_write_b128 v{vEx}, {v(vAcc[1] + 4 * j, 4)} offset:{EXC_B + j * 1024}')

    def xr():
        e(f'v_xor_b32 v{vEx}, 8192, v{vEx}')
        e.wait(vm=e.tok[('s', 17, 3)], lg=xtk[0])
        e('s_barrier')
        stamp('exch', (9, 20))
        q_dma(3, P['qg1'])
        for j in range(4):
            e(f'ds_read_b128 {v(vE + 4 * j, 4)}, v{vEx} offset:{EXC_B + j * 1024}')
    gf += [None] * (121 - len(gf)) + [lambda j=j: xw(j) for j in range(4)] + [None] * P['xdel'] + [xr]
    gemm32([('h', n) for n in range(16)], 0, g1_stage, False, gf, [vAcc[0] + 4 * k for k in range(4)], lambda i: vGp if i < 8 else vAcc, 8,
           [(0, ('gl', j), vGr + 4 * j, j & 1) for j in range(4)],
           {P['wck']: lambda: cnt_check(sWck, 14, 8, DBG), P['gck']: g_check})
    stamp('g1 done', (1, 2, 9))
    for half in range(2):
        ps = [8 * half + 2 * k for k in range(4)]
        A_ = lambda p: v(vAcc[0] + p, 2)
        E_ = lambda p: v(vE + p, 2)
        for p in ps:
            e(f'v_pk_add_f32 {A_(p)}, {A_(p)}, {E_(p)}')
        for p in ps:
            e(f'v_pk_mul_f32 {E_(p)}, {A_(p)}, {A_(p)}')
        for p in ps:
            e(f'v_pk_fma_f32 {E_(p)}, {E_(p)}, {s(sGc, 2)}, {v(vC0, 2)}')
        for p in ps:
            e(f'v_pk_mul_f32 {E_(p)}, {E_(p)}, {A_(p)}')
        for p in ps:
            e(f'v_exp_f32 v{vE + p}, v{vE + p}')
            e(f'v_exp_f32 v{vE + p + 1}, v{vE + p + 1}')
        for p in ps:
            e(f'v_pk_add_f32 {E_(p)}, {E_(p)}, {s(sOne, 2)}')
        for p in ps:
            e(f'v_rcp_f32 v{vE + p}, v{vE + p}')
            e(f'v_rcp_f32 v{vE + p + 1}, v{vE + p + 1}')
        for p in ps:
            e(f'v_pk_mul_f32 {E_(p)}, {E_(p)}, {A_(p)}')
        for k, p in enumerate(ps):
            e(f'v_cvt_pk_bf16_f32 v{vSt[half] + k}, v{vE + p}, v{vE + p + 1}')
    run(q_reads(0))
    e.bg_flush()
    for half in range(2):
        tokU = e(f'buffer_store_dwordx4 {v(vSt[half], 4)}, v{vL16}, {srd(WS)}, s{sUst} offen offset:{half * 1024} sc1')
    stamp('u stored', (1, 2, 5, 9))
    hist = list(e.hist)
    e.cold_begin()

    save = (e.vm_n, e.vm_done, e.lg_n, e.lg_done, dict(e.pvm), dict(e.plg), dict(e.tok), nst[0])
    e.label('L_nog1')
    e.vm_n, e.vm_done, e.lg_n, e.lg_done, e.pvm, e.plg, e.tok = save0
    assert not e.bg
    e.pad(2)
    vW, vWr = vBig + 60, vBig + 61
    vPk = vBig
    sPk, sPp, sPo = 79, 80, 81
    PITCH = 1056
    e.many(f"""
        s_mov_b32 s{WQ + 2}, {448 * 2688}
        s_mov_b32 s{WQ + 3}, 0x20000
        s_sub_u32 s3, s2, 200
        s_cmp_lt_u32 s3, 42
        s_cselect_b32 s{sPo}, 0, {OOB}
        s_cselect_b32 s3, s3, 0
        s_mul_i32 s{sPk}, s3, 43
        s_lshr_b32 s{sPk}, s{sPk}, 7
        s_mul_i32 s{sPp}, s{sPk}, 3
        s_sub_u32 s{sPp}, s3, s{sPp}
        v_min_u32 v{t0}, 55, v{vLane}
        s_lshl_b32 s3, s{sPk}, 2
        s_add_u32 s3, s3, s{sW}
        s_mul_i32 s3, s3, {8 * 2688}
        s_mul_i32 s{sCnt}, s{sPp}, 896
        s_add_u32 s3, s3, s{sCnt}
        s_add_u32 s3, s3, s{sPo}
        v_lshl_add_u32 v{vW}, v{t0}, 4, s3
        s_mul_i32 s{sCnt}, s{sW}, {8 * PITCH}
    """)
    for r in range(8):
        e(f's_add_u32 m0, s{sCnt}, {r * PITCH}')
        e(f's_mov_b32 s3, {r * 2688}')
        e(f'buffer_load_dwordx4 v{vW}, {srd(WQ)}, s3 offen lds')
    tokHh = p0_body((6,))
    e.many(f"""
        v_lshrrev_b32 v{t0}, 2, v{vLane}
        v_mul_u32_u24 v{t0}, {PITCH}, v{t0}
        v_lshl_add_u32 v{t0}, v{vC4}, 3, v{t0}
        s_mul_i32 s3, s{sW}, {4 * 56}
        v_add_u32 v{vWr}, s3, v{t0}
    """)
    h_publish('h', tokHh)
    stamp('hlp hflag', (6,))
    e.many(f"""
        v_cmp_gt_u32 vcc, 12, v{vL15}
        s_mul_i32 s3, s{sW}, {4 * 14}
        s_add_u32 s3, s3, s{sPk}
        s_mul_i32 s3, s3, 3
        s_add_u32 s3, s3, s{sPp}
        s_lshl_b32 s3, s3, 11
        s_add_u32 s3, s3, {WP_OFF}
        s_add_u32 s3, s3, s{sPo}
    """)
    for jj in range(4):
        for t in range(2):
            for h in range(2):
                e(f'ds_read_b64_tr_b16 {v(vPk + (2 * jj + t) * 4 + 2 * h, 2)}, v{vWr} offset:{jj * 56 + t * 32 + h * 16 * PITCH}')
    for jj in range(4):
        for r in range(4):
            d = vPk + (2 * jj + 1) * 4 + r
            e(f'v_cndmask_b32 v{d}, 0, v{d}, vcc')
        for t in range(2):
            tokP = e(f'buffer_store_dwordx4 {v(vPk + (2 * jj + t) * 4, 4)}, v{vL16}, {srd(WS)}, s3 offen offset:{t * 1024} sc1')
        e(f's_add_u32 s3, s3, 86016')
    e.many(f"""
        s_lshl_b32 s{sUst}, s{sPp}, 6
        s_add_u32 s{sUst}, s{sUst}, 64
        s_cmp_eq_u32 s{sPo}, 0
        s_cselect_b32 s{sGfl}, s{sW}, 1
        s_mov_b32 s{sUfl}, {CN_OFF + 100 * 128}
    """)
    if P['gord'] == 1:
        e.many(f"""
            s_and_b32 s3, s2, 1
            s_mul_i32 s3, s3, 3
            s_bfe_u32 s{sT2}, s2, 0x10001
            s_mul_i32 s{sT3}, s{sT2}, 6
            s_add_u32 s3, s3, s{sT3}
            s_add_u32 s3, s3, 1
            v_add_u32 v{t1}, s3, v{vC4}
            s_mul_i32 s{sT2}, s{sT2}, 64
            s_add_u32 s{sT2}, s{sT2}, 7
            v_cmp_ne_u32 vcc, s{sT2}, v{t1}
            v_lshrrev_b32 v{t2}, 2, v{vLane}
            v_mul_u32_u24 v{t2}, 3584, v{t2}
            v_cndmask_b32 v{t1}, 0, v{t1}, vcc
            v_lshl_add_u32 v{t1}, v{t1}, 8, v{t2}
            s_lshl_b32 s3, s{sD}, 2
            s_add_u32 s3, s3, s{sW}
            s_mul_i32 s3, s3, 37
            s_min_u32 s3, s3, {987 if P['t1x'] else 976}
            s_mul_i32 s3, s3, 3584
            s_mul_i32 s{sT2}, s{sM3}, {1024 * 3584 + 128}
            s_add_u32 s3, s3, s{sT2}
        """)
        for k in range(P['nt1']):
            if k == 2 and P['t1x']:
                e(f'v_cmp_gt_u32 vcc, 20, v{vLane}')
                e(f'v_mov_b32 v{t2}, {OOB}')
                e(f'v_cndmask_b32 v{t1}, v{t2}, v{t1}, vcc')
            e(f'buffer_load_dword v{vBig + 44 + k}, v{t1}, {srd(W1)}, s3 offen')
            e(f's_add_u32 s3, s3, {16 * 3584}')
    run(setup[NS1:])
    run(setup2)
    e.wait(vm=tokP)
    e('s_barrier')
    e(f's_cmp_lg_u32 s{sGfl}, 0')
    e(f's_cbranch_scc1 L_nowsig')
    signal(sUst, False, DBG)
    e.label('L_nowsig')
    e(flag_load(vFoH, vFv))

    def w2_touch():
        e.many(f"""
            s_mov_b32 s{W2 + 2}, {1792 * 4096}
            s_and_b32 s3, s2, 1
            s_mul_i32 s3, s3, 7
            s_add_u32 s3, s3, s{sD}
            s_lshl_b32 s3, s3, 2
            s_add_u32 s3, s3, s{sW}
            s_lshl_b32 s3, s3, 17
            s_and_b32 s{sT2}, s2, 6
            s_lshl_b32 s{sT2}, s{sT2}, 9
            s_add_u32 s3, s3, s{sT2}
            v_lshlrev_b32 v{vW}, 12, v{vL31}
            v_lshl_add_u32 v{vW}, v{vHi}, 9, v{vW}
        """)
        for k in range(P['ntw']):
            e(f'buffer_load_dword v{vBig + 50 + k}, v{vW}, {srd(W2)}, s3 offen offset:{(3 - k) * 128}')
        e(f's_cmp_eq_u32 s{sF}, 0')
        e(f's_cselect_b32 s{W2 + 2}, 0, s{W2 + 2}')
    if P['w2pos'] == 0:
        w2_touch()
    e.many(f"""
        s_cmp_eq_u32 s{sF}, 0
        s_cselect_b32 s{W2 + 2}, 0, s{W2 + 2}
        v_and_b32 v{t0}, 0xfffff000, v{vHo}
        v_lshl_add_u32 v{t0}, v{vL31}, 7, v{t0}
        s_add_u32 s3, s{sGsH}, {P['hlead'] * 8192}
        v_lshl_add_u32 v{t1}, v{vHi}, 13, s3
    """)
    flag_check(vFoH, vFv, 8)
    if P['w2pos'] != 1:
        cnt_req(sWck, DBG)
    assert e.vm_done >= tokP
    e('s_barrier')
    e(f'buffer_load_dword v{vRs}, v{vRsa}, {srd(WS)}, 0 offen sc1')
    stamp('hlp h ok', (6,))
    if P['touch'] & 4:
        for k in range((9 - P['hlead']) // 2):
            e(f'v_and_b32 v{t1}, 0xffff, v{t1}')
            e(f'v_add_u32 v{t2}, v{t0}, v{t1}')
            e(f'v_add_u32 v{t1}, 16384, v{t1}')
            e(f'buffer_load_dword v{vBig + 40 + k}, v{t2}, {srd(WS)}, 0 offen sc1')
    if P['w2pos'] == 1:
        w2_touch()
    if not P['rsl']:
        run([t for t in rsfill if t])
    if P['w2pos'] == 1:
        e.wait(vm=e.vm_n - 2)
        cnt_req(sWck, DBG)
    cnt_check(sWck, 14, 16, DBG)
    e('s_barrier')
    stamp('hlp touched', (6, 7))
    if P['touch'] & 1:
        e.many(f"""
            s_max_u32 s3, s{sIdx}, 25
            s_sub_u32 s3, s3, 25
            s_lshl_b32 s3, s3, 2
            s_add_u32 s{sT3}, s3, s{sW}
            v_lshlrev_b32 v{t0}, 7, v{vLane}
            s_and_b32 s3, s{sJ}, 8
            s_mul_i32 s3, s3, 86016
            s_mul_i32 s{sT3}, s{sT3}, 3072
            s_add_u32 s3, s3, s{sT3}
            s_add_u32 s3, s3, {WP_OFF}
            v_min_u32 v{t0}, {23 * 128}, v{t0}
            buffer_load_dword v{vBig + 2}, v{t0}, {srd(WS)}, s3 offen sc1
        """)
    if P['touch'] & 32:
        e.many(f"""
            v_lshl_add_u32 v{t1}, v0, 7, s{sWs}
            s_mul_i32 s3, s{sJ}, 86016
            s_add_u32 s3, s3, {WP_OFF}
        """)
        for k in range(3):
            e(f'v_subrev_u32 v{t2}, 86016, v{t1}')
            e(f'v_min_u32 v{t2}, v{t1}, v{t2}')
            e(f'v_add_u32 v{t1}, {32768 if k == 0 else 86016 - 65536}, v{t1}')
            e(f'buffer_load_dword v{vBig + 3 + k}, v{t2}, {srd(WS)}, s3 offen sc1')
    assert not e.bg
    e.many(f"""
        s_cmp_eq_u32 s{sF}, 0
        s_cselect_b32 s3, {OOB}, 0
        v_add_u32 v{vUo}, s3, v{vUo}
    """)
    e.many(vccset)
    for st in range(4):
        q_dma(st, 0)
    e.bg_flush()
    if P['w2pos'] == 2:
        w2_touch()
    e(f's_mov_b32 s3, {OOB}')
    for _ in range(2):
        e(f'buffer_store_dword v{vNon}, v{vFl}, {srd(WS)}, s3 offen')
    if P['rsl']:
        run([t for t in rsfill if t])
    safe = ('s', 16, 0)
    for st in range(4):
        k = ('s', 17 + 2 * st, 3)
        if not (e.vm_n - e.tok[k] >= save[0] - save[6][k] and save[1] < save[6][k]):
            safe = k
    e.wait(vm=max(e.tok[safe], e.tok[('s', 17, 3)]), lg=e.lg_n)
    e('s_barrier')
    run(q_reads(0))
    e.wait_all(vm=False, lg=True, force=True)
    e.pad(4)
    e('s_branch L_q')
    e.cold_end()
    e.hist = hist
    e.vm_n, e.vm_done, e.lg_n, e.lg_done, e.pvm, e.plg, e.tok, _ = save

    e.label('L_q')
    e.smem_out = 0
    QG = P['qgap']
    vQ = [None, [vBig, vBig + 4], [vBig + 8, vBig + 12]]
    vK = [[vBig + 16 + 8 * t, vBig + 20 + 8 * t] for t in range(3)]
    vV = [[vBig + 40 + 8 * t, vBig + 44 + 8 * t] for t in range(3)]
    nf = [0]

    def f_enq(limit_q, maxn, gap):
        while nf[0] < len(fseq) and QF + nf[0] <= limit_q and nf[0] < maxn:
            f_dma(FORD[nf[0]] if nf[0] < 10 else nf[0], gap)
            nf[0] += 1

    def q_barrier(st):
        key = ('s', 17 + 2 * st, 3) if st < 7 else ('s', QF + 2, 3)
        e.bg_flush(key)
        if st == 7:
            cnt_check(sUck, 7, P['sl3'], unless0=sF)
            stamp('u ok', (1, 3))
        e.wait(vm=max(e.tok[key], tokU if st == P['ust'] else 0), lg=e.lg_n)
        if not P['xp'] & 32768:
            e('s_barrier')
        if st == P['ust']:
            signal(sUfl, True)
            stamp('uflag', (1,))
        stamp(f'Q{st}', (5, 7))
        if st == 1:
            q_dma(4, QG)
        if st == 7:
            rest, e.bg = e.bg, []
            for n in range(PH):
                u_load(n, P['agap'])
            e.bg += rest
        if st + 4 < 7:
            q_dma(st + 4, QG)
        else:
            f_enq(QF + 2 * (st - 3) + 1, 10, QG)

    e.ds_free = True
    e.bg_on = False
    for ks in range(14):
        c = '0' if ks == 0 else None
        ms = []
        for f in range(6):
            part, t = f >> 1, f & 1
            w_ = a(wf(f, ks), 4)
            if part == 0:
                ms += [mf16(vQ[k][t], w_, a(xf(k, ks), 4), c) for k in (1, 2)]
            elif part == 1:
                ms += [mf16(vK[k][t], w_, a(xf(k, ks), 4), c) for k in (1, 2, 0)]
            else:
                ms += [mf16(vV[k][t], a(xf(k, ks), 4), w_, c) for k in (1, 2, 0)]
        if P['xp'] & 2 and ks:
            ms = [m for i, m in enumerate(ms) if i not in (9, 12, 15)]
        last = e.lg_n
        stamp(f'q{ks}', (20,))
        if ks & 1:
            q_barrier((ks + 1) >> 1)
        if ks == P['ureq']:
            e.smem_out = 0
            cnt_req(sUck)
        fpre = {}
        rds = q_reads(ks + 1) if ks < 13 else [t for x in range(DF) for t in tr_reads(QF, x >> 1, x & 1, x)]
        for i, m in enumerate(ms):
            if i == 8:
                stamp(f'q{ks}.5', (20,))
            if i == 0:
                e.wait(lg=last - 6)
            if i == 4:
                e.wait(lg=last)
            e(m)
            n = 1 if i in (3, 15) else 2
            for _ in range(2 if (ks % 2 == 0 and i < P['qrd']) else 1):
                if rds:
                    x_ = (2 * DF - len(rds)) >> 1
                    fpre[x_] = e(rds.pop(0))
                    n -= 1
            while n > 0 and e.bg_step():
                n -= 1
    e.ds_free = False
    e.bg_on = True
    stamp('qkv done', (1, 5, 6, 7))

    vQf = [None, vFr[0], vFr[1]]
    vKf = [vFr[2], vFr[3], vFr[4]]
    vPf = [vFr[5], vFr[6]]
    vVf = [vAcc[1], vAcc[1] + 6]
    vS = [[vAcc[0], vAcc[0] + 4], [vAcc[0] + 8, vAcc[0] + 12]]
    vTm = [[vBig + 64 + 4 * t + k for k in range(4)] for t in range(2)]

    def pack_T(acc, dst):
        for n in range(2):
            for r in range(2):
                e(f'v_cvt_pk_bf16_f32 v{dst + 2 * n + r}, v{acc[n] + 2 * r}, v{acc[n] + 2 * r + 1}')

    for t in (1, 2):
        pack_T(vQ[t], vQf[t])
    for t in (1, 2, 0):
        pack_T(vK[t], vKf[t])
    e(mf16(vS[0][1], v(vKf[1], 4), v(vQf[1], 4), '0'))
    e(mf16(vS[1][0], v(vKf[1], 4), v(vQf[2], 4), '0'))
    e(mf16(vS[1][1], v(vKf[2], 4), v(vQf[2], 4), '0'))
    e(mf16(vS[0][0], v(vKf[0], 4), v(vQf[1], 4), '0'))
    vnorm = []
    for n in range(2):
        for t in range(3):
            for r in range(2):
                vnorm.append(f'v_cvt_pk_bf16_f32 v{vVf[n] + 2 * t + r}, v{vV[t][n] + 2 * r}, v{vV[t][n] + 2 * r + 1}')
    run(vnorm[:6])
    vnorm = vnorm[6:]
    L = [[vTm[0][0], vTm[0][1]], [vTm[1][0], vTm[1][1]]]
    Mx = [vTm[0][2], vTm[1][2]]
    Tm = [vTm[0][3], vTm[1][3]]
    T = range(2)
    for t in (1, 0):
        for z, sc in ((0, sCur0), (1, sCur1)):
            e(f'v_cndmask_b32 v{L[t][z]}, v{vS[t][0] + 2 * z}, v{vS[t][0] + 2 * z + 1}, {s(sPar, 2)}')
            if t == 0:
                e(f'v_cndmask_b32 v{L[t][z]}, v{vNeg}, v{L[t][z]}, {s(sInvd, 2)}')
            e(f'v_cndmask_b32 v{Tm[t]}, v{vS[t][1] + 2 * z}, v{vS[t][1] + 2 * z + 1}, {s(sPar, 2)}')
            e(f'v_cndmask_b32 v{L[t][z]}, v{L[t][z]}, v{Tm[t]}, {s(sc, 2)}')
            e(f'v_mul_f32 v{L[t][z]}, v{L[t][z]}, v{vAs[t][z]}')

    def tree(op):
        for t in T:
            e(f'{op} v{Mx[t]}, v{L[t][0]}, v{L[t][1]}')
        for sw in ('v_permlane16_swap_b32', 'v_permlane32_swap_b32'):
            for t in T:
                e(f'v_mov_b32 v{Tm[t]}, v{Mx[t]}')
            if vnorm:
                e(vnorm.pop(0))
            for t in T:
                e(f'{sw} v{Mx[t]}, v{Tm[t]}')
            for t in T:
                e(f'{op} v{Mx[t]}, v{Mx[t]}, v{Tm[t]}')

    tree('v_max_f32')
    for t in T:
        e(f'v_mul_f32 v{Mx[t]}, v{vCa[t]}, v{Mx[t]}')
    for t in T:
        for z in range(2):
            e(f'v_fma_f32 v{L[t][z]}, v{L[t][z]}, v{vCa[t]}, -v{Mx[t]}')
    for t in T:
        for z in range(2):
            e(f'v_exp_f32 v{L[t][z]}, v{L[t][z]}')
    tree('v_add_f32')
    for t in T:
        e(f'v_rcp_f32 v{Mx[t]}, v{Mx[t]}')
    run(vnorm)
    for t in T:
        for z in range(2):
            e(f'v_mul_f32 v{L[t][z]}, v{L[t][z]}, v{vAs[t][z]}')
    for t in T:
        for z in range(2):
            e(f'v_mul_f32 v{L[t][z]}, v{L[t][z]}, v{Mx[t]}')
    for t in T:
        for z in range(2):
            e(f'v_cvt_pk_bf16_f32 v{L[t][z]}, v{L[t][z]}, v{L[t][z]}')
    for t in T:
        for k in range(4):
            e(f'v_and_b32 v{vPf[t] + k}, v{L[t][k & 1]}, v{vMk + k}')
    vO = [vQ[1], vQ[2]]
    for t in T:
        for n in range(2):
            e(mf16(vO[t][n], v(vVf[n] + 2 * t, 4), v(vPf[t], 4), '0'))
    e(f's_add_u32 s{sC1}, s{sOs}, 16384')
    for t in T:
        pack_T(vO[t], vSt[t])

    def o_stores():
        for t in T:
            tok = e(f'buffer_store_dwordx4 {v(vSt[t], 4)}, v{vL16}, {srd(WS)}, s{sOs + t} offen sc1')
        return tok
    e.bg_flush(('u', P['uo'], 3))
    tokO = o_stores()
    stamp('attn done', (1, 5, 7))
    e(f's_cmp_lg_u32 s{sF}, 0')
    e(f's_cbranch_scc0 L_nof')
    hist = list(e.hist)
    e.cold_begin()
    e.label('L_nof')
    save = (e.vm_n, e.vm_done, e.lg_n, e.lg_done, dict(e.pvm), dict(e.plg), dict(e.tok), nst[0])
    bgs, e.bg = e.bg, []
    e.many(f"""
        v_min_u32 v{t1}, 48, v{vLane}
        s_lshl_b32 s3, s{sD2}, 2
        s_add_u32 s3, s3, s{sW}
        s_mul_i32 s3, s3, {196 * 128}
        v_lshl_add_u32 v{t1}, v{t1}, 7, s3
    """)

    def wo_touch(k):
        if P['touch'] & 2:
            e(f's_add_u32 s3, s2, {k}')
            e(f's_and_b32 s3, s3, 3')
            e(f's_mul_i32 s3, s3, {49 * 128}')
            e(f'buffer_load_dword v{vBig + k}, v{t1}, {srd(WO)}, s3 offen')
    for k in range(P['wopre']):
        wo_touch(k)
    e.wait(vm=tokO)
    e('s_barrier')
    signal(sOfl, True)
    e.smem_out = 0
    for k in range(P['wopre'], 4):
        wo_touch(k)
    e.bg = bgs
    e('s_branch L_fin')
    e.cold_end()
    e.hist = hist
    e.vm_n, e.vm_done, e.lg_n, e.lg_done, e.pvm, e.plg, e.tok, nst[0] = save

    e.label('L_f')
    vE2 = vBig + 40
    vAp = [vBig, vBig + 56]
    assert nf[0] == 10
    fbar = {3: 6, 5: None, 7: 9, 9: 13, 11: None, 13: None}
    if P['flazy']:
        fbar = {3: 6, 5: None, 8: 9, 10: 11, 12: 13, 13: None}
    fbar.update({14 + 2 * g: QO[g] for g in range(4)})
    free = [QF + 9, False]

    def f_more(gap):
        f_enq(free[0], 22 if free[1] else QO[0], gap)

    def o_check():
        cnt_check(sOck, 8, P['sl2'])
        free[1] = True
        e.bg = [(k, f, P['ogap']) for k, f, _ in e.bg]
        f_more(P['ogap'])
    opub = [False]
    nu = [PH]

    def f_stage(i, done):
        if i == P['osig']:
            e.wait(vm=tokO)
        if i in fbar:
            bar(None if fbar[i] is None else QF + fbar[i])
            if i == 20:
                assert done >= QF + 15
            if not opub[0] and e.vm_done >= tokO:
                opub[0] = True
                signal(sOfl, True)
        if i in (0, 2, 4, 6, 8, 10, 12, 14, 18):
            stamp(f'f st{i}', (3,))
        if i in (7, 8, 9, 10, 11, 12, 13, 14, 16, 18, 20):
            stamp(f'f st{i}', (8,))
        gap = P['ogap'] if free[1] else P['fgap']
        rest = [t for t in e.bg if t[0][0] != 'u'] if P['flazy'] else []
        e.bg_settle()
        rest = [t for t in e.bg if t[0][0] != 'u'] if P['flazy'] else []
        e.bg = [t for t in e.bg if t not in rest]
        if nu[0] < 7:
            u_load(nu[0], gap)
            nu[0] += 1
        e.bg += rest
        if i == P['ofq']:
            cnt_req(sOck)
        if i == P['ppub']:
            e.need(('p', 3))
            signal(sPfl, False)
        if i in fbar and i <= 13:
            free[0] = done + 10
            f_more(gap)
        if i == P['pfq']:
            e(f's_xor_b32 s{sPfl}, s{sPfl}, 1024')
            cnt_req(sPfl)

    def p_check():
        cnt_check(sPfl, 1, P['sl1'], few=True)
        e(f'v_xor_b32 v{vPst}, {8 * 16384}, v{vPst}')
        for j in (2, 3, 0, 1):
            bg_ins(('pl', j), [], f'buffer_load_dwordx4 {v(vPr + 4 * j, 4)}, v{vPst}, {srd(WS)}, 0 offen offset:{j * 1024} sc1', 32)

    rs = []
    for q_ in range(2):
        rs.append(f'v_lshlrev_b32 v{vBo[q_]}, 16, v{vBo[q_]}')
        for k in range(4):
            d = vE2 + 8 * q_ + 2 * k
            rs += [f'v_lshlrev_b32 v{d}, 16, v{vXo[q_] + k}', f'v_and_b32 v{d + 1}, 0xffff0000, v{vXo[q_] + k}',
                   f'v_add_f32 v{d}, v{d}, v{vBo[q_]}', f'v_add_f32 v{d + 1}, v{d + 1}, v{vBo[q_]}']
    vPr = vAp[1]

    rs = part_fill(rs, 56, vAp, vPst, 'p')
    rs += [None] * (143 - len(rs)) + [lambda j=j: e(f'ds_write_b128 v{vEw[j & 1]}, {v(vAcc[1] + 4 * j, 4)} offset:{8192 + (j >> 1) * 4096}') for j in range(4)]
    gemm32(fseq, QF, f_stage, True, rs, [], lambda i: vAp if i < 7 else vAcc, 7,
           [(j >> 1, ('pl', j), vPr + 4 * j, j & 1) for j in range(4)],
           {P['ock']: o_check, P['pck']: p_check}, fpre)
    assert opub[0] and not e.bg
    stamp('f done', (1, 3, 8))
    for j in range(4):
        e(f'ds_write_b128 v{vEw[j & 1]}, {v(vAcc[0] + 4 * j, 4)} offset:{(j >> 1) * 4096}')
    e.wait_all(vm=False, lg=True)
    e('s_barrier')
    stamp('epi bar', (3, 20))
    for q_ in range(2):
        for k in range(4):
            e(f'ds_read_b128 {v(vFr[4 * q_ + k], 4)}, v{vEr[k]} offset:{q_ * 2048}')
    for q_ in range(2):
        for k in range(4):
            for r in (0, 2):
                d = vE2 + 8 * q_ + 4 * (k & 1) + r
                e(f'v_pk_add_f32 {v(d, 2)}, {v(d, 2)}, {v(vFr[4 * q_ + k] + r, 2)}')
        for k in range(4):
            d = vE2 + 8 * q_ + 2 * k
            e(f'v_cvt_pk_bf16_f32 v{vSt[q_] + k}, v{d}, v{d + 1}')
        e(f'buffer_store_dwordx4 {v(vSt[q_], 4)}, v{vOo[q_]}, {srd(OUT)}, 0 offen' + ('', ' sc1', ' nt', ' sc0 sc1', ' sc1 nt')[P['outsc']])
    e.label('L_fin')
    if P['stamps']:
        e.wait_all(force=True)
        if nst[0] > 1:
            e(f's_mov_b32 s{sStamp + nst[0] - 1}, s{WQ}')
        e(f's_memrealtime s[{sT2}:{sT3}]')
        e(f's_memtime s[0:1]')
        e.wait_all(vm=False, lg=True, force=True)
        e(f's_mov_b32 s{sStamp + 15}, s{sT2}')
        e(f's_mov_b32 s{sStamp + 14}, s0')
        e(f's_lshl_b32 s3, s2, 2')
        e(f's_add_u32 s3, s3, s{sW}')
        e(f's_lshl_b32 s3, s3, 7')
        e(f's_add_u32 s3, s3, {ST_OFF}')
        if P['stamps'] == 20:
            for k in (ntr[0] - 2, ntr[0] - 1):
                e.raw(f'    v_writelane_b32 v{254 + k // 64}, s{86 + 2 * (k % 3)}, {k % 64}')
            e(f's_sub_u32 s{sT2}, s3, {ST_OFF}')
            e(f's_lshl_b32 s{sT2}, s{sT2}, 3')
            e(f's_add_u32 s{sT2}, s{sT2}, {7 << 20}')
            e(f'v_lshlrev_b32 v{t0}, 2, v{vLane}')
            for k in range(2):
                e(f'buffer_store_dword v{254 + k}, v{t0}, {srd(WS)}, s{sT2} offen offset:{256 * k}')
        for k in range(16):
            e(f'v_mov_b32 v{t0}, s{sStamp + k}')
            e(f'buffer_store_dword v{t0}, v{vFl}, {srd(WS)}, s3 offen offset:{4 * k}')
    if P['probe'] >= 0:
        e.wait_all(force=True)
        if P['probe'] >= 98:
            e(f'{"s_memtime" if P["probe"] == 98 else "s_memrealtime"} s[{sT2}:{sT3}]')
            e.wait_all(vm=False, lg=True, force=True)
            e(f's_mov_b32 s{sStamp}, s{sT2}')
        if P['probe'] == 98:
            e(f's_sub_u32 s{sStamp}, s{sStamp}, s{sStamp + 13}')
            e(f's_lshr_b32 s{sStamp}, s{sStamp}, 4')
            e(f's_add_u32 s{sStamp}, s{sStamp}, s{sNon}')
        e(f's_sub_u32 s{sCnt}, s{sStamp}, s{sNon}')
        e(f's_max_i32 s{sCnt}, s{sCnt}, 0')
        e(f's_min_i32 s{sCnt}, s{sCnt}, 4000')
        e(f's_lshl_b32 s{sCnt}, s{sCnt}, 2')
        e(f's_add_u32 s{sCnt}, s{sCnt}, 4000')
        e.label('L_fix')
        e(f's_memrealtime s[{sT2}:{sT3}]')
        e.wait_all(vm=False, lg=True, force=True)
        e(f's_sub_u32 s3, s{sT2}, s{sNon}')
        e(f's_cmp_lt_u32 s3, s{sCnt}')
        e(f's_cbranch_scc1 L_fix')
    e.label('L_end')
    e('s_endpgm')
    if P['iwarm']:
        e.lines = page_pads(e.lines, e.cold)
    e.lines += e.cold + ['L_last:', '    s_endpgm']

    if P['align']:
        e.lines = align_pass(e.lines, P['align'])
    hdr = open(os.path.join(os.path.dirname(os.path.abspath(__file__)), '..', NAME + '.s.ref')).read().split('; Override launch')[0]
    out = hdr + f"""; Generated by gen/gen.py (hand-written generator).{' cyc' if P['cyc'] else ''}
; @launch grid=(256,1,1) block=(256,1,1) lds={LDS_SIZE}
.amdgcn_target "amdgcn-amd-amdhsa--gfx950"
.text
.globl {NAME}_kernel
.p2align 8
.type {NAME}_kernel,@function
{NAME}_kernel:
""" + e.text() + f""".section .rodata,"a"
.p2align 6
.amdhsa_kernel {NAME}_kernel
  .amdhsa_next_free_vgpr 512
  .amdhsa_next_free_sgpr 102
  .amdhsa_accum_offset 256
  .amdhsa_group_segment_fixed_size 0
  .amdhsa_kernarg_size 88
  .amdhsa_user_sgpr_count 2
  .amdhsa_user_sgpr_kernarg_segment_ptr 1
  .amdhsa_system_sgpr_workgroup_id_x 1
.end_amdhsa_kernel
"""
    sys.stderr.write(f'vgpr hi {V.hi}, nops {e.nnop}, lines {len(e.lines)}\n')
    return out


def ins_sizes(lines):
    import subprocess, tempfile, re
    with tempfile.TemporaryDirectory() as d:
        open(d + '/a.s', 'w').write('.amdgcn_target "amdgcn-amd-amdhsa--gfx950"\n.text\n' + '\n'.join(lines) + '\n')
        subprocess.run(['clang', '-x', 'assembler', '-target', 'amdgcn-amd-amdhsa', '-mcpu=gfx950', '-c', d + '/a.s', '-o', d + '/a.o'], check=True)
        dis = subprocess.run(['llvm-objdump', '-d', '--mcpu=gfx950', d + '/a.o'], capture_output=True, text=True, check=True).stdout
    sizes = [4 * len(m.group(1).split()) for m in re.finditer(r'// [0-9A-F]+: ((?:[0-9A-F]{8} ?)+)', dis)]
    idx = [i for i, l in enumerate(lines) if l.startswith('    ') and not l.strip().startswith(';')]
    assert len(idx) == len(sizes), (len(idx), len(sizes))
    return dict(zip(idx, sizes))


def page_pads(lines, cold):
    NP = 7 if len(lines) > 4000 else 5
    jumps = ['    s_add_u32 s3, s3, 4']
    for k in range(NP):
        jumps += [f'    s_cmp_eq_u32 s3, {k + 4}', f'    s_cbranch_scc1 L_pad{k}']
    i = lines.index(';;PADJUMPS')
    lines = lines[:i] + jumps + lines[i + 1:]
    is_al = lambda l: l.startswith('.p2align')
    sz = ins_sizes([';' if is_al(l) else l for l in lines] + cold + ['L_last:'] + [f'L_pad{k}:' for k in range(NP)])
    out, off, k = [], None, 0
    for i, l in enumerate(lines):
        if is_al(l):
            off = 0
        if off is not None and i in sz:
            if off >= 4096 * (k + 1):
                out += [f'L_pad{k}:', '    s_cbranch_execz L_warm']
                off += 4
                k += 1
            off += sz[i]
        out.append(l)
    assert k <= NP, k
    for kk in range(k, NP):
        j = out.index(f'    s_cbranch_scc1 L_pad{kk}')
        out[j] = '    s_nop 0'
    sys.stderr.write(f'{k} page pads, hot path behind the anchor {off} bytes\n')
    return out


def align_pass(lines, minrun):
    import subprocess, tempfile, re
    with tempfile.TemporaryDirectory() as d:
        open(d + '/a.s', 'w').write('.amdgcn_target "amdgcn-amd-amdhsa--gfx950"\n.text\n' + '\n'.join(lines) + '\n')
        subprocess.run(['clang', '-x', 'assembler', '-target', 'amdgcn-amd-amdhsa', '-mcpu=gfx950', '-c', d + '/a.s', '-o', d + '/a.o'], check=True)
        dis = subprocess.run(['llvm-objdump', '-d', '--mcpu=gfx950', d + '/a.o'], capture_output=True, text=True, check=True).stdout
    sizes = [4 * len(m.group(1).split()) for m in re.finditer(r'// [0-9A-F]+: ((?:[0-9A-F]{8} ?)+)', dis)]
    idx = [i for i, l in enumerate(lines) if l.startswith('    ') and not l.strip().startswith(';')]
    assert len(idx) == len(sizes), (len(idx), len(sizes))
    ok = re.compile(r'^\s+(v_(?:mov|add|sub|subrev|mul|max|min|and|or|xor|lshlrev|lshrrev|exp|rcp|rsq|cndmask|fmac|mul_u32)_?[a-z0-9_]*) ')
    off, last, n, bad = 0, None, 0, 0
    out = list(lines)
    for k, i in enumerate(idx):
        if sizes[k] == 8 and off % 8:
            if last is not None:
                m = ok.match(out[last])
                out[last] = out[last].replace(m.group(1), m.group(1) + '_e64', 1)
                off += 4
                n += 1
            else:
                run = 0
                while k + run < len(sizes) and sizes[k + run] == 8:
                    run += 1
                if minrun > 1 and run >= minrun:
                    out[i] = '    s_nop 0\n' + out[i]
                    off += 4
                    n += 1000
                else:
                    bad += 1
        if sizes[k] == 8 and off % 8 == 0:
            last = None
        elif sizes[k] == 4 and ok.match(lines[i]):
            last = i
        off += sizes[k]
    sys.stderr.write(f'align: {n} promoted, {bad} 8-byte instructions left misaligned\n')
    return out


if __name__ == '__main__':
    kw = {}
    path = os.path.join(os.path.dirname(os.path.abspath(__file__)), '..', NAME + '.s')
    for arg in sys.argv[1:]:
        k, val = arg.split('=')
        if k == 'out':
            path = val
        else:
            kw[k] = int(val)
    open(path, 'w').write(build(**kw))
```

```python
import sys, os, math, struct
sys.path.insert(0, os.path.dirname(os.path.abspath(__file__)))
from emit import Asm, Regs, v, a, s

NAME = 'parallel_sum__sliding_local_dilated__mixer_token_mlp__prompt'

DEF = dict(
    stamps=0,
    probe=-1,
    cyc=0,
    gpub=11,
    gfq=13,
    gck=112,
    xdel=3,
    fqmax=2,
    iwarm=1,
    w1late=0,
    oord=1,
    t1x=1,
    xbf=0,
    pert=0,
    pel=7,
    nowait=0,
    sigall=0,
    wopre=1,
    w2pos=0,
    rsl=1,
    rt=1,
    sl1=4,
    sl2=8,
    sl3=8,
    hspec=0,
    jitter=0,
    outsc=0,
    flazy=1,
    psp=0,
    ggap=52,
    gpause=0,
    fpause=0,
    upause=0,
    gflush=0,
    hsc=1,
    hwarm=0,
    cglc=0,
    wfq=5,
    nt1=3,
    align=0,
    rpos=1,
    gord=1,
    ntw=2,
    ph=3,
    hinit=3,
    hgap=56,
    hpos=5,
    qrd=0,
    ureq=10,
    wck=58,
    ock=88,
    osig=3,
    hold=0,
    df=6,
    w1pre=4,
    w1mid=4,
    w1flag=28,
    w1chk=4,
    hlead=1,
    qrot=0,
    ppub=11,
    pfq=14,
    pck=118,
    ofq=9,
    pu=3,
    xrot=2,
    qg1=56,
    ust=2,
    qgap=50,
    hsleep=4,
    rmask=7,
    pread=0,
    xp=0,
    ogap=48,
    fgap=60,
    agap=56,
    uo=2,
    hrep=8,
    touch=2,
    codepf=1,
    spin=20000,
)


def f32(x):
    return '0x%08x' % struct.unpack('<I', struct.pack('<f', x))[0]


H_OFF = 0
U_OFF = 2 << 20
O_OFF = 4 << 20
RS_OFF = 6 << 20
CN_OFF = RS_OFF + 0x10000
GF_OFF = RS_OFF + 0x20000
PF_OFF = RS_OFF + 0x30000
WP_OFF = 8 << 20
FL_OFF = 10 << 20
HF_OFF = FL_OFF
ST_OFF = 11 << 20
P_OFF = 12 << 20
G_OFF = 16 << 20
WS_SIZE = 20 << 20
OOB = 0x10000000

LDS_SIZE = 163840
SLOT = 16384
NSLOT = 10
PH_B = 9 * SLOT
PR_B = PH_B + 8192
EPI_B = 2 * SLOT
EXC_B = 2 * SLOT

X, WQ, WO, W1, W2, WS, OUT, B1, B2, DBG = 8, 12, 16, 20, 24, 28, 32, 36, 40, 44
sGsW, sGsH = 0, 1
sKh, sNh, sT2, sT3 = 4, 5, 6, 7
sW, sK32, sJ, sFT, sD, sS, sD2, sG1, sF, sNon, sM, sM3, sCnt, sBg = range(48, 62)
sXs, sWs, sGs2, sGsU, sRo, sUst, sUfl, sOfl = range(62, 70)
sPar, sCur0, sCur1, sInvd, sGc, sOne = 70, 72, 74, 76, 78, 80
sOs, sC1, sMh, sIdx = 82, 83, 100, 101
sOne1, sGfl, sUck, sOck = B1, B1 + 1, B1 + 2, B1 + 3
sChk, sWck = WQ + 2, WQ + 3
sZero = sMh
sR2 = sFT
sPfl = sG1
sStamp = 84


def srd(r):
    return s(r, 4)


def lanemask(fn):
    m = 0
    for l in range(64):
        if fn(l):
            m |= 1 << l
    return m


def build(**kw):
    P = dict(DEF)
    P.update(kw)
    assert P['wck'] <= 64 and P['df'] == 6
    e = Asm()
    V = Regs('v', 1, 256)
    nst = [0]
    npr = [0]
    ntr = [0]

    def stamp(name='', sets=(1,)):
        if P['probe'] >= 0 and 1 in sets:
            npr[0] += 1
            if npr[0] == P['probe']:
                e.comment(f'probe {name}')
                e(f's_memrealtime s[{sT2}:{sT3}]')
                e.wait_all(vm=False, lg=True, force=True)
                e(f's_mov_b32 s{sStamp}, s{sT2}')
        if P['jitter']:
            k = ntr[0]
            ntr[0] += 1
            e(f's_mul_i32 s{sStamp}, s{sStamp}, 1664525')
            e(f's_add_u32 s{sStamp}, s{sStamp}, 1013904223')
            e(f's_lshr_b32 s{sStamp + 1}, s{sStamp}, {32 - P["jitter"]}')
            e(f's_cbranch_scc1 L_jit{k}')
            e(f's_sleep {(8, 40, 100)[k % 3]}')
            e.label(f'L_jit{k}')
            return
        if P['stamps'] == 20:
            if sets in ((1,), (1, 4), (4,), (1, 2, 4), (1, 2, 9), (1, 2, 5, 9), (9, 20), (20,), (1, 5, 7), (1, 3), (1, 3, 8), (3, 20), (1, 5, 6, 7)):
                k = ntr[0]
                ntr[0] += 1
                p = 86 + 2 * (k % 3)
                if k >= 2:
                    q = 86 + 2 * ((k - 2) % 3)
                    e.raw(f'    v_writelane_b32 v{254 + (k - 2) // 64}, s{q}, {(k - 2) % 64}')
                e.raw(f'    s_memtime s[{p}:{p + 1}]')
            return
        if P['stamps'] not in sets:
            return
        k = nst[0]
        nst[0] += 1
        assert k < 13
        if k > 1:
            e(f's_mov_b32 s{sStamp + k - 1}, s{WQ}')
        e(f'{"s_memtime" if P["cyc"] else "s_memrealtime"} s[{WQ}:{WQ + 1}]')

    def setmask(r, m):
        return [f's_mov_b32 s{r}, 0x{m & 0xffffffff:08x}', f's_mov_b32 s{r + 1}, 0x{m >> 32:08x}']

    def run(lst):
        for t in lst:
            e.many(t)

    def merge(main, fill, per=1, every=1):
        fill = list(fill)
        for i, t in enumerate(main):
            e.many(t)
            if (i + 1) % every == 0:
                for _ in range(per):
                    if fill:
                        e.many(fill.pop(0))
        return fill

    def bg_dma(key, pre, sr, voff, soff, off, gap, mod=''):
        o = f' offset:{off}' if off else ''
        e.bg_add(key, list(pre) + [f'buffer_load_dwordx4 v{voff}, {srd(sr)}, s{soff} offen{o}{mod} lds'], gap)

    def bg_ins(key, pre, ins, gap):
        e.bg_add(key, list(pre) + [ins], gap)

    def mf16(d, A, B, c=None):
        return f'v_mfma_f32_16x16x32_bf16 {v(d, 4)}, {A}, {B}, {v(d, 4) if c is None else c}'

    def mf32(d, A, B, c=None):
        return f'v_mfma_f32_32x32x16_bf16 {v(d, 16)}, {A}, {B}, {v(d, 16) if c is None else c}'

    def mfs(d, A, B):
        return f'v_mfma_f32_16x16x4_f32 {v(d, 4)}, v{A}, v{B}, 0'

    npoll = [0]

    def flag_load(voff, vdst, n=1):
        return f'buffer_load_dword{"x2" if n == 2 else ""} {v(vdst, n)}, v{voff}, {srd(WS)}, 0 offen sc1'

    def flag_check(voff, vdst, sleep, n=1):
        k = npoll[0]
        npoll[0] += 1
        on, e.bg_on = e.bg_on, False
        e.bg_settle()
        cmp_ = [f'v_cmp_ne_u32 vcc, s{sNon}, v{vdst}'] if n == 1 else \
               [f'v_xor_b32 v{vdst}, s{sNon}, v{vdst}', f'v_xor_b32 v{vdst + 1}, s{sNon}, v{vdst + 1}',
                f'v_or_b32 v{vdst}, v{vdst}, v{vdst + 1}', f'v_cmp_ne_u32 vcc, 0, v{vdst}']
        run(cmp_)
        e(f's_cbranch_vccnz L_pollin{k}')
        e.cold_begin()
        e.label(f'L_pollin{k}')
        e.raw(f'    s_mov_b32 s{sCnt}, 0')
        e.label(f'L_poll{k}')
        e.raw(f'    s_sleep {sleep}')
        e.raw('    ' + flag_load(voff, vdst, n))
        e.raw(f'    s_add_u32 s{sCnt}, s{sCnt}, 1')
        e.raw(f'    s_waitcnt vmcnt(0)')
        for t in cmp_:
            e.raw('    ' + t)
        e.raw(f'    s_cbranch_vccz L_pollok{k}')
        e.raw(f'    s_cmp_lt_u32 s{sCnt}, {P["spin"]}')
        e.raw(f'    s_cbranch_scc1 L_poll{k}')
        e.raw(f'    s_branch L_pollok{k}')
        e.cold_end()
        e.label(f'L_pollok{k}')
        e.bg_on = on

    nsg = [0]

    def signal(soff, wg, base=WS):
        k = nsg[0]
        nsg[0] += 1
        wg = wg and not P['sigall']
        if wg:
            e(f's_cmp_lg_u32 s{sW}, 0')
            e(f's_cbranch_scc1 L_sig{k}')
        e(f's_atomic_add s{sOne1}, s[{base}:{base + 1}], s{soff}')
        if wg:
            e.label(f'L_sig{k}')
        e.smem_out += 1

    def cnt_req(soff, base=WS):
        if P['nowait']:
            e(f's_mov_b32 s{sChk}, 0')
        e(f's_load_dword s{sChk}, s[{base}:{base + 1}], s{soff}' + (' glc' if P['cglc'] else ''))
        e.smem_out += 1

    def cnt_check(soff, target, sleep, base=WS, unless0=None, few=False):
        k = npoll[0]
        npoll[0] += 1
        if P['nowait']:
            e.smem_out = max(e.smem_out - 1, 0)
        else:
            e.wait_all(vm=False, lg=True, force=True)
        e(f's_cmp_ge_u32 s{sChk}, {target}')
        e(f's_cbranch_scc0 L_pollin{k}')
        e.cold_begin()
        e.label(f'L_pollin{k}')
        if P['nowait']:
            e.raw(f'    s_waitcnt lgkmcnt(0)')
            e.raw(f'    s_cmp_ge_u32 s{sChk}, {target}')
            e.raw(f'    s_cbranch_scc1 L_pollok{k}')
        if unless0 is not None:
            e.raw(f'    s_cmp_eq_u32 s{unless0}, 0')
            e.raw(f'    s_cbranch_scc1 L_pollok{k}')
        e.raw(f'    s_mov_b32 s{sCnt}, 0')
        if P['rt'] & 1:
            e.raw(f'    s_branch L_poll{k}a')
        e.label(f'L_poll{k}')
        e.raw(f'    s_sleep {sleep}')
        e.label(f'L_poll{k}a')
        if P['rt'] & 2 and few:
            e.raw(f'    s_load_dword s{sChk}, s[{base}:{base + 1}], s{soff} glc')
            e.raw(f'    s_add_u32 s{sCnt}, s{sCnt}, 1')
            e.raw(f'    s_waitcnt lgkmcnt(0)')
        else:
            e.raw(f'    buffer_load_dword v{vFv}, off, {srd(base)}, s{soff} sc1')
            e.raw(f'    s_add_u32 s{sCnt}, s{sCnt}, 1')
            e.raw(f'    s_waitcnt vmcnt(0)')
            e.raw(f'    v_readfirstlane_b32 s{sChk}, v{vFv}')
            e.raw(f'    s_nop 0')
        e.raw(f'    s_cmp_ge_u32 s{sChk}, {target}')
        e.raw(f'    s_cbranch_scc1 L_pollok{k}')
        e.raw(f'    s_cmp_lt_u32 s{sCnt}, {P["spin"]}')
        e.raw(f'    s_cbranch_scc1 L_poll{k}')
        e.raw(f'    s_branch L_pollok{k}')
        e.cold_end()
        e.label(f'L_pollok{k}')

    def wrap(r, step, n):
        return [f's_add_u32 s{r}, s{r}, {step}', f's_cmp_eq_u32 s{r}, {step * n}', f's_cselect_b32 s{r}, 0, s{r}']

    FORD = [7, 0, 1, 2, 3, 4, 5, 6, 8, 9]

    def slot_of(q):
        k = q % NSLOT
        if q >= 30:
            k = FORD.index(k)
        if q >= 20:
            k = (0, 1, 4, 5, 2, 3, 6, 7, 8, 9)[k]
        return k * SLOT

    def pop(n):
        for _ in range(n):
            if e.bg:
                e._bg_pop()

    def publish(tok, soff):
        e.wait(vm=tok)
        return e(f'buffer_store_dword v{vNon}, v{vFl}, {srd(WS)}, s{soff} offen sc1')

    vLane, vL15, vG, vL16, vR8, vC8, vR4, vC4, vHi, vL31, vFl, vNon = [V.alloc() for _ in range(12)]
    t0, t1, t2, t3 = [V.alloc() for _ in range(4)]
    vFv = V.alloc(2)
    vFoH, vPst, vGs2, vGst, vDum = [V.alloc() for _ in range(5)]
    vCa = [V.alloc(), V.alloc()]
    vAs = [[V.alloc(), V.alloc()], [V.alloc(), V.alloc()]]
    e.dummy_ds = f'ds_read_b32 v{vDum}, v{vL16}'
    vPat = [[V.alloc() for _ in range(4)] for _ in range(3)]
    vPatW = [[V.alloc(), V.alloc()] for _ in range(2)]
    vOr = [[V.alloc(), V.alloc()] for _ in range(3)]
    vLin = [vL16, V.alloc(), V.alloc()]
    vD1 = [V.alloc() for _ in range(4)]
    vD2 = [V.alloc() for _ in range(4)]
    vDo = [V.alloc() for _ in range(2)]
    vOd = [V.alloc() for _ in range(2)]
    vXd = [V.alloc() for _ in range(3)]
    vXr = [[V.alloc(), V.alloc()] for _ in range(3)]
    vRs, vRsa = V.alloc(), V.alloc()
    vHo, vUo, vWp, vEx, vBa, vSw, vNeg = [V.alloc() for _ in range(7)]
    vOo = [V.alloc(), V.alloc()]
    vEw = [V.alloc() for _ in range(2)]
    vEr = [V.alloc() for _ in range(4)]
    vBo = [V.alloc(), V.alloc()]
    vXo = [V.alloc(4), V.alloc(4)]
    vMk = V.alloc(4)
    vC0 = V.alloc(2)
    vSt = [V.alloc(4), V.alloc(4)]
    NF = 8
    vFr = [V.alloc(4) for _ in range(NF)]
    vAcc = [V.alloc(16), V.alloc(16)]
    vBig = V.alloc(72)
    vE = vBig

    e('s_cmp_ge_u32 s2, 256')
    e('s_cbranch_scc1 L_end')
    for r, off in ((X, 0), (W1, 32), (WS, 80), (DBG, 72), (WQ, 8), (WO, 16), (W2, 48), (OUT, 64), (B1, 40), (B2, 56)):
        e(f's_load_dwordx2 {s(r, 2)}, s[0:1], {off}')
    sClk = 78
    e(f's_memrealtime s[{sClk}:{sClk + 1}]')
    if P['codepf']:
        e(f's_getpc_b64 s[6:7]')
        e.label('L_pc')
        e(f's_and_b32 s3, s2, 0xf8')
        e(f'v_lshrrev_b32 v{t0}, 5, v0')
        e(f'v_add_lshl_u32 v{t0}, s3, v{t0}, 7')
        e(f'v_min_u32 v{t0}, L_last-L_pc, v{t0}')
        e(f'global_load_dword v{vFv}, v{t0}, s[6:7]')
    vX = vBig
    vF = vBig + 8
    vG2 = vBig + 24
    vAB = vBig + 40
    vS_, vQ_, vT_, vU_ = vBig + 44, vBig + 45, vBig + 46, vBig + 47
    vLw, vLh, vLx, vHs = vBig + 48, vBig + 49, vBig + 50, vBig + 51
    tp = vBig + 52
    vFr8, vLr, vRo = vBig + 54, vBig + 55, vBig + 56
    sHrd = sC1
    e.many(f"""
        v_lshrrev_b32 v{t0}, 6, v0
        v_and_b32 v{vL31}, 31, v0
        v_readfirstlane_b32 s{sW}, v{t0}
        v_bfe_u32 v{vHi}, v0, 5, 1
        v_mul_u32_u24 v{t1}, 896, v{vHi}
        v_lshl_add_u32 v{t1}, v{vL31}, 4, v{t1}
        v_cmp_gt_u32 vcc, 28, v{vL31}
        v_mov_b32 v{t2}, {OOB}
        s_mov_b32 s{X + 2}, {2048 * 896}
        s_mov_b32 s{X + 3}, 0x20000
        v_cndmask_b32 v{t1}, v{t2}, v{t1}, vcc
        s_lshr_b32 s{sKh}, s{sW}, 1
        s_and_b32 s{sNh}, s{sW}, 1
        s_and_b32 s3, s2, 0xfe
        s_add_u32 s3, s3, s{sKh}
        s_lshl_b32 s3, s3, 1
        s_and_b32 s{sCnt}, s2, 1
        s_add_u32 s3, s3, s{sCnt}
        s_lshl_b32 s3, s3, 1
        s_add_u32 s3, s3, s{sNh}
        s_mul_i32 s3, s3, {2 * 896}
    """)
    e.wait_all(vm=False, lg=True, force=True)
    if P['stamps'] or P['probe'] == 98:
        e(f's_memtime s[0:1]')
        e.wait_all(vm=False, lg=True, force=True)
        e(f's_mov_b32 s{sStamp + 13}, s0')
    e(f'buffer_load_dwordx4 {v(vX, 4)}, v{t1}, {srd(X)}, s3 offen')
    e(f'buffer_load_dwordx4 {v(vX + 4, 4)}, v{t1}, {srd(X)}, s3 offen offset:448')
    if P['stamps'] or P['probe'] >= 0:
        e(f's_mov_b32 s{sStamp}, s{sClk}')
        nst[0] = 1
    if P['jitter']:
        e(f's_lshl_b32 s3, s2, 2')
        e(f's_add_u32 s3, s3, s{sW}')
        e(f's_mul_i32 s3, s3, 0x9e3779b1')
        e(f's_add_u32 s{sStamp}, s3, s{sClk}')
    sPair, sOdd, sXcd = sT2, sT3, sBg
    e.many(f"""
        v_and_b32 v{vLane}, 63, v0
        s_mov_b32 s{DBG + 2}, 256
        s_mov_b32 s{DBG + 3}, 0x20000
        s_lshl_b32 s3, s{sW}, 8
        s_add_u32 s3, s3, s2
        s_cmp_lt_u32 s3, 8
        s_cselect_b32 s3, 0, {OOB}
        s_or_b32 s{sClk}, s{sClk}, 1
        v_mov_b32 v{tp}, s{sClk}
        v_mov_b32 v{tp + 1}, 0
        v_lshlrev_b32 v{vFl}, 25, v{vLane}
        buffer_atomic_cmpswap {v(tp, 2)}, v{vFl}, {srd(DBG)}, s3 offen sc1
        s_bfe_u32 s{sPair}, s2, 0x20001
        s_and_b32 s{sOdd}, s2, 1
        s_and_b32 s{sXcd}, s2, 7
        s_lshr_b32 s{sIdx}, s2, 3
        s_mul_i32 s{sD}, s{sOdd}, 25
        s_add_u32 s{sD}, s{sD}, s{sIdx}
        s_mul_i32 s{sFT}, s{sD}, 37
        s_lshr_b32 s{sFT}, s{sFT}, 8
        s_mul_i32 s3, s{sFT}, 7
        s_sub_u32 s{sD}, s{sD}, s3
    """)
    e.many(f"""
        s_and_b32 s3, s{sPair}, 1
        s_mul_i32 s3, s3, 6
        s_add_u32 s{sFT}, s{sFT}, s3
        s_add_u32 s{sFT}, s{sFT}, 1
        s_add_u32 s3, s3, s{sFT}
        s_cmp_eq_u32 s3, 7
        s_cselect_b32 s{sFT}, 0, s{sFT}
        s_lshr_b32 s{sM3}, s{sPair}, 1
        s_lshl_b32 s{sFT}, s{sFT}, 1
        s_add_u32 s{sFT}, s{sFT}, s{sM3}
        s_max_u32 s{sCnt}, s{sIdx}, 25
        s_sub_u32 s{sCnt}, s{sCnt}, 25
        s_add_u32 s3, s{sIdx}, s{sOdd}
        s_cmp_lt_u32 s3, 25
        s_cselect_b32 s{sG1}, 1, 0
        s_cselect_b32 s{sD}, s{sD}, s{sCnt}
        s_mov_b32 s{W1 + 2}, {2048 * 3584}
        s_mov_b32 s{W1 + 3}, 0x20000
        s_lshl_b32 s3, s{sD}, 1
        s_sub_u32 s{sCnt}, s3, 7
        s_cmp_ge_u32 s3, 7
        s_cselect_b32 s3, s{sCnt}, s3
        s_and_b32 s3, s3, {P['rmask']}
        s_mul_i32 s{sCnt}, s{sXcd}, {P['xrot']}
        s_add_u32 s3, s3, s{sCnt}
        s_and_b32 s3, s3, 7
        s_mul_i32 s{sGsW}, s3, {128 * 3584}
        s_lshl_b32 s{sGsH}, s3, 13
        s_lshl_b32 s{sM}, s{sW}, 12
        v_lshrrev_b32 v{vG}, 4, v{vLane}
        v_lshrrev_b32 v{vR8}, 3, v{vLane}
        v_and_b32 v{vC8}, 7, v{vLane}
        v_lshlrev_b32 v{t1}, 1, v{vG}
        v_xor_b32 v{t1}, v{t1}, v{vC8}
        v_lshlrev_b32 v{vSw}, 4, v{t1}
        s_cmp_eq_u32 s{sG1}, 0
        s_cbranch_scc1 L_nog1
    """)
    save0 = (e.vm_n, e.vm_done, e.lg_n, e.lg_done, dict(e.pvm), dict(e.plg), dict(e.tok))
    e.many(f"""
        v_mul_u32_u24 v{t1}, 3584, v{vR8}
        s_lshl_b32 s3, s{sM3}, 5
        s_add_u32 s3, s3, s{sW}
        s_mul_i32 s3, s3, {32 * 3584}
        s_lshl_b32 s{sCnt}, s{sFT}, 7
        s_add_u32 s3, s3, s{sCnt}
        v_add3_u32 v{vD1[0]}, v{t1}, v{vSw}, s3
        v_add_u32 v{vD1[1]}, {16 * 3584 - 1024}, v{vD1[0]}
        v_add_u32 v{vD1[2]}, {8 * 3584 - 2048}, v{vD1[0]}
        v_add_u32 v{vD1[3]}, {3 * (8 * 3584 - 1024)}, v{vD1[0]}
    """)

    def w1_dma(q, gap):
        for k in range(4):
            pre = [f's_add_u32 m0, s{sM}, {slot_of(q)}'] + wrap(sGsW, 128 * 3584, 8) * (0 if P['xp'] & 8192 else ({0: 0} if P['gord'] else {8: 0, 0: 0, 9: 2}).get(q, 1)) if k == 0 else []
            if q in ((0, 8) if P['gord'] else (0, 9)):
                pre = pre + [f'v_xor_b32 v{vD1[k]}, 128, v{vD1[k]}']
            bg_dma(('s', q, k), pre, W1, vD1[k], sGsW, k * 1024, gap)

    vB1 = vBig + 64
    e.many(f"""
        s_mov_b32 s{B1 + 2}, 3584
        s_mov_b32 s{B1 + 3}, 0x20000
        v_lshlrev_b32 v{t0}, 3, v{vG}
        s_lshl_b32 s3, s{sFT}, 1
        s_add_u32 s3, s3, s{sKh}
        s_lshl_b32 s3, s3, 6
    """)
    for j in range(2):
        e(f'buffer_load_dwordx2 {v(vB1 + 2 * j, 2)}, v{t0}, {srd(B1)}, s3 offen offset:{32 * j}')
    e.bg_on = False
    for q in (range(9) if P['gord'] else (8, 0, 1, 2, 3, 4, 5, 6, 7)):
        w1_dma(q, 64)
    if P['w1late'] == 0:
        pop(P['w1pre'])
    sHs0, sHs1, sHfl, sEps, sInv, sOnes = 70, 71, 74, 75, 76, 77
    sRs, sHf2 = 72, 73
    def res_loads():
        for q_ in range(2):
            e(f'buffer_load_dwordx4 {v(vXo[q_], 4)}, v{vOo[q_]}, {srd(X)}, 0 offen')
            e(f'buffer_load_ushort v{vBo[q_]}, v{vBa}, {srd(B2)}, 0 offen offset:{16 * q_}')

    def p0_body(sets):
        e.many(f"""
            s_mul_i32 s{sS}, s{sIdx}, 37
            s_lshr_b32 s{sS}, s{sS}, 8
            s_mul_i32 s{sD2}, s{sS}, 7
            s_sub_u32 s{sD2}, s{sIdx}, s{sD2}
            s_and_b32 s{sS}, s{sS}, 3
            s_lshl_b32 s3, s{sPair}, 2
            s_add_u32 s{sS}, s{sS}, s3
            s_lshl_b32 s{sS}, s{sS}, 1
            s_add_u32 s{sS}, s{sS}, s{sOdd}
        """)
        e.many(f"""
            s_mov_b32 s{B2 + 2}, 4096
            s_mov_b32 s{B2 + 3}, 0x20000
            s_lshl_b32 s3, s{sS}, 2
            s_add_u32 s3, s3, s{sW}
            s_lshl_b32 s{sCnt}, s3, 5
            v_lshl_add_u32 v{vBa}, v{vR8}, 1, s{sCnt}
            s_mul_i32 s3, s3, {16 * 896}
            s_lshl_b32 s{sCnt}, s{sD2}, 7
            s_add_u32 s3, s3, s{sCnt}
            v_mul_u32_u24 v{t1}, 896, v{vR8}
            v_lshl_add_u32 v{t1}, v{vC8}, 4, v{t1}
            v_add_u32 v{vOo[0]}, s3, v{t1}
            v_add_u32 v{vOo[1]}, {8 * 896}, v{vOo[0]}
        """)
        if P['rpos'] == 0:
            res_loads()
        if P['w1late'] == 1:
            pop(P['w1pre'])
        e.many(f"""
            s_cmp_lt_u32 s{sIdx}, 28
            s_cselect_b32 s{sF}, 1, 0
            s_lshl_b32 s{sJ}, s{sOdd}, 3
            s_and_b32 s3, s{sIdx}, 7
            s_add_u32 s{sJ}, s{sJ}, s3
            s_lshr_b32 s{sCnt}, s{sIdx}, 3
            s_lshl_b32 s{sK32}, s{sPair}, 2
            s_add_u32 s{sK32}, s{sK32}, s{sCnt}
            s_lshl_b32 s{sK32}, s{sK32}, 2
            s_add_u32 s{sK32}, s{sK32}, s{sW}
            s_mul_i32 s{sCnt}, s{sCnt}, {2 * P['qrot']}
            s_add_u32 s3, s3, s{sCnt}
            s_sub_u32 s{sCnt}, s3, 7
            s_cmp_ge_u32 s3, 7
            s_cselect_b32 s3, s{sCnt}, s3
            s_lshl_b32 s{sXs}, s3, 18
            s_mul_i32 s{sWs}, s3, 12288
            s_mov_b32 s{WS + 2}, {WS_SIZE}
            s_mov_b32 s{WS + 3}, 0x20000
            s_mov_b32 s{sEps}, {f32(1e-5)}
            s_mov_b32 s{sInv}, {f32(1.0 / 448)}
            s_mov_b32 s{sOnes}, 0x3f803f80
            v_lshlrev_b32 v{vL16}, 4, v{vLane}
            v_bfe_u32 v{vR4}, v{vLane}, 2, 2
            v_and_b32 v{vC4}, 3, v{vLane}
            v_mul_u32_u24 v{t0}, 960, v{vHi}
            v_lshl_add_u32 v{t0}, v{vL31}, 4, v{t0}
            s_mul_i32 s3, s{sW}, 1920
            s_add_u32 s3, s3, {PH_B}
            v_add_u32 v{vLw}, s3, v{t0}
            v_mul_u32_u24 v{t0}, 960, v{vR4}
            v_lshl_add_u32 v{t0}, v{vG}, 5, v{t0}
            v_lshl_add_u32 v{t0}, v{vC4}, 3, v{t0}
            s_lshl_b32 s3, s{sW}, 8
            s_add_u32 s3, s3, {PH_B}
            v_add_u32 v{vLh}, s3, v{t0}
            s_lshl_b32 s3, s{sW}, 3
            s_add_u32 s3, s3, {PR_B}
            v_lshl_add_u32 v{vLx}, v{vHi}, 2, s3
            v_lshlrev_b32 v{vLr}, 2, v{vC8}
            v_and_b32 v{vL15}, 15, v{vLane}
            v_lshlrev_b32 v{vRo}, 14, v{vG}
            v_add_lshl_u32 v{vRo}, v{vRo}, v{vL15}, 2
            v_add_u32 v{vLr}, {PR_B}, v{vLr}
            v_lshlrev_b32 v{t0}, 17, v{vHi}
            v_lshl_add_u32 v{vHs}, v{vL31}, 4, v{t0}
            s_cmp_eq_u32 s{sW}, 3
            s_cselect_b32 s{sCnt}, {OOB}, 0
            s_lshl_b32 s{sHs0}, s{sW}, 10
            s_add_u32 s{sHs0}, s{sHs0}, s2
            s_lshl_b32 s{sHs0}, s{sHs0}, 9
            s_add_u32 s{sHs1}, s{sHs0}, 262144
            s_add_u32 s{sHs1}, s{sHs1}, s{sCnt}
            s_xor_b32 s{sCnt}, s{sCnt}, {OOB}
            s_lshl_b32 s{sRs}, s2, 7
            s_add_u32 s{sRs}, s{sRs}, s{sCnt}
            s_add_u32 s{sRs}, s{sRs}, {RS_OFF}
            s_lshr_b32 s{sHfl}, s2, 2
            s_lshl_b32 s{sHfl}, s{sHfl}, 5
            s_and_b32 s3, s2, 3
            s_add_u32 s{sHfl}, s{sHfl}, s3
            s_lshl_b32 s{sHfl}, s{sHfl}, 2
            s_add_u32 s{sHfl}, s{sHfl}, {HF_OFF}
            v_cmp_gt_u32 vcc, {P['hrep']}, v0
            v_lshlrev_b32 v{vFr8}, 13, v0
            v_mov_b32 v{t0}, {OOB}
            s_and_b32 s3, s2, {P['hrep'] - 1}
            s_lshl_b32 s3, s3, 13
            s_add_u32 s3, s3, {HF_OFF}
            v_lshrrev_b32 v{t1}, 2, v0
            v_lshl_add_u32 v{t1}, v{t1}, 7, s3
            v_lshl_add_u32 v{vFoH}, v{vC4}, 2, v{t1}
            v_cndmask_b32 v{vFr8}, v{t0}, v{vFr8}, vcc
            v_mov_b32 v{t3}, 0
        """)
        if P['hsc']:
            e(f's_lshl_b32 s3, s{sW}, 14')
            e(f's_add_u32 s{sHfl}, s{sHfl}, s3')
            e(f's_add_u32 s{sHf2}, s{sHfl}, 8192')
            if P['hwarm']:
                e(f's_and_b32 s{sZero}, s2, 3')
                e(f's_cbranch_scc1 L_nowarm{len(sets)}')
                e(f's_atomic_or s{sZero}, s[{WS}:{WS + 1}], s{sHfl}')
                e(f's_atomic_or s{sZero}, s[{WS}:{WS + 1}], s{sHf2}')
                e.label(f'L_nowarm{len(sets)}')
                e.smem_out = 2
        if P['pread'] and sets == (6,):
            e(flag_load(vFoH, vFv + 1))
        if P['w1late'] == 2:
            pop(P['w1pre'])
        for k in range(8):
            e(f'v_dot2_f32_bf16 v{vS_}, v{vX + k}, s{sOnes}, {"0" if k == 0 else "v%d" % vS_}')
            if k == 0:
                stamp('x landed', sets)
            e(f'v_dot2_f32_bf16 v{vQ_}, v{vX + k}, v{vX + k}, {"0" if k == 0 else "v%d" % vQ_}')
        unp = []
        for k in range(8):
            unp += [f'v_lshlrev_b32 v{vF + 2 * k}, 16, v{vX + k}', f'v_and_b32 v{vF + 2 * k + 1}, 0xffff0000, v{vX + k}']
        e(f'buffer_load_dword v{vNon}, v{t3}, {srd(DBG)}, 0 offen sc1')
        if P['w1late'] == 3:
            pop(P['w1pre'])
        run(unp[:2])
        unp = unp[2:]
        for ctl in ('quad_perm:[1,0,3,2]', 'quad_perm:[2,3,0,1]', 'row_half_mirror', 'row_mirror'):
            for r in (vS_, vQ_):
                e(f'v_add_f32_dpp v{r}, v{r}, v{r} {ctl} row_mask:0xf bank_mask:0xf')
            e(unp.pop(0))
        e(f'v_mov_b32 v{vT_}, v{vS_}')
        e(f'v_mov_b32 v{vU_}, v{vQ_}')
        e(unp.pop(0))
        e(f'v_permlane16_swap_b32 v{vS_}, v{vT_}')
        e(f'v_permlane16_swap_b32 v{vQ_}, v{vU_}')
        e.many(f"""
            v_add_f32 v{vS_}, v{vS_}, v{vT_}
            v_add_f32 v{vQ_}, v{vQ_}, v{vU_}
            v_mul_f32_e64 v{vS_}, -v{vS_}, s{sInv}
            v_mul_f32 v{vT_}, v{vS_}, v{vS_}
            v_fma_f32 v{vQ_}, v{vQ_}, s{sInv}, -v{vT_}
            v_max_f32 v{vQ_}, 0, v{vQ_}
            v_add_f32 v{vT_}, s{sEps}, v{vQ_}
            v_rsq_f32 v{vAB}, v{vT_}
        """)
        e(unp.pop(0))
        e.many(f"""
            v_mul_f32 v{vT_}, v{vAB}, v{vAB}
            v_fma_f32 v{vU_}, v{vT_}, v{vQ_}, s{sEps}
            v_rsq_f32 v{vT_}, v{vU_}
            v_mul_f32 v{vAB + 1}, v{vS_}, v{vAB}
            v_mul_f32 v{vAB + 2}, v{vAB}, v{vT_}
            v_mul_f32 v{vAB + 3}, v{vAB + 1}, v{vT_}
            v_mul_f32 v{vU_}, v{vU_}, v{vT_}
            ds_write_b32 v{vLx}, v{vU_}
        """)
        run(unp)

        def normalise(ab, base):
            for hf in range(2):
                for k in range(4 * hf, 4 * hf + 4):
                    e(f'v_pk_fma_f32 {v(vG2 + 2 * k, 2)}, {v(vF + 2 * k, 2)}, {v(ab, 2)}, {v(ab, 2)} op_sel:[0,0,1] op_sel_hi:[1,0,1]')
                for k in range(4 * hf, 4 * hf + 4):
                    e(f'v_cvt_pk_bf16_f32 v{vX + k}, v{vG2 + 2 * k}, v{vG2 + 2 * k + 1}')
                e(f'ds_write_b128 v{vLw}, {v(vX + 4 * hf, 4)} offset:{base + 448 * hf}')

        normalise(vAB + 2, 0)
        e.wait_all(vm=False, lg=True)
        e('s_barrier')
        for z in range(2):
            for h in range(2):
                e(f'ds_read_b64_tr_b16 {v(vSt[z] + 2 * h, 2)}, v{vLh} offset:{z * 128 + h * 3840}')
        e(f'ds_read_b32 v{vU_}, v{vLr}')
        for z in range(2):
            e(f'buffer_store_dwordx4 {v(vSt[z], 4)}, v{vHs}, {srd(WS)}, s{sHs0 + z} offen sc1')
        e(f'v_cmp_gt_u32 vcc, 16, v{vLane}')
        e(f'v_cndmask_b32 v{vU_}, 0, v{vU_}, vcc')
        tokH = e(f'buffer_store_dword v{vU_}, v{vRo}, {srd(WS)}, s{sRs} offen sc1')
        stamp('h stored', sets)
        return tokH

    tokH = p0_body((1, 4))

    pop(P['w1mid'])
    if P['iwarm']:
        e('s_branch L_anchor')
        e.raw('.p2align 12')
        e.label('L_anchor')

    setup = []
    for r, n in ((WO, 448 * 896), (W2, 1792 * 4096), (OUT, 2048 * 896)):
        setup.append(f's_mov_b32 s{r + 2}, {n}\ns_mov_b32 s{r + 3}, 0x20000')
    setup += f"""s_mov_b32 s{sOne1}, 1
        v_lshrrev_b32 v{t1}, 2, v{vLane}
        v_lshlrev_b32 v{t1}, 7, v{t1}
        v_lshl_add_u32 v{t1}, v{vC4}, 3, v{t1}
        v_and_b32 v{t2}, 3, v{vR8}
        v_lshl_add_u32 v{t1}, v{t2}, 5, v{t1}
        s_mul_i32 s3, s{sKh}, {8192 + 64}
        v_xor_b32 v{vPat[0][0]}, s3, v{t1}
        v_xor_b32 v{vPat[0][1]}, 32, v{vPat[0][0]}
        v_xor_b32 v{vPat[0][2]}, 64, v{vPat[0][0]}
        v_xor_b32 v{vPat[0][3]}, 96, v{vPat[0][0]}
        v_add_u32 v{vPat[1][0]}, 65536, v{vPat[0][0]}
        v_add_u32 v{vPat[1][1]}, 65536, v{vPat[0][1]}
        v_add_u32 v{vPat[1][2]}, 65536, v{vPat[0][2]}
        v_add_u32 v{vPat[1][3]}, 65536, v{vPat[0][3]}
        v_add_u32 v{vPat[2][0]}, 131072, v{vPat[0][0]}
        v_add_u32 v{vPat[2][1]}, 131072, v{vPat[0][1]}
        v_add_u32 v{vPat[2][2]}, 131072, v{vPat[0][2]}
        v_add_u32 v{vPat[2][3]}, 131072, v{vPat[0][3]}
        s_lshl_b32 s{sT2}, s{sD}, 1
        s_add_u32 s{sT2}, s{sT2}, s{sNh}
        s_lshl_b32 s3, s{sT2}, 1
        s_add_u32 s3, s3, s{sM3}
        s_lshl_b32 s3, s3, 4
        s_add_u32 s3, s3, s{sKh}
        s_lshl_b32 s3, s3, 12
        v_lshl_add_u32 v{vHo}, v{vG}, 8, v{vL16}
        v_add_u32 v{vHo}, s3, v{vHo}
        s_xor_b32 s{sGfl}, s{sFT}, 1
        s_lshl_b32 s{sGfl}, s{sGfl}, 3
        s_add_u32 s{sGfl}, s{sGfl}, s{sD}
        s_lshl_b32 s3, s{sGfl}, 14
        s_add_u32 s3, s3, s{sM}
        s_add_u32 s3, s3, {G_OFF + (OOB if P['xp'] & 1024 else 0)}
        v_add_u32 v{vGst}, s3, v{vL16}
        s_lshl_b32 s{sGfl}, s{sGfl}, 5
        s_add_u32 s{sGfl}, s{sGfl}, s{sNh}
        s_lshl_b32 s{sGfl}, s{sGfl}, 2
        s_add_u32 s{sGfl}, s{sGfl}, {GF_OFF}
        s_mul_i32 s{sUst}, s{sT2}, 56
        s_lshl_b32 s3, s{sFT}, 1
        s_add_u32 s3, s3, s{sKh}
        s_add_u32 s{sUst}, s{sUst}, s3
        s_lshl_b32 s{sUst}, s{sUst}, 11
        s_add_u32 s{sUst}, s{sUst}, {U_OFF + (OOB if P['xp'] & 2048 else 0)}
        v_add_u32 v{vEx}, s{sM}, v{vL16}
        s_lshl_b32 s{sUfl}, s{sD}, 2
        s_and_b32 s3, s{sFT}, 1
        s_add_u32 s{sUfl}, s{sUfl}, s3
        s_cmp_ge_u32 s{sFT}, 14
        s_cselect_b32 s3, 2, 0
        s_add_u32 s{sUfl}, s{sUfl}, s3
        s_lshl_b32 s{sUfl}, s{sUfl}, 7
        s_add_u32 s{sUfl}, s{sUfl}, {CN_OFF}
        v_add_u32 v{vLin[1]}, 65536, v{vL16}
        v_add_u32 v{vLin[2]}, 131072, v{vL16}
        s_mul_i32 s{sM3}, s{sW}, 3072
        s_mul_i32 s3, s{sJ}, 86016
        s_add_u32 s3, s3, s{sM3}
        s_add_u32 s3, s3, {WP_OFF}
        v_add_u32 v{vWp}, s3, v{vL16}
        v_lshlrev_b32 v{t1}, 7, v{vHi}
        v_xor_b32 v{t1}, v{t1}, v{vL16}
        s_lshl_b32 s3, s{sK32}, 11
        v_add_u32 v{vXd[0]}, s3, v{t1}
        v_add_u32 v{vXd[1]}, {131072 - 2048}, v{vXd[0]}
        s_lshr_b32 s3, s{sK32}, 2
        s_lshl_b32 s3, s3, 3
        s_max_u32 s3, s3, 1
        s_sub_u32 s3, s3, 1
        s_lshl_b32 s3, s3, 10
        s_lshl_b32 s{sT2}, s{sNh}, 17
        s_add_u32 s3, s3, s{sT2}
        s_lshl_b32 s{sT2}, s{sKh}, 28
        s_add_u32 s3, s3, s{sT2}
        v_add_u32 v{vXd[2]}, s3, v{t1}
        s_lshl_b32 s{sMh}, s{sNh}, 1
        s_add_u32 s{sMh}, s{sMh}, s{sKh}
        s_lshl_b32 s{sMh}, s{sMh}, 10
        v_and_b32 v{t1}, 1, v{vLane}
        v_mul_u32_u24 v{t1}, {512 + 128}, v{t1}
        v_lshrrev_b32 v{t2}, 2, v{vLane}
        v_lshlrev_b32 v{t2}, 4, v{t2}
        v_xor_b32 v{t1}, v{t1}, v{t2}
        v_bfe_u32 v{t2}, v{vLane}, 1, 1
        v_lshl_add_u32 v{t1}, v{t2}, 3, v{t1}
        s_add_u32 s3, s{sM}, 12288
        v_add_u32 v{vXr[0][0]}, s3, v{t1}
        s_sub_u32 s3, s3, 3072
        s_cmp_eq_u32 s{sW}, 0
        s_cselect_b32 s3, 28672, s3
        v_add_u32 v{vXr[0][1]}, s3, v{t1}
        v_add_u32 v{vXr[1][0]}, 65536, v{vXr[0][0]}
        v_add_u32 v{vXr[1][1]}, 65536, v{vXr[0][1]}
        v_add_u32 v{vXr[2][0]}, 131072, v{vXr[0][0]}
        v_add_u32 v{vXr[2][1]}, 131072, v{vXr[0][1]}
        s_lshl_b32 s3, s{sK32}, 1
        v_min_u32 v{t1}, 2, v{vG}
        v_add_u32 v{t1}, s3, v{t1}
        v_max_u32 v{t1}, 1, v{t1}
        v_lshlrev_b32 v{t1}, 1, v{t1}
        v_and_b32 v{t2}, 1, v{vR4}
        v_add_lshl_u32 v{t1}, v{t1}, v{t2}, 7
        v_lshrrev_b32 v{t2}, 1, v{vR4}
        v_lshl_add_u32 v{t2}, v{t2}, 2, v{vC4}
        v_lshl_add_u32 v{t1}, v{t2}, 2, v{t1}
        v_add_u32 v{vRsa}, {RS_OFF - 256}, v{t1}
        s_min_u32 s{sWck}, s{sW}, 2
        s_lshl_b32 s{sWck}, s{sWck}, 6
        s_add_u32 s{sWck}, s{sWck}, 64
        s_lshl_b32 s{sOs}, s{sK32}, 5
        s_add_u32 s{sOs}, s{sOs}, s{sJ}
        s_lshl_b32 s{sOs}, s{sOs}, 10
        s_add_u32 s{sOs}, s{sOs}, {O_OFF + (OOB if P['xp'] & 4096 else 0)}
        s_lshr_b32 s{sOfl}, s{sK32}, 2
        s_lshl_b32 s{sOfl}, s{sOfl}, 1
        s_and_b32 s3, s{sJ}, 1
        s_add_u32 s{sOfl}, s{sOfl}, s3
        s_lshl_b32 s{sOfl}, s{sOfl}, 7
        s_add_u32 s{sOfl}, s{sOfl}, {CN_OFF + 32 * 128}
        s_and_b32 s{sT3}, s{sS}, 1
        s_mul_i32 s3, s{sT3}, 28
        s_add_u32 s3, s3, s{sW}
        s_lshl_b32 s3, s3, 17
        s_xor_b32 s{sT2}, s{sS}, 1
        s_lshl_b32 s{sPfl}, s{sT2}, 3
        s_lshl_b32 s{sT2}, s{sS}, 7
        s_add_u32 s3, s3, s{sT2}
        v_lshlrev_b32 v{t1}, 12, v{vR8}
        v_add3_u32 v{vD2[0]}, v{t1}, v{vSw}, s3
        v_add_u32 v{vD2[1]}, {1 * (8 * 4096 - 1024)}, v{vD2[0]}
        v_add_u32 v{vD2[2]}, {2 * (8 * 4096 - 1024)}, v{vD2[0]}
        v_add_u32 v{vD2[3]}, {3 * (8 * 4096 - 1024)}, v{vD2[0]}
        v_mul_u32_u24 v{t1}, 896, v{vR8}
        s_mul_i32 s3, s{sKh}, {28 * 896}
        s_mul_i32 s{sT2}, s{sNh}, {16 * 896}
        s_add_u32 s3, s3, s{sT2}
        s_lshl_b32 s{sT2}, s{sD2}, 7
        s_add_u32 s3, s3, s{sT2}
        v_add3_u32 v{vDo[0]}, v{t1}, v{vSw}, s3
        v_add_u32 v{vDo[1]}, {8 * 896 - 1024}, v{vDo[0]}
        s_lshl_b32 s{sT2}, s{sS}, 1
        s_add_u32 s{sT2}, s{sT2}, s{sNh}
        s_and_b32 s3, s{sS}, 30
        s_add_u32 s3, s3, s{sKh}
        s_lshl_b32 s3, s3, 7
        s_add_u32 s{sOck}, s3, {CN_OFF + 32 * 128}
        s_lshl_b32 s3, s{sT2}, 5
        s_add_u32 s3, s3, s{sKh}
        s_lshl_b32 s3, s3, 10
        s_add_u32 s3, s3, {O_OFF}
        v_add_u32 v{vOd[0]}, s3, v{vL16}
        v_add_u32 v{vOd[1]}, {16384 - 1024}, v{vOd[0]}
        s_xor_b32 s3, s{sKh}, s{sNh}
        s_lshl_b32 s3, s3, 6
        v_xor_b32 v{vPatW[0][0]}, s3, v{vPat[0][0]}
        v_xor_b32 v{vPatW[0][1]}, 32, v{vPatW[0][0]}
        v_add_u32 v{vPatW[1][0]}, 65536, v{vPatW[0][0]}
        v_add_u32 v{vPatW[1][1]}, 65536, v{vPatW[0][1]}
        s_mul_i32 s3, s{sKh}, {3 * 4096}
        v_add_u32 v{vOr[0][0]}, s3, v{vL16}
        v_xor_b32 v{vOr[0][1]}, 4096, v{vOr[0][0]}
        v_add_u32 v{vOr[1][0]}, 65536, v{vOr[0][0]}
        v_add_u32 v{vOr[1][1]}, 65536, v{vOr[0][1]}
        v_add_u32 v{vOr[2][0]}, 131072, v{vOr[0][0]}
        v_add_u32 v{vOr[2][1]}, 131072, v{vOr[0][1]}
        s_lshl_b32 s{sT2}, s{sD2}, 1
        s_add_u32 s{sT2}, s{sT2}, s{sNh}
        s_lshl_b32 s3, s{sT2}, 1
        s_add_u32 s3, s3, s{sT3}
        s_mul_i32 s3, s3, 14
        s_add_u32 s3, s3, s{sKh}
        s_lshl_b32 s3, s3, 12
        s_add_u32 s3, s3, {U_OFF}
        v_add_u32 v{vUo}, s3, v{vL16}
        s_lshl_b32 s3, s{sD2}, 1
        s_add_u32 s3, s3, s{sT3}
        s_lshl_b32 s3, s3, 1
        s_add_u32 s3, s3, s{sKh}
        s_lshl_b32 s3, s3, 7
        s_add_u32 s{sUck}, s3, {CN_OFF}
        s_and_b32 s3, s2, 6
        s_add_u32 s3, s3, s{sD2}
        s_sub_u32 s{sT2}, s3, 7
        s_cmp_ge_u32 s3, 7
        s_cselect_b32 s3, s{sT2}, s3
        s_lshl_b32 s{sGs2}, s3, 19
        s_lshl_b32 s{sGsU}, s3, 13
        s_add_u32 s{sPfl}, s{sPfl}, s{sD2}
        s_lshl_b32 s3, s{sPfl}, 14
        s_add_u32 s3, s3, s{sM}
        s_add_u32 s3, s3, {P_OFF + (OOB if P['xp'] & 512 else 0)}
        v_add_u32 v{vPst}, s3, v{vL16}
        s_lshl_b32 s{sPfl}, s{sPfl}, 5
        s_add_u32 s{sPfl}, s{sPfl}, s{sW}
        s_lshl_b32 s{sPfl}, s{sPfl}, 2
        s_add_u32 s{sPfl}, s{sPfl}, {PF_OFF}
        s_lshl_b32 s3, s{sNh}, 3
        v_add_u32 v{t0}, s3, v{vG}
        v_xor_b32 v{t0}, v{t0}, v{vC8}
        v_lshlrev_b32 v{t0}, 4, v{t0}
        v_lshl_add_u32 v{t0}, v{vL15}, 8, v{t0}
        s_lshl_b32 s3, s{sKh}, 14
        s_add_u32 s3, s3, {EPI_B}
        v_add_u32 v{vEw[0]}, s3, v{t0}
        v_xor_b32 v{vEw[1]}, 64, v{vEw[0]}
        s_lshr_b32 s3, s{sS}, 1
        s_add_u32 s{sRo}, s3, s{sD2}
        s_mov_b32 s{sR2}, s{sRo}
        v_lshlrev_b32 v{t0}, 1, v{vC8}
        v_xor_b32 v{t0}, v{t0}, v{vR8}
        v_lshlrev_b32 v{t0}, 4, v{t0}
        v_lshl_add_u32 v{t0}, v{vR8}, 8, v{t0}
        s_add_u32 s3, s{sM}, {EPI_B}
        v_add_u32 v{vEr[0]}, s3, v{t0}
        v_xor_b32 v{vEr[1]}, 16, v{vEr[0]}
        v_xor_b32 v{vEr[2]}, {16384 + 8192}, v{vEr[0]}
        v_xor_b32 v{vEr[3]}, {16384 + 8192 + 16}, v{vEr[0]}""".split('\n')
    par = lambda l: l & 1
    cur = lambda l, z: 4 * (l >> 4) + 2 * z + (l & 1) <= (l & 15)
    c0 = -2.0 * math.sqrt(2.0 / math.pi) * math.log2(math.e)
    setup2 = setmask(sPar, lanemask(par)) + setmask(sCur0, lanemask(lambda l: cur(l, 0))) + setmask(sCur1, lanemask(lambda l: cur(l, 1)))
    setup2 += [f's_cmp_eq_u32 s{sK32}, 0\ns_cselect_b64 {s(sInvd, 2)}, 0, -1',
               f'v_mov_b32 v{t0}, 0xffff', f'v_mov_b32 v{t1}, 0xffff0000',
               f'v_cndmask_b32 v{t0}, v{t0}, v{t1}, {s(sPar, 2)}']
    for z, sc in ((0, sCur0), (1, sCur1)):
        setup2 += [f'v_cndmask_b32 v{vMk + z}, v{t0}, 0, {s(sc, 2)}', f'v_cndmask_b32 v{vMk + 2 + z}, 0, v{t0}, {s(sc, 2)}']
    setup2 += [f'v_mov_b32 v{vNeg}, {f32(-1e30)}',
               f's_mov_b32 s{sC1}, {f32(28 ** -0.5 * math.log2(math.e))}',
               f's_mov_b32 s{sGc}, {f32(c0 * 0.044715)}\ns_mov_b32 s{sGc + 1}, {f32(c0 * 0.044715)}',
               f's_mov_b32 s{sOne}, 1.0\ns_mov_b32 s{sOne + 1}, 1.0',
               f'v_mov_b32 v{vC0}, {f32(c0)}', f'v_mov_b32 v{vC0 + 1}, {f32(c0)}']
    aSel = 248
    setup2 += [f'v_lshrrev_b32 v{t0}, 1, v{vL15}', f'v_lshlrev_b32 v{t1}, 1, v{vG}', f'v_sub_u32 v{t0}, v{t0}, v{t1}',
               f'v_mov_b32 v{t1}, 0x3f80', f'v_cndmask_b32 v{t1}, v{t1}, 1.0, {s(sPar, 2)}']
    for k in range(2):
        setup2 += [f'v_cmp_eq_i32 vcc, {k}, v{t0}', f'v_accvgpr_write_b32 a{aSel + k}, 0', f'v_accvgpr_write_b32 a{aSel + 4 + k}, 0',
                   f'v_cndmask_b32 v{t2}, 0, v{t1}, vcc', f'v_accvgpr_write_b32 a{aSel + 2 + k}, v{t2}']
    if P['sigall']:
        setup2.append(f"""s_and_b32 s3, s2, 127
            s_lshl_b32 s3, s3, 7
            s_add_u32 s3, s3, {CN_OFF + 128 * 128}
            s_cmp_eq_u32 s{sW}, 0
            s_cselect_b32 s{sUfl}, s{sUfl}, s3
            s_cselect_b32 s{sOfl}, s{sOfl}, s3""")
    NS1 = [i for i, t in enumerate(setup) if t.strip().startswith(f'v_add_u32 v{vLin[1]},')][0]

    def h_publish(tag, tokH):
        run(setup[:NS1])
        e(f'v_readfirstlane_b32 s{sNon}, v{vNon}')
        e(f's_mov_b32 s{sCnt}, 0')
        e(f's_cmp_lg_u32 s{sNon}, 0')
        e(f's_cbranch_scc0 L_nonce{tag}')
        e.cold_begin()
        e.label(f'L_nonce{tag}')
        e.raw(f'    buffer_load_dword v{vNon}, v{t3}, {srd(DBG)}, 0 offen sc1')
        e.raw(f'    s_add_u32 s{sCnt}, s{sCnt}, 1')
        e.raw(f'    s_waitcnt vmcnt(0)')
        e.raw(f'    v_readfirstlane_b32 s{sNon}, v{vNon}')
        e.raw(f'    s_cmp_ge_u32 s{sCnt}, {P["spin"]}')
        e.raw(f'    s_cbranch_scc1 L_nonce_ok{tag}')
        e.raw(f'    s_cmp_eq_u32 s{sNon}, 0')
        e.raw(f'    s_cbranch_scc1 L_nonce{tag}')
        e.raw(f'    s_branch L_nonce_ok{tag}')
        e.cold_end()
        e.label(f'L_nonce_ok{tag}')
        e.wait(vm=tokH, lg=e.lg_n)
        e('s_barrier')
        if P['hsc']:
            assert P['hrep'] == 8
            e(f's_atomic_swap s{sNon}, s[{WS}:{WS + 1}], s{sHfl}')
            e(f's_atomic_swap s{sNon}, s[{WS}:{WS + 1}], s{sHf2}')
            e.smem_out = 2
        else:
            e(f'buffer_store_dword v{vNon}, v{vFr8}, {srd(WS)}, s{sHfl} offen sc1')
        if P['rpos'] == 1 or (P['rpos'] == 2 and tag == 'h'):
            res_loads()

    h_publish('', tokH)
    stamp('hflag', (1, 4))
    if P['xp'] & 1:
        e.wait_all(force=True)
        stamp('flag ack', (4,))
    w1_dma(9, 64)
    e.bg_on = True
    e.credit = 0
    hold = e.bg[max(0, P['w1flag'] - (40 - len(e.bg))):]
    del e.bg[len(e.bg) - len(hold):]
    run(setup[NS1:])
    for j in range(4):
        b = vB1 + 2 * (j & 1)
        e(f'v_lshlrev_b32 v{vAcc[0] + 4 * j}, 16, v{b}')
        e(f'v_and_b32 v{vAcc[0] + 4 * j + 1}, 0xffff0000, v{b}')
        e(f'v_lshlrev_b32 v{vAcc[0] + 4 * j + 2}, 16, v{b + 1}')
        e(f'v_and_b32 v{vAcc[0] + 4 * j + 3}, 0xffff0000, v{b + 1}')

    def bf(n, j):
        return a((n * 4 + j) * 4, 4)

    def h_load(n, gap):
        for j in range(4):
            pre = [f's_add_u32 s{sGsH}, s{sGsH}, 8192', f's_and_b32 s{sGsH}, s{sGsH}, 0xffff'] if (j == 0 and n and not P['xp'] & 128) else []
            bg_ins(('h', n, j), pre, f'buffer_load_dwordx4 {bf(n, j)}, v{vHo}, {srd(WS)}, s{sGsH} offen offset:{(j >> 1) * 2048 + (j & 1) * 256} sc1', gap)

    def u_load(n, gap):
        for j in range(4):
            pre = wrap(sGsU, 8192, 7) if (j == 0 and n and not P['xp'] & 64) else []
            bg_ins(('u', n, j), pre, f'buffer_load_dwordx4 {bf(n, j)}, v{vUo}, {srd(WS)}, s{sGsU} offen offset:{j * 1024} sc1', gap)

    def q_dma(st, gap):
        q = 16 + 2 * st
        b = slot_of(q)
        for k in range(3):
            pre = [f's_add_u32 m0, s{sM3}, {b}'] + (wrap(sWs, 12288, 7) if st and not P['xp'] & 8 else []) if k == 0 else []
            bg_dma(('s', q, k), pre, WS, vWp, sWs, k * 1024, gap, mod=' sc1')
        bg_dma(('s', q, 3), [f's_add_u32 m0, s{sMh}, {b + 28672}'] + (wrap(sXs, 1 << 18, 7) if st and not P['xp'] & 256 else []), WS, vXd[2], sXs, 0, gap, mod=' sc1')
        for k in range(4):
            pre = [f's_add_u32 m0, s{sM}, {b + 12288}'] if k == 0 else []
            bg_dma(('s', q + 1, k), pre, WS, vXd[k >> 1], sXs, k * 1024, gap, mod=' sc1')

    QF = 30
    QW, QO = ((14, 15, 16, 20), (17, 18, 19, 21)) if P['oord'] else ((14, 15, 16, 17), (18, 19, 20, 21))
    fseq = [('u', n) for n in range(14)] + [('o', m) for m in range(8)]

    def f_dma(i, gap):
        kind, n = fseq[i]
        q = QF + i
        m0 = [f's_add_u32 m0, s{sM}, {slot_of(q)}']
        if kind == 'u':
            for k in range(4):
                pre = m0 + wrap(sGs2, 1 << 19, 7) * (0 if P['xp'] & 16 else {0: 0, 7: 0, 8: 2}.get(n, 1)) if k == 0 else []
                if n in (0, 8):
                    pre = pre + [f'v_xor_b32 v{vD2[k]}, 128, v{vD2[k]}']
                bg_dma(('s', q, k), pre, W2, vD2[k], sGs2, k * 1024, gap)
        else:
            r = sRo if i in QW else sR2
            step = [f's_add_u32 s{r}, s{r}, {0 if P["xp"] & 32 else 1}', f's_and_b32 s{r}, s{r}, 3']
            if i in QW:
                bg_dma(('s', q, 0), m0 + step + [f's_mul_i32 s{sBg}, s{sRo}, {112 * 896}'], WO, vDo[0], sBg, 0, gap)
                bg_dma(('s', q, 1), [], WO, vDo[1], sBg, 1024, gap)
                bg_dma(('s', q, 2), [f's_add_u32 s{sBg}, s{sBg}, {56 * 896 - 2048}'], WO, vDo[0], sBg, 2048, gap)
                bg_dma(('s', q, 3), [], WO, vDo[1], sBg, 3072, gap)
            else:
                for k in range(4):
                    pre = m0 + step + [f's_lshl_b32 s{sBg}, s{sR2}, 12'] if k == 0 else []
                    bg_dma(('s', q, k), pre, WS, vOd[k & 1], sBg, k * 1024, gap, mod=' sc1')

    def bar(qlast):
        if qlast is not None:
            e.need(('s', qlast, 3))
        if not (P['xp'] & 16384 and qlast != 5):
            e('s_barrier')

    PH, DF = P['ph'], P['df']
    vWof = [vBig + 16 + 4 * k for k in range(6)]

    def fr(x, n=4, o=0):
        return a(200 + 4 * (x % NF) + o, n)

    def tr_reads(q, j, T_, x):
        r = []
        for h in range(2):
            ad = slot_of(q) + (j >> 1) * 4096 + h * 2048
            r.append(f'ds_read_b64_tr_b16 {fr(x, 2, 2 * h)}, v{vPat[ad >> 16][2 * T_ + (j & 1)]} offset:{ad & 65535}')
        return r

    def gemm32(seq, q0, at_stage, swap, fill, init, accs, amod, padd, checks, pre=None):
        items = []
        for i, (kind, n) in enumerate(seq):
            items += [(i, kind, n, j, T_) for j in range(4 if kind != 'o' else 2) for T_ in range(2)]
        tail = [t for t in items if t[0] >= len(seq) - 2]
        items = items[:len(items) - len(tail)]
        for T_ in (1, 0):
            items += [t for t in tail if t[4] == T_] + [(None, 'P', p, 0, T_) for p in padd if p[0] == T_]
        tk = {}
        left = [sum(1 for t in items if t[0] == i) for i in range(len(seq))]
        seen = set()
        init = set(init)
        lastrd = {}
        done = [-1]
        rq, fq = [], []

        def plan(x):
            i, kind, n, j, T_ = items[x]
            if kind == 'P':
                return
            r = []
            if i not in seen:
                seen.add(i)
                rq.append((x, None, False))
                if kind == 'o':
                    for cb in range(2):
                        for h in range(2):
                            ad = slot_of(q0 + QW[n >> 1]) + h * 4096 + (n & 1) * 2048
                            r.append(f'ds_read_b64_tr_b16 {v(vWof[(2 * n + cb) % 6] + 2 * h, 2)}, v{vPatW[ad >> 16][cb]} offset:{ad & 65535}')
            if pre and x in pre:
                tk[x] = lastrd[i] = pre[x]
                left[i] -= 1
            elif kind != 'o':
                r += tr_reads(q0 + i, j, T_, x)
            else:
                ad = slot_of(q0 + QO[n >> 1]) + (n & 1) * 2048 + j * 1024
                r.append(f'ds_read_b128 {fr(x)}, v{vOr[ad >> 16][T_]} offset:{ad & 65535}')
            rq.extend((x, t, t is r[-1]) for t in r)

        def rd1():
            while rq and rq[0][1] is None:
                i = items[rq.pop(0)[0]][0]
                while left[done[0] + 1] == 0 and e.lg_done >= lastrd[done[0] + 1]:
                    done[0] += 1
                at_stage(i, q0 + done[0])
            if not rq:
                return False
            x, t, last = rq.pop(0)
            tok = e(t)
            if last:
                tk[x] = lastrd[items[x][0]] = tok
                left[items[x][0]] -= 1
            return True

        def f1():
            f = fq.pop(0)
            if callable(f):
                f()
            else:
                e.many(f)
        e.ds_free = True
        e.bg_on = False
        for x in range(DF):
            plan(x)
        while rd1():
            pass
        nxt = DF
        for x, (i, kind, n, j, T_) in enumerate(items):
            if x % 4 == 0:
                stamp(f'{seq[0][0]}{x}', (20,))
            if kind == 'P':
                if n[1]:
                    e.bg_flush(n[1])
                ms = [mf16(vAcc[T_] + 8 * n[3] + 4 * rt, a(aSel + 2 - 2 * rt, 4), v(n[2], 4)) for rt in range(2)]
            else:
                vm = None
                if kind != 'o':
                    key = (kind, n % amod, j | 1)
                    e.bg_flush(key)
                    vm = e.tok[key]
                while x not in tk:
                    rd1()
                e.wait(vm=vm, lg=tk.get(x + 1, tk[x]) if x % 2 == 0 else None)
                ms = []
                for cb in range(2):
                    act = bf(n % amod, (j & 2) + cb) if kind != 'o' else v(vWof[(2 * n + cb) % 6], 4)
                    d = accs(i)[T_] + (8 * (j & 1) + 4 * cb if swap else 8 * cb + 4 * (j & 1))
                    c = None if d in init else '0'
                    init.add(d)
                    ms.append(mf16(d, act, fr(x), c) if swap else mf16(d, fr(x), act, c))
            f = fill.pop(0) if fill else None
            now = callable(f)
            if isinstance(f, list):
                fq.extend(f)
            elif now or (f and 's_cmp' in f):
                fq.append(f)
            elif f:
                fq.extend(f.split('\n'))
            for k, m in enumerate(ms):
                e(m)
                slots = 1 if (k == 1 and x % 2 == 1) else 2
                if k == 0:
                    if x in checks:
                        checks[x]()
                    if not any(x < c <= x + P['hold'] for c in checks):
                        for _ in range(2):
                            if nxt <= x + DF and nxt < len(items):
                                plan(nxt)
                                nxt += 1
                if rd1():
                    slots -= 1
                if len(rq) > 2 and rd1():
                    slots -= 1
                did = False
                while (slots > 0 or e.credit < -24) and e.bg_step():
                    slots -= 1
                while fq and (slots > 0 or (k == 1 and (now or len(fq) > P['fqmax'] or not did and x % 2 == 0))):
                    f1()
                    did = True
                    slots -= 1
        while fq:
            f1()
        e.ds_free = False
        e.bg_on = True
        assert not fill and not rq

    def xf(t, ks):
        return 176 + ((ks & 1) * 3 + t) * 4

    def wf(f, ks):
        return 128 + ((ks & 1) * 6 + f) * 4

    def q_reads(ks):
        st, ksl = ks >> 1, ks & 1
        b = slot_of(16 + 2 * st)

        def xr(t):
            r = []
            for h in range(2):
                ad = b + ksl * 2048 + (1024 if t == 2 else 0) + h * 256
                r.append(f'ds_read_b64_tr_b16 {a(xf(t, ks) + 2 * h, 2)}, v{vXr[ad >> 16][1 if t == 0 else 0]} offset:{ad & 65535}')
            return r

        def wr(f):
            ad = b + (ksl * 6 + f) * 1024
            return [f'ds_read_b128 {a(wf(f, ks), 4)}, v{vLin[ad >> 16]} offset:{ad & 65535}']
        return xr(1) + wr(0) + xr(2) + wr(1) + wr(2) + xr(0) + wr(3) + wr(4) + wr(5)

    e.bg_flush()
    stamp('flag rq', (4,))
    if P['xp'] & 65536:
        e(f'buffer_load_dword v{vFv}, v{t3}, {srd(DBG)}, 0 offen sc1')
    else:
        e(flag_load(vFoH, vFv))
    e.bg = hold[:P['w1chk']]
    hold = hold[P['w1chk']:]
    assert len(hold) % 4 == 0

    def h_spec():
        if P['hspec'] & 4:
            e.many(f"""
                s_mul_i32 s3, s{sIdx}, 37
                s_lshr_b32 s3, s3, 8
                s_lshl_b32 s3, s3, 14
                s_add_u32 s3, s3, s{sGsH}
            """)
        e.many(f"""
            v_and_b32 v{t0}, 0xfffff000, v{vHo}
            v_lshl_add_u32 v{t0}, v{vL31}, 7, v{t0}
            v_lshl_add_u32 v{t1}, v{vHi}, 13, s{3 if P['hspec'] & 4 else sGsH}
            v_and_b32 v{t1}, 0xffff, v{t1}
            v_add_u32 v{t0}, v{t0}, v{t1}
            buffer_load_dword v{vDum}, v{t0}, {srd(WS)}, 0 offen sc1
        """)
        e.pvm.pop(('v', vDum))
    e.bg_on = False
    if P['hspec'] & 1:
        h_spec()
    e.bg_flush()
    if P['hspec'] & 2:
        h_spec()
    e.bg_on = True
    stamp('w1 iss', (4,))
    if P['iwarm']:
        e(f's_mov_b32 s3, s{sW}')
        e('s_mov_b64 exec, 0')
        e.label('L_warm')
        e.raw(';;PADJUMPS')
        e('s_mov_b64 exec, -1')
    if P['stamps'] == 4:
        e(f's_mov_b32 s{sCnt}, 0')
    flag_check(vFoH, vFv, P['hsleep'])
    if P['stamps'] == 4:
        e(f's_mov_b32 s{sStamp + 12}, s{sCnt}')
    stamp('chk', (20,))
    n_iss = 10 - len(hold) // 4
    bar(min(n_iss - 3, 5))
    e.smem_out = 0
    stamp('h ok', (1, 2, 4))
    for n in range(8):
        h_load(n, P['hgap'])
        if n == 0:
            bg_ins('rs', [], f'buffer_load_dword v{vRs}, v{vRsa}, {srd(WS)}, 0 offen sc1', 0)
            if P['rpos'] == 2:
                e.bg_flush()
                res_loads()
        if n < P['hinit']:
            e.bg_flush()
        if n >= P['hpos']:
            e.bg += [(k, f, P['hgap']) for k, f, _ in hold[:4]]
            del hold[:4]
    e.bg += [(k, f, P['hgap']) for k, f, _ in hold]

    rsfill = [f'v_lshlrev_b32 v{t0}, 2, v{vL15}',
            f'v_and_b32 v{t1}, 1, v{vLane}',
            f'v_lshl_add_u32 v{t1}, v{vG}, 2, v{t1}',
            f'v_lshlrev_b32 v{t1}, 2, v{t1}',
            f'v_add_u32 v{t2}, 64, v{t1}',
            f'v_cndmask_b32 v{t3}, v{t1}, v{t2}, {s(sCur0, 2)}',
            f'v_cndmask_b32 v{t1}, v{t1}, v{t2}, {s(sCur1, 2)}']
    for t in range(2):
        rsfill += [f'ds_bpermute_b32 v{vCa[t]}, v{t0}, v{vRs} offset:{64 * (t + 1)}',
                 f'ds_bpermute_b32 v{vAs[t][0]}, v{t3}, v{vRs} offset:{64 * t}',
                 f'ds_bpermute_b32 v{vAs[t][1]}, v{t1}, v{vRs} offset:{64 * t + 8}']
    rsfill += [None] * 6 + [f'v_mul_f32 v{vCa[t]}, s{sC1}, v{vCa[t]}' for t in range(2)]

    g1bar = {3: n_iss - 1, 5: None, 7: 9, 9: 11, 11: 13, 13: 15, 14: None}
    assert n_iss >= 8
    extra = {3: (10, 11), 5: (12, 13), 7: (14, 15)}
    vGp = [vBig, vBig + 16]
    vGr = vBig + 32

    def g_check():
        cnt_check(sGfl, 2, P['sl1'], few=True)
        e(f'v_xor_b32 v{vGst}, {8 * 16384}, v{vGst}')
        e(f'v_xor_b32 v{vGs2}, 8192, v{vGst}')
        for j in (3, 2, 1, 0):
            e.bg.insert(0, (('gl', j), [f'buffer_load_dwordx4 {v(vGr + 4 * j, 4)}, v{vGs2 if j >= 2 else vGst}, {srd(WS)}, 0 offen offset:{j * 1024} sc1'], 32))

    def g1_stage(n, done):
        if P['xp'] & 65536 and n == 2:
            e(flag_load(vFoH, vFv))
        if P['xp'] & 65536 and n == 5:
            flag_check(vFoH, vFv, P['hsleep'])
        if n in g1bar:
            bar(g1bar[n])
        if n == P['gpub']:
            e.need(('g', 3))
            signal(sGfl, False)
        if n in (0, 1, 2, 4, 6, 8, 10, 12, 14):
            stamp(f'g1 st{n}', (2, 4) if n in (1, 4) else (2,))
        if n >= 8:
            stamp(f'g1 st{n}', (9,))
        gap = P['ggap']
        if n == 14:
            assert done >= 12
        for q in extra.get(n, ()):
            assert done >= q - 10
            w1_dma(q, gap)
        if n == P['wfq']:
            cnt_req(sWck, DBG)
        if n in (9, 11, 13):
            assert done >= n - 2
            q_dma(n // 2 - 4, P['qg1'])
        if n == P['gfq']:
            e(f's_xor_b32 s{sGfl}, s{sGfl}, 1024')
            e.smem_out = 0
            cnt_req(sGfl)

    def part_fill(fl, end, acc, vst, key):
        def st(j):
            e.bg.insert(0, ((key, j), [f'buffer_store_dwordx4 {v(acc[j >> 1] + 8 * (j & 1), 4)}, v{vst}, {srd(WS)}, 0 offen offset:{j * 1024} sc1'], 32))
            e.bg_flush((key, j))
        assert len(fl) <= end + 1
        fl = fl + [None] * (end + 1 - len(fl))
        for j in range(4):
            src = acc[j >> 1] + 8 * (j & 1)
            fl += [[f'v_cvt_pk_bf16_f32 v{src + r}, v{src + 2 * r}, v{src + 2 * r + 1}' for r in range(4)] + [lambda j=j: st(j)]] + [None] * P['psp']
        return fl

    gf = ['\n'.join(setup2[:6] + [t for t in setup2 if f's{sC1},' in t])] + rsfill + setup2[6:]
    gf = part_fill(gf, 64, vGp, vGst, 'g')
    xtk = {}

    XB = P['xbf']

    def xw(j):
        xtk[0] = e(f'ds_write_b128 v{vEx}, {v(vAcc[1] + (8 if XB else 4) * j, 4)} offset:{EXC_B + j * 1024}')

    def cvt8(src):
        return [f'v_cvt_pk_bf16_f32 v{src + r}, v{src + 2 * r}, v{src + 2 * r + 1}' for r in range(4)]

    def xr():
        e(f'v_xor_b32 v{vEx}, 8192, v{vEx}')
        e.wait(vm=e.tok[('s', 17, 3)], lg=xtk[0])
        e('s_barrier')
        stamp('exch', (9, 20))
        q_dma(3, P['qg1'])
        for j in range(2 if XB else 4):
            e(f'ds_read_b128 {v(vE + 4 * j, 4)}, v{vEx} offset:{EXC_B + j * 1024}')
    xws = [cvt8(vAcc[1]), lambda: xw(0), cvt8(vAcc[1] + 8), lambda: xw(1)] if XB else [lambda j=j: xw(j) for j in range(4)]
    gf += [None] * (121 - len(gf)) + xws + [None] * P['xdel'] + [xr]
    gemm32([('h', n) for n in range(16)], 0, g1_stage, False, gf, [vAcc[0] + 4 * k for k in range(4)], lambda i: vGp if i < 8 else vAcc, 8,
           [(0, ('gl', j), vGr + 4 * j, j & 1) for j in range(4)] + [(0, None, vE + 4 * j, j) for j in range(2 if XB else 0)],
           {P['wck']: lambda: cnt_check(sWck, 14, 8, DBG), P['gck']: g_check})
    stamp('g1 done', (1, 2, 9))
    for half in range(2):
        ps = [8 * half + 2 * k for k in range(4)]
        A_ = lambda p: v(vAcc[0] + p, 2)
        E_ = lambda p: v(vE + p, 2)
        for p in ps:
            if not XB:
                e(f'v_pk_add_f32 {A_(p)}, {A_(p)}, {E_(p)}')
        for p in ps:
            e(f'v_pk_mul_f32 {E_(p)}, {A_(p)}, {A_(p)}')
        for p in ps:
            e(f'v_pk_fma_f32 {E_(p)}, {E_(p)}, {s(sGc, 2)}, {v(vC0, 2)}')
        for p in ps:
            e(f'v_pk_mul_f32 {E_(p)}, {E_(p)}, {A_(p)}')
        for p in ps:
            e(f'v_exp_f32 v{vE + p}, v{vE + p}')
            e(f'v_exp_f32 v{vE + p + 1}, v{vE + p + 1}')
        for p in ps:
            e(f'v_pk_add_f32 {E_(p)}, {E_(p)}, {s(sOne, 2)}')
        for p in ps:
            e(f'v_rcp_f32 v{vE + p}, v{vE + p}')
            e(f'v_rcp_f32 v{vE + p + 1}, v{vE + p + 1}')
        for p in ps:
            e(f'v_pk_mul_f32 {E_(p)}, {E_(p)}, {A_(p)}')
        for k, p in enumerate(ps):
            e(f'v_cvt_pk_bf16_f32 v{vSt[half] + k}, v{vE + p}, v{vE + p + 1}')
    run(q_reads(0))
    e.bg_flush()
    for half in range(2):
        tokU = e(f'buffer_store_dwordx4 {v(vSt[half], 4)}, v{vL16}, {srd(WS)}, s{sUst} offen offset:{half * 1024} sc1')
    stamp('u stored', (1, 2, 5, 9))
    hist = list(e.hist)
    e.cold_begin()

    save = (e.vm_n, e.vm_done, e.lg_n, e.lg_done, dict(e.pvm), dict(e.plg), dict(e.tok), nst[0])
    e.label('L_nog1')
    e.vm_n, e.vm_done, e.lg_n, e.lg_done, e.pvm, e.plg, e.tok = save0
    assert not e.bg
    e.pad(2)
    vW, vWr = vBig + 60, vBig + 61
    vPk = vBig
    sPk, sPp, sPo = 79, 80, 81
    PITCH = 1056
    e.many(f"""
        s_mov_b32 s{WQ + 2}, {448 * 2688}
        s_mov_b32 s{WQ + 3}, 0x20000
        s_sub_u32 s3, s2, 200
        s_cmp_lt_u32 s3, 42
        s_cselect_b32 s{sPo}, 0, {OOB}
        s_cselect_b32 s3, s3, 0
        s_mul_i32 s{sPk}, s3, 43
        s_lshr_b32 s{sPk}, s{sPk}, 7
        s_mul_i32 s{sPp}, s{sPk}, 3
        s_sub_u32 s{sPp}, s3, s{sPp}
        v_min_u32 v{t0}, 55, v{vLane}
        s_lshl_b32 s3, s{sPk}, 2
        s_add_u32 s3, s3, s{sW}
        s_mul_i32 s3, s3, {8 * 2688}
        s_mul_i32 s{sCnt}, s{sPp}, 896
        s_add_u32 s3, s3, s{sCnt}
        s_add_u32 s3, s3, s{sPo}
        v_lshl_add_u32 v{vW}, v{t0}, 4, s3
        s_mul_i32 s{sCnt}, s{sW}, {8 * PITCH}
    """)
    for r in range(8):
        e(f's_add_u32 m0, s{sCnt}, {r * PITCH}')
        e(f's_mov_b32 s3, {r * 2688}')
        e(f'buffer_load_dwordx4 v{vW}, {srd(WQ)}, s3 offen lds')
    tokHh = p0_body((6,))
    e.many(f"""
        v_lshrrev_b32 v{t0}, 2, v{vLane}
        v_mul_u32_u24 v{t0}, {PITCH}, v{t0}
        v_lshl_add_u32 v{t0}, v{vC4}, 3, v{t0}
        s_mul_i32 s3, s{sW}, {4 * 56}
        v_add_u32 v{vWr}, s3, v{t0}
    """)
    h_publish('h', tokHh)
    stamp('hlp hflag', (6,))
    e.many(f"""
        v_cmp_gt_u32 vcc, 12, v{vL15}
        s_mul_i32 s3, s{sW}, {4 * 14}
        s_add_u32 s3, s3, s{sPk}
        s_mul_i32 s3, s3, 3
        s_add_u32 s3, s3, s{sPp}
        s_lshl_b32 s3, s3, 11
        s_add_u32 s3, s3, {WP_OFF}
        s_add_u32 s3, s3, s{sPo}
    """)
    for jj in range(4):
        for t in range(2):
            for h in range(2):
                e(f'ds_read_b64_tr_b16 {v(vPk + (2 * jj + t) * 4 + 2 * h, 2)}, v{vWr} offset:{jj * 56 + t * 32 + h * 16 * PITCH}')
    for jj in range(4):
        for r in range(4):
            d = vPk + (2 * jj + 1) * 4 + r
            e(f'v_cndmask_b32 v{d}, 0, v{d}, vcc')
        for t in range(2):
            tokP = e(f'buffer_store_dwordx4 {v(vPk + (2 * jj + t) * 4, 4)}, v{vL16}, {srd(WS)}, s3 offen offset:{t * 1024} sc1')
        e(f's_add_u32 s3, s3, 86016')
    e.many(f"""
        s_lshl_b32 s{sUst}, s{sPp}, 6
        s_add_u32 s{sUst}, s{sUst}, 64
        s_cmp_eq_u32 s{sPo}, 0
        s_cselect_b32 s{sGfl}, s{sW}, 1
        s_mov_b32 s{sUfl}, {CN_OFF + 100 * 128}
    """)
    if P['gord'] == 1:
        e.many(f"""
            s_and_b32 s3, s2, 1
            s_mul_i32 s3, s3, 3
            s_bfe_u32 s{sT2}, s2, 0x10001
            s_mul_i32 s{sT3}, s{sT2}, 6
            s_add_u32 s3, s3, s{sT3}
            s_add_u32 s3, s3, 1
            v_add_u32 v{t1}, s3, v{vC4}
            s_mul_i32 s{sT2}, s{sT2}, 64
            s_add_u32 s{sT2}, s{sT2}, 7
            v_cmp_ne_u32 vcc, s{sT2}, v{t1}
            v_lshrrev_b32 v{t2}, 2, v{vLane}
            v_mul_u32_u24 v{t2}, 3584, v{t2}
            v_cndmask_b32 v{t1}, 0, v{t1}, vcc
            v_lshl_add_u32 v{t1}, v{t1}, 8, v{t2}
            s_lshl_b32 s3, s{sD}, 2
            s_add_u32 s3, s3, s{sW}
            s_mul_i32 s3, s3, 37
            s_min_u32 s3, s3, {987 if P['t1x'] else 976}
            s_mul_i32 s3, s3, 3584
            s_mul_i32 s{sT2}, s{sM3}, {1024 * 3584 + 128}
            s_add_u32 s3, s3, s{sT2}
        """)
        for k in range(P['nt1']):
            if k == 2 and P['t1x']:
                e(f'v_cmp_gt_u32 vcc, 20, v{vLane}')
                e(f'v_mov_b32 v{t2}, {OOB}')
                e(f'v_cndmask_b32 v{t1}, v{t2}, v{t1}, vcc')
            e(f'buffer_load_dword v{vBig + 44 + k}, v{t1}, {srd(W1)}, s3 offen')
            e(f's_add_u32 s3, s3, {16 * 3584}')
    run(setup[NS1:])
    run(setup2)
    e.wait(vm=tokP)
    e('s_barrier')
    e(f's_cmp_lg_u32 s{sGfl}, 0')
    e(f's_cbranch_scc1 L_nowsig')
    signal(sUst, False, DBG)
    e.label('L_nowsig')
    e(flag_load(vFoH, vFv))

    def w2_touch():
        e.many(f"""
            s_mov_b32 s{W2 + 2}, {1792 * 4096}
            s_and_b32 s3, s2, 1
            s_mul_i32 s3, s3, 7
            s_add_u32 s3, s3, s{sD}
            s_lshl_b32 s3, s3, 2
            s_add_u32 s3, s3, s{sW}
            s_lshl_b32 s3, s3, 17
            s_and_b32 s{sT2}, s2, 6
            s_lshl_b32 s{sT2}, s{sT2}, 9
            s_add_u32 s3, s3, s{sT2}
            v_lshlrev_b32 v{vW}, 12, v{vL31}
            v_lshl_add_u32 v{vW}, v{vHi}, 9, v{vW}
        """)
        for k in range(P['ntw']):
            e(f'buffer_load_dword v{vBig + 50 + k}, v{vW}, {srd(W2)}, s3 offen offset:{(3 - k) * 128}')
        e(f's_cmp_eq_u32 s{sF}, 0')
        e(f's_cselect_b32 s{W2 + 2}, 0, s{W2 + 2}')
    if P['w2pos'] == 0:
        w2_touch()
    e.many(f"""
        s_cmp_eq_u32 s{sF}, 0
        s_cselect_b32 s{W2 + 2}, 0, s{W2 + 2}
        v_and_b32 v{t0}, 0xfffff000, v{vHo}
        v_lshl_add_u32 v{t0}, v{vL31}, 7, v{t0}
        s_add_u32 s3, s{sGsH}, {P['hlead'] * 8192}
        v_lshl_add_u32 v{t1}, v{vHi}, 13, s3
    """)
    flag_check(vFoH, vFv, 8)
    if P['w2pos'] != 1:
        cnt_req(sWck, DBG)
    assert e.vm_done >= tokP
    e('s_barrier')
    e(f'buffer_load_dword v{vRs}, v{vRsa}, {srd(WS)}, 0 offen sc1')
    stamp('hlp h ok', (6,))
    if P['touch'] & 4:
        for k in range((9 - P['hlead']) // 2):
            e(f'v_and_b32 v{t1}, 0xffff, v{t1}')
            e(f'v_add_u32 v{t2}, v{t0}, v{t1}')
            e(f'v_add_u32 v{t1}, 16384, v{t1}')
            e(f'buffer_load_dword v{vBig + 40 + k}, v{t2}, {srd(WS)}, 0 offen sc1')
    if P['w2pos'] == 1:
        w2_touch()
    if not P['rsl']:
        run([t for t in rsfill if t])
    if P['w2pos'] == 1:
        e.wait(vm=e.vm_n - 2)
        cnt_req(sWck, DBG)
    cnt_check(sWck, 14, 16, DBG)
    e('s_barrier')
    stamp('hlp touched', (6, 7))
    if P['touch'] & 1:
        e.many(f"""
            s_max_u32 s3, s{sIdx}, 25
            s_sub_u32 s3, s3, 25
            s_lshl_b32 s3, s3, 2
            s_add_u32 s{sT3}, s3, s{sW}
            v_lshlrev_b32 v{t0}, 7, v{vLane}
            s_and_b32 s3, s{sJ}, 8
            s_mul_i32 s3, s3, 86016
            s_mul_i32 s{sT3}, s{sT3}, 3072
            s_add_u32 s3, s3, s{sT3}
            s_add_u32 s3, s3, {WP_OFF}
            v_min_u32 v{t0}, {23 * 128}, v{t0}
            buffer_load_dword v{vBig + 2}, v{t0}, {srd(WS)}, s3 offen sc1
        """)
    if P['touch'] & 32:
        e.many(f"""
            v_lshl_add_u32 v{t1}, v0, 7, s{sWs}
            s_mul_i32 s3, s{sJ}, 86016
            s_add_u32 s3, s3, {WP_OFF}
        """)
        for k in range(3):
            e(f'v_subrev_u32 v{t2}, 86016, v{t1}')
            e(f'v_min_u32 v{t2}, v{t1}, v{t2}')
            e(f'v_add_u32 v{t1}, {32768 if k == 0 else 86016 - 65536}, v{t1}')
            e(f'buffer_load_dword v{vBig + 3 + k}, v{t2}, {srd(WS)}, s3 offen sc1')
    assert not e.bg
    e.many(f"""
        s_cmp_eq_u32 s{sF}, 0
        s_cselect_b32 s3, {OOB}, 0
        v_add_u32 v{vUo}, s3, v{vUo}
    """)
    for st in range(4):
        q_dma(st, 0)
    e.bg_flush()
    if P['w2pos'] == 2:
        w2_touch()
    e(f's_mov_b32 s3, {OOB}')
    for _ in range(2):
        e(f'buffer_store_dword v{vNon}, v{vFl}, {srd(WS)}, s3 offen')
    if P['rsl']:
        run([t for t in rsfill if t])
    safe = ('s', 16, 0)
    for st in range(4):
        k = ('s', 17 + 2 * st, 3)
        if not (e.vm_n - e.tok[k] >= save[0] - save[6][k] and save[1] < save[6][k]):
            safe = k
    e.wait(vm=max(e.tok[safe], e.tok[('s', 17, 3)]), lg=e.lg_n)
    e('s_barrier')
    run(q_reads(0))
    e.wait_all(vm=False, lg=True, force=True)
    e.pad(4)
    e('s_branch L_q')
    e.cold_end()
    e.hist = hist
    e.vm_n, e.vm_done, e.lg_n, e.lg_done, e.pvm, e.plg, e.tok, _ = save

    e.label('L_q')
    e.smem_out = 0
    QG = P['qgap']
    vQ = [None, [vBig, vBig + 4], [vBig + 8, vBig + 12]]
    vK = [[vBig + 16 + 8 * t, vBig + 20 + 8 * t] for t in range(3)]
    vV = [[vBig + 40 + 8 * t, vBig + 44 + 8 * t] for t in range(3)]
    nf = [0]

    def f_enq(limit_q, maxn, gap):
        while nf[0] < len(fseq) and QF + nf[0] <= limit_q and nf[0] < maxn:
            f_dma(FORD[nf[0]] if nf[0] < 10 else nf[0], gap)
            nf[0] += 1

    def q_barrier(st):
        key = ('s', 17 + 2 * st, 3) if st < 7 else ('s', QF + 2, 3)
        e.bg_flush(key)
        if st == 7:
            cnt_check(sUck, 7, P['sl3'], unless0=sF)
            stamp('u ok', (1, 3))
        e.wait(vm=max(e.tok[key], tokU if st == P['ust'] else 0), lg=e.lg_n)
        if not P['xp'] & 32768:
            e('s_barrier')
        if st == P['ust']:
            signal(sUfl, True)
            stamp('uflag', (1,))
        stamp(f'Q{st}', (5, 7))
        if st == 1:
            q_dma(4, QG)
        if st == 7:
            rest, e.bg = e.bg, []
            for n in range(PH):
                u_load(n, P['agap'])
            e.bg += rest
        if st + 4 < 7:
            q_dma(st + 4, QG)
        else:
            f_enq(QF + 2 * (st - 3) + 1, 10, QG)

    e.ds_free = True
    e.bg_on = False
    for ks in range(14):
        c = '0' if ks == 0 else None
        ms = []
        for f in range(6):
            part, t = f >> 1, f & 1
            w_ = a(wf(f, ks), 4)
            if part == 0:
                ms += [mf16(vQ[k][t], w_, a(xf(k, ks), 4), c) for k in (1, 2)]
            elif part == 1:
                ms += [mf16(vK[k][t], w_, a(xf(k, ks), 4), c) for k in (1, 2, 0)]
            else:
                ms += [mf16(vV[k][t], a(xf(k, ks), 4), w_, c) for k in (1, 2, 0)]
        if P['xp'] & 2 and ks:
            ms = [m for i, m in enumerate(ms) if i not in (9, 12, 15)]
        last = e.lg_n
        stamp(f'q{ks}', (20,))
        if ks & 1:
            q_barrier((ks + 1) >> 1)
        if ks == P['ureq']:
            e.smem_out = 0
            cnt_req(sUck)
        fpre = {}
        rds = q_reads(ks + 1) if ks < 13 else [t for x in range(DF) for t in tr_reads(QF, x >> 1, x & 1, x)]
        for i, m in enumerate(ms):
            if i == 8:
                stamp(f'q{ks}.5', (20,))
            if i == 0:
                e.wait(lg=last - 6)
            if i == 4:
                e.wait(lg=last)
            e(m)
            n = 1 if i in (3, 15) else 2
            for _ in range(2 if (ks % 2 == 0 and i < P['qrd']) else 1):
                if rds:
                    x_ = (2 * DF - len(rds)) >> 1
                    fpre[x_] = e(rds.pop(0))
                    n -= 1
            while n > 0 and e.bg_step():
                n -= 1
    e.ds_free = False
    e.bg_on = True
    stamp('qkv done', (1, 5, 6, 7))

    vQf = [None, vFr[0], vFr[1]]
    vKf = [vFr[2], vFr[3], vFr[4]]
    vPf = [vFr[5], vFr[6]]
    vVf = [vAcc[1], vAcc[1] + 6]
    vS = [[vAcc[0], vAcc[0] + 4], [vAcc[0] + 8, vAcc[0] + 12]]
    vTm = [[vBig + 64 + 4 * t + k for k in range(4)] for t in range(2)]

    def pack_T(acc, dst):
        for n in range(2):
            for r in range(2):
                e(f'v_cvt_pk_bf16_f32 v{dst + 2 * n + r}, v{acc[n] + 2 * r}, v{acc[n] + 2 * r + 1}')

    for t in (1, 2):
        pack_T(vQ[t], vQf[t])
    for t in (1, 2, 0):
        pack_T(vK[t], vKf[t])
    e(mf16(vS[0][1], v(vKf[1], 4), v(vQf[1], 4), '0'))
    e(mf16(vS[1][0], v(vKf[1], 4), v(vQf[2], 4), '0'))
    e(mf16(vS[1][1], v(vKf[2], 4), v(vQf[2], 4), '0'))
    e(mf16(vS[0][0], v(vKf[0], 4), v(vQf[1], 4), '0'))
    vnorm = []
    for n in range(2):
        for t in range(3):
            for r in range(2):
                vnorm.append(f'v_cvt_pk_bf16_f32 v{vVf[n] + 2 * t + r}, v{vV[t][n] + 2 * r}, v{vV[t][n] + 2 * r + 1}')
    run(vnorm[:6])
    vnorm = vnorm[6:]
    L = [[vTm[0][0], vTm[0][1]], [vTm[1][0], vTm[1][1]]]
    Mx = [vTm[0][2], vTm[1][2]]
    Tm = [vTm[0][3], vTm[1][3]]
    T = range(2)
    for t in (1, 0):
        for z, sc in ((0, sCur0), (1, sCur1)):
            e(f'v_cndmask_b32 v{L[t][z]}, v{vS[t][0] + 2 * z}, v{vS[t][0] + 2 * z + 1}, {s(sPar, 2)}')
            if t == 0:
                e(f'v_cndmask_b32 v{L[t][z]}, v{vNeg}, v{L[t][z]}, {s(sInvd, 2)}')
            e(f'v_cndmask_b32 v{Tm[t]}, v{vS[t][1] + 2 * z}, v{vS[t][1] + 2 * z + 1}, {s(sPar, 2)}')
            e(f'v_cndmask_b32 v{L[t][z]}, v{L[t][z]}, v{Tm[t]}, {s(sc, 2)}')
            e(f'v_mul_f32 v{L[t][z]}, v{L[t][z]}, v{vAs[t][z]}')

    def tree(op):
        for t in T:
            e(f'{op} v{Mx[t]}, v{L[t][0]}, v{L[t][1]}')
        for sw in ('v_permlane16_swap_b32', 'v_permlane32_swap_b32'):
            for t in T:
                e(f'v_mov_b32 v{Tm[t]}, v{Mx[t]}')
            if vnorm:
                e(vnorm.pop(0))
            for t in T:
                e(f'{sw} v{Mx[t]}, v{Tm[t]}')
            for t in T:
                e(f'{op} v{Mx[t]}, v{Mx[t]}, v{Tm[t]}')

    tree('v_max_f32')
    for t in T:
        e(f'v_mul_f32 v{Mx[t]}, v{vCa[t]}, v{Mx[t]}')
    for t in T:
        for z in range(2):
            e(f'v_fma_f32 v{L[t][z]}, v{L[t][z]}, v{vCa[t]}, -v{Mx[t]}')
    for t in T:
        for z in range(2):
            e(f'v_exp_f32 v{L[t][z]}, v{L[t][z]}')
    tree('v_add_f32')
    for t in T:
        e(f'v_rcp_f32 v{Mx[t]}, v{Mx[t]}')
    run(vnorm)
    for t in T:
        for z in range(2):
            e(f'v_mul_f32 v{L[t][z]}, v{L[t][z]}, v{vAs[t][z]}')
    for t in T:
        for z in range(2):
            e(f'v_mul_f32 v{L[t][z]}, v{L[t][z]}, v{Mx[t]}')
    for t in T:
        for z in range(2):
            e(f'v_cvt_pk_bf16_f32 v{L[t][z]}, v{L[t][z]}, v{L[t][z]}')
    for t in T:
        for k in range(4):
            e(f'v_and_b32 v{vPf[t] + k}, v{L[t][k & 1]}, v{vMk + k}')
    vO = [vQ[1], vQ[2]]
    for t in T:
        for n in range(2):
            e(mf16(vO[t][n], v(vVf[n] + 2 * t, 4), v(vPf[t], 4), '0'))
    e(f's_add_u32 s{sC1}, s{sOs}, 16384')
    for t in T:
        pack_T(vO[t], vSt[t])

    def o_stores():
        for t in T:
            tok = e(f'buffer_store_dwordx4 {v(vSt[t], 4)}, v{vL16}, {srd(WS)}, s{sOs + t} offen sc1')
        return tok
    e.bg_flush(('u', P['uo'], 3))
    tokO = o_stores()
    stamp('attn done', (1, 5, 7))
    e(f's_cmp_lg_u32 s{sF}, 0')
    e(f's_cbranch_scc0 L_nof')
    hist = list(e.hist)
    e.cold_begin()
    e.label('L_nof')
    save = (e.vm_n, e.vm_done, e.lg_n, e.lg_done, dict(e.pvm), dict(e.plg), dict(e.tok), nst[0])
    bgs, e.bg = e.bg, []
    e.many(f"""
        v_min_u32 v{t1}, 48, v{vLane}
        s_lshl_b32 s3, s{sD2}, 2
        s_add_u32 s3, s3, s{sW}
        s_mul_i32 s3, s3, {196 * 128}
        v_lshl_add_u32 v{t1}, v{t1}, 7, s3
    """)

    def wo_touch(k):
        if P['touch'] & 2:
            e(f's_add_u32 s3, s2, {k}')
            e(f's_and_b32 s3, s3, 3')
            e(f's_mul_i32 s3, s3, {49 * 128}')
            e(f'buffer_load_dword v{vBig + k}, v{t1}, {srd(WO)}, s3 offen')
    for k in range(P['wopre']):
        wo_touch(k)
    e.wait(vm=tokO)
    e('s_barrier')
    signal(sOfl, True)
    e.smem_out = 0
    for k in range(P['wopre'], 4):
        wo_touch(k)
    e.bg = bgs
    e('s_branch L_fin')
    e.cold_end()
    e.hist = hist
    e.vm_n, e.vm_done, e.lg_n, e.lg_done, e.pvm, e.plg, e.tok, nst[0] = save

    e.label('L_f')
    vE2 = vBig + 40
    vAp = [vBig, vBig + 56]
    assert nf[0] == 10
    fbar = {3: 6, 5: None, 7: 9, 9: 13, 11: None, 13: None}
    if P['flazy']:
        fbar = {3: 6, 5: None, 8: 9, 10: 11, 12: 13, 13: None}
    fbar.update({14 + 2 * g: QO[g] for g in range(4)})
    free = [QF + 9, False]

    def f_more(gap):
        f_enq(free[0], 22 if free[1] else QO[0], gap)

    def o_check():
        cnt_check(sOck, 8, P['sl2'])
        free[1] = True
        e.bg = [(k, f, P['ogap']) for k, f, _ in e.bg]
        f_more(P['ogap'])
    opub = [False]
    nu = [PH]

    def f_stage(i, done):
        if i == P['osig']:
            e.wait(vm=tokO)
        if i in fbar:
            bar(None if fbar[i] is None else QF + fbar[i])
            if i == 20:
                assert done >= QF + 15
            if not opub[0] and e.vm_done >= tokO:
                opub[0] = True
                signal(sOfl, True)
        if i in (0, 2, 4, 6, 8, 10, 12, 14, 18):
            stamp(f'f st{i}', (3,))
        if i in (7, 8, 9, 10, 11, 12, 13, 14, 16, 18, 20):
            stamp(f'f st{i}', (8,))
        gap = P['ogap'] if free[1] else P['fgap']
        rest = [t for t in e.bg if t[0][0] != 'u'] if P['flazy'] else []
        e.bg_settle()
        rest = [t for t in e.bg if t[0][0] != 'u'] if P['flazy'] else []
        e.bg = [t for t in e.bg if t not in rest]
        if nu[0] < 7:
            u_load(nu[0], gap)
            nu[0] += 1
        e.bg += rest
        if i == P['ofq']:
            e.smem_out = 0
            cnt_req(sOck)
        if i == P['ppub']:
            e.need(('p', 3))
            signal(sPfl, False)
        if i in fbar and i <= 13:
            free[0] = done + 10
            f_more(gap)
        if i == P['pfq']:
            e(f's_xor_b32 s{sPfl}, s{sPfl}, 1024')
            e.smem_out = 0
            cnt_req(sPfl)

    def p_check():
        cnt_check(sPfl, 1, P['sl1'], few=True)
        e(f'v_xor_b32 v{vPst}, {8 * 16384}, v{vPst}')
        for j in (2, 3, 0, 1):
            bg_ins(('pl', j), [], f'buffer_load_dwordx4 {v(vPr + 4 * j, 4)}, v{vPst}, {srd(WS)}, 0 offen offset:{j * 1024} sc1', 32)

    rs = []
    for q_ in range(2):
        rs.append(f'v_lshlrev_b32 v{vBo[q_]}, 16, v{vBo[q_]}')
        for k in range(4):
            d = vE2 + 8 * q_ + 2 * k
            rs += [f'v_lshlrev_b32 v{d}, 16, v{vXo[q_] + k}', f'v_and_b32 v{d + 1}, 0xffff0000, v{vXo[q_] + k}',
                   f'v_add_f32 v{d}, v{d}, v{vBo[q_]}', f'v_add_f32 v{d + 1}, v{d + 1}, v{vBo[q_]}']
    vPr = vAp[1]

    rs = part_fill(rs, 56, vAp, vPst, 'p')
    rs += [None] * (143 - len(rs)) + [lambda j=j: e(f'ds_write_b128 v{vEw[j & 1]}, {v(vAcc[1] + 4 * j, 4)} offset:{8192 + (j >> 1) * 4096}') for j in range(4)]
    gemm32(fseq, QF, f_stage, True, rs, [], lambda i: vAp if i < 7 else vAcc, 7,
           [(j >> 1, ('pl', j), vPr + 4 * j, j & 1) for j in range(4)],
           {P['ock']: o_check, P['pck']: p_check}, fpre)
    assert opub[0] and not e.bg
    stamp('f done', (1, 3, 8))
    for j in range(4):
        e(f'ds_write_b128 v{vEw[j & 1]}, {v(vAcc[0] + 4 * j, 4)} offset:{(j >> 1) * 4096}')
    e.wait_all(vm=False, lg=True)
    e('s_barrier')
    stamp('epi bar', (3, 20))
    if P['pert']:
        e(f'v_cmp_eq_u32 vcc, 0, v{vOo[0]}')
        e(f'v_mov_b32 v{t0}, {f32(P["pert"] / 1000.0)}')
        e(f'v_cndmask_b32 v{t0}, 0, v{t0}, vcc')
        e(f'v_add_f32 v{vE2 + P["pel"]}, v{vE2 + P["pel"]}, v{t0}')
    for q_ in range(2):
        for k in range(4):
            e(f'ds_read_b128 {v(vFr[4 * q_ + k], 4)}, v{vEr[k]} offset:{q_ * 2048}')
    for q_ in range(2):
        for k in range(4):
            for r in (0, 2):
                d = vE2 + 8 * q_ + 4 * (k & 1) + r
                e(f'v_pk_add_f32 {v(d, 2)}, {v(d, 2)}, {v(vFr[4 * q_ + k] + r, 2)}')
        for k in range(4):
            d = vE2 + 8 * q_ + 2 * k
            e(f'v_cvt_pk_bf16_f32 v{vSt[q_] + k}, v{d}, v{d + 1}')
        e(f'buffer_store_dwordx4 {v(vSt[q_], 4)}, v{vOo[q_]}, {srd(OUT)}, 0 offen' + ('', ' sc1', ' nt', ' sc0 sc1', ' sc1 nt')[P['outsc']])
    e.label('L_fin')
    if P['stamps']:
        e.wait_all(force=True)
        if nst[0] > 1:
            e(f's_mov_b32 s{sStamp + nst[0] - 1}, s{WQ}')
        e(f's_memrealtime s[{sT2}:{sT3}]')
        e(f's_memtime s[0:1]')
        e.wait_all(vm=False, lg=True, force=True)
        e(f's_mov_b32 s{sStamp + 15}, s{sT2}')
        e(f's_mov_b32 s{sStamp + 14}, s0')
        e(f's_lshl_b32 s3, s2, 2')
        e(f's_add_u32 s3, s3, s{sW}')
        e(f's_lshl_b32 s3, s3, 7')
        e(f's_add_u32 s3, s3, {ST_OFF}')
        if P['stamps'] == 20:
            for k in (ntr[0] - 2, ntr[0] - 1):
                e.raw(f'    v_writelane_b32 v{254 + k // 64}, s{86 + 2 * (k % 3)}, {k % 64}')
            e(f's_sub_u32 s{sT2}, s3, {ST_OFF}')
            e(f's_lshl_b32 s{sT2}, s{sT2}, 3')
            e(f's_add_u32 s{sT2}, s{sT2}, {7 << 20}')
            e(f'v_lshlrev_b32 v{t0}, 2, v{vLane}')
            for k in range(2):
                e(f'buffer_store_dword v{254 + k}, v{t0}, {srd(WS)}, s{sT2} offen offset:{256 * k}')
        for k in range(16):
            e(f'v_mov_b32 v{t0}, s{sStamp + k}')
            e(f'buffer_store_dword v{t0}, v{vFl}, {srd(WS)}, s3 offen offset:{4 * k}')
    if P['probe'] >= 0:
        e.wait_all(force=True)
        if P['probe'] >= 98:
            e(f'{"s_memtime" if P["probe"] == 98 else "s_memrealtime"} s[{sT2}:{sT3}]')
            e.wait_all(vm=False, lg=True, force=True)
            e(f's_mov_b32 s{sStamp}, s{sT2}')
        if P['probe'] == 98:
            e(f's_sub_u32 s{sStamp}, s{sStamp}, s{sStamp + 13}')
            e(f's_lshr_b32 s{sStamp}, s{sStamp}, 4')
            e(f's_add_u32 s{sStamp}, s{sStamp}, s{sNon}')
        e(f's_sub_u32 s{sCnt}, s{sStamp}, s{sNon}')
        e(f's_max_i32 s{sCnt}, s{sCnt}, 0')
        e(f's_min_i32 s{sCnt}, s{sCnt}, 4000')
        e(f's_lshl_b32 s{sCnt}, s{sCnt}, 2')
        e(f's_add_u32 s{sCnt}, s{sCnt}, 4000')
        e.label('L_fix')
        e(f's_memrealtime s[{sT2}:{sT3}]')
        e.wait_all(vm=False, lg=True, force=True)
        e(f's_sub_u32 s3, s{sT2}, s{sNon}')
        e(f's_cmp_lt_u32 s3, s{sCnt}')
        e(f's_cbranch_scc1 L_fix')
    e.label('L_end')
    e('s_endpgm')
    if P['iwarm']:
        e.lines = page_pads(e.lines, e.cold)
    e.lines += e.cold + ['L_last:', '    s_endpgm']

    if P['align']:
        e.lines = align_pass(e.lines, P['align'])
    hdr = open(os.path.join(os.path.dirname(os.path.abspath(__file__)), '..', NAME + '.s.ref')).read().split('; Override launch')[0]
    out = hdr + f"""; Generated by gen/gen.py (hand-written generator).{' cyc' if P['cyc'] else ''}
; @launch grid=(256,1,1) block=(256,1,1) lds={LDS_SIZE}
.amdgcn_target "amdgcn-amd-amdhsa--gfx950"
.text
.globl {NAME}_kernel
.p2align 8
.type {NAME}_kernel,@function
{NAME}_kernel:
""" + e.text() + f""".section .rodata,"a"
.p2align 6
.amdhsa_kernel {NAME}_kernel
  .amdhsa_next_free_vgpr 512
  .amdhsa_next_free_sgpr 102
  .amdhsa_accum_offset 256
  .amdhsa_group_segment_fixed_size 0
  .amdhsa_kernarg_size 88
  .amdhsa_user_sgpr_count 2
  .amdhsa_user_sgpr_kernarg_segment_ptr 1
  .amdhsa_system_sgpr_workgroup_id_x 1
.end_amdhsa_kernel
"""
    sys.stderr.write(f'vgpr hi {V.hi}, nops {e.nnop}, lines {len(e.lines)}\n')
    return out


def ins_sizes(lines):
    import subprocess, tempfile, re
    with tempfile.TemporaryDirectory() as d:
        open(d + '/a.s', 'w').write('.amdgcn_target "amdgcn-amd-amdhsa--gfx950"\n.text\n' + '\n'.join(lines) + '\n')
        subprocess.run(['clang', '-x', 'assembler', '-target', 'amdgcn-amd-amdhsa', '-mcpu=gfx950', '-c', d + '/a.s', '-o', d + '/a.o'], check=True)
        dis = subprocess.run(['llvm-objdump', '-d', '--mcpu=gfx950', d + '/a.o'], capture_output=True, text=True, check=True).stdout
    sizes = [4 * len(m.group(1).split()) for m in re.finditer(r'// [0-9A-F]+: ((?:[0-9A-F]{8} ?)+)', dis)]
    idx = [i for i, l in enumerate(lines) if l.startswith('    ') and not l.strip().startswith(';')]
    assert len(idx) == len(sizes), (len(idx), len(sizes))
    return dict(zip(idx, sizes))


def page_pads(lines, cold):
    NP = 7 if len(lines) > 4000 else 5
    jumps = ['    s_add_u32 s3, s3, 4']
    for k in range(NP):
        jumps += [f'    s_cmp_eq_u32 s3, {k + 4}', f'    s_cbranch_scc1 L_pad{k}']
    i = lines.index(';;PADJUMPS')
    lines = lines[:i] + jumps + lines[i + 1:]
    is_al = lambda l: l.startswith('.p2align')
    sz = ins_sizes([';' if is_al(l) else l for l in lines] + cold + ['L_last:'] + [f'L_pad{k}:' for k in range(NP)])
    out, off, k = [], None, 0
    for i, l in enumerate(lines):
        if is_al(l):
            off = 0
        if off is not None and i in sz:
            if off >= 4096 * (k + 1):
                out += [f'L_pad{k}:', '    s_cbranch_execz L_warm']
                off += 4
                k += 1
            off += sz[i]
        out.append(l)
    assert k <= NP, k
    for kk in range(k, NP):
        j = out.index(f'    s_cbranch_scc1 L_pad{kk}')
        out[j] = '    s_nop 0'
    sys.stderr.write(f'{k} page pads, hot path behind the anchor {off} bytes\n')
    return out


def align_pass(lines, minrun):
    import subprocess, tempfile, re
    with tempfile.TemporaryDirectory() as d:
        open(d + '/a.s', 'w').write('.amdgcn_target "amdgcn-amd-amdhsa--gfx950"\n.text\n' + '\n'.join(lines) + '\n')
        subprocess.run(['clang', '-x', 'assembler', '-target', 'amdgcn-amd-amdhsa', '-mcpu=gfx950', '-c', d + '/a.s', '-o', d + '/a.o'], check=True)
        dis = subprocess.run(['llvm-objdump', '-d', '--mcpu=gfx950', d + '/a.o'], capture_output=True, text=True, check=True).stdout
    sizes = [4 * len(m.group(1).split()) for m in re.finditer(r'// [0-9A-F]+: ((?:[0-9A-F]{8} ?)+)', dis)]
    idx = [i for i, l in enumerate(lines) if l.startswith('    ') and not l.strip().startswith(';')]
    assert len(idx) == len(sizes), (len(idx), len(sizes))
    ok = re.compile(r'^\s+(v_(?:mov|add|sub|subrev|mul|max|min|and|or|xor|lshlrev|lshrrev|exp|rcp|rsq|cndmask|fmac|mul_u32)_?[a-z0-9_]*) ')
    off, last, n, bad = 0, None, 0, 0
    out = list(lines)
    for k, i in enumerate(idx):
        if sizes[k] == 8 and off % 8:
            if last is not None:
                m = ok.match(out[last])
                out[last] = out[last].replace(m.group(1), m.group(1) + '_e64', 1)
                off += 4
                n += 1
            else:
                run = 0
                while k + run < len(sizes) and sizes[k + run] == 8:
                    run += 1
                if minrun > 1 and run >= minrun:
                    out[i] = '    s_nop 0\n' + out[i]
                    off += 4
                    n += 1000
                else:
                    bad += 1
        if sizes[k] == 8 and off % 8 == 0:
            last = None
        elif sizes[k] == 4 and ok.match(lines[i]):
            last = i
        off += sizes[k]
    sys.stderr.write(f'align: {n} promoted, {bad} 8-byte instructions left misaligned\n')
    return out


if __name__ == '__main__':
    kw = {}
    path = os.path.join(os.path.dirname(os.path.abspath(__file__)), '..', NAME + '.s')
    for arg in sys.argv[1:]:
        k, val = arg.split('=')
        if k == 'out':
            path = val
        else:
            kw[k] = int(val)
    open(path, 'w').write(build(**kw))
```

```python
import sys, os, math, struct
sys.path.insert(0, os.path.dirname(os.path.abspath(__file__)))
from emit import Asm, Regs, v, a, s

NAME = 'parallel_sum__sliding_local_dilated__mixer_token_mlp__prompt'

DEF = dict(
    stamps=0,
    probe=-1,
    cyc=0,
    gpub=11,
    gfq=13,
    gck=112,
    xdel=2,
    fqmax=2,
    iwarm=1,
    w1late=0,
    oord=1,
    t1x=1,
    xbf=1,
    pert=0,
    pel=7,
    nowait=1,
    sigall=0,
    wopre=1,
    w2pos=0,
    rsl=1,
    rt=1,
    sl1=4,
    sl2=8,
    sl3=8,
    hspec=0,
    jitter=0,
    outsc=0,
    flazy=2,
    psp=0,
    ggap=52,
    gpause=0,
    fpause=0,
    upause=0,
    gflush=0,
    hsc=1,
    hwarm=0,
    cglc=0,
    wfq=5,
    nt1=3,
    align=0,
    rpos=1,
    gord=1,
    tset=3726,
    sflip=0,
    wpause=0,
    wpk=3,
    flead=1,
    ph=3,
    hinit=3,
    hgap=56,
    hpos=5,
    qrd=0,
    ureq=11,
    wck=58,
    ock=88,
    osig=3,
    hold=0,
    df=6,
    w1pre=4,
    w1mid=4,
    w1flag=28,
    w1chk=4,
    hlead=1,
    qrot=0,
    ppub=11,
    pfq=14,
    pck=118,
    ofq=9,
    pu=3,
    xrot=2,
    qg1=56,
    ust=2,
    qgap=50,
    hsleep=4,
    rmask=7,
    pread=0,
    xp=0,
    ogap=48,
    fgap=60,
    agap=56,
    uo=2,
    hrep=8,
    touch=2,
    codepf=1,
    spin=20000,
)


def f32(x):
    return '0x%08x' % struct.unpack('<I', struct.pack('<f', x))[0]


H_OFF = 0
U_OFF = 2 << 20
O_OFF = 4 << 20
RS_OFF = 6 << 20
CN_OFF = RS_OFF + 0x10000
GF_OFF = RS_OFF + 0x20000
PF_OFF = RS_OFF + 0x30000
WP_OFF = 8 << 20
FL_OFF = 10 << 20
HF_OFF = FL_OFF
ST_OFF = 11 << 20
P_OFF = 12 << 20
G_OFF = 16 << 20
WS_SIZE = 20 << 20
OOB = 0x10000000

LDS_SIZE = 163840
SLOT = 16384
NSLOT = 10
PH_B = 9 * SLOT
PR_B = PH_B + 8192
EPI_B = 2 * SLOT
EXC_B = 2 * SLOT

X, WQ, WO, W1, W2, WS, OUT, B1, B2, DBG = 8, 12, 16, 20, 24, 28, 32, 36, 40, 44
sGsW, sGsH = 0, 1
sKh, sNh, sT2, sT3 = 4, 5, 6, 7
sW, sK32, sJ, sFT, sD, sS, sD2, sG1, sF, sNon, sM, sM3, sCnt, sBg = range(48, 62)
sXs, sWs, sGs2, sGsU, sRo, sUst, sUfl, sOfl = range(62, 70)
sPar, sCur0, sCur1, sInvd, sGc, sOne = 70, 72, 74, 76, 78, 80
sOs, sC1, sMh, sIdx = 82, 83, 100, 101
sOne1, sGfl, sUck, sOck = B1, B1 + 1, B1 + 2, B1 + 3
sChk, sWck = WQ + 2, WQ + 3
sZero = sMh
sR2 = sFT
sPfl = sG1
sStamp = 84


def srd(r):
    return s(r, 4)


def lanemask(fn):
    m = 0
    for l in range(64):
        if fn(l):
            m |= 1 << l
    return m


def build(**kw):
    P = dict(DEF)
    P.update(kw)
    assert P['wck'] <= 64 and P['df'] == 6
    e = Asm()
    V = Regs('v', 1, 256)
    nst = [0]
    npr = [0]
    ntr = [0]

    def stamp(name='', sets=(1,)):
        if P['probe'] >= 0 and 1 in sets:
            npr[0] += 1
            if npr[0] == P['probe']:
                e.comment(f'probe {name}')
                e(f's_memrealtime s[{sT2}:{sT3}]')
                e.wait_all(vm=False, lg=True, force=True)
                e(f's_mov_b32 s{sStamp}, s{sT2}')
        if P['jitter']:
            k = ntr[0]
            ntr[0] += 1
            e(f's_mul_i32 s{sStamp}, s{sStamp}, 1664525')
            e(f's_add_u32 s{sStamp}, s{sStamp}, 1013904223')
            e(f's_lshr_b32 s{sStamp + 1}, s{sStamp}, {32 - P["jitter"]}')
            e(f's_cbranch_scc1 L_jit{k}')
            e(f's_sleep {(8, 40, 100)[k % 3]}')
            e.label(f'L_jit{k}')
            return
        if P['stamps'] == 20:
            if sets in ((1,), (1, 4), (4,), (1, 2, 4), (1, 2, 9), (1, 2, 5, 9), (9, 20), (20,), (1, 5, 7), (1, 3), (1, 3, 8), (3, 20), (1, 5, 6, 7)):
                k = ntr[0]
                ntr[0] += 1
                p = 86 + 2 * (k % 3)
                if k >= 2:
                    q = 86 + 2 * ((k - 2) % 3)
                    e.raw(f'    v_writelane_b32 v{254 + (k - 2) // 64}, s{q}, {(k - 2) % 64}')
                e.raw(f'    s_memtime s[{p}:{p + 1}]')
            return
        if P['stamps'] not in sets:
            return
        k = nst[0]
        nst[0] += 1
        assert k < 13
        if k > 1:
            e(f's_mov_b32 s{sStamp + k - 1}, s{WQ}')
        e(f'{"s_memtime" if P["cyc"] else "s_memrealtime"} s[{WQ}:{WQ + 1}]')

    def setmask(r, m):
        return [f's_mov_b32 s{r}, 0x{m & 0xffffffff:08x}', f's_mov_b32 s{r + 1}, 0x{m >> 32:08x}']

    def run(lst):
        for t in lst:
            e.many(t)

    def merge(main, fill, per=1, every=1):
        fill = list(fill)
        for i, t in enumerate(main):
            e.many(t)
            if (i + 1) % every == 0:
                for _ in range(per):
                    if fill:
                        e.many(fill.pop(0))
        return fill

    def bg_dma(key, pre, sr, voff, soff, off, gap, mod=''):
        o = f' offset:{off}' if off else ''
        e.bg_add(key, list(pre) + [f'buffer_load_dwordx4 v{voff}, {srd(sr)}, s{soff} offen{o}{mod} lds'], gap)

    def bg_ins(key, pre, ins, gap):
        e.bg_add(key, list(pre) + [ins], gap)

    def mf16(d, A, B, c=None):
        return f'v_mfma_f32_16x16x32_bf16 {v(d, 4)}, {A}, {B}, {v(d, 4) if c is None else c}'

    def mf32(d, A, B, c=None):
        return f'v_mfma_f32_32x32x16_bf16 {v(d, 16)}, {A}, {B}, {v(d, 16) if c is None else c}'

    def mfs(d, A, B):
        return f'v_mfma_f32_16x16x4_f32 {v(d, 4)}, v{A}, v{B}, 0'

    npoll = [0]

    def flag_load(voff, vdst, n=1):
        return f'buffer_load_dword{"x2" if n == 2 else ""} {v(vdst, n)}, v{voff}, {srd(WS)}, 0 offen sc1'

    def flag_check(voff, vdst, sleep, n=1):
        k = npoll[0]
        npoll[0] += 1
        on, e.bg_on = e.bg_on, False
        e.bg_settle()
        cmp_ = [f'v_cmp_ne_u32 vcc, s{sNon}, v{vdst}'] if n == 1 else \
               [f'v_xor_b32 v{vdst}, s{sNon}, v{vdst}', f'v_xor_b32 v{vdst + 1}, s{sNon}, v{vdst + 1}',
                f'v_or_b32 v{vdst}, v{vdst}, v{vdst + 1}', f'v_cmp_ne_u32 vcc, 0, v{vdst}']
        run(cmp_)
        e(f's_cbranch_vccnz L_pollin{k}')
        e.cold_begin()
        e.label(f'L_pollin{k}')
        e.raw(f'    s_mov_b32 s{sCnt}, 0')
        e.label(f'L_poll{k}')
        e.raw(f'    s_sleep {sleep}')
        e.raw('    ' + flag_load(voff, vdst, n))
        e.raw(f'    s_add_u32 s{sCnt}, s{sCnt}, 1')
        e.raw(f'    s_waitcnt vmcnt(0)')
        for t in cmp_:
            e.raw('    ' + t)
        e.raw(f'    s_cbranch_vccz L_pollok{k}')
        e.raw(f'    s_cmp_lt_u32 s{sCnt}, {P["spin"]}')
        e.raw(f'    s_cbranch_scc1 L_poll{k}')
        e.raw(f'    s_branch L_pollok{k}')
        e.cold_end()
        e.label(f'L_pollok{k}')
        e.bg_on = on

    nsg = [0]

    def signal(soff, wg, base=WS):
        k = nsg[0]
        nsg[0] += 1
        wg = wg and not P['sigall']
        if wg:
            e(f's_cmp_lg_u32 s{sW}, 0')
            e(f's_cbranch_scc1 L_sig{k}')
        e(f's_atomic_add s{sOne1}, s[{base}:{base + 1}], s{soff}')
        if wg:
            e.label(f'L_sig{k}')
        e.smem_out += 1

    def cnt_req(soff, base=WS):
        if P['nowait']:
            e(f's_mov_b32 s{sChk}, 0')
        e(f's_load_dword s{sChk}, s[{base}:{base + 1}], s{soff}' + (' glc' if P['cglc'] else ''))
        e.smem_out += 1

    def cnt_check(soff, target, sleep, base=WS, unless0=None, few=False):
        k = npoll[0]
        npoll[0] += 1
        if P['nowait']:
            e.smem_out = max(e.smem_out - 1, 0)
        else:
            e.wait_all(vm=False, lg=True, force=True)
        e(f's_cmp_ge_u32 s{sChk}, {target}')
        e(f's_cbranch_scc0 L_pollin{k}')
        e.cold_begin()
        e.label(f'L_pollin{k}')
        if P['nowait']:
            e.raw(f'    s_waitcnt lgkmcnt(0)')
            e.raw(f'    s_cmp_ge_u32 s{sChk}, {target}')
            e.raw(f'    s_cbranch_scc1 L_pollok{k}')
        if unless0 is not None:
            e.raw(f'    s_cmp_eq_u32 s{unless0}, 0')
            e.raw(f'    s_cbranch_scc1 L_pollok{k}')
        e.raw(f'    s_mov_b32 s{sCnt}, 0')
        if P['rt'] & 1:
            e.raw(f'    s_branch L_poll{k}a')
        e.label(f'L_poll{k}')
        e.raw(f'    s_sleep {sleep}')
        e.label(f'L_poll{k}a')
        if P['rt'] & 2 and few:
            e.raw(f'    s_load_dword s{sChk}, s[{base}:{base + 1}], s{soff} glc')
            e.raw(f'    s_add_u32 s{sCnt}, s{sCnt}, 1')
            e.raw(f'    s_waitcnt lgkmcnt(0)')
        else:
            e.raw(f'    buffer_load_dword v{vFv}, off, {srd(base)}, s{soff} sc1')
            e.raw(f'    s_add_u32 s{sCnt}, s{sCnt}, 1')
            e.raw(f'    s_waitcnt vmcnt(0)')
            e.raw(f'    v_readfirstlane_b32 s{sChk}, v{vFv}')
            e.raw(f'    s_nop 0')
        e.raw(f'    s_cmp_ge_u32 s{sChk}, {target}')
        e.raw(f'    s_cbranch_scc1 L_pollok{k}')
        e.raw(f'    s_cmp_lt_u32 s{sCnt}, {P["spin"]}')
        e.raw(f'    s_cbranch_scc1 L_poll{k}')
        e.raw(f'    s_branch L_pollok{k}')
        e.cold_end()
        e.label(f'L_pollok{k}')

    def wrap(r, step, n):
        return [f's_add_u32 s{r}, s{r}, {step}', f's_cmp_eq_u32 s{r}, {step * n}', f's_cselect_b32 s{r}, 0, s{r}']

    FORD = [7, 0, 1, 2, 3, 4, 5, 6, 8, 9]

    def slot_of(q):
        k = q % NSLOT
        if q >= 30:
            k = FORD.index(k)
        if q >= 20:
            k = (0, 1, 4, 5, 2, 3, 6, 7, 8, 9)[k]
        return k * SLOT

    def pop(n):
        for _ in range(n):
            if e.bg:
                e._bg_pop()

    def publish(tok, soff):
        e.wait(vm=tok)
        return e(f'buffer_store_dword v{vNon}, v{vFl}, {srd(WS)}, s{soff} offen sc1')

    vLane, vL15, vG, vL16, vR8, vC8, vR4, vC4, vHi, vL31, vFl, vNon = [V.alloc() for _ in range(12)]
    t0, t1, t2, t3 = [V.alloc() for _ in range(4)]
    vFv = V.alloc(2)
    vFoH, vPst, vGs2, vGst, vDum = [V.alloc() for _ in range(5)]
    vCa = [V.alloc(), V.alloc()]
    vAs = [[V.alloc(), V.alloc()], [V.alloc(), V.alloc()]]
    e.dummy_ds = f'ds_read_b32 v{vDum}, v{vL16}'
    vPat = [[V.alloc() for _ in range(4)] for _ in range(3)]
    vPatW = [[V.alloc(), V.alloc()] for _ in range(2)]
    vOr = [[V.alloc(), V.alloc()] for _ in range(3)]
    vLin = [vL16, V.alloc(), V.alloc()]
    vD1 = [V.alloc() for _ in range(4)]
    vD2 = [V.alloc() for _ in range(4)]
    vDo = [V.alloc() for _ in range(2)]
    vOd = [V.alloc() for _ in range(2)]
    vXd = [V.alloc() for _ in range(3)]
    vXr = [[V.alloc(), V.alloc()] for _ in range(3)]
    vRs, vRsa = V.alloc(), V.alloc()
    vHo, vUo, vWp, vEx, vBa, vSw, vNeg = [V.alloc() for _ in range(7)]
    vOo = [V.alloc(), V.alloc()]
    vEw = [V.alloc() for _ in range(2)]
    vEr = [V.alloc() for _ in range(4)]
    vBo = [V.alloc(), V.alloc()]
    vXo = [V.alloc(4), V.alloc(4)]
    vMk = V.alloc(4)
    vC0 = V.alloc(2)
    vSt = [V.alloc(4), V.alloc(4)]
    NF = 8
    vFr = [V.alloc(4) for _ in range(NF)]
    vAcc = [V.alloc(16), V.alloc(16)]
    vBig = V.alloc(72)
    vE = vBig

    e('s_cmp_ge_u32 s2, 256')
    e('s_cbranch_scc1 L_end')
    for r, off in ((X, 0), (W1, 32), (WS, 80), (DBG, 72), (WQ, 8), (WO, 16), (W2, 48), (OUT, 64), (B1, 40), (B2, 56)):
        e(f's_load_dwordx2 {s(r, 2)}, s[0:1], {off}')
    sClk = 78
    e(f's_memrealtime s[{sClk}:{sClk + 1}]')
    if P['codepf']:
        e(f's_getpc_b64 s[6:7]')
        e.label('L_pc')
        e(f's_and_b32 s3, s2, 0xf8')
        e(f'v_lshrrev_b32 v{t0}, 5, v0')
        e(f'v_add_lshl_u32 v{t0}, s3, v{t0}, 7')
        e(f'v_min_u32 v{t0}, L_last-L_pc, v{t0}')
        e(f'global_load_dword v{vFv}, v{t0}, s[6:7]')
    vX = vBig
    vF = vBig + 8
    vG2 = vBig + 24
    vAB = vBig + 40
    vS_, vQ_, vT_, vU_ = vBig + 44, vBig + 45, vBig + 46, vBig + 47
    vLw, vLh, vLx, vHs = vBig + 48, vBig + 49, vBig + 50, vBig + 51
    tp = vBig + 52
    vFr8, vLr, vRo = vBig + 54, vBig + 55, vBig + 56
    sHrd = sC1
    e.many(f"""
        v_lshrrev_b32 v{t0}, 6, v0
        v_and_b32 v{vL31}, 31, v0
        v_readfirstlane_b32 s{sW}, v{t0}
        v_bfe_u32 v{vHi}, v0, 5, 1
        v_mul_u32_u24 v{t1}, 896, v{vHi}
        v_lshl_add_u32 v{t1}, v{vL31}, 4, v{t1}
        v_cmp_gt_u32 vcc, 28, v{vL31}
        v_mov_b32 v{t2}, {OOB}
        s_mov_b32 s{X + 2}, {2048 * 896}
        s_mov_b32 s{X + 3}, 0x20000
        v_cndmask_b32 v{t1}, v{t2}, v{t1}, vcc
        s_lshr_b32 s{sKh}, s{sW}, 1
        s_and_b32 s{sNh}, s{sW}, 1
        s_and_b32 s3, s2, 0xfe
        s_add_u32 s3, s3, s{sKh}
        s_lshl_b32 s3, s3, 1
        s_and_b32 s{sCnt}, s2, 1
        s_add_u32 s3, s3, s{sCnt}
        s_lshl_b32 s3, s3, 1
        s_add_u32 s3, s3, s{sNh}
        s_mul_i32 s3, s3, {2 * 896}
    """)
    e.wait_all(vm=False, lg=True, force=True)
    if P['stamps'] or P['probe'] == 98:
        e(f's_memtime s[0:1]')
        e.wait_all(vm=False, lg=True, force=True)
        e(f's_mov_b32 s{sStamp + 13}, s0')
    e(f'buffer_load_dwordx4 {v(vX, 4)}, v{t1}, {srd(X)}, s3 offen')
    e(f'buffer_load_dwordx4 {v(vX + 4, 4)}, v{t1}, {srd(X)}, s3 offen offset:448')
    if P['stamps'] or P['probe'] >= 0:
        e(f's_mov_b32 s{sStamp}, s{sClk}')
        nst[0] = 1
    if P['jitter']:
        e(f's_lshl_b32 s3, s2, 2')
        e(f's_add_u32 s3, s3, s{sW}')
        e(f's_mul_i32 s3, s3, 0x9e3779b1')
        e(f's_add_u32 s{sStamp}, s3, s{sClk}')
    sPair, sOdd, sXcd = sT2, sT3, sBg
    e.many(f"""
        v_and_b32 v{vLane}, 63, v0
        s_mov_b32 s{DBG + 2}, 256
        s_mov_b32 s{DBG + 3}, 0x20000
        s_lshl_b32 s3, s{sW}, 8
        s_add_u32 s3, s3, s2
        s_cmp_lt_u32 s3, 8
        s_cselect_b32 s3, 0, {OOB}
        s_or_b32 s{sClk}, s{sClk}, 1
        v_mov_b32 v{tp}, s{sClk}
        v_mov_b32 v{tp + 1}, 0
        v_lshlrev_b32 v{vFl}, 25, v{vLane}
        buffer_atomic_cmpswap {v(tp, 2)}, v{vFl}, {srd(DBG)}, s3 offen sc1
        s_bfe_u32 s{sPair}, s2, 0x20001
        s_and_b32 s{sOdd}, s2, 1
        s_and_b32 s{sXcd}, s2, 7
        s_lshr_b32 s{sIdx}, s2, 3
        s_mul_i32 s{sD}, s{sOdd}, 25
        s_add_u32 s{sD}, s{sD}, s{sIdx}
        s_mul_i32 s{sFT}, s{sD}, 37
        s_lshr_b32 s{sFT}, s{sFT}, 8
        s_mul_i32 s3, s{sFT}, 7
        s_sub_u32 s{sD}, s{sD}, s3
    """)
    e.many(f"""
        s_and_b32 s3, s{sPair}, 1
        s_mul_i32 s3, s3, 6
        s_add_u32 s{sFT}, s{sFT}, s3
        s_add_u32 s{sFT}, s{sFT}, 1
        s_add_u32 s3, s3, s{sFT}
        s_cmp_eq_u32 s3, 7
        s_cselect_b32 s{sFT}, 0, s{sFT}
        s_lshr_b32 s{sM3}, s{sPair}, 1
        s_lshl_b32 s{sFT}, s{sFT}, 1
        s_add_u32 s{sFT}, s{sFT}, s{sM3}
        s_max_u32 s{sCnt}, s{sIdx}, 25
        s_sub_u32 s{sCnt}, s{sCnt}, 25
        s_add_u32 s3, s{sIdx}, s{sOdd}
        s_cmp_lt_u32 s3, 25
        s_cselect_b32 s{sG1}, 1, 0
        s_cselect_b32 s{sD}, s{sD}, s{sCnt}
        s_mov_b32 s{W1 + 2}, {2048 * 3584}
        s_mov_b32 s{W1 + 3}, 0x20000
        s_lshl_b32 s3, s{sD}, 1
        s_sub_u32 s{sCnt}, s3, 7
        s_cmp_ge_u32 s3, 7
        s_cselect_b32 s3, s{sCnt}, s3
        s_and_b32 s3, s3, {P['rmask']}
        s_mul_i32 s{sCnt}, s{sXcd}, {P['xrot']}
        s_add_u32 s3, s3, s{sCnt}
        s_and_b32 s3, s3, 7
        s_mul_i32 s{sGsW}, s3, {128 * 3584}
        s_lshl_b32 s{sGsH}, s3, 13
        s_lshl_b32 s{sM}, s{sW}, 12
        v_lshrrev_b32 v{vG}, 4, v{vLane}
        v_lshrrev_b32 v{vR8}, 3, v{vLane}
        v_and_b32 v{vC8}, 7, v{vLane}
        v_lshlrev_b32 v{t1}, 1, v{vG}
        v_xor_b32 v{t1}, v{t1}, v{vC8}
        v_lshlrev_b32 v{vSw}, 4, v{t1}
        s_cmp_eq_u32 s{sG1}, 0
        s_cbranch_scc1 L_nog1
    """)
    save0 = (e.vm_n, e.vm_done, e.lg_n, e.lg_done, dict(e.pvm), dict(e.plg), dict(e.tok))
    e.many(f"""
        v_mul_u32_u24 v{t1}, 3584, v{vR8}
        s_lshl_b32 s3, s{sM3}, 5
        s_add_u32 s3, s3, s{sW}
        s_mul_i32 s3, s3, {32 * 3584}
        s_lshl_b32 s{sCnt}, s{sFT}, 7
        s_add_u32 s3, s3, s{sCnt}
        v_add3_u32 v{vD1[0]}, v{t1}, v{vSw}, s3
        v_add_u32 v{vD1[1]}, {16 * 3584 - 1024}, v{vD1[0]}
        v_add_u32 v{vD1[2]}, {8 * 3584 - 2048}, v{vD1[0]}
        v_add_u32 v{vD1[3]}, {3 * (8 * 3584 - 1024)}, v{vD1[0]}
    """)

    def w1_dma(q, gap):
        for k in range(4):
            pre = [f's_add_u32 m0, s{sM}, {slot_of(q)}'] + wrap(sGsW, 128 * 3584, 8) * (0 if P['xp'] & 8192 else ({0: 0} if P['gord'] else {8: 0, 0: 0, 9: 2}).get(q, 1)) if k == 0 else []
            if q in ((0, 8) if P['gord'] else (0, 9)):
                pre = pre + [f'v_xor_b32 v{vD1[k]}, 128, v{vD1[k]}']
            bg_dma(('s', q, k), pre, W1, vD1[k], sGsW, k * 1024, gap)

    vB1 = vBig + 64
    e.many(f"""
        s_mov_b32 s{B1 + 2}, 3584
        s_mov_b32 s{B1 + 3}, 0x20000
        v_lshlrev_b32 v{t0}, 3, v{vG}
        s_lshl_b32 s3, s{sFT}, 1
        s_add_u32 s3, s3, s{sKh}
        s_lshl_b32 s3, s3, 6
    """)
    for j in range(2):
        e(f'buffer_load_dwordx2 {v(vB1 + 2 * j, 2)}, v{t0}, {srd(B1)}, s3 offen offset:{32 * j}')
    e.bg_on = False
    for q in (range(9) if P['gord'] else (8, 0, 1, 2, 3, 4, 5, 6, 7)):
        w1_dma(q, 64)
    if P['w1late'] == 0:
        pop(P['w1pre'])
    sHs0, sHs1, sHfl, sEps, sInv, sOnes = 70, 71, 74, 75, 76, 77
    sRs, sHf2 = 72, 73
    def res_loads():
        for q_ in range(2):
            e(f'buffer_load_dwordx4 {v(vXo[q_], 4)}, v{vOo[q_]}, {srd(X)}, 0 offen')
            e(f'buffer_load_ushort v{vBo[q_]}, v{vBa}, {srd(B2)}, 0 offen offset:{16 * q_}')

    def p0_body(sets):
        e.many(f"""
            s_mul_i32 s{sS}, s{sIdx}, 37
            s_lshr_b32 s{sS}, s{sS}, 8
            s_mul_i32 s{sD2}, s{sS}, 7
            s_sub_u32 s{sD2}, s{sIdx}, s{sD2}
            s_and_b32 s{sS}, s{sS}, 3
            s_xor_b32 s{sS}, s{sS}, {P['sflip']}
            s_lshl_b32 s3, s{sPair}, 2
            s_add_u32 s{sS}, s{sS}, s3
            s_lshl_b32 s{sS}, s{sS}, 1
            s_add_u32 s{sS}, s{sS}, s{sOdd}
        """)
        e.many(f"""
            s_mov_b32 s{B2 + 2}, 4096
            s_mov_b32 s{B2 + 3}, 0x20000
            s_lshl_b32 s3, s{sS}, 2
            s_add_u32 s3, s3, s{sW}
            s_lshl_b32 s{sCnt}, s3, 5
            v_lshl_add_u32 v{vBa}, v{vR8}, 1, s{sCnt}
            s_mul_i32 s3, s3, {16 * 896}
            s_lshl_b32 s{sCnt}, s{sD2}, 7
            s_add_u32 s3, s3, s{sCnt}
            v_mul_u32_u24 v{t1}, 896, v{vR8}
            v_lshl_add_u32 v{t1}, v{vC8}, 4, v{t1}
            v_add_u32 v{vOo[0]}, s3, v{t1}
            v_add_u32 v{vOo[1]}, {8 * 896}, v{vOo[0]}
        """)
        if P['rpos'] == 0:
            res_loads()
        if P['w1late'] == 1:
            pop(P['w1pre'])
        e.many(f"""
            s_cmp_lt_u32 s{sIdx}, 28
            s_cselect_b32 s{sF}, 1, 0
            s_lshl_b32 s{sJ}, s{sOdd}, 3
            s_and_b32 s3, s{sIdx}, 7
            s_add_u32 s{sJ}, s{sJ}, s3
            s_lshr_b32 s{sCnt}, s{sIdx}, 3
            s_lshl_b32 s{sK32}, s{sPair}, 2
            s_add_u32 s{sK32}, s{sK32}, s{sCnt}
            s_lshl_b32 s{sK32}, s{sK32}, 2
            s_add_u32 s{sK32}, s{sK32}, s{sW}
            s_mul_i32 s{sCnt}, s{sCnt}, {2 * P['qrot']}
            s_add_u32 s3, s3, s{sCnt}
            s_sub_u32 s{sCnt}, s3, 7
            s_cmp_ge_u32 s3, 7
            s_cselect_b32 s3, s{sCnt}, s3
            s_lshl_b32 s{sXs}, s3, 18
            s_mul_i32 s{sWs}, s3, 12288
            s_mov_b32 s{WS + 2}, {WS_SIZE}
            s_mov_b32 s{WS + 3}, 0x20000
            s_mov_b32 s{sEps}, {f32(1e-5)}
            s_mov_b32 s{sInv}, {f32(1.0 / 448)}
            s_mov_b32 s{sOnes}, 0x3f803f80
            v_lshlrev_b32 v{vL16}, 4, v{vLane}
            v_bfe_u32 v{vR4}, v{vLane}, 2, 2
            v_and_b32 v{vC4}, 3, v{vLane}
            v_mul_u32_u24 v{t0}, 960, v{vHi}
            v_lshl_add_u32 v{t0}, v{vL31}, 4, v{t0}
            s_mul_i32 s3, s{sW}, 1920
            s_add_u32 s3, s3, {PH_B}
            v_add_u32 v{vLw}, s3, v{t0}
            v_mul_u32_u24 v{t0}, 960, v{vR4}
            v_lshl_add_u32 v{t0}, v{vG}, 5, v{t0}
            v_lshl_add_u32 v{t0}, v{vC4}, 3, v{t0}
            s_lshl_b32 s3, s{sW}, 8
            s_add_u32 s3, s3, {PH_B}
            v_add_u32 v{vLh}, s3, v{t0}
            s_lshl_b32 s3, s{sW}, 3
            s_add_u32 s3, s3, {PR_B}
            v_lshl_add_u32 v{vLx}, v{vHi}, 2, s3
            v_lshlrev_b32 v{vLr}, 2, v{vC8}
            v_and_b32 v{vL15}, 15, v{vLane}
            v_lshlrev_b32 v{vRo}, 14, v{vG}
            v_add_lshl_u32 v{vRo}, v{vRo}, v{vL15}, 2
            v_add_u32 v{vLr}, {PR_B}, v{vLr}
            v_lshlrev_b32 v{t0}, 17, v{vHi}
            v_lshl_add_u32 v{vHs}, v{vL31}, 4, v{t0}
            s_cmp_eq_u32 s{sW}, 3
            s_cselect_b32 s{sCnt}, {OOB}, 0
            s_lshl_b32 s{sHs0}, s{sW}, 10
            s_add_u32 s{sHs0}, s{sHs0}, s2
            s_lshl_b32 s{sHs0}, s{sHs0}, 9
            s_add_u32 s{sHs1}, s{sHs0}, 262144
            s_add_u32 s{sHs1}, s{sHs1}, s{sCnt}
            s_xor_b32 s{sCnt}, s{sCnt}, {OOB}
            s_lshl_b32 s{sRs}, s2, 7
            s_add_u32 s{sRs}, s{sRs}, s{sCnt}
            s_add_u32 s{sRs}, s{sRs}, {RS_OFF}
            s_lshr_b32 s{sHfl}, s2, 2
            s_lshl_b32 s{sHfl}, s{sHfl}, 5
            s_and_b32 s3, s2, 3
            s_add_u32 s{sHfl}, s{sHfl}, s3
            s_lshl_b32 s{sHfl}, s{sHfl}, 2
            s_add_u32 s{sHfl}, s{sHfl}, {HF_OFF}
            v_cmp_gt_u32 vcc, {P['hrep']}, v0
            v_lshlrev_b32 v{vFr8}, 13, v0
            v_mov_b32 v{t0}, {OOB}
            s_and_b32 s3, s2, {P['hrep'] - 1}
            s_lshl_b32 s3, s3, 13
            s_add_u32 s3, s3, {HF_OFF}
            v_lshrrev_b32 v{t1}, 2, v0
            v_lshl_add_u32 v{t1}, v{t1}, 7, s3
            v_lshl_add_u32 v{vFoH}, v{vC4}, 2, v{t1}
            v_cndmask_b32 v{vFr8}, v{t0}, v{vFr8}, vcc
            v_mov_b32 v{t3}, 0
        """)
        if P['hsc']:
            e(f's_lshl_b32 s3, s{sW}, 14')
            e(f's_add_u32 s{sHfl}, s{sHfl}, s3')
            e(f's_add_u32 s{sHf2}, s{sHfl}, 8192')
            if P['hwarm']:
                e(f's_and_b32 s{sZero}, s2, 3')
                e(f's_cbranch_scc1 L_nowarm{len(sets)}')
                e(f's_atomic_or s{sZero}, s[{WS}:{WS + 1}], s{sHfl}')
                e(f's_atomic_or s{sZero}, s[{WS}:{WS + 1}], s{sHf2}')
                e.label(f'L_nowarm{len(sets)}')
                e.smem_out = 2
        if P['pread'] and sets == (6,):
            e(flag_load(vFoH, vFv + 1))
        if P['w1late'] == 2:
            pop(P['w1pre'])
        for k in range(8):
            e(f'v_dot2_f32_bf16 v{vS_}, v{vX + k}, s{sOnes}, {"0" if k == 0 else "v%d" % vS_}')
            if k == 0:
                stamp('x landed', sets)
            e(f'v_dot2_f32_bf16 v{vQ_}, v{vX + k}, v{vX + k}, {"0" if k == 0 else "v%d" % vQ_}')
        unp = []
        for k in range(8):
            unp += [f'v_lshlrev_b32 v{vF + 2 * k}, 16, v{vX + k}', f'v_and_b32 v{vF + 2 * k + 1}, 0xffff0000, v{vX + k}']
        e(f'buffer_load_dword v{vNon}, v{t3}, {srd(DBG)}, 0 offen sc1')
        if P['w1late'] == 3:
            pop(P['w1pre'])
        run(unp[:2])
        unp = unp[2:]
        for ctl in ('quad_perm:[1,0,3,2]', 'quad_perm:[2,3,0,1]', 'row_half_mirror', 'row_mirror'):
            for r in (vS_, vQ_):
                e(f'v_add_f32_dpp v{r}, v{r}, v{r} {ctl} row_mask:0xf bank_mask:0xf')
            e(unp.pop(0))
        e(f'v_mov_b32 v{vT_}, v{vS_}')
        e(f'v_mov_b32 v{vU_}, v{vQ_}')
        e(unp.pop(0))
        e(f'v_permlane16_swap_b32 v{vS_}, v{vT_}')
        e(f'v_permlane16_swap_b32 v{vQ_}, v{vU_}')
        e.many(f"""
            v_add_f32 v{vS_}, v{vS_}, v{vT_}
            v_add_f32 v{vQ_}, v{vQ_}, v{vU_}
            v_mul_f32_e64 v{vS_}, -v{vS_}, s{sInv}
            v_mul_f32 v{vT_}, v{vS_}, v{vS_}
            v_fma_f32 v{vQ_}, v{vQ_}, s{sInv}, -v{vT_}
            v_max_f32 v{vQ_}, 0, v{vQ_}
            v_add_f32 v{vT_}, s{sEps}, v{vQ_}
            v_rsq_f32 v{vAB}, v{vT_}
        """)
        e(unp.pop(0))
        e.many(f"""
            v_mul_f32 v{vT_}, v{vAB}, v{vAB}
            v_fma_f32 v{vU_}, v{vT_}, v{vQ_}, s{sEps}
            v_rsq_f32 v{vT_}, v{vU_}
            v_mul_f32 v{vAB + 1}, v{vS_}, v{vAB}
            v_mul_f32 v{vAB + 2}, v{vAB}, v{vT_}
            v_mul_f32 v{vAB + 3}, v{vAB + 1}, v{vT_}
            v_mul_f32 v{vU_}, v{vU_}, v{vT_}
            ds_write_b32 v{vLx}, v{vU_}
        """)
        run(unp)

        def normalise(ab, base):
            for hf in range(2):
                for k in range(4 * hf, 4 * hf + 4):
                    e(f'v_pk_fma_f32 {v(vG2 + 2 * k, 2)}, {v(vF + 2 * k, 2)}, {v(ab, 2)}, {v(ab, 2)} op_sel:[0,0,1] op_sel_hi:[1,0,1]')
                for k in range(4 * hf, 4 * hf + 4):
                    e(f'v_cvt_pk_bf16_f32 v{vX + k}, v{vG2 + 2 * k}, v{vG2 + 2 * k + 1}')
                e(f'ds_write_b128 v{vLw}, {v(vX + 4 * hf, 4)} offset:{base + 448 * hf}')

        normalise(vAB + 2, 0)
        e.wait_all(vm=False, lg=True)
        e('s_barrier')
        for z in range(2):
            for h in range(2):
                e(f'ds_read_b64_tr_b16 {v(vSt[z] + 2 * h, 2)}, v{vLh} offset:{z * 128 + h * 3840}')
        e(f'ds_read_b32 v{vU_}, v{vLr}')
        for z in range(2):
            e(f'buffer_store_dwordx4 {v(vSt[z], 4)}, v{vHs}, {srd(WS)}, s{sHs0 + z} offen sc1')
        e(f'v_cmp_gt_u32 vcc, 16, v{vLane}')
        e(f'v_cndmask_b32 v{vU_}, 0, v{vU_}, vcc')
        tokH = e(f'buffer_store_dword v{vU_}, v{vRo}, {srd(WS)}, s{sRs} offen sc1')
        stamp('h stored', sets)
        return tokH

    tokH = p0_body((1, 4))

    pop(P['w1mid'])
    if P['iwarm']:
        e.comment('page-align the rest of the hot path (the padding is never executed)')
        e('s_branch L_anchor')
        e.raw('.p2align 12')
        e.label('L_anchor')

    setup = []
    for r, n in ((WO, 448 * 896), (W2, 1792 * 4096), (OUT, 2048 * 896)):
        setup.append(f's_mov_b32 s{r + 2}, {n}\ns_mov_b32 s{r + 3}, 0x20000')
    setup += f"""s_mov_b32 s{sOne1}, 1
        v_lshrrev_b32 v{t1}, 2, v{vLane}
        v_lshlrev_b32 v{t1}, 7, v{t1}
        v_lshl_add_u32 v{t1}, v{vC4}, 3, v{t1}
        v_and_b32 v{t2}, 3, v{vR8}
        v_lshl_add_u32 v{t1}, v{t2}, 5, v{t1}
        s_mul_i32 s3, s{sKh}, {8192 + 64}
        v_xor_b32 v{vPat[0][0]}, s3, v{t1}
        v_xor_b32 v{vPat[0][1]}, 32, v{vPat[0][0]}
        v_xor_b32 v{vPat[0][2]}, 64, v{vPat[0][0]}
        v_xor_b32 v{vPat[0][3]}, 96, v{vPat[0][0]}
        v_add_u32 v{vPat[1][0]}, 65536, v{vPat[0][0]}
        v_add_u32 v{vPat[1][1]}, 65536, v{vPat[0][1]}
        v_add_u32 v{vPat[1][2]}, 65536, v{vPat[0][2]}
        v_add_u32 v{vPat[1][3]}, 65536, v{vPat[0][3]}
        v_add_u32 v{vPat[2][0]}, 131072, v{vPat[0][0]}
        v_add_u32 v{vPat[2][1]}, 131072, v{vPat[0][1]}
        v_add_u32 v{vPat[2][2]}, 131072, v{vPat[0][2]}
        v_add_u32 v{vPat[2][3]}, 131072, v{vPat[0][3]}
        s_lshl_b32 s{sT2}, s{sD}, 1
        s_add_u32 s{sT2}, s{sT2}, s{sNh}
        s_lshl_b32 s3, s{sT2}, 1
        s_add_u32 s3, s3, s{sM3}
        s_lshl_b32 s3, s3, 4
        s_add_u32 s3, s3, s{sKh}
        s_lshl_b32 s3, s3, 12
        v_lshl_add_u32 v{vHo}, v{vG}, 8, v{vL16}
        v_add_u32 v{vHo}, s3, v{vHo}
        s_xor_b32 s{sGfl}, s{sFT}, 1
        s_lshl_b32 s{sGfl}, s{sGfl}, 3
        s_add_u32 s{sGfl}, s{sGfl}, s{sD}
        s_lshl_b32 s3, s{sGfl}, 14
        s_add_u32 s3, s3, s{sM}
        s_add_u32 s3, s3, {G_OFF + (OOB if P['xp'] & 1024 else 0)}
        v_add_u32 v{vGst}, s3, v{vL16}
        s_lshl_b32 s{sGfl}, s{sGfl}, 5
        s_add_u32 s{sGfl}, s{sGfl}, s{sNh}
        s_lshl_b32 s{sGfl}, s{sGfl}, 2
        s_add_u32 s{sGfl}, s{sGfl}, {GF_OFF}
        s_mul_i32 s{sUst}, s{sT2}, 56
        s_lshl_b32 s3, s{sFT}, 1
        s_add_u32 s3, s3, s{sKh}
        s_add_u32 s{sUst}, s{sUst}, s3
        s_lshl_b32 s{sUst}, s{sUst}, 11
        s_add_u32 s{sUst}, s{sUst}, {U_OFF + (OOB if P['xp'] & 2048 else 0)}
        v_add_u32 v{vEx}, s{sM}, v{vL16}
        s_lshl_b32 s{sUfl}, s{sD}, 2
        s_and_b32 s3, s{sFT}, 1
        s_add_u32 s{sUfl}, s{sUfl}, s3
        s_cmp_ge_u32 s{sFT}, 14
        s_cselect_b32 s3, 2, 0
        s_add_u32 s{sUfl}, s{sUfl}, s3
        s_lshl_b32 s{sUfl}, s{sUfl}, 7
        s_add_u32 s{sUfl}, s{sUfl}, {CN_OFF}
        v_add_u32 v{vLin[1]}, 65536, v{vL16}
        v_add_u32 v{vLin[2]}, 131072, v{vL16}
        s_mul_i32 s{sM3}, s{sW}, 3072
        s_mul_i32 s3, s{sJ}, 86016
        s_add_u32 s3, s3, s{sM3}
        s_add_u32 s3, s3, {WP_OFF}
        v_add_u32 v{vWp}, s3, v{vL16}
        v_lshlrev_b32 v{t1}, 7, v{vHi}
        v_xor_b32 v{t1}, v{t1}, v{vL16}
        s_lshl_b32 s3, s{sK32}, 11
        v_add_u32 v{vXd[0]}, s3, v{t1}
        v_add_u32 v{vXd[1]}, {131072 - 2048}, v{vXd[0]}
        s_lshr_b32 s3, s{sK32}, 2
        s_lshl_b32 s3, s3, 3
        s_max_u32 s3, s3, 1
        s_sub_u32 s3, s3, 1
        s_lshl_b32 s3, s3, 10
        s_lshl_b32 s{sT2}, s{sNh}, 17
        s_add_u32 s3, s3, s{sT2}
        s_lshl_b32 s{sT2}, s{sKh}, 28
        s_add_u32 s3, s3, s{sT2}
        v_add_u32 v{vXd[2]}, s3, v{t1}
        s_lshl_b32 s{sMh}, s{sNh}, 1
        s_add_u32 s{sMh}, s{sMh}, s{sKh}
        s_lshl_b32 s{sMh}, s{sMh}, 10
        v_and_b32 v{t1}, 1, v{vLane}
        v_mul_u32_u24 v{t1}, {512 + 128}, v{t1}
        v_lshrrev_b32 v{t2}, 2, v{vLane}
        v_lshlrev_b32 v{t2}, 4, v{t2}
        v_xor_b32 v{t1}, v{t1}, v{t2}
        v_bfe_u32 v{t2}, v{vLane}, 1, 1
        v_lshl_add_u32 v{t1}, v{t2}, 3, v{t1}
        s_add_u32 s3, s{sM}, 12288
        v_add_u32 v{vXr[0][0]}, s3, v{t1}
        s_sub_u32 s3, s3, 3072
        s_cmp_eq_u32 s{sW}, 0
        s_cselect_b32 s3, 28672, s3
        v_add_u32 v{vXr[0][1]}, s3, v{t1}
        v_add_u32 v{vXr[1][0]}, 65536, v{vXr[0][0]}
        v_add_u32 v{vXr[1][1]}, 65536, v{vXr[0][1]}
        v_add_u32 v{vXr[2][0]}, 131072, v{vXr[0][0]}
        v_add_u32 v{vXr[2][1]}, 131072, v{vXr[0][1]}
        s_lshl_b32 s3, s{sK32}, 1
        v_min_u32 v{t1}, 2, v{vG}
        v_add_u32 v{t1}, s3, v{t1}
        v_max_u32 v{t1}, 1, v{t1}
        v_lshlrev_b32 v{t1}, 1, v{t1}
        v_and_b32 v{t2}, 1, v{vR4}
        v_add_lshl_u32 v{t1}, v{t1}, v{t2}, 7
        v_lshrrev_b32 v{t2}, 1, v{vR4}
        v_lshl_add_u32 v{t2}, v{t2}, 2, v{vC4}
        v_lshl_add_u32 v{t1}, v{t2}, 2, v{t1}
        v_add_u32 v{vRsa}, {RS_OFF - 256}, v{t1}
        s_min_u32 s{sWck}, s{sW}, 2
        s_lshl_b32 s{sWck}, s{sWck}, 6
        s_add_u32 s{sWck}, s{sWck}, 64
        s_lshl_b32 s{sOs}, s{sK32}, 5
        s_add_u32 s{sOs}, s{sOs}, s{sJ}
        s_lshl_b32 s{sOs}, s{sOs}, 10
        s_add_u32 s{sOs}, s{sOs}, {O_OFF + (OOB if P['xp'] & 4096 else 0)}
        s_lshr_b32 s{sOfl}, s{sK32}, 2
        s_lshl_b32 s{sOfl}, s{sOfl}, 1
        s_and_b32 s3, s{sJ}, 1
        s_add_u32 s{sOfl}, s{sOfl}, s3
        s_lshl_b32 s{sOfl}, s{sOfl}, 7
        s_add_u32 s{sOfl}, s{sOfl}, {CN_OFF + 32 * 128}
        s_and_b32 s{sT3}, s{sS}, 1
        s_mul_i32 s3, s{sT3}, 28
        s_add_u32 s3, s3, s{sW}
        s_lshl_b32 s3, s3, 17
        s_xor_b32 s{sT2}, s{sS}, 1
        s_lshl_b32 s{sPfl}, s{sT2}, 3
        s_lshl_b32 s{sT2}, s{sS}, 7
        s_add_u32 s3, s3, s{sT2}
        v_lshlrev_b32 v{t1}, 12, v{vR8}
        v_add3_u32 v{vD2[0]}, v{t1}, v{vSw}, s3
        v_add_u32 v{vD2[1]}, {1 * (8 * 4096 - 1024)}, v{vD2[0]}
        v_add_u32 v{vD2[2]}, {2 * (8 * 4096 - 1024)}, v{vD2[0]}
        v_add_u32 v{vD2[3]}, {3 * (8 * 4096 - 1024)}, v{vD2[0]}
        v_mul_u32_u24 v{t1}, 896, v{vR8}
        s_mul_i32 s3, s{sKh}, {28 * 896}
        s_mul_i32 s{sT2}, s{sNh}, {16 * 896}
        s_add_u32 s3, s3, s{sT2}
        s_lshl_b32 s{sT2}, s{sD2}, 7
        s_add_u32 s3, s3, s{sT2}
        v_add3_u32 v{vDo[0]}, v{t1}, v{vSw}, s3
        v_add_u32 v{vDo[1]}, {8 * 896 - 1024}, v{vDo[0]}
        s_lshl_b32 s{sT2}, s{sS}, 1
        s_add_u32 s{sT2}, s{sT2}, s{sNh}
        s_and_b32 s3, s{sS}, 30
        s_add_u32 s3, s3, s{sKh}
        s_lshl_b32 s3, s3, 7
        s_add_u32 s{sOck}, s3, {CN_OFF + 32 * 128}
        s_lshl_b32 s3, s{sT2}, 5
        s_add_u32 s3, s3, s{sKh}
        s_lshl_b32 s3, s3, 10
        s_add_u32 s3, s3, {O_OFF}
        v_add_u32 v{vOd[0]}, s3, v{vL16}
        v_add_u32 v{vOd[1]}, {16384 - 1024}, v{vOd[0]}
        s_xor_b32 s3, s{sKh}, s{sNh}
        s_lshl_b32 s3, s3, 6
        v_xor_b32 v{vPatW[0][0]}, s3, v{vPat[0][0]}
        v_xor_b32 v{vPatW[0][1]}, 32, v{vPatW[0][0]}
        v_add_u32 v{vPatW[1][0]}, 65536, v{vPatW[0][0]}
        v_add_u32 v{vPatW[1][1]}, 65536, v{vPatW[0][1]}
        s_mul_i32 s3, s{sKh}, {3 * 4096}
        v_add_u32 v{vOr[0][0]}, s3, v{vL16}
        v_xor_b32 v{vOr[0][1]}, 4096, v{vOr[0][0]}
        v_add_u32 v{vOr[1][0]}, 65536, v{vOr[0][0]}
        v_add_u32 v{vOr[1][1]}, 65536, v{vOr[0][1]}
        v_add_u32 v{vOr[2][0]}, 131072, v{vOr[0][0]}
        v_add_u32 v{vOr[2][1]}, 131072, v{vOr[0][1]}
        s_lshl_b32 s{sT2}, s{sD2}, 1
        s_add_u32 s{sT2}, s{sT2}, s{sNh}
        s_lshl_b32 s3, s{sT2}, 1
        s_add_u32 s3, s3, s{sT3}
        s_mul_i32 s3, s3, 14
        s_add_u32 s3, s3, s{sKh}
        s_lshl_b32 s3, s3, 12
        s_add_u32 s3, s3, {U_OFF}
        v_add_u32 v{vUo}, s3, v{vL16}
        s_lshl_b32 s3, s{sD2}, 1
        s_add_u32 s3, s3, s{sT3}
        s_lshl_b32 s3, s3, 1
        s_add_u32 s3, s3, s{sKh}
        s_lshl_b32 s3, s3, 7
        s_add_u32 s{sUck}, s3, {CN_OFF}
        s_and_b32 s3, s2, 6
        s_add_u32 s3, s3, s{sD2}
        s_sub_u32 s{sT2}, s3, 7
        s_cmp_ge_u32 s3, 7
        s_cselect_b32 s3, s{sT2}, s3
        s_lshl_b32 s{sGs2}, s3, 19
        s_lshl_b32 s{sGsU}, s3, 13
        s_add_u32 s{sPfl}, s{sPfl}, s{sD2}
        s_lshl_b32 s3, s{sPfl}, 14
        s_add_u32 s3, s3, s{sM}
        s_add_u32 s3, s3, {P_OFF + (OOB if P['xp'] & 512 else 0)}
        v_add_u32 v{vPst}, s3, v{vL16}
        s_lshl_b32 s{sPfl}, s{sPfl}, 5
        s_add_u32 s{sPfl}, s{sPfl}, s{sW}
        s_lshl_b32 s{sPfl}, s{sPfl}, 2
        s_add_u32 s{sPfl}, s{sPfl}, {PF_OFF}
        s_lshl_b32 s3, s{sNh}, 3
        v_add_u32 v{t0}, s3, v{vG}
        v_xor_b32 v{t0}, v{t0}, v{vC8}
        v_lshlrev_b32 v{t0}, 4, v{t0}
        v_lshl_add_u32 v{t0}, v{vL15}, 8, v{t0}
        s_lshl_b32 s3, s{sKh}, 14
        s_add_u32 s3, s3, {EPI_B}
        v_add_u32 v{vEw[0]}, s3, v{t0}
        v_xor_b32 v{vEw[1]}, 64, v{vEw[0]}
        s_lshr_b32 s3, s{sS}, 1
        s_add_u32 s{sRo}, s3, s{sD2}
        s_mov_b32 s{sR2}, s{sRo}
        v_lshlrev_b32 v{t0}, 1, v{vC8}
        v_xor_b32 v{t0}, v{t0}, v{vR8}
        v_lshlrev_b32 v{t0}, 4, v{t0}
        v_lshl_add_u32 v{t0}, v{vR8}, 8, v{t0}
        s_add_u32 s3, s{sM}, {EPI_B}
        v_add_u32 v{vEr[0]}, s3, v{t0}
        v_xor_b32 v{vEr[1]}, 16, v{vEr[0]}
        v_xor_b32 v{vEr[2]}, {16384 + 8192}, v{vEr[0]}
        v_xor_b32 v{vEr[3]}, {16384 + 8192 + 16}, v{vEr[0]}""".split('\n')
    par = lambda l: l & 1
    cur = lambda l, z: 4 * (l >> 4) + 2 * z + (l & 1) <= (l & 15)
    c0 = -2.0 * math.sqrt(2.0 / math.pi) * math.log2(math.e)
    setup2 = setmask(sPar, lanemask(par)) + setmask(sCur0, lanemask(lambda l: cur(l, 0))) + setmask(sCur1, lanemask(lambda l: cur(l, 1)))
    setup2 += [f's_cmp_eq_u32 s{sK32}, 0\ns_cselect_b64 {s(sInvd, 2)}, 0, -1',
               f'v_mov_b32 v{t0}, 0xffff', f'v_mov_b32 v{t1}, 0xffff0000',
               f'v_cndmask_b32 v{t0}, v{t0}, v{t1}, {s(sPar, 2)}']
    for z, sc in ((0, sCur0), (1, sCur1)):
        setup2 += [f'v_cndmask_b32 v{vMk + z}, v{t0}, 0, {s(sc, 2)}', f'v_cndmask_b32 v{vMk + 2 + z}, 0, v{t0}, {s(sc, 2)}']
    setup2 += [f'v_mov_b32 v{vNeg}, {f32(-1e30)}',
               f's_mov_b32 s{sC1}, {f32(28 ** -0.5 * math.log2(math.e))}',
               f's_mov_b32 s{sGc}, {f32(c0 * 0.044715)}\ns_mov_b32 s{sGc + 1}, {f32(c0 * 0.044715)}',
               f's_mov_b32 s{sOne}, 1.0\ns_mov_b32 s{sOne + 1}, 1.0',
               f'v_mov_b32 v{vC0}, {f32(c0)}', f'v_mov_b32 v{vC0 + 1}, {f32(c0)}']
    aSel = 248
    setup2 += [f'v_lshrrev_b32 v{t0}, 1, v{vL15}', f'v_lshlrev_b32 v{t1}, 1, v{vG}', f'v_sub_u32 v{t0}, v{t0}, v{t1}',
               f'v_mov_b32 v{t1}, 0x3f80', f'v_cndmask_b32 v{t1}, v{t1}, 1.0, {s(sPar, 2)}']
    for k in range(2):
        setup2 += [f'v_cmp_eq_i32 vcc, {k}, v{t0}', f'v_accvgpr_write_b32 a{aSel + k}, 0', f'v_accvgpr_write_b32 a{aSel + 4 + k}, 0',
                   f'v_cndmask_b32 v{t2}, 0, v{t1}, vcc', f'v_accvgpr_write_b32 a{aSel + 2 + k}, v{t2}']
    if P['sigall']:
        setup2.append(f"""s_and_b32 s3, s2, 127
            s_lshl_b32 s3, s3, 7
            s_add_u32 s3, s3, {CN_OFF + 128 * 128}
            s_cmp_eq_u32 s{sW}, 0
            s_cselect_b32 s{sUfl}, s{sUfl}, s3
            s_cselect_b32 s{sOfl}, s{sOfl}, s3""")
    NS1 = [i for i, t in enumerate(setup) if t.strip().startswith(f'v_add_u32 v{vLin[1]},')][0]

    def h_publish(tag, tokH):
        run(setup[:NS1])
        e(f'v_readfirstlane_b32 s{sNon}, v{vNon}')
        e(f's_mov_b32 s{sCnt}, 0')
        e(f's_cmp_lg_u32 s{sNon}, 0')
        e(f's_cbranch_scc0 L_nonce{tag}')
        e.cold_begin()
        e.label(f'L_nonce{tag}')
        e.raw(f'    buffer_load_dword v{vNon}, v{t3}, {srd(DBG)}, 0 offen sc1')
        e.raw(f'    s_add_u32 s{sCnt}, s{sCnt}, 1')
        e.raw(f'    s_waitcnt vmcnt(0)')
        e.raw(f'    v_readfirstlane_b32 s{sNon}, v{vNon}')
        e.raw(f'    s_cmp_ge_u32 s{sCnt}, {P["spin"]}')
        e.raw(f'    s_cbranch_scc1 L_nonce_ok{tag}')
        e.raw(f'    s_cmp_eq_u32 s{sNon}, 0')
        e.raw(f'    s_cbranch_scc1 L_nonce{tag}')
        e.raw(f'    s_branch L_nonce_ok{tag}')
        e.cold_end()
        e.label(f'L_nonce_ok{tag}')
        e.wait(vm=tokH, lg=e.lg_n)
        e('s_barrier')
        if P['hsc']:
            assert P['hrep'] == 8
            e(f's_atomic_swap s{sNon}, s[{WS}:{WS + 1}], s{sHfl}')
            e(f's_atomic_swap s{sNon}, s[{WS}:{WS + 1}], s{sHf2}')
            e.smem_out = 2
        else:
            e(f'buffer_store_dword v{vNon}, v{vFr8}, {srd(WS)}, s{sHfl} offen sc1')
        if P['rpos'] == 1 or (P['rpos'] == 2 and tag == 'h'):
            res_loads()

    h_publish('', tokH)
    stamp('hflag', (1, 4))
    if P['xp'] & 1:
        e.wait_all(force=True)
        stamp('flag ack', (4,))
    w1_dma(9, 64)
    e.bg_on = True
    e.credit = 0
    hold = e.bg[max(0, P['w1flag'] - (40 - len(e.bg))):]
    del e.bg[len(e.bg) - len(hold):]
    run(setup[NS1:])
    for j in range(4):
        b = vB1 + 2 * (j & 1)
        e(f'v_lshlrev_b32 v{vAcc[0] + 4 * j}, 16, v{b}')
        e(f'v_and_b32 v{vAcc[0] + 4 * j + 1}, 0xffff0000, v{b}')
        e(f'v_lshlrev_b32 v{vAcc[0] + 4 * j + 2}, 16, v{b + 1}')
        e(f'v_and_b32 v{vAcc[0] + 4 * j + 3}, 0xffff0000, v{b + 1}')

    def bf(n, j):
        return a((n * 4 + j) * 4, 4)

    def h_load(n, gap):
        for j in range(4):
            pre = [f's_add_u32 s{sGsH}, s{sGsH}, 8192', f's_and_b32 s{sGsH}, s{sGsH}, 0xffff'] if (j == 0 and n and not P['xp'] & 128) else []
            bg_ins(('h', n, j), pre, f'buffer_load_dwordx4 {bf(n, j)}, v{vHo}, {srd(WS)}, s{sGsH} offen offset:{(j >> 1) * 2048 + (j & 1) * 256} sc1', gap)

    def u_load(n, gap):
        for j in range(4):
            pre = wrap(sGsU, 8192, 7) if (j == 0 and n and not P['xp'] & 64) else []
            bg_ins(('u', n, j), pre, f'buffer_load_dwordx4 {bf(n, j)}, v{vUo}, {srd(WS)}, s{sGsU} offen offset:{j * 1024} sc1', gap)

    def q_dma(st, gap):
        q = 16 + 2 * st
        b = slot_of(q)
        for k in range(3):
            pre = [f's_add_u32 m0, s{sM3}, {b}'] + (wrap(sWs, 12288, 7) if st and not P['xp'] & 8 else []) if k == 0 else []
            bg_dma(('s', q, k), pre, WS, vWp, sWs, k * 1024, gap, mod=' sc1')
        bg_dma(('s', q, 3), [f's_add_u32 m0, s{sMh}, {b + 28672}'] + (wrap(sXs, 1 << 18, 7) if st and not P['xp'] & 256 else []), WS, vXd[2], sXs, 0, gap, mod=' sc1')
        for k in range(4):
            pre = [f's_add_u32 m0, s{sM}, {b + 12288}'] if k == 0 else []
            bg_dma(('s', q + 1, k), pre, WS, vXd[k >> 1], sXs, k * 1024, gap, mod=' sc1')

    QF = 30
    QW, QO = ((14, 15, 16, 20), (17, 18, 19, 21)) if P['oord'] else ((14, 15, 16, 17), (18, 19, 20, 21))
    fseq = [('u', n) for n in range(14)] + [('o', m) for m in range(8)]

    def f_dma(i, gap):
        kind, n = fseq[i]
        q = QF + i
        m0 = [f's_add_u32 m0, s{sM}, {slot_of(q)}']
        if kind == 'u':
            for k in range(4):
                pre = m0 + wrap(sGs2, 1 << 19, 7) * (0 if P['xp'] & 16 else {0: 0, 7: 0, 8: 2}.get(n, 1)) if k == 0 else []
                if n in (0, 8):
                    pre = pre + [f'v_xor_b32 v{vD2[k]}, 128, v{vD2[k]}']
                bg_dma(('s', q, k), pre, W2, vD2[k], sGs2, k * 1024, gap + (P['wpause'] if (n, k) == (0, P['wpk']) else 0))
        else:
            r = sRo if i in QW else sR2
            step = [f's_add_u32 s{r}, s{r}, {0 if P["xp"] & 32 else 1}', f's_and_b32 s{r}, s{r}, 3']
            if i in QW:
                bg_dma(('s', q, 0), m0 + step + [f's_mul_i32 s{sBg}, s{sRo}, {112 * 896}'], WO, vDo[0], sBg, 0, gap)
                bg_dma(('s', q, 1), [], WO, vDo[1], sBg, 1024, gap)
                bg_dma(('s', q, 2), [f's_add_u32 s{sBg}, s{sBg}, {56 * 896 - 2048}'], WO, vDo[0], sBg, 2048, gap)
                bg_dma(('s', q, 3), [], WO, vDo[1], sBg, 3072, gap)
            else:
                for k in range(4):
                    pre = m0 + step + [f's_lshl_b32 s{sBg}, s{sR2}, 12'] if k == 0 else []
                    bg_dma(('s', q, k), pre, WS, vOd[k & 1], sBg, k * 1024, gap, mod=' sc1')

    def bar(qlast):
        if qlast is not None:
            e.need(('s', qlast, 3))
        if not (P['xp'] & 16384 and qlast != 5):
            e('s_barrier')

    PH, DF = P['ph'], P['df']
    vWof = [vBig + 16 + 4 * k for k in range(6)]

    def fr(x, n=4, o=0):
        return a(200 + 4 * (x % NF) + o, n)

    def tr_reads(q, j, T_, x):
        r = []
        for h in range(2):
            ad = slot_of(q) + (j >> 1) * 4096 + h * 2048
            r.append(f'ds_read_b64_tr_b16 {fr(x, 2, 2 * h)}, v{vPat[ad >> 16][2 * T_ + (j & 1)]} offset:{ad & 65535}')
        return r

    def gemm32(seq, q0, at_stage, swap, fill, init, accs, amod, padd, checks, pre=None):
        items = []
        for i, (kind, n) in enumerate(seq):
            items += [(i, kind, n, j, T_) for j in range(4 if kind != 'o' else 2) for T_ in range(2)]
        tail = [t for t in items if t[0] >= len(seq) - 2]
        items = items[:len(items) - len(tail)]
        for T_ in (1, 0):
            items += [t for t in tail if t[4] == T_] + [(None, 'P', p, 0, T_) for p in padd if p[0] == T_]
        tk = {}
        left = [sum(1 for t in items if t[0] == i) for i in range(len(seq))]
        seen = set()
        init = set(init)
        lastrd = {}
        done = [-1]
        rq, fq = [], []

        def plan(x):
            i, kind, n, j, T_ = items[x]
            if kind == 'P':
                return
            r = []
            if i not in seen:
                seen.add(i)
                rq.append((x, None, False))
                if kind == 'o':
                    for cb in range(2):
                        for h in range(2):
                            ad = slot_of(q0 + QW[n >> 1]) + h * 4096 + (n & 1) * 2048
                            r.append(f'ds_read_b64_tr_b16 {v(vWof[(2 * n + cb) % 6] + 2 * h, 2)}, v{vPatW[ad >> 16][cb]} offset:{ad & 65535}')
            if pre and x in pre:
                tk[x] = lastrd[i] = pre[x]
                left[i] -= 1
            elif kind != 'o':
                r += tr_reads(q0 + i, j, T_, x)
            else:
                ad = slot_of(q0 + QO[n >> 1]) + (n & 1) * 2048 + j * 1024
                r.append(f'ds_read_b128 {fr(x)}, v{vOr[ad >> 16][T_]} offset:{ad & 65535}')
            rq.extend((x, t, t is r[-1]) for t in r)

        def rd1():
            while rq and rq[0][1] is None:
                i = items[rq.pop(0)[0]][0]
                while left[done[0] + 1] == 0 and e.lg_done >= lastrd[done[0] + 1]:
                    done[0] += 1
                at_stage(i, q0 + done[0])
            if not rq:
                return False
            x, t, last = rq.pop(0)
            tok = e(t)
            if last:
                tk[x] = lastrd[items[x][0]] = tok
                left[items[x][0]] -= 1
            return True

        def f1():
            f = fq.pop(0)
            if callable(f):
                f()
            else:
                e.many(f)
        e.ds_free = True
        e.bg_on = False
        for x in range(DF):
            plan(x)
        while rd1():
            pass
        nxt = DF
        for x, (i, kind, n, j, T_) in enumerate(items):
            if x % 4 == 0:
                stamp(f'{seq[0][0]}{x}', (20,))
            if kind == 'P':
                if n[1]:
                    e.bg_flush(n[1])
                ms = [mf16(vAcc[T_] + 8 * n[3] + 4 * rt, a(aSel + 2 - 2 * rt, 4), v(n[2], 4)) for rt in range(2)]
            else:
                vm = None
                if kind != 'o':
                    key = (kind, n % amod, j | 1)
                    e.bg_flush(key)
                    vm = e.tok[key]
                while x not in tk:
                    rd1()
                e.wait(vm=vm, lg=tk.get(x + 1, tk[x]) if x % 2 == 0 else None)
                ms = []
                for cb in range(2):
                    act = bf(n % amod, (j & 2) + cb) if kind != 'o' else v(vWof[(2 * n + cb) % 6], 4)
                    d = accs(i)[T_] + (8 * (j & 1) + 4 * cb if swap else 8 * cb + 4 * (j & 1))
                    c = None if d in init else '0'
                    init.add(d)
                    ms.append(mf16(d, act, fr(x), c) if swap else mf16(d, fr(x), act, c))
            f = fill.pop(0) if fill else None
            now = callable(f)
            if isinstance(f, list):
                fq.extend(f)
            elif now or (f and 's_cmp' in f):
                fq.append(f)
            elif f:
                fq.extend(f.split('\n'))
            for k, m in enumerate(ms):
                e(m)
                slots = 1 if (k == 1 and x % 2 == 1) else 2
                if k == 0:
                    if x in checks:
                        checks[x]()
                    if not any(x < c <= x + P['hold'] for c in checks):
                        for _ in range(2):
                            if nxt <= x + DF and nxt < len(items):
                                plan(nxt)
                                nxt += 1
                if rd1():
                    slots -= 1
                if len(rq) > 2 and rd1():
                    slots -= 1
                did = False
                while (slots > 0 or e.credit < -24) and e.bg_step():
                    slots -= 1
                while fq and (slots > 0 or (k == 1 and (now or len(fq) > P['fqmax'] or not did and x % 2 == 0))):
                    f1()
                    did = True
                    slots -= 1
        while fq:
            f1()
        e.ds_free = False
        e.bg_on = True
        assert not fill and not rq

    def xf(t, ks):
        return 176 + ((ks & 1) * 3 + t) * 4

    def wf(f, ks):
        return 128 + ((ks & 1) * 6 + f) * 4

    def q_reads(ks):
        st, ksl = ks >> 1, ks & 1
        b = slot_of(16 + 2 * st)

        def xr(t):
            r = []
            for h in range(2):
                ad = b + ksl * 2048 + (1024 if t == 2 else 0) + h * 256
                r.append(f'ds_read_b64_tr_b16 {a(xf(t, ks) + 2 * h, 2)}, v{vXr[ad >> 16][1 if t == 0 else 0]} offset:{ad & 65535}')
            return r

        def wr(f):
            ad = b + (ksl * 6 + f) * 1024
            return [f'ds_read_b128 {a(wf(f, ks), 4)}, v{vLin[ad >> 16]} offset:{ad & 65535}']
        return xr(1) + wr(0) + xr(2) + wr(1) + wr(2) + xr(0) + wr(3) + wr(4) + wr(5)

    e.bg_flush()
    stamp('flag rq', (4,))
    if P['xp'] & 65536:
        e(f'buffer_load_dword v{vFv}, v{t3}, {srd(DBG)}, 0 offen sc1')
    else:
        e(flag_load(vFoH, vFv))
    e.bg = hold[:P['w1chk']]
    hold = hold[P['w1chk']:]
    assert len(hold) % 4 == 0

    def h_spec():
        if P['hspec'] & 4:
            e.many(f"""
                s_mul_i32 s3, s{sIdx}, 37
                s_lshr_b32 s3, s3, 8
                s_lshl_b32 s3, s3, 14
                s_add_u32 s3, s3, s{sGsH}
            """)
        e.many(f"""
            v_and_b32 v{t0}, 0xfffff000, v{vHo}
            v_lshl_add_u32 v{t0}, v{vL31}, 7, v{t0}
            v_lshl_add_u32 v{t1}, v{vHi}, 13, s{3 if P['hspec'] & 4 else sGsH}
            v_and_b32 v{t1}, 0xffff, v{t1}
            v_add_u32 v{t0}, v{t0}, v{t1}
            buffer_load_dword v{vDum}, v{t0}, {srd(WS)}, 0 offen sc1
        """)
        e.pvm.pop(('v', vDum))
    e.bg_on = False
    if P['hspec'] & 1:
        h_spec()
    e.bg_flush()
    if P['hspec'] & 2:
        h_spec()
    e.bg_on = True
    stamp('w1 iss', (4,))
    if P['iwarm']:
        e.comment('while the flags are in flight: touch the first fetch line of every later code page (no memory code on this walk)')
        e(f's_mov_b32 s3, s{sW}')
        e('s_mov_b64 exec, 0')
        e.label('L_warm')
        e.raw(';;PADJUMPS')
        e('s_mov_b64 exec, -1')
    if P['stamps'] == 4:
        e(f's_mov_b32 s{sCnt}, 0')
    flag_check(vFoH, vFv, P['hsleep'])
    if P['stamps'] == 4:
        e(f's_mov_b32 s{sStamp + 12}, s{sCnt}')
    stamp('chk', (20,))
    n_iss = 10 - len(hold) // 4
    bar(min(n_iss - 3, 5))
    e.smem_out = 0
    stamp('h ok', (1, 2, 4))
    for n in range(8):
        h_load(n, P['hgap'])
        if n == 0:
            bg_ins('rs', [], f'buffer_load_dword v{vRs}, v{vRsa}, {srd(WS)}, 0 offen sc1', 0)
            if P['rpos'] == 2:
                e.bg_flush()
                res_loads()
        if n < P['hinit']:
            e.bg_flush()
        if n >= P['hpos']:
            e.bg += [(k, f, P['hgap']) for k, f, _ in hold[:4]]
            del hold[:4]
    e.bg += [(k, f, P['hgap']) for k, f, _ in hold]

    rsfill = [f'v_lshlrev_b32 v{t0}, 2, v{vL15}',
            f'v_and_b32 v{t1}, 1, v{vLane}',
            f'v_lshl_add_u32 v{t1}, v{vG}, 2, v{t1}',
            f'v_lshlrev_b32 v{t1}, 2, v{t1}',
            f'v_add_u32 v{t2}, 64, v{t1}',
            f'v_cndmask_b32 v{t3}, v{t1}, v{t2}, {s(sCur0, 2)}',
            f'v_cndmask_b32 v{t1}, v{t1}, v{t2}, {s(sCur1, 2)}']
    for t in range(2):
        rsfill += [f'ds_bpermute_b32 v{vCa[t]}, v{t0}, v{vRs} offset:{64 * (t + 1)}',
                 f'ds_bpermute_b32 v{vAs[t][0]}, v{t3}, v{vRs} offset:{64 * t}',
                 f'ds_bpermute_b32 v{vAs[t][1]}, v{t1}, v{vRs} offset:{64 * t + 8}']
    rsfill += [None] * 6 + [f'v_mul_f32 v{vCa[t]}, s{sC1}, v{vCa[t]}' for t in range(2)]

    g1bar = {3: n_iss - 1, 5: None, 7: 9, 9: 11, 11: 13, 13: 15, 14: None}
    assert n_iss >= 8
    extra = {3: (10, 11), 5: (12, 13), 7: (14, 15)}
    vGp = [vBig, vBig + 16]
    vGr = vBig + 32

    def g_check():
        cnt_check(sGfl, 2, P['sl1'], few=True)
        e(f'v_xor_b32 v{vGst}, {8 * 16384}, v{vGst}')
        e(f'v_xor_b32 v{vGs2}, 8192, v{vGst}')
        for j in (3, 2, 1, 0):
            e.bg.insert(0, (('gl', j), [f'buffer_load_dwordx4 {v(vGr + 4 * j, 4)}, v{vGs2 if j >= 2 else vGst}, {srd(WS)}, 0 offen offset:{j * 1024} sc1'], 32))

    def g1_stage(n, done):
        if P['xp'] & 65536 and n == 2:
            e(flag_load(vFoH, vFv))
        if P['xp'] & 65536 and n == 5:
            flag_check(vFoH, vFv, P['hsleep'])
        if n in g1bar:
            bar(g1bar[n])
        if n == P['gpub']:
            e.need(('g', 3))
            signal(sGfl, False)
        if n in (0, 1, 2, 4, 6, 8, 10, 12, 14):
            stamp(f'g1 st{n}', (2, 4) if n in (1, 4) else (2,))
        if n >= 8:
            stamp(f'g1 st{n}', (9,))
        gap = P['ggap']
        if n == 14:
            assert done >= 12
        for q in extra.get(n, ()):
            assert done >= q - 10
            w1_dma(q, gap)
        if n == P['wfq']:
            cnt_req(sWck, DBG)
        if n in (9, 11, 13):
            assert done >= n - 2
            q_dma(n // 2 - 4, P['qg1'])
        if n == P['gfq']:
            e(f's_xor_b32 s{sGfl}, s{sGfl}, 1024')
            e.smem_out = 0
            cnt_req(sGfl)

    def part_fill(fl, end, acc, vst, key):
        def st(j):
            e.bg.insert(0, ((key, j), [f'buffer_store_dwordx4 {v(acc[j >> 1] + 8 * (j & 1), 4)}, v{vst}, {srd(WS)}, 0 offen offset:{j * 1024} sc1'], 32))
            e.bg_flush((key, j))
        assert len(fl) <= end + 1
        fl = fl + [None] * (end + 1 - len(fl))
        for j in range(4):
            src = acc[j >> 1] + 8 * (j & 1)
            fl += [[f'v_cvt_pk_bf16_f32 v{src + r}, v{src + 2 * r}, v{src + 2 * r + 1}' for r in range(4)] + [lambda j=j: st(j)]] + [None] * P['psp']
        return fl

    gf = ['\n'.join(setup2[:6] + [t for t in setup2 if f's{sC1},' in t])] + rsfill + setup2[6:]
    gf = part_fill(gf, 64, vGp, vGst, 'g')
    xtk = {}

    XB = P['xbf']

    def xw(j):
        xtk[0] = e(f'ds_write_b128 v{vEx}, {v(vAcc[1] + (8 if XB else 4) * j, 4)} offset:{EXC_B + j * 1024}')

    def cvt8(src):
        return [f'v_cvt_pk_bf16_f32 v{src + r}, v{src + 2 * r}, v{src + 2 * r + 1}' for r in range(4)]

    def xr():
        e(f'v_xor_b32 v{vEx}, 8192, v{vEx}')
        e.wait(vm=e.tok[('s', 17, 3)], lg=xtk[0])
        e('s_barrier')
        stamp('exch', (9, 20))
        q_dma(3, P['qg1'])
        for j in range(2 if XB else 4):
            e(f'ds_read_b128 {v(vE + 4 * j, 4)}, v{vEx} offset:{EXC_B + j * 1024}')
    xws = [cvt8(vAcc[1]), lambda: xw(0), cvt8(vAcc[1] + 8), lambda: xw(1)] if XB else [lambda j=j: xw(j) for j in range(4)]
    gf += [None] * (121 - len(gf)) + xws + [None] * P['xdel'] + [xr]
    gemm32([('h', n) for n in range(16)], 0, g1_stage, False, gf, [vAcc[0] + 4 * k for k in range(4)], lambda i: vGp if i < 8 else vAcc, 8,
           [(0, ('gl', j), vGr + 4 * j, j & 1) for j in range(4)] + [(0, None, vE + 4 * j, j) for j in range(2 if XB else 0)],
           {P['wck']: lambda: cnt_check(sWck, 14, 8, DBG), P['gck']: g_check})
    stamp('g1 done', (1, 2, 9))
    for half in range(2):
        ps = [8 * half + 2 * k for k in range(4)]
        A_ = lambda p: v(vAcc[0] + p, 2)
        E_ = lambda p: v(vE + p, 2)
        for p in ps:
            if not XB:
                e(f'v_pk_add_f32 {A_(p)}, {A_(p)}, {E_(p)}')
        for p in ps:
            e(f'v_pk_mul_f32 {E_(p)}, {A_(p)}, {A_(p)}')
        for p in ps:
            e(f'v_pk_fma_f32 {E_(p)}, {E_(p)}, {s(sGc, 2)}, {v(vC0, 2)}')
        for p in ps:
            e(f'v_pk_mul_f32 {E_(p)}, {E_(p)}, {A_(p)}')
        for p in ps:
            e(f'v_exp_f32 v{vE + p}, v{vE + p}')
            e(f'v_exp_f32 v{vE + p + 1}, v{vE + p + 1}')
        for p in ps:
            e(f'v_pk_add_f32 {E_(p)}, {E_(p)}, {s(sOne, 2)}')
        for p in ps:
            e(f'v_rcp_f32 v{vE + p}, v{vE + p}')
            e(f'v_rcp_f32 v{vE + p + 1}, v{vE + p + 1}')
        for p in ps:
            e(f'v_pk_mul_f32 {E_(p)}, {E_(p)}, {A_(p)}')
        for k, p in enumerate(ps):
            e(f'v_cvt_pk_bf16_f32 v{vSt[half] + k}, v{vE + p}, v{vE + p + 1}')
    run(q_reads(0))
    e.bg_flush()
    for half in range(2):
        tokU = e(f'buffer_store_dwordx4 {v(vSt[half], 4)}, v{vL16}, {srd(WS)}, s{sUst} offen offset:{half * 1024} sc1')
    stamp('u stored', (1, 2, 5, 9))
    hist = list(e.hist)
    e.cold_begin()

    save = (e.vm_n, e.vm_done, e.lg_n, e.lg_done, dict(e.pvm), dict(e.plg), dict(e.tok), nst[0])
    e.label('L_nog1')
    e.vm_n, e.vm_done, e.lg_n, e.lg_done, e.pvm, e.plg, e.tok = save0
    assert not e.bg
    e.pad(2)
    vW, vWr = vBig + 60, vBig + 61
    vPk = vBig
    sPk, sPp, sPo = 79, 80, 81
    PITCH = 1056
    e.many(f"""
        s_mov_b32 s{WQ + 2}, {448 * 2688}
        s_mov_b32 s{WQ + 3}, 0x20000
        s_sub_u32 s3, s2, 200
        s_cmp_lt_u32 s3, 42
        s_cselect_b32 s{sPo}, 0, {OOB}
        s_cselect_b32 s3, s3, 0
        s_mul_i32 s{sPk}, s3, 43
        s_lshr_b32 s{sPk}, s{sPk}, 7
        s_mul_i32 s{sPp}, s{sPk}, 3
        s_sub_u32 s{sPp}, s3, s{sPp}
        v_min_u32 v{t0}, 55, v{vLane}
        s_lshl_b32 s3, s{sPk}, 2
        s_add_u32 s3, s3, s{sW}
        s_mul_i32 s3, s3, {8 * 2688}
        s_mul_i32 s{sCnt}, s{sPp}, 896
        s_add_u32 s3, s3, s{sCnt}
        s_add_u32 s3, s3, s{sPo}
        v_lshl_add_u32 v{vW}, v{t0}, 4, s3
        s_mul_i32 s{sCnt}, s{sW}, {8 * PITCH}
    """)
    for r in range(8):
        e(f's_add_u32 m0, s{sCnt}, {r * PITCH}')
        e(f's_mov_b32 s3, {r * 2688}')
        e(f'buffer_load_dwordx4 v{vW}, {srd(WQ)}, s3 offen lds')
    tokHh = p0_body((6,))
    e.many(f"""
        v_lshrrev_b32 v{t0}, 2, v{vLane}
        v_mul_u32_u24 v{t0}, {PITCH}, v{t0}
        v_lshl_add_u32 v{t0}, v{vC4}, 3, v{t0}
        s_mul_i32 s3, s{sW}, {4 * 56}
        v_add_u32 v{vWr}, s3, v{t0}
    """)
    h_publish('h', tokHh)
    stamp('hlp hflag', (6,))
    e.many(f"""
        v_cmp_gt_u32 vcc, 12, v{vL15}
        s_mul_i32 s3, s{sW}, {4 * 14}
        s_add_u32 s3, s3, s{sPk}
        s_mul_i32 s3, s3, 3
        s_add_u32 s3, s3, s{sPp}
        s_lshl_b32 s3, s3, 11
        s_add_u32 s3, s3, {WP_OFF}
        s_add_u32 s3, s3, s{sPo}
    """)
    for jj in range(4):
        for t in range(2):
            for h in range(2):
                e(f'ds_read_b64_tr_b16 {v(vPk + (2 * jj + t) * 4 + 2 * h, 2)}, v{vWr} offset:{jj * 56 + t * 32 + h * 16 * PITCH}')
    for jj in range(4):
        for r in range(4):
            d = vPk + (2 * jj + 1) * 4 + r
            e(f'v_cndmask_b32 v{d}, 0, v{d}, vcc')
        for t in range(2):
            tokP = e(f'buffer_store_dwordx4 {v(vPk + (2 * jj + t) * 4, 4)}, v{vL16}, {srd(WS)}, s3 offen offset:{t * 1024} sc1')
        e(f's_add_u32 s3, s3, 86016')
    e.many(f"""
        s_lshl_b32 s{sUst}, s{sPp}, 6
        s_add_u32 s{sUst}, s{sUst}, 64
        s_cmp_eq_u32 s{sPo}, 0
        s_cselect_b32 s{sGfl}, s{sW}, 1
        s_mov_b32 s{sUfl}, {CN_OFF + 100 * 128}
    """)
    if P['gord'] == 1:
        e.many(f"""
            s_and_b32 s3, s2, 1
            s_mul_i32 s3, s3, 3
            s_bfe_u32 s{sT2}, s2, 0x10001
            s_mul_i32 s{sT3}, s{sT2}, 6
            s_add_u32 s3, s3, s{sT3}
            s_add_u32 s3, s3, 1
            v_add_u32 v{t1}, s3, v{vC4}
            s_mul_i32 s{sT2}, s{sT2}, 64
            s_add_u32 s{sT2}, s{sT2}, 7
            v_cmp_ne_u32 vcc, s{sT2}, v{t1}
            v_lshrrev_b32 v{t2}, 2, v{vLane}
            v_mul_u32_u24 v{t2}, 3584, v{t2}
            v_cndmask_b32 v{t1}, 0, v{t1}, vcc
            v_lshl_add_u32 v{t1}, v{t1}, 8, v{t2}
            s_lshl_b32 s3, s{sD}, 2
            s_add_u32 s3, s3, s{sW}
            s_mul_i32 s3, s3, 37
            s_min_u32 s3, s3, {987 if P['t1x'] else 976}
            s_mul_i32 s3, s3, 3584
            s_mul_i32 s{sT2}, s{sM3}, {1024 * 3584 + 128}
            s_add_u32 s3, s3, s{sT2}
        """)
        for k in range(P['nt1']):
            if k == 2 and P['t1x']:
                e(f'v_cmp_gt_u32 vcc, 20, v{vLane}')
                e(f'v_mov_b32 v{t2}, {OOB}')
                e(f'v_cndmask_b32 v{t1}, v{t2}, v{t1}, vcc')
            e(f'buffer_load_dword v{vBig + 44 + k}, v{t1}, {srd(W1)}, s3 offen')
            e(f's_add_u32 s3, s3, {16 * 3584}')
    run(setup[NS1:])
    run(setup2)
    e.wait(vm=tokP)
    e('s_barrier')
    e(f's_cmp_lg_u32 s{sGfl}, 0')
    e(f's_cbranch_scc1 L_nowsig')
    signal(sUst, False, DBG)
    e.label('L_nowsig')
    e(flag_load(vFoH, vFv))

    def w2_touch():
        e.many(f"""
            s_mov_b32 s{W2 + 2}, {1792 * 4096}
            s_and_b32 s3, s2, 1
            s_mul_i32 s3, s3, 7
            s_add_u32 s3, s3, s{sD}
            s_lshl_b32 s3, s3, 2
            s_add_u32 s3, s3, s{sW}
            s_lshl_b32 s3, s3, 17
            s_and_b32 s{sT2}, s2, 6
            s_lshl_b32 s{sT2}, s{sT2}, 9
            s_add_u32 s3, s3, s{sT2}
            v_lshlrev_b32 v{vW}, 12, v{vL31}
        """)
        ts = str(P['tset'])
        for k in range(len(ts) // 2):
            lo, hi = sorted(int(c) % 8 for c in ts[2 * k:2 * k + 2])
            e(f'v_mul_u32_u24 v{vWr}, {(hi - lo) * 128}, v{vHi}')
            e(f'v_add_u32 v{vWr}, v{vW}, v{vWr}')
            e(f'buffer_load_dword v{vBig + 50 + k}, v{vWr}, {srd(W2)}, s3 offen offset:{lo * 128}')
        e(f's_cmp_eq_u32 s{sF}, 0')
        e(f's_cselect_b32 s{W2 + 2}, 0, s{W2 + 2}')
    if P['w2pos'] == 0:
        w2_touch()
    e.many(f"""
        s_cmp_eq_u32 s{sF}, 0
        s_cselect_b32 s{W2 + 2}, 0, s{W2 + 2}
        v_and_b32 v{t0}, 0xfffff000, v{vHo}
        v_lshl_add_u32 v{t0}, v{vL31}, 7, v{t0}
        s_add_u32 s3, s{sGsH}, {P['hlead'] * 8192}
        v_lshl_add_u32 v{t1}, v{vHi}, 13, s3
    """)
    flag_check(vFoH, vFv, 8)
    if P['w2pos'] != 1:
        cnt_req(sWck, DBG)
    assert e.vm_done >= tokP
    e('s_barrier')
    e(f'buffer_load_dword v{vRs}, v{vRsa}, {srd(WS)}, 0 offen sc1')
    stamp('hlp h ok', (6,))
    if P['touch'] & 4:
        for k in range((9 - P['hlead']) // 2):
            e(f'v_and_b32 v{t1}, 0xffff, v{t1}')
            e(f'v_add_u32 v{t2}, v{t0}, v{t1}')
            e(f'v_add_u32 v{t1}, 16384, v{t1}')
            e(f'buffer_load_dword v{vBig + 40 + k}, v{t2}, {srd(WS)}, 0 offen sc1')
    if P['w2pos'] == 1:
        w2_touch()
    if not P['rsl']:
        run([t for t in rsfill if t])
    if P['w2pos'] == 1:
        e.wait(vm=e.vm_n - 2)
        cnt_req(sWck, DBG)
    cnt_check(sWck, 14, 16, DBG)
    e('s_barrier')
    stamp('hlp touched', (6, 7))
    if P['touch'] & 1:
        e.many(f"""
            s_max_u32 s3, s{sIdx}, 25
            s_sub_u32 s3, s3, 25
            s_lshl_b32 s3, s3, 2
            s_add_u32 s{sT3}, s3, s{sW}
            v_lshlrev_b32 v{t0}, 7, v{vLane}
            s_and_b32 s3, s{sJ}, 8
            s_mul_i32 s3, s3, 86016
            s_mul_i32 s{sT3}, s{sT3}, 3072
            s_add_u32 s3, s3, s{sT3}
            s_add_u32 s3, s3, {WP_OFF}
            v_min_u32 v{t0}, {23 * 128}, v{t0}
            buffer_load_dword v{vBig + 2}, v{t0}, {srd(WS)}, s3 offen sc1
        """)
    if P['touch'] & 32:
        e.many(f"""
            v_lshl_add_u32 v{t1}, v0, 7, s{sWs}
            s_mul_i32 s3, s{sJ}, 86016
            s_add_u32 s3, s3, {WP_OFF}
        """)
        for k in range(3):
            e(f'v_subrev_u32 v{t2}, 86016, v{t1}')
            e(f'v_min_u32 v{t2}, v{t1}, v{t2}')
            e(f'v_add_u32 v{t1}, {32768 if k == 0 else 86016 - 65536}, v{t1}')
            e(f'buffer_load_dword v{vBig + 3 + k}, v{t2}, {srd(WS)}, s3 offen sc1')
    assert not e.bg
    e.many(f"""
        s_cmp_eq_u32 s{sF}, 0
        s_cselect_b32 s3, {OOB}, 0
        v_add_u32 v{vUo}, s3, v{vUo}
    """)
    if P['flead']:
        e.many(f"""
            s_mov_b32 s{W2 + 2}, {1792 * 4096}
            s_and_b32 s3, s{sD2}, 1
            s_lshl_b32 s3, s3, 2
            s_lshr_b32 s{sT2}, s{sD2}, 1
            s_add_u32 s3, s3, s{sT2}
            s_lshl_b32 s3, s3, 7
            s_cmp_eq_u32 s{sF}, 0
            s_cselect_b32 s3, s3, 0
        """)
        for k in range(4):
            e(f'v_xor_b32 v{vD2[k]}, s3, v{vD2[k]}')
    for st in range(4):
        q_dma(st, 0)
    e.bg_flush()
    if P['w2pos'] == 2:
        w2_touch()
    e(f's_mov_b32 s3, {OOB}')
    for _ in range(2):
        e(f'buffer_store_dword v{vNon}, v{vFl}, {srd(WS)}, s3 offen')
    if P['rsl']:
        run([t for t in rsfill if t])
    safe = ('s', 16, 0)
    for st in range(4):
        k = ('s', 17 + 2 * st, 3)
        if not (e.vm_n - e.tok[k] >= save[0] - save[6][k] and save[1] < save[6][k]):
            safe = k
    e.wait(vm=max(e.tok[safe], e.tok[('s', 17, 3)]), lg=e.lg_n)
    e('s_barrier')
    run(q_reads(0))
    e.wait_all(vm=False, lg=True, force=True)
    e.pad(4)
    e('s_branch L_q')
    e.cold_end()
    e.hist = hist
    e.vm_n, e.vm_done, e.lg_n, e.lg_done, e.pvm, e.plg, e.tok, _ = save

    e.label('L_q')
    e.smem_out = 0
    QG = P['qgap']
    vQ = [None, [vBig, vBig + 4], [vBig + 8, vBig + 12]]
    vK = [[vBig + 16 + 8 * t, vBig + 20 + 8 * t] for t in range(3)]
    vV = [[vBig + 40 + 8 * t, vBig + 44 + 8 * t] for t in range(3)]
    nf = [0]

    def f_enq(limit_q, maxn, gap):
        while nf[0] < len(fseq) and QF + nf[0] <= limit_q and nf[0] < maxn:
            f_dma(FORD[nf[0]] if nf[0] < 10 else nf[0], gap)
            nf[0] += 1

    def q_barrier(st):
        key = ('s', 17 + 2 * st, 3) if st < 7 else ('s', QF + 2, 3)
        e.bg_flush(key)
        if st == 7:
            cnt_check(sUck, 7, P['sl3'], unless0=sF)
            stamp('u ok', (1, 3))
        e.wait(vm=max(e.tok[key], tokU if st == P['ust'] else 0), lg=e.lg_n)
        if not P['xp'] & 32768:
            e('s_barrier')
        if st == P['ust']:
            signal(sUfl, True)
            stamp('uflag', (1,))
        stamp(f'Q{st}', (5, 7))
        if st == 1:
            q_dma(4, QG)
        if st == 7:
            rest, e.bg = e.bg, []
            for n in range(PH):
                u_load(n, P['agap'])
            e.bg += rest
        if st + 4 < 7:
            q_dma(st + 4, QG)
        else:
            f_enq(QF + 2 * (st - 3) + 1, 10, QG)

    e.ds_free = True
    e.bg_on = False
    for ks in range(14):
        c = '0' if ks == 0 else None
        ms = []
        for f in range(6):
            part, t = f >> 1, f & 1
            w_ = a(wf(f, ks), 4)
            if part == 0:
                ms += [mf16(vQ[k][t], w_, a(xf(k, ks), 4), c) for k in (1, 2)]
            elif part == 1:
                ms += [mf16(vK[k][t], w_, a(xf(k, ks), 4), c) for k in (1, 2, 0)]
            else:
                ms += [mf16(vV[k][t], a(xf(k, ks), 4), w_, c) for k in (1, 2, 0)]
        if P['xp'] & 2 and ks:
            ms = [m for i, m in enumerate(ms) if i not in (9, 12, 15)]
        last = e.lg_n
        stamp(f'q{ks}', (20,))
        if ks & 1:
            q_barrier((ks + 1) >> 1)
        if ks == P['ureq']:
            e.smem_out = 0
            cnt_req(sUck)
        fpre = {}
        rds = q_reads(ks + 1) if ks < 13 else [t for x in range(DF) for t in tr_reads(QF, x >> 1, x & 1, x)]
        for i, m in enumerate(ms):
            if i == 8:
                stamp(f'q{ks}.5', (20,))
            if i == 0:
                e.wait(lg=last - 6)
            if i == 4:
                e.wait(lg=last)
            e(m)
            n = 1 if i in (3, 15) else 2
            for _ in range(2 if (ks % 2 == 0 and i < P['qrd']) else 1):
                if rds:
                    x_ = (2 * DF - len(rds)) >> 1
                    fpre[x_] = e(rds.pop(0))
                    n -= 1
            while n > 0 and e.bg_step():
                n -= 1
    e.ds_free = False
    e.bg_on = True
    stamp('qkv done', (1, 5, 6, 7))

    vQf = [None, vFr[0], vFr[1]]
    vKf = [vFr[2], vFr[3], vFr[4]]
    vPf = [vFr[5], vFr[6]]
    vVf = [vAcc[1], vAcc[1] + 6]
    vS = [[vAcc[0], vAcc[0] + 4], [vAcc[0] + 8, vAcc[0] + 12]]
    vTm = [[vBig + 64 + 4 * t + k for k in range(4)] for t in range(2)]

    def pack_T(acc, dst):
        for n in range(2):
            for r in range(2):
                e(f'v_cvt_pk_bf16_f32 v{dst + 2 * n + r}, v{acc[n] + 2 * r}, v{acc[n] + 2 * r + 1}')

    for t in (1, 2):
        pack_T(vQ[t], vQf[t])
    for t in (1, 2, 0):
        pack_T(vK[t], vKf[t])
    e(mf16(vS[0][1], v(vKf[1], 4), v(vQf[1], 4), '0'))
    e(mf16(vS[1][0], v(vKf[1], 4), v(vQf[2], 4), '0'))
    e(mf16(vS[1][1], v(vKf[2], 4), v(vQf[2], 4), '0'))
    e(mf16(vS[0][0], v(vKf[0], 4), v(vQf[1], 4), '0'))
    vnorm = []
    for n in range(2):
        for t in range(3):
            for r in range(2):
                vnorm.append(f'v_cvt_pk_bf16_f32 v{vVf[n] + 2 * t + r}, v{vV[t][n] + 2 * r}, v{vV[t][n] + 2 * r + 1}')
    run(vnorm[:6])
    vnorm = vnorm[6:]
    L = [[vTm[0][0], vTm[0][1]], [vTm[1][0], vTm[1][1]]]
    Mx = [vTm[0][2], vTm[1][2]]
    Tm = [vTm[0][3], vTm[1][3]]
    T = range(2)
    for t in (1, 0):
        for z, sc in ((0, sCur0), (1, sCur1)):
            e(f'v_cndmask_b32 v{L[t][z]}, v{vS[t][0] + 2 * z}, v{vS[t][0] + 2 * z + 1}, {s(sPar, 2)}')
            if t == 0:
                e(f'v_cndmask_b32 v{L[t][z]}, v{vNeg}, v{L[t][z]}, {s(sInvd, 2)}')
            e(f'v_cndmask_b32 v{Tm[t]}, v{vS[t][1] + 2 * z}, v{vS[t][1] + 2 * z + 1}, {s(sPar, 2)}')
            e(f'v_cndmask_b32 v{L[t][z]}, v{L[t][z]}, v{Tm[t]}, {s(sc, 2)}')
            e(f'v_mul_f32 v{L[t][z]}, v{L[t][z]}, v{vAs[t][z]}')

    def tree(op):
        for t in T:
            e(f'{op} v{Mx[t]}, v{L[t][0]}, v{L[t][1]}')
        for sw in ('v_permlane16_swap_b32', 'v_permlane32_swap_b32'):
            for t in T:
                e(f'v_mov_b32 v{Tm[t]}, v{Mx[t]}')
            if vnorm:
                e(vnorm.pop(0))
            for t in T:
                e(f'{sw} v{Mx[t]}, v{Tm[t]}')
            for t in T:
                e(f'{op} v{Mx[t]}, v{Mx[t]}, v{Tm[t]}')

    tree('v_max_f32')
    for t in T:
        e(f'v_mul_f32 v{Mx[t]}, v{vCa[t]}, v{Mx[t]}')
    for t in T:
        for z in range(2):
            e(f'v_fma_f32 v{L[t][z]}, v{L[t][z]}, v{vCa[t]}, -v{Mx[t]}')
    for t in T:
        for z in range(2):
            e(f'v_exp_f32 v{L[t][z]}, v{L[t][z]}')
    tree('v_add_f32')
    for t in T:
        e(f'v_rcp_f32 v{Mx[t]}, v{Mx[t]}')
    run(vnorm)
    for t in T:
        for z in range(2):
            e(f'v_mul_f32 v{L[t][z]}, v{L[t][z]}, v{vAs[t][z]}')
    for t in T:
        for z in range(2):
            e(f'v_mul_f32 v{L[t][z]}, v{L[t][z]}, v{Mx[t]}')
    for t in T:
        for z in range(2):
            e(f'v_cvt_pk_bf16_f32 v{L[t][z]}, v{L[t][z]}, v{L[t][z]}')
    for t in T:
        for k in range(4):
            e(f'v_and_b32 v{vPf[t] + k}, v{L[t][k & 1]}, v{vMk + k}')
    vO = [vQ[1], vQ[2]]
    for t in T:
        for n in range(2):
            e(mf16(vO[t][n], v(vVf[n] + 2 * t, 4), v(vPf[t], 4), '0'))
    e(f's_add_u32 s{sC1}, s{sOs}, 16384')
    for t in T:
        pack_T(vO[t], vSt[t])

    def o_stores():
        for t in T:
            tok = e(f'buffer_store_dwordx4 {v(vSt[t], 4)}, v{vL16}, {srd(WS)}, s{sOs + t} offen sc1')
        return tok
    e.bg_flush(('u', P['uo'], 3))
    tokO = o_stores()
    stamp('attn done', (1, 5, 7))
    e(f's_cmp_lg_u32 s{sF}, 0')
    e(f's_cbranch_scc0 L_nof')
    hist = list(e.hist)
    e.cold_begin()
    e.label('L_nof')
    save = (e.vm_n, e.vm_done, e.lg_n, e.lg_done, dict(e.pvm), dict(e.plg), dict(e.tok), nst[0])
    bgs, e.bg = e.bg, []
    e.many(f"""
        v_min_u32 v{t1}, 48, v{vLane}
        s_lshl_b32 s3, s{sD2}, 2
        s_add_u32 s3, s3, s{sW}
        s_mul_i32 s3, s3, {196 * 128}
        v_lshl_add_u32 v{t1}, v{t1}, 7, s3
    """)

    def wo_touch(k):
        if P['touch'] & 2:
            e(f's_add_u32 s3, s2, {k}')
            e(f's_and_b32 s3, s3, 3')
            e(f's_mul_i32 s3, s3, {49 * 128}')
            e(f'buffer_load_dword v{vBig + k}, v{t1}, {srd(WO)}, s3 offen')
    for k in range(P['wopre']):
        wo_touch(k)
    e.wait(vm=tokO)
    e('s_barrier')
    signal(sOfl, True)
    e.smem_out = 0
    for k in range(P['wopre'], 4):
        wo_touch(k)
    e.bg = bgs
    e('s_branch L_fin')
    e.cold_end()
    e.hist = hist
    e.vm_n, e.vm_done, e.lg_n, e.lg_done, e.pvm, e.plg, e.tok, nst[0] = save

    e.label('L_f')
    vE2 = vBig + 40
    vAp = [vBig, vBig + 56]
    assert nf[0] == 10
    fbar = {3: 6, 5: None, 7: 9, 9: 13, 11: None, 13: None}
    if P['flazy']:
        fbar = {3: 6, 5: None, 8: 9, 10: 11, 12: 13, 13: None}
        if P['flazy'] == 2:
            fbar.update({3: 4, 5: 6})
    fbar.update({14 + 2 * g: QO[g] for g in range(4)})
    free = [QF + 9, False]

    def f_more(gap):
        f_enq(free[0], 22 if free[1] else QO[0], gap)

    def o_check():
        cnt_check(sOck, 8, P['sl2'])
        free[1] = True
        e.bg = [(k, f, P['ogap']) for k, f, _ in e.bg]
        f_more(P['ogap'])
    opub = [False]
    nu = [PH]

    def f_stage(i, done):
        if i == P['osig']:
            e.wait(vm=tokO)
        if i in fbar:
            bar(None if fbar[i] is None else QF + fbar[i])
            if i == 20:
                assert done >= QF + 15
            if not opub[0] and e.vm_done >= tokO:
                opub[0] = True
                signal(sOfl, True)
        if i in (0, 2, 4, 6, 8, 10, 12, 14, 18):
            stamp(f'f st{i}', (3,))
        if i in (7, 8, 9, 10, 11, 12, 13, 14, 16, 18, 20):
            stamp(f'f st{i}', (8,))
        gap = P['ogap'] if free[1] else P['fgap']
        rest = [t for t in e.bg if t[0][0] != 'u'] if P['flazy'] else []
        e.bg_settle()
        rest = [t for t in e.bg if t[0][0] != 'u'] if P['flazy'] else []
        e.bg = [t for t in e.bg if t not in rest]
        if nu[0] < 7:
            u_load(nu[0], gap)
            nu[0] += 1
        e.bg += rest
        if i == P['ofq']:
            e.smem_out = 0
            cnt_req(sOck)
        if i == P['ppub']:
            e.need(('p', 3))
            signal(sPfl, False)
        if i in fbar and i <= 13:
            free[0] = done + 10
            f_more(gap)
        if i == P['pfq']:
            e(f's_xor_b32 s{sPfl}, s{sPfl}, 1024')
            e.smem_out = 0
            cnt_req(sPfl)

    def p_check():
        cnt_check(sPfl, 1, P['sl1'], few=True)
        e(f'v_xor_b32 v{vPst}, {8 * 16384}, v{vPst}')
        for j in (2, 3, 0, 1):
            bg_ins(('pl', j), [], f'buffer_load_dwordx4 {v(vPr + 4 * j, 4)}, v{vPst}, {srd(WS)}, 0 offen offset:{j * 1024} sc1', 32)

    rs = []
    for q_ in range(2):
        rs.append(f'v_lshlrev_b32 v{vBo[q_]}, 16, v{vBo[q_]}')
        for k in range(4):
            d = vE2 + 8 * q_ + 2 * k
            rs += [f'v_lshlrev_b32 v{d}, 16, v{vXo[q_] + k}', f'v_and_b32 v{d + 1}, 0xffff0000, v{vXo[q_] + k}',
                   f'v_add_f32 v{d}, v{d}, v{vBo[q_]}', f'v_add_f32 v{d + 1}, v{d + 1}, v{vBo[q_]}']
    vPr = vAp[1]

    rs = part_fill(rs, 56, vAp, vPst, 'p')
    rs += [None] * (143 - len(rs)) + [lambda j=j: e(f'ds_write_b128 v{vEw[j & 1]}, {v(vAcc[1] + 4 * j, 4)} offset:{8192 + (j >> 1) * 4096}') for j in range(4)]
    gemm32(fseq, QF, f_stage, True, rs, [], lambda i: vAp if i < 7 else vAcc, 7,
           [(j >> 1, ('pl', j), vPr + 4 * j, j & 1) for j in range(4)],
           {P['ock']: o_check, P['pck']: p_check}, fpre)
    assert opub[0] and not e.bg
    stamp('f done', (1, 3, 8))
    for j in range(4):
        e(f'ds_write_b128 v{vEw[j & 1]}, {v(vAcc[0] + 4 * j, 4)} offset:{(j >> 1) * 4096}')
    e.wait_all(vm=False, lg=True)
    e('s_barrier')
    stamp('epi bar', (3, 20))
    if P['pert']:
        e(f'v_cmp_eq_u32 vcc, 0, v{vOo[0]}')
        e(f'v_mov_b32 v{t0}, {f32(P["pert"] / 1000.0)}')
        e(f'v_cndmask_b32 v{t0}, 0, v{t0}, vcc')
        e(f'v_add_f32 v{vE2 + P["pel"]}, v{vE2 + P["pel"]}, v{t0}')
    for q_ in range(2):
        for k in range(4):
            e(f'ds_read_b128 {v(vFr[4 * q_ + k], 4)}, v{vEr[k]} offset:{q_ * 2048}')
    for q_ in range(2):
        for k in range(4):
            for r in (0, 2):
                d = vE2 + 8 * q_ + 4 * (k & 1) + r
                e(f'v_pk_add_f32 {v(d, 2)}, {v(d, 2)}, {v(vFr[4 * q_ + k] + r, 2)}')
        for k in range(4):
            d = vE2 + 8 * q_ + 2 * k
            e(f'v_cvt_pk_bf16_f32 v{vSt[q_] + k}, v{d}, v{d + 1}')
        e(f'buffer_store_dwordx4 {v(vSt[q_], 4)}, v{vOo[q_]}, {srd(OUT)}, 0 offen' + ('', ' sc1', ' nt', ' sc0 sc1', ' sc1 nt')[P['outsc']])
    e.label('L_fin')
    if P['stamps']:
        e.wait_all(force=True)
        if nst[0] > 1:
            e(f's_mov_b32 s{sStamp + nst[0] - 1}, s{WQ}')
        e(f's_memrealtime s[{sT2}:{sT3}]')
        e(f's_memtime s[0:1]')
        e.wait_all(vm=False, lg=True, force=True)
        e(f's_mov_b32 s{sStamp + 15}, s{sT2}')
        e(f's_mov_b32 s{sStamp + 14}, s0')
        e(f's_lshl_b32 s3, s2, 2')
        e(f's_add_u32 s3, s3, s{sW}')
        e(f's_lshl_b32 s3, s3, 7')
        e(f's_add_u32 s3, s3, {ST_OFF}')
        if P['stamps'] == 20:
            for k in (ntr[0] - 2, ntr[0] - 1):
                e.raw(f'    v_writelane_b32 v{254 + k // 64}, s{86 + 2 * (k % 3)}, {k % 64}')
            e(f's_sub_u32 s{sT2}, s3, {ST_OFF}')
            e(f's_lshl_b32 s{sT2}, s{sT2}, 3')
            e(f's_add_u32 s{sT2}, s{sT2}, {7 << 20}')
            e(f'v_lshlrev_b32 v{t0}, 2, v{vLane}')
            for k in range(2):
                e(f'buffer_store_dword v{254 + k}, v{t0}, {srd(WS)}, s{sT2} offen offset:{256 * k}')
        for k in range(16):
            e(f'v_mov_b32 v{t0}, s{sStamp + k}')
            e(f'buffer_store_dword v{t0}, v{vFl}, {srd(WS)}, s3 offen offset:{4 * k}')
    if P['probe'] >= 0:
        e.wait_all(force=True)
        if P['probe'] >= 98:
            e(f'{"s_memtime" if P["probe"] == 98 else "s_memrealtime"} s[{sT2}:{sT3}]')
            e.wait_all(vm=False, lg=True, force=True)
            e(f's_mov_b32 s{sStamp}, s{sT2}')
        if P['probe'] == 98:
            e(f's_sub_u32 s{sStamp}, s{sStamp}, s{sStamp + 13}')
            e(f's_lshr_b32 s{sStamp}, s{sStamp}, 4')
            e(f's_add_u32 s{sStamp}, s{sStamp}, s{sNon}')
        e(f's_sub_u32 s{sCnt}, s{sStamp}, s{sNon}')
        e(f's_max_i32 s{sCnt}, s{sCnt}, 0')
        e(f's_min_i32 s{sCnt}, s{sCnt}, 4000')
        e(f's_lshl_b32 s{sCnt}, s{sCnt}, 2')
        e(f's_add_u32 s{sCnt}, s{sCnt}, 4000')
        e.label('L_fix')
        e(f's_memrealtime s[{sT2}:{sT3}]')
        e.wait_all(vm=False, lg=True, force=True)
        e(f's_sub_u32 s3, s{sT2}, s{sNon}')
        e(f's_cmp_lt_u32 s3, s{sCnt}')
        e(f's_cbranch_scc1 L_fix')
    e.label('L_end')
    e('s_endpgm')
    if P['iwarm']:
        e.lines = page_pads(e.lines, e.cold)
    e.lines += e.cold + ['L_last:', '    s_endpgm']

    if P['align']:
        e.lines = align_pass(e.lines, P['align'])
    hdr = open(os.path.join(os.path.dirname(os.path.abspath(__file__)), '..', NAME + '.s.ref')).read().split('; Override launch')[0]
    out = hdr + f"""; Generated by gen/gen.py (hand-written generator).{' cyc' if P['cyc'] else ''}
; One persistent launch, 256 workgroups (one per CU) x 4 waves:
;   P0  8 rows each: LayerNorm twice (h = LN(LN(x)); mean(LN(x)) = 0 and var(LN(x)) = var/(var+eps) in closed form) -> h, row scale
;   G1  196 workgroups: u = gelu(h^T w1 + b1), 64x64 tiles; two workgroups share two tiles, one K half each, partials via d_ws
;       the other 60 re-tile wqkv per head and pull weights towards their L2
;   Q   (128 rows, head): QKV from h (row scale folded into logits / probabilities), dilated window softmax, o -> d_ws
;   F   224 workgroups: out = x + b2 + (u w2)^T + o wo, paired like G1
; Hand-offs: write-through stores, acknowledged, then a flag (launch nonce kept in d_debug[0]) or an arrival counter zeroed in P0;
; every wait is a bounded poll.  Workgroup-id -> role mapping only aims at L2 locality.
; @launch grid=(256,1,1) block=(256,1,1) lds={LDS_SIZE}
.amdgcn_target "amdgcn-amd-amdhsa--gfx950"
.text
.globl {NAME}_kernel
.p2align 8
.type {NAME}_kernel,@function
{NAME}_kernel:
""" + e.text() + f""".section .rodata,"a"
.p2align 6
.amdhsa_kernel {NAME}_kernel
  .amdhsa_next_free_vgpr 512
  .amdhsa_next_free_sgpr 102
  .amdhsa_accum_offset 256
  .amdhsa_group_segment_fixed_size 0
  .amdhsa_kernarg_size 88
  .amdhsa_user_sgpr_count 2
  .amdhsa_user_sgpr_kernarg_segment_ptr 1
  .amdhsa_system_sgpr_workgroup_id_x 1
.end_amdhsa_kernel
"""
    sys.stderr.write(f'vgpr hi {V.hi}, nops {e.nnop}, lines {len(e.lines)}\n')
    return out


def ins_sizes(lines):
    import subprocess, tempfile, re
    with tempfile.TemporaryDirectory() as d:
        open(d + '/a.s', 'w').write('.amdgcn_target "amdgcn-amd-amdhsa--gfx950"\n.text\n' + '\n'.join(lines) + '\n')
        subprocess.run(['clang', '-x', 'assembler', '-target', 'amdgcn-amd-amdhsa', '-mcpu=gfx950', '-c', d + '/a.s', '-o', d + '/a.o'], check=True)
        dis = subprocess.run(['llvm-objdump', '-d', '--mcpu=gfx950', d + '/a.o'], capture_output=True, text=True, check=True).stdout
    sizes = [4 * len(m.group(1).split()) for m in re.finditer(r'// [0-9A-F]+: ((?:[0-9A-F]{8} ?)+)', dis)]
    idx = [i for i, l in enumerate(lines) if l.startswith('    ') and not l.strip().startswith(';')]
    assert len(idx) == len(sizes), (len(idx), len(sizes))
    return dict(zip(idx, sizes))


def page_pads(lines, cold):
    NP = 7 if len(lines) > 4000 else 5
    jumps = ['    s_add_u32 s3, s3, 4']
    for k in range(NP):
        jumps += [f'    s_cmp_eq_u32 s3, {k + 4}', f'    s_cbranch_scc1 L_pad{k}']
    i = lines.index(';;PADJUMPS')
    lines = lines[:i] + jumps + lines[i + 1:]
    is_al = lambda l: l.startswith('.p2align')
    sz = ins_sizes([';' if is_al(l) else l for l in lines] + cold + ['L_last:'] + [f'L_pad{k}:' for k in range(NP)])
    out, off, k = [], None, 0
    for i, l in enumerate(lines):
        if is_al(l):
            off = 0
        if off is not None and i in sz:
            if off >= 4096 * (k + 1):
                out += [f'L_pad{k}:', '    s_cbranch_execz L_warm']
                off += 4
                k += 1
            off += sz[i]
        out.append(l)
    assert k <= NP, k
    for kk in range(k, NP):
        j = out.index(f'    s_cbranch_scc1 L_pad{kk}')
        out[j] = '    s_nop 0'
    sys.stderr.write(f'{k} page pads, hot path behind the anchor {off} bytes\n')
    return out


def align_pass(lines, minrun):
    import subprocess, tempfile, re
    with tempfile.TemporaryDirectory() as d:
        open(d + '/a.s', 'w').write('.amdgcn_target "amdgcn-amd-amdhsa--gfx950"\n.text\n' + '\n'.join(lines) + '\n')
        subprocess.run(['clang', '-x', 'assembler', '-target', 'amdgcn-amd-amdhsa', '-mcpu=gfx950', '-c', d + '/a.s', '-o', d + '/a.o'], check=True)
        dis = subprocess.run(['llvm-objdump', '-d', '--mcpu=gfx950', d + '/a.o'], capture_output=True, text=True, check=True).stdout
    sizes = [4 * len(m.group(1).split()) for m in re.finditer(r'// [0-9A-F]+: ((?:[0-9A-F]{8} ?)+)', dis)]
    idx = [i for i, l in enumerate(lines) if l.startswith('    ') and not l.strip().startswith(';')]
    assert len(idx) == len(sizes), (len(idx), len(sizes))
    ok = re.compile(r'^\s+(v_(?:mov|add|sub|subrev|mul|max|min|and|or|xor|lshlrev|lshrrev|exp|rcp|rsq|cndmask|fmac|mul_u32)_?[a-z0-9_]*) ')
    off, last, n, bad = 0, None, 0, 0
    out = list(lines)
    for k, i in enumerate(idx):
        if sizes[k] == 8 and off % 8:
            if last is not None:
                m = ok.match(out[last])
                out[last] = out[last].replace(m.group(1), m.group(1) + '_e64', 1)
                off += 4
                n += 1
            else:
                run = 0
                while k + run < len(sizes) and sizes[k + run] == 8:
                    run += 1
                if minrun > 1 and run >= minrun:
                    out[i] = '    s_nop 0\n' + out[i]
                    off += 4
                    n += 1000
                else:
                    bad += 1
        if sizes[k] == 8 and off % 8 == 0:
            last = None
        elif sizes[k] == 4 and ok.match(lines[i]):
            last = i
        off += sizes[k]
    sys.stderr.write(f'align: {n} promoted, {bad} 8-byte instructions left misaligned\n')
    return out


if __name__ == '__main__':
    kw = {}
    path = os.path.join(os.path.dirname(os.path.abspath(__file__)), '..', NAME + '.s')
    for arg in sys.argv[1:]:
        k, val = arg.split('=')
        if k == 'out':
            path = val
        else:
            kw[k] = int(val)
    open(path, 'w').write(build(**kw))
```

```python
import sys, os, math, struct
sys.path.insert(0, os.path.dirname(os.path.abspath(__file__)))
from emit import Asm, Regs, v, a, s

NAME = 'parallel_sum__sliding_local_dilated__mixer_token_mlp__prompt'

DEF = dict(
    stamps=0,
    probe=-1,
    cyc=0,
    gpub=11,
    gfq=13,
    gck=112,
    xdel=2,
    fqmax=2,
    iwarm=1,
    w1late=0,
    oord=1,
    t1x=1,
    xbf=1,
    pert=0,
    pel=7,
    nowait=1,
    sigall=0,
    wopre=1,
    w2pos=0,
    rsl=1,
    rt=1,
    sl1=4,
    sl2=8,
    sl3=8,
    hspec=0,
    jitter=0,
    outsc=0,
    flazy=2,
    psp=0,
    ggap=52,
    gpause=0,
    fpause=0,
    upause=0,
    gflush=0,
    hsc=1,
    hwarm=0,
    cglc=0,
    wfq=5,
    nt1=3,
    align=0,
    rpos=1,
    gord=1,
    tset=3726,
    sflip=0,
    b2e=0,
    hk=2,
    rs2=1,
    hb=6,
    uchk=0,
    gdel=0,
    fdel=0,
    wpause=0,
    wpk=3,
    flead=1,
    ph=3,
    hinit=3,
    hgap=56,
    hpos=5,
    qrd=0,
    ureq=11,
    wck=58,
    ock=88,
    osig=3,
    hold=0,
    df=6,
    w1pre=4,
    w1mid=4,
    w1flag=28,
    w1chk=4,
    hlead=1,
    qrot=0,
    ppub=11,
    pfq=14,
    pck=118,
    ofq=9,
    pu=3,
    xrot=2,
    qg1=56,
    ust=2,
    qgap=50,
    hsleep=4,
    rmask=7,
    pread=0,
    xp=0,
    ogap=48,
    fgap=60,
    agap=56,
    uo=2,
    hrep=8,
    touch=2,
    codepf=1,
    spin=20000,
)


def f32(x):
    return '0x%08x' % struct.unpack('<I', struct.pack('<f', x))[0]


H_OFF = 0
U_OFF = 2 << 20
O_OFF = 4 << 20
RS_OFF = 6 << 20
CN_OFF = RS_OFF + 0x10000
GF_OFF = RS_OFF + 0x20000
PF_OFF = RS_OFF + 0x30000
WP_OFF = 8 << 20
FL_OFF = 10 << 20
HF_OFF = FL_OFF
ST_OFF = 11 << 20
P_OFF = 12 << 20
G_OFF = 16 << 20
WS_SIZE = 20 << 20
OOB = 0x10000000

LDS_SIZE = 163840
SLOT = 16384
NSLOT = 10
PH_B = 9 * SLOT
PR_B = PH_B + 8192
EPI_B = 2 * SLOT
EXC_B = 2 * SLOT

X, WQ, WO, W1, W2, WS, OUT, B1, B2, DBG = 8, 12, 16, 20, 24, 28, 32, 36, 40, 44
sGsW, sGsH = 0, 1
sKh, sNh, sT2, sT3 = 4, 5, 6, 7
sW, sK32, sJ, sFT, sD, sS, sD2, sG1, sF, sNon, sM, sM3, sCnt, sBg = range(48, 62)
sXs, sWs, sGs2, sGsU, sRo, sUst, sUfl, sOfl = range(62, 70)
sPar, sCur0, sCur1, sInvd, sGc, sOne = 70, 72, 74, 76, 78, 80
sOs, sC1, sMh, sIdx = 82, 83, 100, 101
sOne1, sGfl, sUck, sOck = B1, B1 + 1, B1 + 2, B1 + 3
sChk, sWck = WQ + 2, WQ + 3
sZero = sMh
sR2 = sFT
sPfl = sG1
sStamp = 84


def srd(r):
    return s(r, 4)


def lanemask(fn):
    m = 0
    for l in range(64):
        if fn(l):
            m |= 1 << l
    return m


def build(**kw):
    P = dict(DEF)
    P.update(kw)
    assert P['wck'] <= 64 and P['df'] == 6
    e = Asm()
    V = Regs('v', 1, 256)
    nst = [0]
    npr = [0]
    ntr = [0]

    def stamp(name='', sets=(1,)):
        if P['probe'] >= 0 and 1 in sets:
            npr[0] += 1
            if npr[0] == P['probe']:
                e.comment(f'probe {name}')
                e(f's_memrealtime s[{sT2}:{sT3}]')
                e.wait_all(vm=False, lg=True, force=True)
                e(f's_mov_b32 s{sStamp}, s{sT2}')
        if P['jitter']:
            k = ntr[0]
            ntr[0] += 1
            e(f's_mul_i32 s{sStamp}, s{sStamp}, 1664525')
            e(f's_add_u32 s{sStamp}, s{sStamp}, 1013904223')
            e(f's_lshr_b32 s{sStamp + 1}, s{sStamp}, {32 - P["jitter"]}')
            e(f's_cbranch_scc1 L_jit{k}')
            e(f's_sleep {(8, 40, 100)[k % 3]}')
            e.label(f'L_jit{k}')
            return
        if P['stamps'] == 20:
            if sets in ((1,), (1, 4), (4,), (1, 2, 4), (1, 2, 9), (1, 2, 5, 9), (9, 20), (20,), (1, 5, 7), (1, 3), (1, 3, 8), (3, 20), (1, 5, 6, 7)):
                k = ntr[0]
                ntr[0] += 1
                p = 86 + 2 * (k % 3)
                if k >= 2:
                    q = 86 + 2 * ((k - 2) % 3)
                    e.raw(f'    v_writelane_b32 v{254 + (k - 2) // 64}, s{q}, {(k - 2) % 64}')
                e.raw(f'    s_memtime s[{p}:{p + 1}]')
            return
        if P['stamps'] not in sets:
            return
        k = nst[0]
        nst[0] += 1
        assert k < 13
        if k > 1:
            e(f's_mov_b32 s{sStamp + k - 1}, s{WQ}')
        e(f'{"s_memtime" if P["cyc"] else "s_memrealtime"} s[{WQ}:{WQ + 1}]')

    def setmask(r, m):
        return [f's_mov_b32 s{r}, 0x{m & 0xffffffff:08x}', f's_mov_b32 s{r + 1}, 0x{m >> 32:08x}']

    def run(lst):
        for t in lst:
            e.many(t)

    def merge(main, fill, per=1, every=1):
        fill = list(fill)
        for i, t in enumerate(main):
            e.many(t)
            if (i + 1) % every == 0:
                for _ in range(per):
                    if fill:
                        e.many(fill.pop(0))
        return fill

    def bg_dma(key, pre, sr, voff, soff, off, gap, mod=''):
        o = f' offset:{off}' if off else ''
        e.bg_add(key, list(pre) + [f'buffer_load_dwordx4 v{voff}, {srd(sr)}, s{soff} offen{o}{mod} lds'], gap)

    def bg_ins(key, pre, ins, gap):
        e.bg_add(key, list(pre) + [ins], gap)

    def mf16(d, A, B, c=None):
        return f'v_mfma_f32_16x16x32_bf16 {v(d, 4)}, {A}, {B}, {v(d, 4) if c is None else c}'

    def mf32(d, A, B, c=None):
        return f'v_mfma_f32_32x32x16_bf16 {v(d, 16)}, {A}, {B}, {v(d, 16) if c is None else c}'

    def mfs(d, A, B):
        return f'v_mfma_f32_16x16x4_f32 {v(d, 4)}, v{A}, v{B}, 0'

    npoll = [0]

    def flag_load(voff, vdst, n=1):
        return f'buffer_load_dword{"x2" if n == 2 else ""} {v(vdst, n)}, v{voff}, {srd(WS)}, 0 offen sc1'

    def flag_check(voff, vdst, sleep, n=1):
        k = npoll[0]
        npoll[0] += 1
        on, e.bg_on = e.bg_on, False
        e.bg_settle()
        cmp_ = [f'v_cmp_ne_u32 vcc, s{sNon}, v{vdst}'] if n == 1 else \
               [f'v_xor_b32 v{vdst}, s{sNon}, v{vdst}', f'v_xor_b32 v{vdst + 1}, s{sNon}, v{vdst + 1}',
                f'v_or_b32 v{vdst}, v{vdst}, v{vdst + 1}', f'v_cmp_ne_u32 vcc, 0, v{vdst}']
        run(cmp_)
        e(f's_cbranch_vccnz L_pollin{k}')
        e.cold_begin()
        e.label(f'L_pollin{k}')
        e.raw(f'    s_mov_b32 s{sCnt}, 0')
        e.label(f'L_poll{k}')
        e.raw(f'    s_sleep {sleep}')
        e.raw('    ' + flag_load(voff, vdst, n))
        e.raw(f'    s_add_u32 s{sCnt}, s{sCnt}, 1')
        e.raw(f'    s_waitcnt vmcnt(0)')
        for t in cmp_:
            e.raw('    ' + t)
        e.raw(f'    s_cbranch_vccz L_pollok{k}')
        e.raw(f'    s_cmp_lt_u32 s{sCnt}, {P["spin"]}')
        e.raw(f'    s_cbranch_scc1 L_poll{k}')
        e.raw(f'    s_branch L_pollok{k}')
        e.cold_end()
        e.label(f'L_pollok{k}')
        e.bg_on = on

    nsg = [0]

    def signal(soff, wg, base=WS):
        k = nsg[0]
        nsg[0] += 1
        wg = wg and not P['sigall']
        if wg:
            e(f's_cmp_lg_u32 s{sW}, 0')
            e(f's_cbranch_scc1 L_sig{k}')
        e(f's_atomic_add s{sOne1}, s[{base}:{base + 1}], s{soff}')
        if wg:
            e.label(f'L_sig{k}')
        e.smem_out += 1

    def cnt_req(soff, base=WS):
        if P['nowait']:
            e(f's_mov_b32 s{sChk}, 0')
        e(f's_load_dword s{sChk}, s[{base}:{base + 1}], s{soff}' + (' glc' if P['cglc'] else ''))
        e.smem_out += 1

    def cnt_check(soff, target, sleep, base=WS, unless0=None, few=False):
        k = npoll[0]
        npoll[0] += 1
        if P['nowait']:
            e.smem_out = max(e.smem_out - 1, 0)
        else:
            e.wait_all(vm=False, lg=True, force=True)
        e(f's_cmp_ge_u32 s{sChk}, {target}')
        e(f's_cbranch_scc0 L_pollin{k}')
        e.cold_begin()
        e.label(f'L_pollin{k}')
        if P['nowait']:
            e.raw(f'    s_waitcnt lgkmcnt(0)')
            e.raw(f'    s_cmp_ge_u32 s{sChk}, {target}')
            e.raw(f'    s_cbranch_scc1 L_pollok{k}')
        if unless0 is not None:
            e.raw(f'    s_cmp_eq_u32 s{unless0}, 0')
            e.raw(f'    s_cbranch_scc1 L_pollok{k}')
        e.raw(f'    s_mov_b32 s{sCnt}, 0')
        if P['rt'] & 1:
            e.raw(f'    s_branch L_poll{k}a')
        e.label(f'L_poll{k}')
        e.raw(f'    s_sleep {sleep}')
        e.label(f'L_poll{k}a')
        if P['rt'] & 2 and few:
            e.raw(f'    s_load_dword s{sChk}, s[{base}:{base + 1}], s{soff} glc')
            e.raw(f'    s_add_u32 s{sCnt}, s{sCnt}, 1')
            e.raw(f'    s_waitcnt lgkmcnt(0)')
        else:
            e.raw(f'    buffer_load_dword v{vFv}, off, {srd(base)}, s{soff} sc1')
            e.raw(f'    s_add_u32 s{sCnt}, s{sCnt}, 1')
            e.raw(f'    s_waitcnt vmcnt(0)')
            e.raw(f'    v_readfirstlane_b32 s{sChk}, v{vFv}')
            e.raw(f'    s_nop 0')
        e.raw(f'    s_cmp_ge_u32 s{sChk}, {target}')
        e.raw(f'    s_cbranch_scc1 L_pollok{k}')
        e.raw(f'    s_cmp_lt_u32 s{sCnt}, {P["spin"]}')
        e.raw(f'    s_cbranch_scc1 L_poll{k}')
        e.raw(f'    s_branch L_pollok{k}')
        e.cold_end()
        e.label(f'L_pollok{k}')

    def wrap(r, step, n):
        return [f's_add_u32 s{r}, s{r}, {step}', f's_cmp_eq_u32 s{r}, {step * n}', f's_cselect_b32 s{r}, 0, s{r}']

    FORD = [7, 0, 1, 2, 3, 4, 5, 6, 8, 9]

    def slot_of(q):
        k = q % NSLOT
        if q >= 30:
            k = FORD.index(k)
        if q >= 20:
            k = (0, 1, 4, 5, 2, 3, 6, 7, 8, 9)[k]
        return k * SLOT

    def pop(n):
        for _ in range(n):
            if e.bg:
                e._bg_pop()

    def publish(tok, soff):
        e.wait(vm=tok)
        return e(f'buffer_store_dword v{vNon}, v{vFl}, {srd(WS)}, s{soff} offen sc1')

    vLane, vL15, vG, vL16, vR8, vC8, vR4, vC4, vHi, vL31, vFl, vNon = [V.alloc() for _ in range(12)]
    t0, t1, t2, t3 = [V.alloc() for _ in range(4)]
    vFv = V.alloc(2)
    vFoH, vPst, vGs2, vGst, vDum = [V.alloc() for _ in range(5)]
    vCa = [V.alloc(), V.alloc()]
    vAs = [[V.alloc(), V.alloc()], [V.alloc(), V.alloc()]]
    e.dummy_ds = f'ds_read_b32 v{vDum}, v{vL16}'
    vPat = [[V.alloc() for _ in range(4)] for _ in range(3)]
    vPatW = [[V.alloc(), V.alloc()] for _ in range(2)]
    vOr = [[V.alloc(), V.alloc()] for _ in range(3)]
    vLin = [vL16, V.alloc(), V.alloc()]
    vD1 = [V.alloc() for _ in range(4)]
    vD2 = [V.alloc() for _ in range(4)]
    vDo = [V.alloc() for _ in range(2)]
    vOd = [V.alloc() for _ in range(2)]
    vXd = [V.alloc() for _ in range(3)]
    vXr = [[V.alloc(), V.alloc()] for _ in range(3)]
    vRs, vRsa = V.alloc(), V.alloc()
    vHo, vUo, vWp, vEx, vBa, vSw, vNeg = [V.alloc() for _ in range(7)]
    vOo = [V.alloc(), V.alloc()]
    vEw = [V.alloc() for _ in range(2)]
    vEr = [V.alloc() for _ in range(4)]
    vBo = [V.alloc(), V.alloc()]
    vXo = [V.alloc(4), V.alloc(4)]
    vMk = V.alloc(4)
    vC0 = V.alloc(2)
    vSt = [V.alloc(4), V.alloc(4)]
    NF = 8
    vFr = [V.alloc(4) for _ in range(NF)]
    vAcc = [V.alloc(16), V.alloc(16)]
    vBig = V.alloc(72)
    vE = vBig

    e('s_cmp_ge_u32 s2, 256')
    e('s_cbranch_scc1 L_end')
    for r, off in ((X, 0), (W1, 32), (WS, 80), (DBG, 72), (WQ, 8), (WO, 16), (W2, 48), (OUT, 64), (B1, 40), (B2, 56)):
        e(f's_load_dwordx2 {s(r, 2)}, s[0:1], {off}')
    sClk = 78
    e(f's_memrealtime s[{sClk}:{sClk + 1}]')
    if P['codepf']:
        e(f's_getpc_b64 s[6:7]')
        e.label('L_pc')
        e(f's_and_b32 s3, s2, 0xf8')
        e(f'v_lshrrev_b32 v{t0}, 5, v0')
        e(f'v_add_lshl_u32 v{t0}, s3, v{t0}, 7')
        e(f'v_min_u32 v{t0}, L_last-L_pc, v{t0}')
        e(f'global_load_dword v{vFv}, v{t0}, s[6:7]')
    vX = vBig
    vF = vBig + 8
    vG2 = vBig + 24
    vAB = vBig + 40
    vS_, vQ_, vT_, vU_ = vBig + 44, vBig + 45, vBig + 46, vBig + 47
    vLw, vLh, vLx, vHs = vBig + 48, vBig + 49, vBig + 50, vBig + 51
    tp = vBig + 52
    vFr8, vLr, vRo = vBig + 54, vBig + 55, vBig + 56
    sHrd = sC1
    e.many(f"""
        v_lshrrev_b32 v{t0}, 6, v0
        v_and_b32 v{vL31}, 31, v0
        v_readfirstlane_b32 s{sW}, v{t0}
        v_bfe_u32 v{vHi}, v0, 5, 1
        v_mul_u32_u24 v{t1}, 896, v{vHi}
        v_lshl_add_u32 v{t1}, v{vL31}, 4, v{t1}
        v_cmp_gt_u32 vcc, 28, v{vL31}
        v_mov_b32 v{t2}, {OOB}
        s_mov_b32 s{X + 2}, {2048 * 896}
        s_mov_b32 s{X + 3}, 0x20000
        v_cndmask_b32 v{t1}, v{t2}, v{t1}, vcc
        s_lshr_b32 s{sKh}, s{sW}, 1
        s_and_b32 s{sNh}, s{sW}, 1
        s_and_b32 s3, s2, 0xfe
        s_add_u32 s3, s3, s{sKh}
        s_lshl_b32 s3, s3, 1
        s_and_b32 s{sCnt}, s2, 1
        s_add_u32 s3, s3, s{sCnt}
        s_lshl_b32 s3, s3, 1
        s_add_u32 s3, s3, s{sNh}
        s_mul_i32 s3, s3, {2 * 896}
    """)
    e.wait_all(vm=False, lg=True, force=True)
    if P['stamps'] or P['probe'] == 98:
        e(f's_memtime s[0:1]')
        e.wait_all(vm=False, lg=True, force=True)
        e(f's_mov_b32 s{sStamp + 13}, s0')
    e(f'buffer_load_dwordx4 {v(vX, 4)}, v{t1}, {srd(X)}, s3 offen')
    e(f'buffer_load_dwordx4 {v(vX + 4, 4)}, v{t1}, {srd(X)}, s3 offen offset:448')
    if P['stamps'] or P['probe'] >= 0:
        e(f's_mov_b32 s{sStamp}, s{sClk}')
        nst[0] = 1
    if P['jitter']:
        e(f's_lshl_b32 s3, s2, 2')
        e(f's_add_u32 s3, s3, s{sW}')
        e(f's_mul_i32 s3, s3, 0x9e3779b1')
        e(f's_add_u32 s{sStamp}, s3, s{sClk}')
    sPair, sOdd, sXcd = sT2, sT3, sBg
    e.many(f"""
        v_and_b32 v{vLane}, 63, v0
        s_mov_b32 s{DBG + 2}, 256
        s_mov_b32 s{DBG + 3}, 0x20000
        s_lshl_b32 s3, s{sW}, 8
        s_add_u32 s3, s3, s2
        s_cmp_lt_u32 s3, 8
        s_cselect_b32 s3, 0, {OOB}
        s_or_b32 s{sClk}, s{sClk}, 1
        v_mov_b32 v{tp}, s{sClk}
        v_mov_b32 v{tp + 1}, 0
        v_lshlrev_b32 v{vFl}, 25, v{vLane}
        buffer_atomic_cmpswap {v(tp, 2)}, v{vFl}, {srd(DBG)}, s3 offen sc1
        s_bfe_u32 s{sPair}, s2, 0x20001
        s_and_b32 s{sOdd}, s2, 1
        s_and_b32 s{sXcd}, s2, 7
        s_lshr_b32 s{sIdx}, s2, 3
        s_mul_i32 s{sD}, s{sOdd}, 25
        s_add_u32 s{sD}, s{sD}, s{sIdx}
        s_mul_i32 s{sFT}, s{sD}, 37
        s_lshr_b32 s{sFT}, s{sFT}, 8
        s_mul_i32 s3, s{sFT}, 7
        s_sub_u32 s{sD}, s{sD}, s3
    """)
    e.many(f"""
        s_and_b32 s3, s{sPair}, 1
        s_mul_i32 s3, s3, 6
        s_add_u32 s{sFT}, s{sFT}, s3
        s_add_u32 s{sFT}, s{sFT}, 1
        s_add_u32 s3, s3, s{sFT}
        s_cmp_eq_u32 s3, 7
        s_cselect_b32 s{sFT}, 0, s{sFT}
        s_lshr_b32 s{sM3}, s{sPair}, 1
        s_lshl_b32 s{sFT}, s{sFT}, 1
        s_add_u32 s{sFT}, s{sFT}, s{sM3}
        s_max_u32 s{sCnt}, s{sIdx}, 25
        s_sub_u32 s{sCnt}, s{sCnt}, 25
        s_add_u32 s3, s{sIdx}, s{sOdd}
        s_cmp_lt_u32 s3, 25
        s_cselect_b32 s{sG1}, 1, 0
        s_cselect_b32 s{sD}, s{sD}, s{sCnt}
        s_mov_b32 s{W1 + 2}, {2048 * 3584}
        s_mov_b32 s{W1 + 3}, 0x20000
        s_lshl_b32 s3, s{sD}, 1
        s_sub_u32 s{sCnt}, s3, 7
        s_cmp_ge_u32 s3, 7
        s_cselect_b32 s3, s{sCnt}, s3
        s_and_b32 s3, s3, {P['rmask']}
        s_mul_i32 s{sCnt}, s{sXcd}, {P['xrot']}
        s_add_u32 s3, s3, s{sCnt}
        s_and_b32 s3, s3, 7
        s_mul_i32 s{sGsW}, s3, {128 * 3584}
        s_lshl_b32 s{sGsH}, s3, 13
        s_lshl_b32 s{sM}, s{sW}, 12
        v_lshrrev_b32 v{vG}, 4, v{vLane}
        v_lshrrev_b32 v{vR8}, 3, v{vLane}
        v_and_b32 v{vC8}, 7, v{vLane}
        v_lshlrev_b32 v{t1}, 1, v{vG}
        v_xor_b32 v{t1}, v{t1}, v{vC8}
        v_lshlrev_b32 v{vSw}, 4, v{t1}
        s_cmp_eq_u32 s{sG1}, 0
        s_cbranch_scc1 L_nog1
    """)
    save0 = (e.vm_n, e.vm_done, e.lg_n, e.lg_done, dict(e.pvm), dict(e.plg), dict(e.tok))
    e.many(f"""
        v_mul_u32_u24 v{t1}, 3584, v{vR8}
        s_lshl_b32 s3, s{sM3}, 5
        s_add_u32 s3, s3, s{sW}
        s_mul_i32 s3, s3, {32 * 3584}
        s_lshl_b32 s{sCnt}, s{sFT}, 7
        s_add_u32 s3, s3, s{sCnt}
        v_add3_u32 v{vD1[0]}, v{t1}, v{vSw}, s3
        v_add_u32 v{vD1[1]}, {16 * 3584 - 1024}, v{vD1[0]}
        v_add_u32 v{vD1[2]}, {8 * 3584 - 2048}, v{vD1[0]}
        v_add_u32 v{vD1[3]}, {3 * (8 * 3584 - 1024)}, v{vD1[0]}
    """)

    def w1_dma(q, gap):
        for k in range(4):
            pre = [f's_add_u32 m0, s{sM}, {slot_of(q)}'] + wrap(sGsW, 128 * 3584, 8) * (0 if P['xp'] & 8192 else ({0: 0} if P['gord'] else {8: 0, 0: 0, 9: 2}).get(q, 1)) if k == 0 else []
            if q in ((0, 8) if P['gord'] else (0, 9)):
                pre = pre + [f'v_xor_b32 v{vD1[k]}, 128, v{vD1[k]}']
            bg_dma(('s', q, k), pre, W1, vD1[k], sGsW, k * 1024, gap)

    vB1 = vBig + 64
    e.many(f"""
        s_mov_b32 s{B1 + 2}, 3584
        s_mov_b32 s{B1 + 3}, 0x20000
        v_lshlrev_b32 v{t0}, 3, v{vG}
        s_lshl_b32 s3, s{sFT}, 1
        s_add_u32 s3, s3, s{sKh}
        s_lshl_b32 s3, s3, 6
    """)
    for j in range(2):
        e(f'buffer_load_dwordx2 {v(vB1 + 2 * j, 2)}, v{t0}, {srd(B1)}, s3 offen offset:{32 * j}')
    e.bg_on = False
    for q in (range(9) if P['gord'] else (8, 0, 1, 2, 3, 4, 5, 6, 7)):
        w1_dma(q, 64)
    if P['w1late'] == 0:
        pop(P['w1pre'])
    sHs0, sHs1, sHfl, sEps, sInv, sOnes = 70, 71, 74, 75, 76, 77
    sRs, sHf2 = 72, 73
    def b2_loads():
        for q_ in range(2):
            e(f'buffer_load_ushort v{vBo[q_]}, v{vBa}, {srd(B2)}, 0 offen offset:{16 * q_}')

    def res_loads():
        for q_ in range(2):
            e(f'buffer_load_dwordx4 {v(vXo[q_], 4)}, v{vOo[q_]}, {srd(X)}, 0 offen')
        if not P['b2e']:
            b2_loads()

    def p0_body(sets):
        e.many(f"""
            s_mul_i32 s{sS}, s{sIdx}, 37
            s_lshr_b32 s{sS}, s{sS}, 8
            s_mul_i32 s{sD2}, s{sS}, 7
            s_sub_u32 s{sD2}, s{sIdx}, s{sD2}
            s_and_b32 s{sS}, s{sS}, 3
            s_xor_b32 s{sS}, s{sS}, {P['sflip']}
            s_lshl_b32 s3, s{sPair}, 2
            s_add_u32 s{sS}, s{sS}, s3
            s_lshl_b32 s{sS}, s{sS}, 1
            s_add_u32 s{sS}, s{sS}, s{sOdd}
        """)
        e.many(f"""
            s_mov_b32 s{B2 + 2}, 4096
            s_mov_b32 s{B2 + 3}, 0x20000
            s_lshl_b32 s3, s{sS}, 2
            s_add_u32 s3, s3, s{sW}
            s_lshl_b32 s{sCnt}, s3, 5
            v_lshl_add_u32 v{vBa}, v{vR8}, 1, s{sCnt}
            s_mul_i32 s3, s3, {16 * 896}
            s_lshl_b32 s{sCnt}, s{sD2}, 7
            s_add_u32 s3, s3, s{sCnt}
            v_mul_u32_u24 v{t1}, 896, v{vR8}
            v_lshl_add_u32 v{t1}, v{vC8}, 4, v{t1}
            v_add_u32 v{vOo[0]}, s3, v{t1}
            v_add_u32 v{vOo[1]}, {8 * 896}, v{vOo[0]}
        """)
        if P['b2e']:
            b2_loads()
        if P['rpos'] == 0:
            res_loads()
        if P['w1late'] == 1:
            pop(P['w1pre'])
        e.many(f"""
            s_cmp_lt_u32 s{sIdx}, 28
            s_cselect_b32 s{sF}, 1, 0
            s_lshl_b32 s{sJ}, s{sOdd}, 3
            s_and_b32 s3, s{sIdx}, 7
            s_add_u32 s{sJ}, s{sJ}, s3
            s_lshr_b32 s{sCnt}, s{sIdx}, 3
            s_lshl_b32 s{sK32}, s{sPair}, 2
            s_add_u32 s{sK32}, s{sK32}, s{sCnt}
            s_lshl_b32 s{sK32}, s{sK32}, 2
            s_add_u32 s{sK32}, s{sK32}, s{sW}
            s_mul_i32 s{sCnt}, s{sCnt}, {2 * P['qrot']}
            s_add_u32 s3, s3, s{sCnt}
            s_sub_u32 s{sCnt}, s3, 7
            s_cmp_ge_u32 s3, 7
            s_cselect_b32 s3, s{sCnt}, s3
            s_lshl_b32 s{sXs}, s3, 18
            s_mul_i32 s{sWs}, s3, 12288
            s_mov_b32 s{WS + 2}, {WS_SIZE}
            s_mov_b32 s{WS + 3}, 0x20000
            s_mov_b32 s{sEps}, {f32(1e-5)}
            s_mov_b32 s{sInv}, {f32(1.0 / 448)}
            s_mov_b32 s{sOnes}, 0x3f803f80
            v_lshlrev_b32 v{vL16}, 4, v{vLane}
            v_bfe_u32 v{vR4}, v{vLane}, 2, 2
            v_and_b32 v{vC4}, 3, v{vLane}
            v_mul_u32_u24 v{t0}, 960, v{vHi}
            v_lshl_add_u32 v{t0}, v{vL31}, 4, v{t0}
            s_mul_i32 s3, s{sW}, 1920
            s_add_u32 s3, s3, {PH_B}
            v_add_u32 v{vLw}, s3, v{t0}
            v_mul_u32_u24 v{t0}, 960, v{vR4}
            v_lshl_add_u32 v{t0}, v{vG}, 5, v{t0}
            v_lshl_add_u32 v{t0}, v{vC4}, 3, v{t0}
            s_lshl_b32 s3, s{sW}, 8
            s_add_u32 s3, s3, {PH_B}
            v_add_u32 v{vLh}, s3, v{t0}
            s_lshl_b32 s3, s{sW}, 3
            s_add_u32 s3, s3, {PR_B}
            v_lshl_add_u32 v{vLx}, v{vHi}, 2, s3
            v_lshlrev_b32 v{vLr}, 2, v{vC8}
            v_and_b32 v{vL15}, 15, v{vLane}
            v_lshlrev_b32 v{vRo}, {14 - P['rs2']}, v{vG}
            v_add_lshl_u32 v{vRo}, v{vRo}, v{vL15}, {2 + P['rs2']}
            v_add_u32 v{vLr}, {PR_B}, v{vLr}
            v_lshlrev_b32 v{t0}, 17, v{vHi}
            v_lshl_add_u32 v{vHs}, v{vL31}, 4, v{t0}
            s_cmp_eq_u32 s{sW}, 3
            s_cselect_b32 s{sCnt}, {OOB}, 0
            s_lshl_b32 s{sHs0}, s{sW}, 10
            s_add_u32 s{sHs0}, s{sHs0}, s2
            s_lshl_b32 s{sHs0}, s{sHs0}, 9
            s_add_u32 s{sHs1}, s{sHs0}, 262144
            s_add_u32 s{sHs1}, s{sHs1}, s{sCnt}
            s_xor_b32 s{sCnt}, s{sCnt}, {OOB}
            s_lshl_b32 s{sRs}, s2, 7
            s_add_u32 s{sRs}, s{sRs}, s{sCnt}
            s_add_u32 s{sRs}, s{sRs}, {RS_OFF}
            s_lshr_b32 s{sHfl}, s2, {P['hk']}
            s_lshl_b32 s{sHfl}, s{sHfl}, {P['hb'] - 2}
            s_and_b32 s3, s2, {(1 << P['hk']) - 1}
            s_add_u32 s{sHfl}, s{sHfl}, s3
            s_lshl_b32 s{sHfl}, s{sHfl}, 2
            s_add_u32 s{sHfl}, s{sHfl}, {HF_OFF}
            v_cmp_gt_u32 vcc, {P['hrep']}, v0
            v_lshlrev_b32 v{vFr8}, 13, v0
            v_mov_b32 v{t0}, {OOB}
            s_and_b32 s3, s2, {P['hrep'] - 1}
            s_lshl_b32 s3, s3, 13
            s_add_u32 s3, s3, {HF_OFF}
            v_lshrrev_b32 v{t1}, {P['hk']}, v0
            v_lshl_add_u32 v{t1}, v{t1}, {P['hb']}, s3
            v_and_b32 v{t2}, {(1 << P['hk']) - 1}, v0
            v_lshl_add_u32 v{vFoH}, v{t2}, 2, v{t1}
            v_cndmask_b32 v{vFr8}, v{t0}, v{vFr8}, vcc
            v_mov_b32 v{t3}, 0
        """)
        if P['hsc']:
            e(f's_lshl_b32 s3, s{sW}, 14')
            e(f's_add_u32 s{sHfl}, s{sHfl}, s3')
            e(f's_add_u32 s{sHf2}, s{sHfl}, 8192')
            if P['hwarm']:
                e(f's_and_b32 s{sZero}, s2, 3')
                e(f's_cbranch_scc1 L_nowarm{len(sets)}')
                e(f's_atomic_or s{sZero}, s[{WS}:{WS + 1}], s{sHfl}')
                e(f's_atomic_or s{sZero}, s[{WS}:{WS + 1}], s{sHf2}')
                e.label(f'L_nowarm{len(sets)}')
                e.smem_out = 2
        if P['pread'] and sets == (6,):
            e(flag_load(vFoH, vFv + 1))
        if P['w1late'] == 2:
            pop(P['w1pre'])
        for k in range(8):
            e(f'v_dot2_f32_bf16 v{vS_}, v{vX + k}, s{sOnes}, {"0" if k == 0 else "v%d" % vS_}')
            if k == 0:
                stamp('x landed', sets)
            e(f'v_dot2_f32_bf16 v{vQ_}, v{vX + k}, v{vX + k}, {"0" if k == 0 else "v%d" % vQ_}')
        unp = []
        for k in range(8):
            unp += [f'v_lshlrev_b32 v{vF + 2 * k}, 16, v{vX + k}', f'v_and_b32 v{vF + 2 * k + 1}, 0xffff0000, v{vX + k}']
        e(f'buffer_load_dword v{vNon}, v{t3}, {srd(DBG)}, 0 offen sc1')
        if P['w1late'] == 3:
            pop(P['w1pre'])
        run(unp[:2])
        unp = unp[2:]
        for ctl in ('quad_perm:[1,0,3,2]', 'quad_perm:[2,3,0,1]', 'row_half_mirror', 'row_mirror'):
            for r in (vS_, vQ_):
                e(f'v_add_f32_dpp v{r}, v{r}, v{r} {ctl} row_mask:0xf bank_mask:0xf')
            e(unp.pop(0))
        e(f'v_mov_b32 v{vT_}, v{vS_}')
        e(f'v_mov_b32 v{vU_}, v{vQ_}')
        e(unp.pop(0))
        e(f'v_permlane16_swap_b32 v{vS_}, v{vT_}')
        e(f'v_permlane16_swap_b32 v{vQ_}, v{vU_}')
        e.many(f"""
            v_add_f32 v{vS_}, v{vS_}, v{vT_}
            v_add_f32 v{vQ_}, v{vQ_}, v{vU_}
            v_mul_f32_e64 v{vS_}, -v{vS_}, s{sInv}
            v_mul_f32 v{vT_}, v{vS_}, v{vS_}
            v_fma_f32 v{vQ_}, v{vQ_}, s{sInv}, -v{vT_}
            v_max_f32 v{vQ_}, 0, v{vQ_}
            v_add_f32 v{vT_}, s{sEps}, v{vQ_}
            v_rsq_f32 v{vAB}, v{vT_}
        """)
        e(unp.pop(0))
        e.many(f"""
            v_mul_f32 v{vT_}, v{vAB}, v{vAB}
            v_fma_f32 v{vU_}, v{vT_}, v{vQ_}, s{sEps}
            v_rsq_f32 v{vT_}, v{vU_}
            v_mul_f32 v{vAB + 1}, v{vS_}, v{vAB}
            v_mul_f32 v{vAB + 2}, v{vAB}, v{vT_}
            v_mul_f32 v{vAB + 3}, v{vAB + 1}, v{vT_}
            v_mul_f32 v{vU_}, v{vU_}, v{vT_}
            ds_write_b32 v{vLx}, v{vU_}
        """)
        run(unp)

        def normalise(ab, base):
            for hf in range(2):
                for k in range(4 * hf, 4 * hf + 4):
                    e(f'v_pk_fma_f32 {v(vG2 + 2 * k, 2)}, {v(vF + 2 * k, 2)}, {v(ab, 2)}, {v(ab, 2)} op_sel:[0,0,1] op_sel_hi:[1,0,1]')
                for k in range(4 * hf, 4 * hf + 4):
                    e(f'v_cvt_pk_bf16_f32 v{vX + k}, v{vG2 + 2 * k}, v{vG2 + 2 * k + 1}')
                e(f'ds_write_b128 v{vLw}, {v(vX + 4 * hf, 4)} offset:{base + 448 * hf}')

        normalise(vAB + 2, 0)
        e.wait_all(vm=False, lg=True)
        e('s_barrier')
        for z in range(2):
            for h in range(2):
                e(f'ds_read_b64_tr_b16 {v(vSt[z] + 2 * h, 2)}, v{vLh} offset:{z * 128 + h * 3840}')
        e(f'ds_read_b32 v{vU_}, v{vLr}')
        for z in range(2):
            e(f'buffer_store_dwordx4 {v(vSt[z], 4)}, v{vHs}, {srd(WS)}, s{sHs0 + z} offen sc1')
        e(f'v_cmp_gt_u32 vcc, 16, v{vLane}')
        e(f'v_cndmask_b32 v{vU_}, 0, v{vU_}, vcc')
        if P['rs2']:
            e(f'v_mov_b32 v{vT_}, v{vU_}')
            tokH = e(f'buffer_store_dwordx2 {v(vT_, 2)}, v{vRo}, {srd(WS)}, s{sRs} offen sc1')
        else:
            tokH = e(f'buffer_store_dword v{vU_}, v{vRo}, {srd(WS)}, s{sRs} offen sc1')
        stamp('h stored', sets)
        return tokH

    tokH = p0_body((1, 4))

    if P['rpos'] == 4:
        res_loads()
    pop(P['w1mid'])
    if P['iwarm']:
        e.comment('page-align the rest of the hot path (the padding is never executed)')
        e('s_branch L_anchor')
        e.raw('.p2align 12')
        e.label('L_anchor')

    setup = []
    for r, n in ((WO, 448 * 896), (W2, 1792 * 4096), (OUT, 2048 * 896)):
        setup.append(f's_mov_b32 s{r + 2}, {n}\ns_mov_b32 s{r + 3}, 0x20000')
    setup += f"""s_mov_b32 s{sOne1}, 1
        v_lshrrev_b32 v{t1}, 2, v{vLane}
        v_lshlrev_b32 v{t1}, 7, v{t1}
        v_lshl_add_u32 v{t1}, v{vC4}, 3, v{t1}
        v_and_b32 v{t2}, 3, v{vR8}
        v_lshl_add_u32 v{t1}, v{t2}, 5, v{t1}
        s_mul_i32 s3, s{sKh}, {8192 + 64}
        v_xor_b32 v{vPat[0][0]}, s3, v{t1}
        v_xor_b32 v{vPat[0][1]}, 32, v{vPat[0][0]}
        v_xor_b32 v{vPat[0][2]}, 64, v{vPat[0][0]}
        v_xor_b32 v{vPat[0][3]}, 96, v{vPat[0][0]}
        v_add_u32 v{vPat[1][0]}, 65536, v{vPat[0][0]}
        v_add_u32 v{vPat[1][1]}, 65536, v{vPat[0][1]}
        v_add_u32 v{vPat[1][2]}, 65536, v{vPat[0][2]}
        v_add_u32 v{vPat[1][3]}, 65536, v{vPat[0][3]}
        v_add_u32 v{vPat[2][0]}, 131072, v{vPat[0][0]}
        v_add_u32 v{vPat[2][1]}, 131072, v{vPat[0][1]}
        v_add_u32 v{vPat[2][2]}, 131072, v{vPat[0][2]}
        v_add_u32 v{vPat[2][3]}, 131072, v{vPat[0][3]}
        s_lshl_b32 s{sT2}, s{sD}, 1
        s_add_u32 s{sT2}, s{sT2}, s{sNh}
        s_lshl_b32 s3, s{sT2}, 1
        s_add_u32 s3, s3, s{sM3}
        s_lshl_b32 s3, s3, 4
        s_add_u32 s3, s3, s{sKh}
        s_lshl_b32 s3, s3, 12
        v_lshl_add_u32 v{vHo}, v{vG}, 8, v{vL16}
        v_add_u32 v{vHo}, s3, v{vHo}
        s_xor_b32 s{sGfl}, s{sFT}, 1
        s_lshl_b32 s{sGfl}, s{sGfl}, 3
        s_add_u32 s{sGfl}, s{sGfl}, s{sD}
        s_lshl_b32 s3, s{sGfl}, 14
        s_add_u32 s3, s3, s{sM}
        s_add_u32 s3, s3, {G_OFF + (OOB if P['xp'] & 1024 else 0)}
        v_add_u32 v{vGst}, s3, v{vL16}
        s_lshl_b32 s{sGfl}, s{sGfl}, 5
        s_add_u32 s{sGfl}, s{sGfl}, s{sNh}
        s_lshl_b32 s{sGfl}, s{sGfl}, 2
        s_add_u32 s{sGfl}, s{sGfl}, {GF_OFF}
        s_mul_i32 s{sUst}, s{sT2}, 56
        s_lshl_b32 s3, s{sFT}, 1
        s_add_u32 s3, s3, s{sKh}
        s_add_u32 s{sUst}, s{sUst}, s3
        s_lshl_b32 s{sUst}, s{sUst}, 11
        s_add_u32 s{sUst}, s{sUst}, {U_OFF + (OOB if P['xp'] & 2048 else 0)}
        v_add_u32 v{vEx}, s{sM}, v{vL16}
        s_lshl_b32 s{sUfl}, s{sD}, 2
        s_and_b32 s3, s{sFT}, 1
        s_add_u32 s{sUfl}, s{sUfl}, s3
        s_cmp_ge_u32 s{sFT}, 14
        s_cselect_b32 s3, 2, 0
        s_add_u32 s{sUfl}, s{sUfl}, s3
        s_lshl_b32 s{sUfl}, s{sUfl}, 7
        s_add_u32 s{sUfl}, s{sUfl}, {CN_OFF}
        v_add_u32 v{vLin[1]}, 65536, v{vL16}
        v_add_u32 v{vLin[2]}, 131072, v{vL16}
        s_mul_i32 s{sM3}, s{sW}, 3072
        s_mul_i32 s3, s{sJ}, 86016
        s_add_u32 s3, s3, s{sM3}
        s_add_u32 s3, s3, {WP_OFF}
        v_add_u32 v{vWp}, s3, v{vL16}
        v_lshlrev_b32 v{t1}, 7, v{vHi}
        v_xor_b32 v{t1}, v{t1}, v{vL16}
        s_lshl_b32 s3, s{sK32}, 11
        v_add_u32 v{vXd[0]}, s3, v{t1}
        v_add_u32 v{vXd[1]}, {131072 - 2048}, v{vXd[0]}
        s_lshr_b32 s3, s{sK32}, 2
        s_lshl_b32 s3, s3, 3
        s_max_u32 s3, s3, 1
        s_sub_u32 s3, s3, 1
        s_lshl_b32 s3, s3, 10
        s_lshl_b32 s{sT2}, s{sNh}, 17
        s_add_u32 s3, s3, s{sT2}
        s_lshl_b32 s{sT2}, s{sKh}, 28
        s_add_u32 s3, s3, s{sT2}
        v_add_u32 v{vXd[2]}, s3, v{t1}
        s_lshl_b32 s{sMh}, s{sNh}, 1
        s_add_u32 s{sMh}, s{sMh}, s{sKh}
        s_lshl_b32 s{sMh}, s{sMh}, 10
        v_and_b32 v{t1}, 1, v{vLane}
        v_mul_u32_u24 v{t1}, {512 + 128}, v{t1}
        v_lshrrev_b32 v{t2}, 2, v{vLane}
        v_lshlrev_b32 v{t2}, 4, v{t2}
        v_xor_b32 v{t1}, v{t1}, v{t2}
        v_bfe_u32 v{t2}, v{vLane}, 1, 1
        v_lshl_add_u32 v{t1}, v{t2}, 3, v{t1}
        s_add_u32 s3, s{sM}, 12288
        v_add_u32 v{vXr[0][0]}, s3, v{t1}
        s_sub_u32 s3, s3, 3072
        s_cmp_eq_u32 s{sW}, 0
        s_cselect_b32 s3, 28672, s3
        v_add_u32 v{vXr[0][1]}, s3, v{t1}
        v_add_u32 v{vXr[1][0]}, 65536, v{vXr[0][0]}
        v_add_u32 v{vXr[1][1]}, 65536, v{vXr[0][1]}
        v_add_u32 v{vXr[2][0]}, 131072, v{vXr[0][0]}
        v_add_u32 v{vXr[2][1]}, 131072, v{vXr[0][1]}
        s_lshl_b32 s3, s{sK32}, 1
        v_min_u32 v{t1}, 2, v{vG}
        v_add_u32 v{t1}, s3, v{t1}
        v_max_u32 v{t1}, 1, v{t1}
        v_lshlrev_b32 v{t1}, 1, v{t1}
        v_and_b32 v{t2}, 1, v{vR4}
        v_add_lshl_u32 v{t1}, v{t1}, v{t2}, 7
        v_lshrrev_b32 v{t2}, 1, v{vR4}
        v_lshl_add_u32 v{t2}, v{t2}, 2, v{vC4}
        v_lshl_add_u32 v{t1}, v{t2}, {2 + P['rs2']}, v{t1}
        v_add_u32 v{vRsa}, {RS_OFF - 256}, v{t1}
        s_min_u32 s{sWck}, s{sW}, 2
        s_lshl_b32 s{sWck}, s{sWck}, 6
        s_add_u32 s{sWck}, s{sWck}, 64
        s_lshl_b32 s{sOs}, s{sK32}, 5
        s_add_u32 s{sOs}, s{sOs}, s{sJ}
        s_lshl_b32 s{sOs}, s{sOs}, 10
        s_add_u32 s{sOs}, s{sOs}, {O_OFF + (OOB if P['xp'] & 4096 else 0)}
        s_lshr_b32 s{sOfl}, s{sK32}, 2
        s_lshl_b32 s{sOfl}, s{sOfl}, 1
        s_and_b32 s3, s{sJ}, 1
        s_add_u32 s{sOfl}, s{sOfl}, s3
        s_lshl_b32 s{sOfl}, s{sOfl}, 7
        s_add_u32 s{sOfl}, s{sOfl}, {CN_OFF + 32 * 128}
        s_and_b32 s{sT3}, s{sS}, 1
        s_mul_i32 s3, s{sT3}, 28
        s_add_u32 s3, s3, s{sW}
        s_lshl_b32 s3, s3, 17
        s_xor_b32 s{sT2}, s{sS}, 1
        s_lshl_b32 s{sPfl}, s{sT2}, 3
        s_lshl_b32 s{sT2}, s{sS}, 7
        s_add_u32 s3, s3, s{sT2}
        v_lshlrev_b32 v{t1}, 12, v{vR8}
        v_add3_u32 v{vD2[0]}, v{t1}, v{vSw}, s3
        v_add_u32 v{vD2[1]}, {1 * (8 * 4096 - 1024)}, v{vD2[0]}
        v_add_u32 v{vD2[2]}, {2 * (8 * 4096 - 1024)}, v{vD2[0]}
        v_add_u32 v{vD2[3]}, {3 * (8 * 4096 - 1024)}, v{vD2[0]}
        v_mul_u32_u24 v{t1}, 896, v{vR8}
        s_mul_i32 s3, s{sKh}, {28 * 896}
        s_mul_i32 s{sT2}, s{sNh}, {16 * 896}
        s_add_u32 s3, s3, s{sT2}
        s_lshl_b32 s{sT2}, s{sD2}, 7
        s_add_u32 s3, s3, s{sT2}
        v_add3_u32 v{vDo[0]}, v{t1}, v{vSw}, s3
        v_add_u32 v{vDo[1]}, {8 * 896 - 1024}, v{vDo[0]}
        s_lshl_b32 s{sT2}, s{sS}, 1
        s_add_u32 s{sT2}, s{sT2}, s{sNh}
        s_and_b32 s3, s{sS}, 30
        s_add_u32 s3, s3, s{sKh}
        s_lshl_b32 s3, s3, 7
        s_add_u32 s{sOck}, s3, {CN_OFF + 32 * 128}
        s_lshl_b32 s3, s{sT2}, 5
        s_add_u32 s3, s3, s{sKh}
        s_lshl_b32 s3, s3, 10
        s_add_u32 s3, s3, {O_OFF}
        v_add_u32 v{vOd[0]}, s3, v{vL16}
        v_add_u32 v{vOd[1]}, {16384 - 1024}, v{vOd[0]}
        s_xor_b32 s3, s{sKh}, s{sNh}
        s_lshl_b32 s3, s3, 6
        v_xor_b32 v{vPatW[0][0]}, s3, v{vPat[0][0]}
        v_xor_b32 v{vPatW[0][1]}, 32, v{vPatW[0][0]}
        v_add_u32 v{vPatW[1][0]}, 65536, v{vPatW[0][0]}
        v_add_u32 v{vPatW[1][1]}, 65536, v{vPatW[0][1]}
        s_mul_i32 s3, s{sKh}, {3 * 4096}
        v_add_u32 v{vOr[0][0]}, s3, v{vL16}
        v_xor_b32 v{vOr[0][1]}, 4096, v{vOr[0][0]}
        v_add_u32 v{vOr[1][0]}, 65536, v{vOr[0][0]}
        v_add_u32 v{vOr[1][1]}, 65536, v{vOr[0][1]}
        v_add_u32 v{vOr[2][0]}, 131072, v{vOr[0][0]}
        v_add_u32 v{vOr[2][1]}, 131072, v{vOr[0][1]}
        s_lshl_b32 s{sT2}, s{sD2}, 1
        s_add_u32 s{sT2}, s{sT2}, s{sNh}
        s_lshl_b32 s3, s{sT2}, 1
        s_add_u32 s3, s3, s{sT3}
        s_mul_i32 s3, s3, 14
        s_add_u32 s3, s3, s{sKh}
        s_lshl_b32 s3, s3, 12
        s_add_u32 s3, s3, {U_OFF}
        v_add_u32 v{vUo}, s3, v{vL16}
        s_lshl_b32 s3, s{sD2}, 1
        s_add_u32 s3, s3, s{sT3}
        s_lshl_b32 s3, s3, 1
        s_add_u32 s3, s3, s{sKh}
        s_lshl_b32 s3, s3, 7
        s_add_u32 s{sUck}, s3, {CN_OFF}
        s_and_b32 s3, s2, 6
        s_add_u32 s3, s3, s{sD2}
        s_sub_u32 s{sT2}, s3, 7
        s_cmp_ge_u32 s3, 7
        s_cselect_b32 s3, s{sT2}, s3
        s_lshl_b32 s{sGs2}, s3, 19
        s_lshl_b32 s{sGsU}, s3, 13
        s_add_u32 s{sPfl}, s{sPfl}, s{sD2}
        s_lshl_b32 s3, s{sPfl}, 14
        s_add_u32 s3, s3, s{sM}
        s_add_u32 s3, s3, {P_OFF + (OOB if P['xp'] & 512 else 0)}
        v_add_u32 v{vPst}, s3, v{vL16}
        s_lshl_b32 s{sPfl}, s{sPfl}, 5
        s_add_u32 s{sPfl}, s{sPfl}, s{sW}
        s_lshl_b32 s{sPfl}, s{sPfl}, 2
        s_add_u32 s{sPfl}, s{sPfl}, {PF_OFF}
        s_lshl_b32 s3, s{sNh}, 3
        v_add_u32 v{t0}, s3, v{vG}
        v_xor_b32 v{t0}, v{t0}, v{vC8}
        v_lshlrev_b32 v{t0}, 4, v{t0}
        v_lshl_add_u32 v{t0}, v{vL15}, 8, v{t0}
        s_lshl_b32 s3, s{sKh}, 14
        s_add_u32 s3, s3, {EPI_B}
        v_add_u32 v{vEw[0]}, s3, v{t0}
        v_xor_b32 v{vEw[1]}, 64, v{vEw[0]}
        s_lshr_b32 s3, s{sS}, 1
        s_add_u32 s{sRo}, s3, s{sD2}
        s_mov_b32 s{sR2}, s{sRo}
        v_lshlrev_b32 v{t0}, 1, v{vC8}
        v_xor_b32 v{t0}, v{t0}, v{vR8}
        v_lshlrev_b32 v{t0}, 4, v{t0}
        v_lshl_add_u32 v{t0}, v{vR8}, 8, v{t0}
        s_add_u32 s3, s{sM}, {EPI_B}
        v_add_u32 v{vEr[0]}, s3, v{t0}
        v_xor_b32 v{vEr[1]}, 16, v{vEr[0]}
        v_xor_b32 v{vEr[2]}, {16384 + 8192}, v{vEr[0]}
        v_xor_b32 v{vEr[3]}, {16384 + 8192 + 16}, v{vEr[0]}""".split('\n')
    par = lambda l: l & 1
    cur = lambda l, z: 4 * (l >> 4) + 2 * z + (l & 1) <= (l & 15)
    c0 = -2.0 * math.sqrt(2.0 / math.pi) * math.log2(math.e)
    setup2 = setmask(sPar, lanemask(par)) + setmask(sCur0, lanemask(lambda l: cur(l, 0))) + setmask(sCur1, lanemask(lambda l: cur(l, 1)))
    setup2 += [f's_cmp_eq_u32 s{sK32}, 0\ns_cselect_b64 {s(sInvd, 2)}, 0, -1',
               f'v_mov_b32 v{t0}, 0xffff', f'v_mov_b32 v{t1}, 0xffff0000',
               f'v_cndmask_b32 v{t0}, v{t0}, v{t1}, {s(sPar, 2)}']
    for z, sc in ((0, sCur0), (1, sCur1)):
        setup2 += [f'v_cndmask_b32 v{vMk + z}, v{t0}, 0, {s(sc, 2)}', f'v_cndmask_b32 v{vMk + 2 + z}, 0, v{t0}, {s(sc, 2)}']
    setup2 += [f'v_mov_b32 v{vNeg}, {f32(-1e30)}',
               f's_mov_b32 s{sC1}, {f32(28 ** -0.5 * math.log2(math.e))}',
               f's_mov_b32 s{sGc}, {f32(c0 * 0.044715)}\ns_mov_b32 s{sGc + 1}, {f32(c0 * 0.044715)}',
               f's_mov_b32 s{sOne}, 1.0\ns_mov_b32 s{sOne + 1}, 1.0',
               f'v_mov_b32 v{vC0}, {f32(c0)}', f'v_mov_b32 v{vC0 + 1}, {f32(c0)}']
    aSel = 248
    setup2 += [f'v_lshrrev_b32 v{t0}, 1, v{vL15}', f'v_lshlrev_b32 v{t1}, 1, v{vG}', f'v_sub_u32 v{t0}, v{t0}, v{t1}',
               f'v_mov_b32 v{t1}, 0x3f80', f'v_cndmask_b32 v{t1}, v{t1}, 1.0, {s(sPar, 2)}']
    for k in range(2):
        setup2 += [f'v_cmp_eq_i32 vcc, {k}, v{t0}', f'v_accvgpr_write_b32 a{aSel + k}, 0', f'v_accvgpr_write_b32 a{aSel + 4 + k}, 0',
                   f'v_cndmask_b32 v{t2}, 0, v{t1}, vcc', f'v_accvgpr_write_b32 a{aSel + 2 + k}, v{t2}']
    if P['sigall']:
        setup2.append(f"""s_and_b32 s3, s2, 127
            s_lshl_b32 s3, s3, 7
            s_add_u32 s3, s3, {CN_OFF + 128 * 128}
            s_cmp_eq_u32 s{sW}, 0
            s_cselect_b32 s{sUfl}, s{sUfl}, s3
            s_cselect_b32 s{sOfl}, s{sOfl}, s3""")
    NS1 = [i for i, t in enumerate(setup) if t.strip().startswith(f'v_add_u32 v{vLin[1]},')][0]

    def page_walk():
        e.comment('while waiting: touch the first fetch line of every later code page (no memory code on this walk)')
        e(f's_mov_b32 s3, s{sW}')
        e('s_mov_b64 exec, 0')
        e.label('L_warm')
        e.raw(';;PADJUMPS')
        e('s_mov_b64 exec, -1')

    def h_publish(tag, tokH):
        run(setup[:NS1])
        if P['iwarm'] == 2 and not tag:
            page_walk()
        e(f'v_readfirstlane_b32 s{sNon}, v{vNon}')
        e(f's_mov_b32 s{sCnt}, 0')
        e(f's_cmp_lg_u32 s{sNon}, 0')
        e(f's_cbranch_scc0 L_nonce{tag}')
        e.cold_begin()
        e.label(f'L_nonce{tag}')
        e.raw(f'    buffer_load_dword v{vNon}, v{t3}, {srd(DBG)}, 0 offen sc1')
        e.raw(f'    s_add_u32 s{sCnt}, s{sCnt}, 1')
        e.raw(f'    s_waitcnt vmcnt(0)')
        e.raw(f'    v_readfirstlane_b32 s{sNon}, v{vNon}')
        e.raw(f'    s_cmp_ge_u32 s{sCnt}, {P["spin"]}')
        e.raw(f'    s_cbranch_scc1 L_nonce_ok{tag}')
        e.raw(f'    s_cmp_eq_u32 s{sNon}, 0')
        e.raw(f'    s_cbranch_scc1 L_nonce{tag}')
        e.raw(f'    s_branch L_nonce_ok{tag}')
        e.cold_end()
        e.label(f'L_nonce_ok{tag}')
        e.wait(vm=tokH, lg=e.lg_n)
        e('s_barrier')
        if P['hsc']:
            assert P['hrep'] == 8
            e(f's_atomic_swap s{sNon}, s[{WS}:{WS + 1}], s{sHfl}')
            e(f's_atomic_swap s{sNon}, s[{WS}:{WS + 1}], s{sHf2}')
            e.smem_out = 2
        else:
            e(f'buffer_store_dword v{vNon}, v{vFr8}, {srd(WS)}, s{sHfl} offen sc1')
        if P['rpos'] == 1 or (P['rpos'] >= 2 and tag == 'h'):
            res_loads()

    h_publish('', tokH)
    stamp('hflag', (1, 4))
    if P['xp'] & 1:
        e.wait_all(force=True)
        stamp('flag ack', (4,))
    w1_dma(9, 64)
    e.bg_on = True
    e.credit = 0
    hold = e.bg[max(0, P['w1flag'] - (40 - len(e.bg))):]
    del e.bg[len(e.bg) - len(hold):]
    run(setup[NS1:])
    for j in range(4):
        b = vB1 + 2 * (j & 1)
        e(f'v_lshlrev_b32 v{vAcc[0] + 4 * j}, 16, v{b}')
        e(f'v_and_b32 v{vAcc[0] + 4 * j + 1}, 0xffff0000, v{b}')
        e(f'v_lshlrev_b32 v{vAcc[0] + 4 * j + 2}, 16, v{b + 1}')
        e(f'v_and_b32 v{vAcc[0] + 4 * j + 3}, 0xffff0000, v{b + 1}')

    def bf(n, j):
        return a((n * 4 + j) * 4, 4)

    def h_load(n, gap):
        for j in range(4):
            pre = [f's_add_u32 s{sGsH}, s{sGsH}, 8192', f's_and_b32 s{sGsH}, s{sGsH}, 0xffff'] if (j == 0 and n and not P['xp'] & 128) else []
            bg_ins(('h', n, j), pre, f'buffer_load_dwordx4 {bf(n, j)}, v{vHo}, {srd(WS)}, s{sGsH} offen offset:{(j >> 1) * 2048 + (j & 1) * 256} sc1', gap)

    def u_load(n, gap):
        for j in range(4):
            pre = wrap(sGsU, 8192, 7) if (j == 0 and n and not P['xp'] & 64) else []
            bg_ins(('u', n, j), pre, f'buffer_load_dwordx4 {bf(n, j)}, v{vUo}, {srd(WS)}, s{sGsU} offen offset:{j * 1024} sc1', gap)

    def q_dma(st, gap):
        q = 16 + 2 * st
        b = slot_of(q)
        for k in range(3):
            pre = [f's_add_u32 m0, s{sM3}, {b}'] + (wrap(sWs, 12288, 7) if st and not P['xp'] & 8 else []) if k == 0 else []
            bg_dma(('s', q, k), pre, WS, vWp, sWs, k * 1024, gap, mod=' sc1')
        bg_dma(('s', q, 3), [f's_add_u32 m0, s{sMh}, {b + 28672}'] + (wrap(sXs, 1 << 18, 7) if st and not P['xp'] & 256 else []), WS, vXd[2], sXs, 0, gap, mod=' sc1')
        for k in range(4):
            pre = [f's_add_u32 m0, s{sM}, {b + 12288}'] if k == 0 else []
            if not (P['xp'] & 4 and k in (1, 2)):
                bg_dma(('s', q + 1, k), pre, WS, vXd[k >> 1], sXs, k * 1024, gap, mod=' sc1')

    QF = 30
    QW, QO = ((14, 15, 16, 20), (17, 18, 19, 21)) if P['oord'] else ((14, 15, 16, 17), (18, 19, 20, 21))
    fseq = [('u', n) for n in range(14)] + [('o', m) for m in range(8)]

    def f_dma(i, gap):
        kind, n = fseq[i]
        q = QF + i
        m0 = [f's_add_u32 m0, s{sM}, {slot_of(q)}']
        if kind == 'u':
            for k in range(4):
                pre = m0 + wrap(sGs2, 1 << 19, 7) * (0 if P['xp'] & 16 else {0: 0, 7: 0, 8: 2}.get(n, 1)) if k == 0 else []
                if n in (0, 8):
                    pre = pre + [f'v_xor_b32 v{vD2[k]}, 128, v{vD2[k]}']
                bg_dma(('s', q, k), pre, W2, vD2[k], sGs2, k * 1024, gap + (P['wpause'] if (n, k) == (0, P['wpk']) else 0))
        else:
            r = sRo if i in QW else sR2
            step = [f's_add_u32 s{r}, s{r}, {0 if P["xp"] & 32 else 1}', f's_and_b32 s{r}, s{r}, 3']
            if i in QW:
                bg_dma(('s', q, 0), m0 + step + [f's_mul_i32 s{sBg}, s{sRo}, {112 * 896}'], WO, vDo[0], sBg, 0, gap)
                bg_dma(('s', q, 1), [], WO, vDo[1], sBg, 1024, gap)
                bg_dma(('s', q, 2), [f's_add_u32 s{sBg}, s{sBg}, {56 * 896 - 2048}'], WO, vDo[0], sBg, 2048, gap)
                bg_dma(('s', q, 3), [], WO, vDo[1], sBg, 3072, gap)
            else:
                for k in range(4):
                    pre = m0 + step + [f's_lshl_b32 s{sBg}, s{sR2}, 12'] if k == 0 else []
                    bg_dma(('s', q, k), pre, WS, vOd[k & 1], sBg, k * 1024, gap, mod=' sc1')

    def bar(qlast):
        if qlast is not None:
            e.need(('s', qlast, 3))
        if not (P['xp'] & 16384 and qlast != 5):
            e('s_barrier')

    PH, DF = P['ph'], P['df']
    vWof = [vBig + 16 + 4 * k for k in range(6)]

    def fr(x, n=4, o=0):
        return a(200 + 4 * (x % NF) + o, n)

    def tr_reads(q, j, T_, x):
        r = []
        for h in range(2):
            ad = slot_of(q) + (j >> 1) * 4096 + h * 2048
            r.append(f'ds_read_b64_tr_b16 {fr(x, 2, 2 * h)}, v{vPat[ad >> 16][2 * T_ + (j & 1)]} offset:{ad & 65535}')
        return r

    def gemm32(seq, q0, at_stage, swap, fill, init, accs, amod, padd, checks, pre=None):
        items = []
        for i, (kind, n) in enumerate(seq):
            items += [(i, kind, n, j, T_) for j in range(4 if kind != 'o' else 2) for T_ in range(2)]
        tail = [t for t in items if t[0] >= len(seq) - 2]
        items = items[:len(items) - len(tail)]
        for T_ in (1, 0):
            items += [t for t in tail if t[4] == T_] + [(None, 'P', p, 0, T_) for p in padd if p[0] == T_]
        tk = {}
        left = [sum(1 for t in items if t[0] == i) for i in range(len(seq))]
        seen = set()
        init = set(init)
        lastrd = {}
        done = [-1]
        rq, fq = [], []

        def plan(x):
            i, kind, n, j, T_ = items[x]
            if kind == 'P':
                return
            r = []
            if i not in seen:
                seen.add(i)
                rq.append((x, None, False))
                if kind == 'o':
                    for cb in range(2):
                        for h in range(2):
                            ad = slot_of(q0 + QW[n >> 1]) + h * 4096 + (n & 1) * 2048
                            r.append(f'ds_read_b64_tr_b16 {v(vWof[(2 * n + cb) % 6] + 2 * h, 2)}, v{vPatW[ad >> 16][cb]} offset:{ad & 65535}')
            if pre and x in pre:
                tk[x] = lastrd[i] = pre[x]
                left[i] -= 1
            elif kind != 'o':
                r += tr_reads(q0 + i, j, T_, x)
            else:
                ad = slot_of(q0 + QO[n >> 1]) + (n & 1) * 2048 + j * 1024
                r.append(f'ds_read_b128 {fr(x)}, v{vOr[ad >> 16][T_]} offset:{ad & 65535}')
            rq.extend((x, t, t is r[-1]) for t in r)

        def rd1():
            while rq and rq[0][1] is None:
                i = items[rq.pop(0)[0]][0]
                while left[done[0] + 1] == 0 and e.lg_done >= lastrd[done[0] + 1]:
                    done[0] += 1
                at_stage(i, q0 + done[0])
            if not rq:
                return False
            x, t, last = rq.pop(0)
            tok = e(t)
            if last:
                tk[x] = lastrd[items[x][0]] = tok
                left[items[x][0]] -= 1
            return True

        def f1():
            f = fq.pop(0)
            if callable(f):
                f()
            else:
                e.many(f)
        e.ds_free = True
        e.bg_on = False
        for x in range(DF):
            plan(x)
        while rd1():
            pass
        nxt = DF
        for x, (i, kind, n, j, T_) in enumerate(items):
            if x % 4 == 0:
                stamp(f'{seq[0][0]}{x}', (20,))
            if kind == 'P':
                if n[1]:
                    e.bg_flush(n[1])
                ms = [mf16(vAcc[T_] + 8 * n[3] + 4 * rt, a(aSel + 2 - 2 * rt, 4), v(n[2], 4)) for rt in range(2)]
            else:
                vm = None
                if kind != 'o':
                    key = (kind, n % amod, j | 1)
                    e.bg_flush(key)
                    vm = e.tok[key]
                while x not in tk:
                    rd1()
                e.wait(vm=vm, lg=tk.get(x + 1, tk[x]) if x % 2 == 0 else None)
                ms = []
                for cb in range(2):
                    act = bf(n % amod, (j & 2) + cb) if kind != 'o' else v(vWof[(2 * n + cb) % 6], 4)
                    d = accs(i)[T_] + (8 * (j & 1) + 4 * cb if swap else 8 * cb + 4 * (j & 1))
                    c = None if d in init else '0'
                    init.add(d)
                    ms.append(mf16(d, act, fr(x), c) if swap else mf16(d, fr(x), act, c))
            f = fill.pop(0) if fill else None
            now = callable(f)
            if isinstance(f, list):
                fq.extend(f)
            elif now or (f and 's_cmp' in f):
                fq.append(f)
            elif f:
                fq.extend(f.split('\n'))
            for k, m in enumerate(ms):
                e(m)
                slots = 1 if (k == 1 and x % 2 == 1) else 2
                if k == 0:
                    if x in checks:
                        checks[x]()
                    if not any(x < c <= x + P['hold'] for c in checks):
                        for _ in range(2):
                            if nxt <= x + DF and nxt < len(items):
                                plan(nxt)
                                nxt += 1
                if rd1():
                    slots -= 1
                if len(rq) > 2 and rd1():
                    slots -= 1
                did = False
                while (slots > 0 or e.credit < -24) and e.bg_step():
                    slots -= 1
                while fq and (slots > 0 or (k == 1 and (now or len(fq) > P['fqmax'] or not did and x % 2 == 0))):
                    f1()
                    did = True
                    slots -= 1
        while fq:
            f1()
        e.ds_free = False
        e.bg_on = True
        assert not fill and not rq

    def xf(t, ks):
        return 176 + ((ks & 1) * 3 + t) * 4

    def wf(f, ks):
        return 128 + ((ks & 1) * 6 + f) * 4

    def q_reads(ks):
        st, ksl = ks >> 1, ks & 1
        b = slot_of(16 + 2 * st)

        def xr(t):
            r = []
            for h in range(2):
                ad = b + ksl * 2048 + (1024 if t == 2 else 0) + h * 256
                r.append(f'ds_read_b64_tr_b16 {a(xf(t, ks) + 2 * h, 2)}, v{vXr[ad >> 16][1 if t == 0 else 0]} offset:{ad & 65535}')
            return r

        def wr(f):
            ad = b + (ksl * 6 + f) * 1024
            return [f'ds_read_b128 {a(wf(f, ks), 4)}, v{vLin[ad >> 16]} offset:{ad & 65535}']
        return xr(1) + wr(0) + xr(2) + wr(1) + wr(2) + xr(0) + wr(3) + wr(4) + wr(5)

    e.bg_flush()
    stamp('flag rq', (4,))
    if P['xp'] & 65536:
        e(f'buffer_load_dword v{vFv}, v{t3}, {srd(DBG)}, 0 offen sc1')
    else:
        e(flag_load(vFoH, vFv))
    if P['rpos'] == 3:
        res_loads()
    e.bg = hold[:P['w1chk']]
    hold = hold[P['w1chk']:]
    assert len(hold) % 4 == 0

    def h_spec():
        if P['hspec'] & 4:
            e.many(f"""
                s_mul_i32 s3, s{sIdx}, 37
                s_lshr_b32 s3, s3, 8
                s_lshl_b32 s3, s3, 14
                s_add_u32 s3, s3, s{sGsH}
            """)
        e.many(f"""
            v_and_b32 v{t0}, 0xfffff000, v{vHo}
            v_lshl_add_u32 v{t0}, v{vL31}, 7, v{t0}
            v_lshl_add_u32 v{t1}, v{vHi}, 13, s{3 if P['hspec'] & 4 else sGsH}
            v_and_b32 v{t1}, 0xffff, v{t1}
            v_add_u32 v{t0}, v{t0}, v{t1}
            buffer_load_dword v{vDum}, v{t0}, {srd(WS)}, 0 offen sc1
        """)
        e.pvm.pop(('v', vDum))
    e.bg_on = False
    if P['hspec'] & 1:
        h_spec()
    e.bg_flush()
    if P['hspec'] & 2:
        h_spec()
    e.bg_on = True
    stamp('w1 iss', (4,))
    if P['iwarm'] == 1:
        page_walk()
    if P['stamps'] == 4:
        e(f's_mov_b32 s{sCnt}, 0')
    flag_check(vFoH, vFv, P['hsleep'])
    if P['stamps'] == 4:
        e(f's_mov_b32 s{sStamp + 12}, s{sCnt}')
    stamp('chk', (20,))
    n_iss = 10 - len(hold) // 4
    bar(min(n_iss - 3, 5))
    e.smem_out = 0
    stamp('h ok', (1, 2, 4))
    for n in range(8):
        h_load(n, P['hgap'])
        if n == 0:
            bg_ins('rs', [], f'buffer_load_dword v{vRs}, v{vRsa}, {srd(WS)}, 0 offen sc1', 0)
            if P['rpos'] == 2:
                e.bg_flush()
                res_loads()
        if n < P['hinit']:
            e.bg_flush()
        if n >= P['hpos']:
            e.bg += [(k, f, P['hgap']) for k, f, _ in hold[:4]]
            del hold[:4]
    e.bg += [(k, f, P['hgap']) for k, f, _ in hold]

    rsfill = [f'v_lshlrev_b32 v{t0}, 2, v{vL15}',
            f'v_and_b32 v{t1}, 1, v{vLane}',
            f'v_lshl_add_u32 v{t1}, v{vG}, 2, v{t1}',
            f'v_lshlrev_b32 v{t1}, 2, v{t1}',
            f'v_add_u32 v{t2}, 64, v{t1}',
            f'v_cndmask_b32 v{t3}, v{t1}, v{t2}, {s(sCur0, 2)}',
            f'v_cndmask_b32 v{t1}, v{t1}, v{t2}, {s(sCur1, 2)}']
    for t in range(2):
        rsfill += [f'ds_bpermute_b32 v{vCa[t]}, v{t0}, v{vRs} offset:{64 * (t + 1)}',
                 f'ds_bpermute_b32 v{vAs[t][0]}, v{t3}, v{vRs} offset:{64 * t}',
                 f'ds_bpermute_b32 v{vAs[t][1]}, v{t1}, v{vRs} offset:{64 * t + 8}']
    rsfill += [None] * 6 + [f'v_mul_f32 v{vCa[t]}, s{sC1}, v{vCa[t]}' for t in range(2)]

    g1bar = {3: n_iss - 1, 5: None, 7: 9, 9: 11, 11: 13, 13: 15, 14: None}
    assert n_iss >= 8
    extra = {3: (10, 11), 5: (12, 13), 7: (14, 15)}
    vGp = [vBig, vBig + 16]
    vGr = vBig + 32

    def g_check():
        cnt_check(sGfl, 0 if P['xp'] & 131072 else 2, P['sl1'], few=True)
        e(f'v_xor_b32 v{vGst}, {8 * 16384}, v{vGst}')
        e(f'v_xor_b32 v{vGs2}, 8192, v{vGst}')
        for j in (3, 2, 1, 0):
            e.bg.insert(0, (('gl', j), [f'buffer_load_dwordx4 {v(vGr + 4 * j, 4)}, v{vGs2 if j >= 2 else vGst}, {srd(WS)}, 0 offen offset:{j * 1024} sc1'], 32))

    def g1_stage(n, done):
        if P['xp'] & 65536 and n == 2:
            e(flag_load(vFoH, vFv))
        if P['xp'] & 65536 and n == 5:
            flag_check(vFoH, vFv, P['hsleep'])
        if n in g1bar:
            bar(g1bar[n])
        if n == P['gpub'] and not P['xp'] & 131072:
            e.need(('g', 3))
            signal(sGfl, False)
        if n in (0, 1, 2, 4, 6, 8, 10, 12, 14):
            stamp(f'g1 st{n}', (2, 4) if n in (1, 4) else (2,))
        if n >= 8:
            stamp(f'g1 st{n}', (9,))
        gap = P['ggap']
        if n == 14:
            assert done >= 12
        for q in extra.get(n, ()):
            assert done >= q - 10
            w1_dma(q, gap)
        if n == P['wfq']:
            cnt_req(sWck, DBG)
        if n in (9, 11, 13):
            assert done >= n - 2
            q_dma(n // 2 - 4, P['qg1'])
        if n == P['gfq']:
            e(f's_xor_b32 s{sGfl}, s{sGfl}, 1024')
            e.smem_out = 0
            cnt_req(sGfl)

    def part_fill(fl, end, acc, vst, key, pause):
        def st(j):
            e.bg.insert(0, ((key, j), [f'buffer_store_dwordx4 {v(acc[j >> 1] + 8 * (j & 1), 4)}, v{vst}, {srd(WS)}, 0 offen offset:{j * 1024} sc1'], 32))
            e.bg_flush((key, j))
            if j == 3:
                e.credit += pause
        assert len(fl) <= end + 1
        fl = fl + [None] * (end + 1 - len(fl))
        for j in range(4):
            src = acc[j >> 1] + 8 * (j & 1)
            fl += [[f'v_cvt_pk_bf16_f32 v{src + r}, v{src + 2 * r}, v{src + 2 * r + 1}' for r in range(4)] + [lambda j=j: st(j)]] + [None] * P['psp']
        return fl

    gf = ['\n'.join(setup2[:6] + [t for t in setup2 if f's{sC1},' in t])] + rsfill + setup2[6:]
    gf = part_fill(gf, 64 + P['gdel'], vGp, vGst, 'g', P['gpause'])
    xtk = {}

    XB = P['xbf']

    def xw(j):
        xtk[0] = e(f'ds_write_b128 v{vEx}, {v(vAcc[1] + (8 if XB else 4) * j, 4)} offset:{EXC_B + j * 1024}')

    def cvt8(src):
        return [f'v_cvt_pk_bf16_f32 v{src + r}, v{src + 2 * r}, v{src + 2 * r + 1}' for r in range(4)]

    def xr():
        e(f'v_xor_b32 v{vEx}, 8192, v{vEx}')
        e.wait(vm=e.tok[('s', 17, 3)], lg=xtk[0])
        e('s_barrier')
        stamp('exch', (9, 20))
        q_dma(3, P['qg1'])
        for j in range(2 if XB else 4):
            e(f'ds_read_b128 {v(vE + 4 * j, 4)}, v{vEx} offset:{EXC_B + j * 1024}')
    xws = [cvt8(vAcc[1]), lambda: xw(0), cvt8(vAcc[1] + 8), lambda: xw(1)] if XB else [lambda j=j: xw(j) for j in range(4)]
    gf += [None] * (121 - len(gf)) + xws + [None] * P['xdel'] + [xr]
    gemm32([('h', n) for n in range(16)], 0, g1_stage, False, gf, [vAcc[0] + 4 * k for k in range(4)], lambda i: vGp if i < 8 else vAcc, 8,
           [(0, ('gl', j), vGr + 4 * j, j & 1) for j in range(4)] + [(0, None, vE + 4 * j, j) for j in range(2 if XB else 0)],
           {P['wck']: lambda: cnt_check(sWck, 14, 8, DBG), P['gck']: g_check})
    stamp('g1 done', (1, 2, 9))
    for half in range(2):
        ps = [8 * half + 2 * k for k in range(4)]
        A_ = lambda p: v(vAcc[0] + p, 2)
        E_ = lambda p: v(vE + p, 2)
        for p in ps:
            if not XB:
                e(f'v_pk_add_f32 {A_(p)}, {A_(p)}, {E_(p)}')
        for p in ps:
            e(f'v_pk_mul_f32 {E_(p)}, {A_(p)}, {A_(p)}')
        for p in ps:
            e(f'v_pk_fma_f32 {E_(p)}, {E_(p)}, {s(sGc, 2)}, {v(vC0, 2)}')
        for p in ps:
            e(f'v_pk_mul_f32 {E_(p)}, {E_(p)}, {A_(p)}')
        for p in ps:
            e(f'v_exp_f32 v{vE + p}, v{vE + p}')
            e(f'v_exp_f32 v{vE + p + 1}, v{vE + p + 1}')
        for p in ps:
            e(f'v_pk_add_f32 {E_(p)}, {E_(p)}, {s(sOne, 2)}')
        for p in ps:
            e(f'v_rcp_f32 v{vE + p}, v{vE + p}')
            e(f'v_rcp_f32 v{vE + p + 1}, v{vE + p + 1}')
        for p in ps:
            e(f'v_pk_mul_f32 {E_(p)}, {E_(p)}, {A_(p)}')
        for k, p in enumerate(ps):
            e(f'v_cvt_pk_bf16_f32 v{vSt[half] + k}, v{vE + p}, v{vE + p + 1}')
    run(q_reads(0))
    e.bg_flush()
    for half in range(2):
        tokU = e(f'buffer_store_dwordx4 {v(vSt[half], 4)}, v{vL16}, {srd(WS)}, s{sUst} offen offset:{half * 1024} sc1')
    stamp('u stored', (1, 2, 5, 9))
    hist = list(e.hist)
    e.cold_begin()

    save = (e.vm_n, e.vm_done, e.lg_n, e.lg_done, dict(e.pvm), dict(e.plg), dict(e.tok), nst[0])
    e.label('L_nog1')
    e.vm_n, e.vm_done, e.lg_n, e.lg_done, e.pvm, e.plg, e.tok = save0
    assert not e.bg
    e.pad(2)
    vW, vWr = vBig + 60, vBig + 61
    vPk = vBig
    sPk, sPp, sPo = 79, 80, 81
    PITCH = 1056
    e.many(f"""
        s_mov_b32 s{WQ + 2}, {448 * 2688}
        s_mov_b32 s{WQ + 3}, 0x20000
        s_sub_u32 s3, s2, 200
        s_cmp_lt_u32 s3, 42
        s_cselect_b32 s{sPo}, 0, {OOB}
        s_cselect_b32 s3, s3, 0
        s_mul_i32 s{sPk}, s3, 43
        s_lshr_b32 s{sPk}, s{sPk}, 7
        s_mul_i32 s{sPp}, s{sPk}, 3
        s_sub_u32 s{sPp}, s3, s{sPp}
        v_min_u32 v{t0}, 55, v{vLane}
        s_lshl_b32 s3, s{sPk}, 2
        s_add_u32 s3, s3, s{sW}
        s_mul_i32 s3, s3, {8 * 2688}
        s_mul_i32 s{sCnt}, s{sPp}, 896
        s_add_u32 s3, s3, s{sCnt}
        s_add_u32 s3, s3, s{sPo}
        v_lshl_add_u32 v{vW}, v{t0}, 4, s3
        s_mul_i32 s{sCnt}, s{sW}, {8 * PITCH}
    """)
    for r in range(8):
        e(f's_add_u32 m0, s{sCnt}, {r * PITCH}')
        e(f's_mov_b32 s3, {r * 2688}')
        e(f'buffer_load_dwordx4 v{vW}, {srd(WQ)}, s3 offen lds')
    tokHh = p0_body((6,))
    e.many(f"""
        v_lshrrev_b32 v{t0}, 2, v{vLane}
        v_mul_u32_u24 v{t0}, {PITCH}, v{t0}
        v_lshl_add_u32 v{t0}, v{vC4}, 3, v{t0}
        s_mul_i32 s3, s{sW}, {4 * 56}
        v_add_u32 v{vWr}, s3, v{t0}
    """)
    h_publish('h', tokHh)
    stamp('hlp hflag', (6,))
    e.many(f"""
        v_cmp_gt_u32 vcc, 12, v{vL15}
        s_mul_i32 s3, s{sW}, {4 * 14}
        s_add_u32 s3, s3, s{sPk}
        s_mul_i32 s3, s3, 3
        s_add_u32 s3, s3, s{sPp}
        s_lshl_b32 s3, s3, 11
        s_add_u32 s3, s3, {WP_OFF}
        s_add_u32 s3, s3, s{sPo}
    """)
    for jj in range(4):
        for t in range(2):
            for h in range(2):
                e(f'ds_read_b64_tr_b16 {v(vPk + (2 * jj + t) * 4 + 2 * h, 2)}, v{vWr} offset:{jj * 56 + t * 32 + h * 16 * PITCH}')
    for jj in range(4):
        for r in range(4):
            d = vPk + (2 * jj + 1) * 4 + r
            e(f'v_cndmask_b32 v{d}, 0, v{d}, vcc')
        for t in range(2):
            tokP = e(f'buffer_store_dwordx4 {v(vPk + (2 * jj + t) * 4, 4)}, v{vL16}, {srd(WS)}, s3 offen offset:{t * 1024} sc1')
        e(f's_add_u32 s3, s3, 86016')
    e.many(f"""
        s_lshl_b32 s{sUst}, s{sPp}, 6
        s_add_u32 s{sUst}, s{sUst}, 64
        s_cmp_eq_u32 s{sPo}, 0
        s_cselect_b32 s{sGfl}, s{sW}, 1
        s_mov_b32 s{sUfl}, {CN_OFF + 100 * 128}
    """)
    if P['gord'] == 1:
        e.many(f"""
            s_and_b32 s3, s2, 1
            s_mul_i32 s3, s3, 3
            s_bfe_u32 s{sT2}, s2, 0x10001
            s_mul_i32 s{sT3}, s{sT2}, 6
            s_add_u32 s3, s3, s{sT3}
            s_add_u32 s3, s3, 1
            v_add_u32 v{t1}, s3, v{vC4}
            s_mul_i32 s{sT2}, s{sT2}, 64
            s_add_u32 s{sT2}, s{sT2}, 7
            v_cmp_ne_u32 vcc, s{sT2}, v{t1}
            v_lshrrev_b32 v{t2}, 2, v{vLane}
            v_mul_u32_u24 v{t2}, 3584, v{t2}
            v_cndmask_b32 v{t1}, 0, v{t1}, vcc
            v_lshl_add_u32 v{t1}, v{t1}, 8, v{t2}
            s_lshl_b32 s3, s{sD}, 2
            s_add_u32 s3, s3, s{sW}
            s_mul_i32 s3, s3, 37
            s_min_u32 s3, s3, {987 if P['t1x'] else 976}
            s_mul_i32 s3, s3, 3584
            s_mul_i32 s{sT2}, s{sM3}, {1024 * 3584 + 128}
            s_add_u32 s3, s3, s{sT2}
        """)
        for k in range(P['nt1']):
            if k == 2 and P['t1x']:
                e(f'v_cmp_gt_u32 vcc, 20, v{vLane}')
                e(f'v_mov_b32 v{t2}, {OOB}')
                e(f'v_cndmask_b32 v{t1}, v{t2}, v{t1}, vcc')
            e(f'buffer_load_dword v{vBig + 44 + k}, v{t1}, {srd(W1)}, s3 offen')
            e(f's_add_u32 s3, s3, {16 * 3584}')
    run(setup[NS1:])
    run(setup2)
    e.wait(vm=tokP)
    e('s_barrier')
    e(f's_cmp_lg_u32 s{sGfl}, 0')
    e(f's_cbranch_scc1 L_nowsig')
    signal(sUst, False, DBG)
    e.label('L_nowsig')
    e(flag_load(vFoH, vFv))

    def w2_touch():
        e.many(f"""
            s_mov_b32 s{W2 + 2}, {1792 * 4096}
            s_and_b32 s3, s2, 1
            s_mul_i32 s3, s3, 7
            s_add_u32 s3, s3, s{sD}
            s_lshl_b32 s3, s3, 2
            s_add_u32 s3, s3, s{sW}
            s_lshl_b32 s3, s3, 17
            s_and_b32 s{sT2}, s2, 6
            s_lshl_b32 s{sT2}, s{sT2}, 9
            s_add_u32 s3, s3, s{sT2}
            v_lshlrev_b32 v{vW}, 12, v{vL31}
        """)
        ts = str(P['tset'])
        for k in range(len(ts) // 2):
            lo, hi = sorted(int(c) % 8 for c in ts[2 * k:2 * k + 2])
            e(f'v_mul_u32_u24 v{vWr}, {(hi - lo) * 128}, v{vHi}')
            e(f'v_add_u32 v{vWr}, v{vW}, v{vWr}')
            e(f'buffer_load_dword v{vBig + 50 + k}, v{vWr}, {srd(W2)}, s3 offen offset:{lo * 128}')
        e(f's_cmp_eq_u32 s{sF}, 0')
        e(f's_cselect_b32 s{W2 + 2}, 0, s{W2 + 2}')
    if P['w2pos'] == 0:
        w2_touch()
    e.many(f"""
        s_cmp_eq_u32 s{sF}, 0
        s_cselect_b32 s{W2 + 2}, 0, s{W2 + 2}
        v_and_b32 v{t0}, 0xfffff000, v{vHo}
        v_lshl_add_u32 v{t0}, v{vL31}, 7, v{t0}
        s_add_u32 s3, s{sGsH}, {P['hlead'] * 8192}
        v_lshl_add_u32 v{t1}, v{vHi}, 13, s3
    """)
    flag_check(vFoH, vFv, 8)
    if P['w2pos'] != 1:
        cnt_req(sWck, DBG)
    assert e.vm_done >= tokP
    e('s_barrier')
    e(f'buffer_load_dword v{vRs}, v{vRsa}, {srd(WS)}, 0 offen sc1')
    stamp('hlp h ok', (6,))
    if P['touch'] & 4:
        for k in range((9 - P['hlead']) // 2):
            e(f'v_and_b32 v{t1}, 0xffff, v{t1}')
            e(f'v_add_u32 v{t2}, v{t0}, v{t1}')
            e(f'v_add_u32 v{t1}, 16384, v{t1}')
            e(f'buffer_load_dword v{vBig + 40 + k}, v{t2}, {srd(WS)}, 0 offen sc1')
    if P['w2pos'] == 1:
        w2_touch()
    if not P['rsl']:
        run([t for t in rsfill if t])
    if P['w2pos'] == 1:
        e.wait(vm=e.vm_n - 2)
        cnt_req(sWck, DBG)
    cnt_check(sWck, 14, 16, DBG)
    e('s_barrier')
    stamp('hlp touched', (6, 7))
    if P['touch'] & 1:
        e.many(f"""
            s_max_u32 s3, s{sIdx}, 25
            s_sub_u32 s3, s3, 25
            s_lshl_b32 s3, s3, 2
            s_add_u32 s{sT3}, s3, s{sW}
            v_lshlrev_b32 v{t0}, 7, v{vLane}
            s_and_b32 s3, s{sJ}, 8
            s_mul_i32 s3, s3, 86016
            s_mul_i32 s{sT3}, s{sT3}, 3072
            s_add_u32 s3, s3, s{sT3}
            s_add_u32 s3, s3, {WP_OFF}
            v_min_u32 v{t0}, {23 * 128}, v{t0}
            buffer_load_dword v{vBig + 2}, v{t0}, {srd(WS)}, s3 offen sc1
        """)
    if P['touch'] & 32:
        e.many(f"""
            v_lshl_add_u32 v{t1}, v0, 7, s{sWs}
            s_mul_i32 s3, s{sJ}, 86016
            s_add_u32 s3, s3, {WP_OFF}
        """)
        for k in range(3):
            e(f'v_subrev_u32 v{t2}, 86016, v{t1}')
            e(f'v_min_u32 v{t2}, v{t1}, v{t2}')
            e(f'v_add_u32 v{t1}, {32768 if k == 0 else 86016 - 65536}, v{t1}')
            e(f'buffer_load_dword v{vBig + 3 + k}, v{t2}, {srd(WS)}, s3 offen sc1')
    assert not e.bg
    e.many(f"""
        s_cmp_eq_u32 s{sF}, 0
        s_cselect_b32 s3, {OOB}, 0
        v_add_u32 v{vUo}, s3, v{vUo}
    """)
    if P['flead']:
        e.many(f"""
            s_mov_b32 s{W2 + 2}, {1792 * 4096}
            s_and_b32 s3, s{sD2}, 1
            s_lshl_b32 s3, s3, 2
            s_lshr_b32 s{sT2}, s{sD2}, 1
            s_add_u32 s3, s3, s{sT2}
            s_lshl_b32 s3, s3, 7
            s_cmp_eq_u32 s{sF}, 0
            s_cselect_b32 s3, s3, 0
        """)
        for k in range(4):
            e(f'v_xor_b32 v{vD2[k]}, s3, v{vD2[k]}')
    for st in range(4):
        q_dma(st, 0)
    e.bg_flush()
    if P['w2pos'] == 2:
        w2_touch()
    e(f's_mov_b32 s3, {OOB}')
    for _ in range(2):
        e(f'buffer_store_dword v{vNon}, v{vFl}, {srd(WS)}, s3 offen')
    if P['rsl']:
        run([t for t in rsfill if t])
    safe = ('s', 16, 0)
    for st in range(4):
        k = ('s', 17 + 2 * st, 3)
        if not (e.vm_n - e.tok[k] >= save[0] - save[6][k] and save[1] < save[6][k]):
            safe = k
    e.wait(vm=max(e.tok[safe], e.tok[('s', 17, 3)]), lg=e.lg_n)
    e('s_barrier')
    run(q_reads(0))
    e.wait_all(vm=False, lg=True, force=True)
    e.pad(4)
    e('s_branch L_q')
    e.cold_end()
    e.hist = hist
    e.vm_n, e.vm_done, e.lg_n, e.lg_done, e.pvm, e.plg, e.tok, _ = save

    e.label('L_q')
    e.smem_out = 0
    QG = P['qgap']
    vQ = [None, [vBig, vBig + 4], [vBig + 8, vBig + 12]]
    vK = [[vBig + 16 + 8 * t, vBig + 20 + 8 * t] for t in range(3)]
    vV = [[vBig + 40 + 8 * t, vBig + 44 + 8 * t] for t in range(3)]
    nf = [0]

    def f_enq(limit_q, maxn, gap):
        while nf[0] < len(fseq) and QF + nf[0] <= limit_q and nf[0] < maxn:
            f_dma(FORD[nf[0]] if nf[0] < 10 else nf[0], gap)
            nf[0] += 1

    def u_point(pos):
        if pos == P['ureq'] - 13 and pos > 0:
            e.smem_out = 0
            cnt_req(sUck)
        if pos != P['uchk']:
            return
        cnt_check(sUck, 7, P['sl3'], unless0=sF)
        stamp('u ok', (1, 3))
        rest, e.bg = e.bg, []
        for n in range(PH):
            u_load(n, P['agap'])
        e.bg += rest

    def q_barrier(st):
        key = ('s', 17 + 2 * st, 3) if st < 7 else ('s', QF + 2, 3)
        e.bg_flush(key)
        e.wait(vm=max(e.tok[key], tokU if st == P['ust'] else 0), lg=e.lg_n)
        if not P['xp'] & 32768:
            e('s_barrier')
        if st == P['ust']:
            signal(sUfl, True)
            stamp('uflag', (1,))
        stamp(f'Q{st}', (5, 7))
        if st == 1:
            q_dma(4, QG)
        if st == 7:
            u_point(0)
        if st + 4 < 7:
            q_dma(st + 4, QG)
        else:
            f_enq(QF + 2 * (st - 3) + 1, 10, QG)

    e.ds_free = True
    e.bg_on = False
    for ks in range(14):
        c = '0' if ks == 0 else None
        ms = []
        for f in range(6):
            part, t = f >> 1, f & 1
            w_ = a(wf(f, ks), 4)
            if part == 0:
                ms += [mf16(vQ[k][t], w_, a(xf(k, ks), 4), c) for k in (1, 2)]
            elif part == 1:
                ms += [mf16(vK[k][t], w_, a(xf(k, ks), 4), c) for k in (1, 2, 0)]
            else:
                ms += [mf16(vV[k][t], a(xf(k, ks), 4), w_, c) for k in (1, 2, 0)]
        if P['xp'] & 2 and ks:
            ms = [m for i, m in enumerate(ms) if i not in (9, 12, 15)]
        if P['xp'] & 4 and ks:
            ms = [m for i, m in enumerate(ms) if i not in (1, 3, 5, 8, 11, 14)]
        last = e.lg_n
        stamp(f'q{ks}', (20,))
        if ks & 1:
            q_barrier((ks + 1) >> 1)
        if ks == P['ureq']:
            e.smem_out = 0
            cnt_req(sUck)
        fpre = {}
        rds = q_reads(ks + 1) if ks < 13 else [t for x in range(DF) for t in tr_reads(QF, x >> 1, x & 1, x)]
        for i, m in enumerate(ms):
            if i == 8:
                stamp(f'q{ks}.5', (20,))
            if i == 0:
                e.wait(lg=last - 6)
            if i == 4:
                e.wait(lg=last)
            e(m)
            n = 1 if i in (3, 15) else 2
            for _ in range(2 if ((ks % 2 == 0 and i < P['qrd']) or len(rds) > len(ms) - i) else 1):
                if rds:
                    x_ = (2 * DF - len(rds)) >> 1
                    fpre[x_] = e(rds.pop(0))
                    n -= 1
            while n > 0 and e.bg_step():
                n -= 1
    e.ds_free = False
    e.bg_on = True
    stamp('qkv done', (1, 5, 6, 7))

    u_point(1)
    vQf = [None, vFr[0], vFr[1]]
    vKf = [vFr[2], vFr[3], vFr[4]]
    vPf = [vFr[5], vFr[6]]
    vVf = [vAcc[1], vAcc[1] + 6]
    vS = [[vAcc[0], vAcc[0] + 4], [vAcc[0] + 8, vAcc[0] + 12]]
    vTm = [[vBig + 64 + 4 * t + k for k in range(4)] for t in range(2)]

    def pack_T(acc, dst):
        for n in range(2):
            for r in range(2):
                e(f'v_cvt_pk_bf16_f32 v{dst + 2 * n + r}, v{acc[n] + 2 * r}, v{acc[n] + 2 * r + 1}')

    for t in (1, 2):
        pack_T(vQ[t], vQf[t])
    for t in (1, 2, 0):
        pack_T(vK[t], vKf[t])
    e(mf16(vS[0][1], v(vKf[1], 4), v(vQf[1], 4), '0'))
    e(mf16(vS[1][0], v(vKf[1], 4), v(vQf[2], 4), '0'))
    e(mf16(vS[1][1], v(vKf[2], 4), v(vQf[2], 4), '0'))
    e(mf16(vS[0][0], v(vKf[0], 4), v(vQf[1], 4), '0'))
    vnorm = []
    for n in range(2):
        for t in range(3):
            for r in range(2):
                vnorm.append(f'v_cvt_pk_bf16_f32 v{vVf[n] + 2 * t + r}, v{vV[t][n] + 2 * r}, v{vV[t][n] + 2 * r + 1}')
    run(vnorm[:6])
    u_point(2)
    vnorm = vnorm[6:]
    L = [[vTm[0][0], vTm[0][1]], [vTm[1][0], vTm[1][1]]]
    Mx = [vTm[0][2], vTm[1][2]]
    Tm = [vTm[0][3], vTm[1][3]]
    T = range(2)
    for t in (1, 0):
        for z, sc in ((0, sCur0), (1, sCur1)):
            e(f'v_cndmask_b32 v{L[t][z]}, v{vS[t][0] + 2 * z}, v{vS[t][0] + 2 * z + 1}, {s(sPar, 2)}')
            if t == 0:
                e(f'v_cndmask_b32 v{L[t][z]}, v{vNeg}, v{L[t][z]}, {s(sInvd, 2)}')
            e(f'v_cndmask_b32 v{Tm[t]}, v{vS[t][1] + 2 * z}, v{vS[t][1] + 2 * z + 1}, {s(sPar, 2)}')
            e(f'v_cndmask_b32 v{L[t][z]}, v{L[t][z]}, v{Tm[t]}, {s(sc, 2)}')
            e(f'v_mul_f32 v{L[t][z]}, v{L[t][z]}, v{vAs[t][z]}')

    def tree(op):
        for t in T:
            e(f'{op} v{Mx[t]}, v{L[t][0]}, v{L[t][1]}')
        for sw in ('v_permlane16_swap_b32', 'v_permlane32_swap_b32'):
            for t in T:
                e(f'v_mov_b32 v{Tm[t]}, v{Mx[t]}')
            if vnorm:
                e(vnorm.pop(0))
            for t in T:
                e(f'{sw} v{Mx[t]}, v{Tm[t]}')
            for t in T:
                e(f'{op} v{Mx[t]}, v{Mx[t]}, v{Tm[t]}')

    tree('v_max_f32')
    u_point(3)
    for t in T:
        e(f'v_mul_f32 v{Mx[t]}, v{vCa[t]}, v{Mx[t]}')
    for t in T:
        for z in range(2):
            e(f'v_fma_f32 v{L[t][z]}, v{L[t][z]}, v{vCa[t]}, -v{Mx[t]}')
    for t in T:
        for z in range(2):
            e(f'v_exp_f32 v{L[t][z]}, v{L[t][z]}')
    tree('v_add_f32')
    u_point(4)
    for t in T:
        e(f'v_rcp_f32 v{Mx[t]}, v{Mx[t]}')
    run(vnorm)
    for t in T:
        for z in range(2):
            e(f'v_mul_f32 v{L[t][z]}, v{L[t][z]}, v{vAs[t][z]}')
    for t in T:
        for z in range(2):
            e(f'v_mul_f32 v{L[t][z]}, v{L[t][z]}, v{Mx[t]}')
    for t in T:
        for z in range(2):
            e(f'v_cvt_pk_bf16_f32 v{L[t][z]}, v{L[t][z]}, v{L[t][z]}')
    for t in T:
        for k in range(4):
            e(f'v_and_b32 v{vPf[t] + k}, v{L[t][k & 1]}, v{vMk + k}')
    vO = [vQ[1], vQ[2]]
    for t in T:
        for n in range(2):
            e(mf16(vO[t][n], v(vVf[n] + 2 * t, 4), v(vPf[t], 4), '0'))
    e(f's_add_u32 s{sC1}, s{sOs}, 16384')
    u_point(5)
    for t in T:
        pack_T(vO[t], vSt[t])

    def o_stores():
        for t in T:
            tok = e(f'buffer_store_dwordx4 {v(vSt[t], 4)}, v{vL16}, {srd(WS)}, s{sOs + t} offen sc1')
        return tok
    e.bg_flush(('u', P['uo'], 3))
    tokO = o_stores()
    stamp('attn done', (1, 5, 7))
    e(f's_cmp_lg_u32 s{sF}, 0')
    e(f's_cbranch_scc0 L_nof')
    hist = list(e.hist)
    e.cold_begin()
    e.label('L_nof')
    save = (e.vm_n, e.vm_done, e.lg_n, e.lg_done, dict(e.pvm), dict(e.plg), dict(e.tok), nst[0])
    bgs, e.bg = e.bg, []
    e.many(f"""
        v_min_u32 v{t1}, 48, v{vLane}
        s_lshl_b32 s3, s{sD2}, 2
        s_add_u32 s3, s3, s{sW}
        s_mul_i32 s3, s3, {196 * 128}
        v_lshl_add_u32 v{t1}, v{t1}, 7, s3
    """)

    def wo_touch(k):
        if P['touch'] & 2:
            e(f's_add_u32 s3, s2, {k}')
            e(f's_and_b32 s3, s3, 3')
            e(f's_mul_i32 s3, s3, {49 * 128}')
            e(f'buffer_load_dword v{vBig + k}, v{t1}, {srd(WO)}, s3 offen')
    for k in range(P['wopre']):
        wo_touch(k)
    e.wait(vm=tokO)
    e('s_barrier')
    signal(sOfl, True)
    e.smem_out = 0
    for k in range(P['wopre'], 4):
        wo_touch(k)
    e.bg = bgs
    e('s_branch L_fin')
    e.cold_end()
    e.hist = hist
    e.vm_n, e.vm_done, e.lg_n, e.lg_done, e.pvm, e.plg, e.tok, nst[0] = save

    e.label('L_f')
    vE2 = vBig + 40
    vAp = [vBig, vBig + 56]
    assert nf[0] == 10
    fbar = {3: 6, 5: None, 7: 9, 9: 13, 11: None, 13: None}
    if P['flazy']:
        fbar = {3: 6, 5: None, 8: 9, 10: 11, 12: 13, 13: None}
        if P['flazy'] == 2:
            fbar.update({3: 4, 5: 6})
    fbar.update({14 + 2 * g: QO[g] for g in range(4)})
    free = [QF + 9, False]

    def f_more(gap):
        f_enq(free[0], 22 if free[1] else QO[0], gap)

    def o_check():
        cnt_check(sOck, 8, P['sl2'])
        free[1] = True
        e.bg = [(k, f, P['ogap']) for k, f, _ in e.bg]
        f_more(P['ogap'])
    opub = [False]
    nu = [PH]

    def f_stage(i, done):
        if i == P['osig']:
            e.wait(vm=tokO)
        if i in fbar:
            bar(None if fbar[i] is None else QF + fbar[i])
            if i == 20:
                assert done >= QF + 15
            if not opub[0] and e.vm_done >= tokO:
                opub[0] = True
                signal(sOfl, True)
        if i in (0, 2, 4, 6, 8, 10, 12, 14, 18):
            stamp(f'f st{i}', (3,))
        if i in (7, 8, 9, 10, 11, 12, 13, 14, 16, 18, 20):
            stamp(f'f st{i}', (8,))
        gap = P['ogap'] if free[1] else P['fgap']
        rest = [t for t in e.bg if t[0][0] != 'u'] if P['flazy'] else []
        e.bg_settle()
        rest = [t for t in e.bg if t[0][0] != 'u'] if P['flazy'] else []
        e.bg = [t for t in e.bg if t not in rest]
        if nu[0] < 7:
            u_load(nu[0], gap)
            nu[0] += 1
        e.bg += rest
        if i == P['ofq']:
            e.smem_out = 0
            cnt_req(sOck)
        if i == P['ppub'] and not P['xp'] & 262144:
            e.need(('p', 3))
            signal(sPfl, False)
        if i in fbar and i <= 13:
            free[0] = done + 10
            f_more(gap)
        if i == P['pfq']:
            e(f's_xor_b32 s{sPfl}, s{sPfl}, 1024')
            e.smem_out = 0
            cnt_req(sPfl)

    def p_check():
        cnt_check(sPfl, 0 if P['xp'] & 262144 else 1, P['sl1'], few=True)
        e(f'v_xor_b32 v{vPst}, {8 * 16384}, v{vPst}')
        for j in (2, 3, 0, 1):
            bg_ins(('pl', j), [], f'buffer_load_dwordx4 {v(vPr + 4 * j, 4)}, v{vPst}, {srd(WS)}, 0 offen offset:{j * 1024} sc1', 32)

    rs = []
    for q_ in range(2):
        rs.append(f'v_lshlrev_b32 v{vBo[q_]}, 16, v{vBo[q_]}')
        for k in range(4):
            d = vE2 + 8 * q_ + 2 * k
            rs += [f'v_lshlrev_b32 v{d}, 16, v{vXo[q_] + k}', f'v_and_b32 v{d + 1}, 0xffff0000, v{vXo[q_] + k}',
                   f'v_add_f32 v{d}, v{d}, v{vBo[q_]}', f'v_add_f32 v{d + 1}, v{d + 1}, v{vBo[q_]}']
    vPr = vAp[1]

    rs = part_fill(rs, 56 + P['fdel'], vAp, vPst, 'p', P['fpause'])
    rs += [None] * (143 - len(rs)) + [lambda j=j: e(f'ds_write_b128 v{vEw[j & 1]}, {v(vAcc[1] + 4 * j, 4)} offset:{8192 + (j >> 1) * 4096}') for j in range(4)]
    gemm32(fseq, QF, f_stage, True, rs, [], lambda i: vAp if i < 7 else vAcc, 7,
           [(j >> 1, ('pl', j), vPr + 4 * j, j & 1) for j in range(4)],
           {P['ock']: o_check, P['pck']: p_check}, fpre)
    assert opub[0] and not e.bg
    stamp('f done', (1, 3, 8))
    for j in range(4):
        e(f'ds_write_b128 v{vEw[j & 1]}, {v(vAcc[0] + 4 * j, 4)} offset:{(j >> 1) * 4096}')
    e.wait_all(vm=False, lg=True)
    e('s_barrier')
    stamp('epi bar', (3, 20))
    if P['pert']:
        e(f'v_cmp_eq_u32 vcc, 0, v{vOo[0]}')
        e(f'v_mov_b32 v{t0}, {f32(P["pert"] / 1000.0)}')
        e(f'v_cndmask_b32 v{t0}, 0, v{t0}, vcc')
        e(f'v_add_f32 v{vE2 + P["pel"]}, v{vE2 + P["pel"]}, v{t0}')
    for q_ in range(2):
        for k in range(4):
            e(f'ds_read_b128 {v(vFr[4 * q_ + k], 4)}, v{vEr[k]} offset:{q_ * 2048}')
    for q_ in range(2):
        for k in range(4):
            for r in (0, 2):
                d = vE2 + 8 * q_ + 4 * (k & 1) + r
                e(f'v_pk_add_f32 {v(d, 2)}, {v(d, 2)}, {v(vFr[4 * q_ + k] + r, 2)}')
        for k in range(4):
            d = vE2 + 8 * q_ + 2 * k
            e(f'v_cvt_pk_bf16_f32 v{vSt[q_] + k}, v{d}, v{d + 1}')
        e(f'buffer_store_dwordx4 {v(vSt[q_], 4)}, v{vOo[q_]}, {srd(OUT)}, 0 offen' + ('', ' sc1', ' nt', ' sc0 sc1', ' sc1 nt')[P['outsc']])
    e.label('L_fin')
    if P['stamps']:
        e.wait_all(force=True)
        if nst[0] > 1:
            e(f's_mov_b32 s{sStamp + nst[0] - 1}, s{WQ}')
        e(f's_memrealtime s[{sT2}:{sT3}]')
        e(f's_memtime s[0:1]')
        e.wait_all(vm=False, lg=True, force=True)
        e(f's_mov_b32 s{sStamp + 15}, s{sT2}')
        e(f's_mov_b32 s{sStamp + 14}, s0')
        e(f's_lshl_b32 s3, s2, 2')
        e(f's_add_u32 s3, s3, s{sW}')
        e(f's_lshl_b32 s3, s3, 7')
        e(f's_add_u32 s3, s3, {ST_OFF}')
        if P['stamps'] == 20:
            for k in (ntr[0] - 2, ntr[0] - 1):
                e.raw(f'    v_writelane_b32 v{254 + k // 64}, s{86 + 2 * (k % 3)}, {k % 64}')
            e(f's_sub_u32 s{sT2}, s3, {ST_OFF}')
            e(f's_lshl_b32 s{sT2}, s{sT2}, 3')
            e(f's_add_u32 s{sT2}, s{sT2}, {7 << 20}')
            e(f'v_lshlrev_b32 v{t0}, 2, v{vLane}')
            for k in range(2):
                e(f'buffer_store_dword v{254 + k}, v{t0}, {srd(WS)}, s{sT2} offen offset:{256 * k}')
        for k in range(16):
            e(f'v_mov_b32 v{t0}, s{sStamp + k}')
            e(f'buffer_store_dword v{t0}, v{vFl}, {srd(WS)}, s3 offen offset:{4 * k}')
    if P['probe'] >= 0:
        e.wait_all(force=True)
        if P['probe'] >= 98:
            e(f'{"s_memtime" if P["probe"] == 98 else "s_memrealtime"} s[{sT2}:{sT3}]')
            e.wait_all(vm=False, lg=True, force=True)
            e(f's_mov_b32 s{sStamp}, s{sT2}')
        if P['probe'] == 98:
            e(f's_sub_u32 s{sStamp}, s{sStamp}, s{sStamp + 13}')
            e(f's_lshr_b32 s{sStamp}, s{sStamp}, 4')
            e(f's_add_u32 s{sStamp}, s{sStamp}, s{sNon}')
        e(f's_sub_u32 s{sCnt}, s{sStamp}, s{sNon}')
        e(f's_max_i32 s{sCnt}, s{sCnt}, 0')
        e(f's_min_i32 s{sCnt}, s{sCnt}, 4000')
        e(f's_lshl_b32 s{sCnt}, s{sCnt}, 2')
        e(f's_add_u32 s{sCnt}, s{sCnt}, 4000')
        e.label('L_fix')
        e(f's_memrealtime s[{sT2}:{sT3}]')
        e.wait_all(vm=False, lg=True, force=True)
        e(f's_sub_u32 s3, s{sT2}, s{sNon}')
        e(f's_cmp_lt_u32 s3, s{sCnt}')
        e(f's_cbranch_scc1 L_fix')
    e.label('L_end')
    e('s_endpgm')
    if P['iwarm']:
        e.lines = page_pads(e.lines, e.cold)
    e.lines += e.cold + ['L_last:', '    s_endpgm']

    if P['align']:
        e.lines = align_pass(e.lines, P['align'])
    hdr = open(os.path.join(os.path.dirname(os.path.abspath(__file__)), '..', NAME + '.s.ref')).read().split('; Override launch')[0]
    out = hdr + f"""; Generated by gen/gen.py (hand-written generator).{' cyc' if P['cyc'] else ''}
; One persistent launch, 256 workgroups (one per CU) x 4 waves:
;   P0  8 rows each: LayerNorm twice (h = LN(LN(x)); mean(LN(x)) = 0 and var(LN(x)) = var/(var+eps) in closed form) -> h, row scale
;   G1  196 workgroups: u = gelu(h^T w1 + b1), 64x64 tiles; two workgroups share two tiles, one K half each, partials via d_ws
;       the other 60 re-tile wqkv per head and pull weights towards their L2
;   Q   (128 rows, head): QKV from h (row scale folded into logits / probabilities), dilated window softmax, o -> d_ws
;   F   224 workgroups: out = x + b2 + (u w2)^T + o wo, paired like G1
; Hand-offs: write-through stores, acknowledged, then a flag (launch nonce kept in d_debug[0]) or an arrival counter zeroed in P0;
; every wait is a bounded poll.  Workgroup-id -> role mapping only aims at L2 locality.
; @launch grid=(256,1,1) block=(256,1,1) lds={LDS_SIZE}
.amdgcn_target "amdgcn-amd-amdhsa--gfx950"
.text
.globl {NAME}_kernel
.p2align 8
.type {NAME}_kernel,@function
{NAME}_kernel:
""" + e.text() + f""".section .rodata,"a"
.p2align 6
.amdhsa_kernel {NAME}_kernel
  .amdhsa_next_free_vgpr 512
  .amdhsa_next_free_sgpr 102
  .amdhsa_accum_offset 256
  .amdhsa_group_segment_fixed_size 0
  .amdhsa_kernarg_size 88
  .amdhsa_user_sgpr_count 2
  .amdhsa_user_sgpr_kernarg_segment_ptr 1
  .amdhsa_system_sgpr_workgroup_id_x 1
.end_amdhsa_kernel
"""
    sys.stderr.write(f'vgpr hi {V.hi}, nops {e.nnop}, lines {len(e.lines)}\n')
    return out


def ins_sizes(lines):
    import subprocess, tempfile, re
    with tempfile.TemporaryDirectory() as d:
        open(d + '/a.s', 'w').write('.amdgcn_target "amdgcn-amd-amdhsa--gfx950"\n.text\n' + '\n'.join(lines) + '\n')
        subprocess.run(['clang', '-x', 'assembler', '-target', 'amdgcn-amd-amdhsa', '-mcpu=gfx950', '-c', d + '/a.s', '-o', d + '/a.o'], check=True)
        dis = subprocess.run(['llvm-objdump', '-d', '--mcpu=gfx950', d + '/a.o'], capture_output=True, text=True, check=True).stdout
    sizes = [4 * len(m.group(1).split()) for m in re.finditer(r'// [0-9A-F]+: ((?:[0-9A-F]{8} ?)+)', dis)]
    idx = [i for i, l in enumerate(lines) if l.startswith('    ') and not l.strip().startswith(';')]
    assert len(idx) == len(sizes), (len(idx), len(sizes))
    return dict(zip(idx, sizes))


def page_pads(lines, cold):
    NP = 7 if len(lines) > 4000 else 5
    jumps = ['    s_add_u32 s3, s3, 4']
    for k in range(NP):
        jumps += [f'    s_cmp_eq_u32 s3, {k + 4}', f'    s_cbranch_scc1 L_pad{k}']
    i = lines.index(';;PADJUMPS')
    lines = lines[:i] + jumps + lines[i + 1:]
    is_al = lambda l: l.startswith('.p2align')
    sz = ins_sizes([';' if is_al(l) else l for l in lines] + cold + ['L_last:'] + [f'L_pad{k}:' for k in range(NP)])
    out, off, k = [], None, 0
    for i, l in enumerate(lines):
        if is_al(l):
            off = 0
        if off is not None and i in sz:
            if off >= 4096 * (k + 1):
                out += [f'L_pad{k}:', '    s_cbranch_execz L_warm']
                off += 4
                k += 1
            off += sz[i]
        out.append(l)
    assert k <= NP, k
    for kk in range(k, NP):
        j = out.index(f'    s_cbranch_scc1 L_pad{kk}')
        out[j] = '    s_nop 0'
    sys.stderr.write(f'{k} page pads, hot path behind the anchor {off} bytes\n')
    return out


def align_pass(lines, minrun):
    import subprocess, tempfile, re
    with tempfile.TemporaryDirectory() as d:
        open(d + '/a.s', 'w').write('.amdgcn_target "amdgcn-amd-amdhsa--gfx950"\n.text\n' + '\n'.join(lines) + '\n')
        subprocess.run(['clang', '-x', 'assembler', '-target', 'amdgcn-amd-amdhsa', '-mcpu=gfx950', '-c', d + '/a.s', '-o', d + '/a.o'], check=True)
        dis = subprocess.run(['llvm-objdump', '-d', '--mcpu=gfx950', d + '/a.o'], capture_output=True, text=True, check=True).stdout
    sizes = [4 * len(m.group(1).split()) for m in re.finditer(r'// [0-9A-F]+: ((?:[0-9A-F]{8} ?)+)', dis)]
    idx = [i for i, l in enumerate(lines) if l.startswith('    ') and not l.strip().startswith(';')]
    assert len(idx) == len(sizes), (len(idx), len(sizes))
    ok = re.compile(r'^\s+(v_(?:mov|add|sub|subrev|mul|max|min|and|or|xor|lshlrev|lshrrev|exp|rcp|rsq|cndmask|fmac|mul_u32)_?[a-z0-9_]*) ')
    off, last, n, bad = 0, None, 0, 0
    out = list(lines)
    for k, i in enumerate(idx):
        if sizes[k] == 8 and off % 8:
            if last is not None:
                m = ok.match(out[last])
                out[last] = out[last].replace(m.group(1), m.group(1) + '_e64', 1)
                off += 4
                n += 1
            else:
                run = 0
                while k + run < len(sizes) and sizes[k + run] == 8:
                    run += 1
                if minrun > 1 and run >= minrun:
                    out[i] = '    s_nop 0\n' + out[i]
                    off += 4
                    n += 1000
                else:
                    bad += 1
        if sizes[k] == 8 and off % 8 == 0:
            last = None
        elif sizes[k] == 4 and ok.match(lines[i]):
            last = i
        off += sizes[k]
    sys.stderr.write(f'align: {n} promoted, {bad} 8-byte instructions left misaligned\n')
    return out


if __name__ == '__main__':
    kw = {}
    path = os.path.join(os.path.dirname(os.path.abspath(__file__)), '..', NAME + '.s')
    for arg in sys.argv[1:]:
        k, val = arg.split('=')
        if k == 'out':
            path = val
        else:
            kw[k] = int(val)
    open(path, 'w').write(build(**kw))
```

```python
import sys, os, math, struct
sys.path.insert(0, os.path.dirname(os.path.abspath(__file__)))
from emit import Asm, Regs, v, a, s

NAME = 'parallel_sum__sliding_local_dilated__mixer_token_mlp__prompt'

DEF = dict(
    stamps=0,
    probe=-1,
    cyc=0,
    gpub=11,
    gfq=13,
    gck=112,
    xdel=2,
    fqmax=2,
    iwarm=1,
    w1late=0,
    oord=1,
    t1x=1,
    xbf=1,
    pert=0,
    pel=7,
    nowait=1,
    sigall=0,
    wopre=1,
    w2pos=0,
    rsl=1,
    rt=1,
    sl1=4,
    sl2=8,
    sl3=8,
    hspec=0,
    jitter=0,
    outsc=0,
    flazy=2,
    psp=0,
    ggap=52,
    gpause=0,
    fpause=0,
    upause=0,
    gflush=0,
    hsc=1,
    hwarm=0,
    cglc=0,
    wfq=5,
    nt1=3,
    align=0,
    rpos=1,
    gord=1,
    tset=32,
    sflip=0,
    wfirst=0,
    tlb=0,
    gb=1,
    b2e=0,
    hk=2,
    rs2=1,
    hb=6,
    uchk=0,
    gdel=0,
    fdel=0,
    wpause=0,
    wpk=3,
    flead=1,
    ph=3,
    hinit=3,
    hgap=56,
    hpos=5,
    qrd=0,
    ureq=11,
    wck=58,
    ock=88,
    osig=3,
    hold=0,
    df=6,
    w1pre=4,
    w1mid=4,
    w1flag=28,
    w1chk=4,
    hlead=1,
    qrot=0,
    ppub=11,
    pfq=14,
    pck=118,
    ofq=9,
    pu=3,
    xrot=3,
    qg1=56,
    ust=2,
    qgap=50,
    hsleep=4,
    rmask=7,
    pread=0,
    xp=0,
    ogap=48,
    fgap=60,
    agap=56,
    uo=2,
    hrep=8,
    touch=2,
    codepf=1,
    spin=20000,
)


def f32(x):
    return '0x%08x' % struct.unpack('<I', struct.pack('<f', x))[0]


H_OFF = 0
U_OFF = 2 << 20
O_OFF = 4 << 20
RS_OFF = 6 << 20
CN_OFF = RS_OFF + 0x10000
GF_OFF = RS_OFF + 0x20000
PF_OFF = RS_OFF + 0x30000
WP_OFF = 8 << 20
FL_OFF = 10 << 20
HF_OFF = FL_OFF
ST_OFF = 11 << 20
P_OFF = 12 << 20
G_OFF = 16 << 20
WS_SIZE = 20 << 20
OOB = 0x10000000

LDS_SIZE = 163840
SLOT = 16384
NSLOT = 10
PH_B = 9 * SLOT
PR_B = PH_B + 8192
EPI_B = 2 * SLOT
EXC_B = 2 * SLOT

X, WQ, WO, W1, W2, WS, OUT, B1, B2, DBG = 8, 12, 16, 20, 24, 28, 32, 36, 40, 44
sGsW, sGsH = 0, 1
sKh, sNh, sT2, sT3 = 4, 5, 6, 7
sW, sK32, sJ, sFT, sD, sS, sD2, sG1, sF, sNon, sM, sM3, sCnt, sBg = range(48, 62)
sXs, sWs, sGs2, sGsU, sRo, sUst, sUfl, sOfl = range(62, 70)
sPar, sCur0, sCur1, sInvd, sGc, sOne = 70, 72, 74, 76, 78, 80
sOs, sC1, sMh, sIdx = 82, 83, 100, 101
sOne1, sGfl, sUck, sOck = B1, B1 + 1, B1 + 2, B1 + 3
sChk, sWck = WQ + 2, WQ + 3
sZero = sMh
sR2 = sFT
sPfl = sG1
sStamp = 84


def srd(r):
    return s(r, 4)


def lanemask(fn):
    m = 0
    for l in range(64):
        if fn(l):
            m |= 1 << l
    return m


def build(**kw):
    P = dict(DEF)
    P.update(kw)
    assert P['wck'] <= 64 and P['df'] == 6
    e = Asm()
    V = Regs('v', 1, 256)
    nst = [0]
    npr = [0]
    ntr = [0]

    def stamp(name='', sets=(1,)):
        if P['probe'] >= 0 and 1 in sets:
            npr[0] += 1
            if npr[0] == P['probe']:
                e.comment(f'probe {name}')
                e(f's_memrealtime s[{sT2}:{sT3}]')
                e.wait_all(vm=False, lg=True, force=True)
                e(f's_mov_b32 s{sStamp}, s{sT2}')
        if P['jitter']:
            k = ntr[0]
            ntr[0] += 1
            e(f's_mul_i32 s{sStamp}, s{sStamp}, 1664525')
            e(f's_add_u32 s{sStamp}, s{sStamp}, 1013904223')
            e(f's_lshr_b32 s{sStamp + 1}, s{sStamp}, {32 - P["jitter"]}')
            e(f's_cbranch_scc1 L_jit{k}')
            e(f's_sleep {(8, 40, 100)[k % 3]}')
            e.label(f'L_jit{k}')
            return
        if P['stamps'] == 20:
            if sets in ((1,), (1, 4), (4,), (1, 2, 4), (1, 2, 9), (1, 2, 5, 9), (9, 20), (20,), (1, 5, 7), (1, 3), (1, 3, 8), (3, 20), (1, 5, 6, 7)):
                k = ntr[0]
                ntr[0] += 1
                p = 86 + 2 * (k % 3)
                if k >= 2:
                    q = 86 + 2 * ((k - 2) % 3)
                    e.raw(f'    v_writelane_b32 v{254 + (k - 2) // 64}, s{q}, {(k - 2) % 64}')
                e.raw(f'    s_memtime s[{p}:{p + 1}]')
            return
        if P['stamps'] not in sets:
            return
        k = nst[0]
        nst[0] += 1
        assert k < 13
        if k > 1:
            e(f's_mov_b32 s{sStamp + k - 1}, s{WQ}')
        e(f'{"s_memtime" if P["cyc"] else "s_memrealtime"} s[{WQ}:{WQ + 1}]')

    def setmask(r, m):
        return [f's_mov_b32 s{r}, 0x{m & 0xffffffff:08x}', f's_mov_b32 s{r + 1}, 0x{m >> 32:08x}']

    def run(lst):
        for t in lst:
            e.many(t)

    def merge(main, fill, per=1, every=1):
        fill = list(fill)
        for i, t in enumerate(main):
            e.many(t)
            if (i + 1) % every == 0:
                for _ in range(per):
                    if fill:
                        e.many(fill.pop(0))
        return fill

    def bg_dma(key, pre, sr, voff, soff, off, gap, mod=''):
        o = f' offset:{off}' if off else ''
        e.bg_add(key, list(pre) + [f'buffer_load_dwordx4 v{voff}, {srd(sr)}, s{soff} offen{o}{mod} lds'], gap)

    def bg_ins(key, pre, ins, gap):
        e.bg_add(key, list(pre) + [ins], gap)

    def mf16(d, A, B, c=None):
        return f'v_mfma_f32_16x16x32_bf16 {v(d, 4)}, {A}, {B}, {v(d, 4) if c is None else c}'

    def mf32(d, A, B, c=None):
        return f'v_mfma_f32_32x32x16_bf16 {v(d, 16)}, {A}, {B}, {v(d, 16) if c is None else c}'

    def mfs(d, A, B):
        return f'v_mfma_f32_16x16x4_f32 {v(d, 4)}, v{A}, v{B}, 0'

    npoll = [0]

    def flag_load(voff, vdst, n=1):
        return f'buffer_load_dword{"x2" if n == 2 else ""} {v(vdst, n)}, v{voff}, {srd(WS)}, 0 offen sc1'

    def flag_check(voff, vdst, sleep, n=1):
        k = npoll[0]
        npoll[0] += 1
        on, e.bg_on = e.bg_on, False
        e.bg_settle()
        cmp_ = [f'v_cmp_ne_u32 vcc, s{sNon}, v{vdst}'] if n == 1 else \
               [f'v_xor_b32 v{vdst}, s{sNon}, v{vdst}', f'v_xor_b32 v{vdst + 1}, s{sNon}, v{vdst + 1}',
                f'v_or_b32 v{vdst}, v{vdst}, v{vdst + 1}', f'v_cmp_ne_u32 vcc, 0, v{vdst}']
        run(cmp_)
        e(f's_cbranch_vccnz L_pollin{k}')
        e.cold_begin()
        e.label(f'L_pollin{k}')
        e.raw(f'    s_mov_b32 s{sCnt}, 0')
        e.label(f'L_poll{k}')
        e.raw(f'    s_sleep {sleep}')
        e.raw('    ' + flag_load(voff, vdst, n))
        e.raw(f'    s_add_u32 s{sCnt}, s{sCnt}, 1')
        e.raw(f'    s_waitcnt vmcnt(0)')
        for t in cmp_:
            e.raw('    ' + t)
        e.raw(f'    s_cbranch_vccz L_pollok{k}')
        e.raw(f'    s_cmp_lt_u32 s{sCnt}, {P["spin"]}')
        e.raw(f'    s_cbranch_scc1 L_poll{k}')
        e.raw(f'    s_branch L_pollok{k}')
        e.cold_end()
        e.label(f'L_pollok{k}')
        e.bg_on = on

    nsg = [0]

    def signal(soff, wg, base=WS):
        k = nsg[0]
        nsg[0] += 1
        wg = wg and not P['sigall']
        if wg:
            e(f's_cmp_lg_u32 s{sW}, 0')
            e(f's_cbranch_scc1 L_sig{k}')
        e(f's_atomic_add s{sOne1}, s[{base}:{base + 1}], s{soff}')
        if wg:
            e.label(f'L_sig{k}')
        e.smem_out += 1

    def cnt_req(soff, base=WS):
        if P['nowait']:
            e(f's_mov_b32 s{sChk}, 0')
        e(f's_load_dword s{sChk}, s[{base}:{base + 1}], s{soff}' + (' glc' if P['cglc'] else ''))
        e.smem_out += 1

    def cnt_check(soff, target, sleep, base=WS, unless0=None, few=False):
        k = npoll[0]
        npoll[0] += 1
        if P['nowait']:
            e.smem_out = max(e.smem_out - 1, 0)
        else:
            e.wait_all(vm=False, lg=True, force=True)
        e(f's_cmp_ge_u32 s{sChk}, {target}')
        e(f's_cbranch_scc0 L_pollin{k}')
        e.cold_begin()
        e.label(f'L_pollin{k}')
        if P['nowait']:
            e.raw(f'    s_waitcnt lgkmcnt(0)')
            e.raw(f'    s_cmp_ge_u32 s{sChk}, {target}')
            e.raw(f'    s_cbranch_scc1 L_pollok{k}')
        if unless0 is not None:
            e.raw(f'    s_cmp_eq_u32 s{unless0}, 0')
            e.raw(f'    s_cbranch_scc1 L_pollok{k}')
        e.raw(f'    s_mov_b32 s{sCnt}, 0')
        if P['rt'] & 1:
            e.raw(f'    s_branch L_poll{k}a')
        e.label(f'L_poll{k}')
        e.raw(f'    s_sleep {sleep}')
        e.label(f'L_poll{k}a')
        if P['rt'] & 2 and few:
            e.raw(f'    s_load_dword s{sChk}, s[{base}:{base + 1}], s{soff} glc')
            e.raw(f'    s_add_u32 s{sCnt}, s{sCnt}, 1')
            e.raw(f'    s_waitcnt lgkmcnt(0)')
        else:
            e.raw(f'    buffer_load_dword v{vFv}, off, {srd(base)}, s{soff} sc1')
            e.raw(f'    s_add_u32 s{sCnt}, s{sCnt}, 1')
            e.raw(f'    s_waitcnt vmcnt(0)')
            e.raw(f'    v_readfirstlane_b32 s{sChk}, v{vFv}')
            e.raw(f'    s_nop 0')
        e.raw(f'    s_cmp_ge_u32 s{sChk}, {target}')
        e.raw(f'    s_cbranch_scc1 L_pollok{k}')
        e.raw(f'    s_cmp_lt_u32 s{sCnt}, {P["spin"]}')
        e.raw(f'    s_cbranch_scc1 L_poll{k}')
        e.raw(f'    s_branch L_pollok{k}')
        e.cold_end()
        e.label(f'L_pollok{k}')

    def wrap(r, step, n):
        return [f's_add_u32 s{r}, s{r}, {step}', f's_cmp_eq_u32 s{r}, {step * n}', f's_cselect_b32 s{r}, 0, s{r}']

    FORD = [7, 0, 1, 2, 3, 4, 5, 6, 8, 9]

    def slot_of(q):
        k = q % NSLOT
        if q >= 30:
            k = FORD.index(k)
        if q >= 20:
            k = (0, 1, 4, 5, 2, 3, 6, 7, 8, 9)[k]
        return k * SLOT

    def pop(n):
        for _ in range(n):
            if e.bg:
                e._bg_pop()

    def publish(tok, soff):
        e.wait(vm=tok)
        return e(f'buffer_store_dword v{vNon}, v{vFl}, {srd(WS)}, s{soff} offen sc1')

    vLane, vL15, vG, vL16, vR8, vC8, vR4, vC4, vHi, vL31, vFl, vNon = [V.alloc() for _ in range(12)]
    t0, t1, t2, t3 = [V.alloc() for _ in range(4)]
    vFv = V.alloc(2)
    vFoH, vPst, vGs2, vGst, vDum = [V.alloc() for _ in range(5)]
    vCa = [V.alloc(), V.alloc()]
    vAs = [[V.alloc(), V.alloc()], [V.alloc(), V.alloc()]]
    e.dummy_ds = f'ds_read_b32 v{vDum}, v{vL16}'
    vPat = [[V.alloc() for _ in range(4)] for _ in range(3)]
    vPatW = [[V.alloc(), V.alloc()] for _ in range(2)]
    vOr = [[V.alloc(), V.alloc()] for _ in range(3)]
    vLin = [vL16, V.alloc(), V.alloc()]
    vD1 = [V.alloc() for _ in range(4)]
    vD2 = [V.alloc() for _ in range(4)]
    vDo = [V.alloc() for _ in range(2)]
    vOd = [V.alloc() for _ in range(2)]
    vXd = [V.alloc() for _ in range(3)]
    vXr = [[V.alloc(), V.alloc()] for _ in range(3)]
    vRs, vRsa = V.alloc(), V.alloc()
    vHo, vUo, vWp, vEx, vBa, vSw, vNeg = [V.alloc() for _ in range(7)]
    vOo = [V.alloc(), V.alloc()]
    vEw = [V.alloc() for _ in range(2)]
    vEr = [V.alloc() for _ in range(4)]
    vBo = [V.alloc(), V.alloc()]
    vXo = [V.alloc(4), V.alloc(4)]
    vMk = V.alloc(4)
    vC0 = V.alloc(2)
    vSt = [V.alloc(4), V.alloc(4)]
    NF = 8
    vFr = [V.alloc(4) for _ in range(NF)]
    vAcc = [V.alloc(16), V.alloc(16)]
    vBig = V.alloc(72)
    vE = vBig

    e('s_cmp_ge_u32 s2, 256')
    e('s_cbranch_scc1 L_end')
    for r, off in ((X, 0), (W1, 32), (WS, 80), (DBG, 72), (WQ, 8), (WO, 16), (W2, 48), (OUT, 64), (B1, 40), (B2, 56)):
        e(f's_load_dwordx2 {s(r, 2)}, s[0:1], {off}')
    sClk = 78
    e(f's_memrealtime s[{sClk}:{sClk + 1}]')
    if P['codepf']:
        e(f's_getpc_b64 s[6:7]')
        e.label('L_pc')
        e(f's_and_b32 s3, s2, 0xf8')
        e(f'v_lshrrev_b32 v{t0}, 5, v0')
        e(f'v_add_lshl_u32 v{t0}, s3, v{t0}, 7')
        e(f'v_min_u32 v{t0}, L_last-L_pc, v{t0}')
        e(f'global_load_dword v{vFv}, v{t0}, s[6:7]')
    vX = vBig
    vF = vBig + 8
    vG2 = vBig + 24
    vAB = vBig + 40
    vS_, vQ_, vT_, vU_ = vBig + 44, vBig + 45, vBig + 46, vBig + 47
    vLw, vLh, vLx, vHs = vBig + 48, vBig + 49, vBig + 50, vBig + 51
    tp = vBig + 52
    vFr8, vLr, vRo = vBig + 54, vBig + 55, vBig + 56
    sHrd = sC1
    e.many(f"""
        v_lshrrev_b32 v{t0}, 6, v0
        v_and_b32 v{vL31}, 31, v0
        v_readfirstlane_b32 s{sW}, v{t0}
        v_bfe_u32 v{vHi}, v0, 5, 1
        v_mul_u32_u24 v{t1}, 896, v{vHi}
        v_lshl_add_u32 v{t1}, v{vL31}, 4, v{t1}
        v_cmp_gt_u32 vcc, 28, v{vL31}
        v_mov_b32 v{t2}, {OOB}
        s_mov_b32 s{X + 2}, {2048 * 896}
        s_mov_b32 s{X + 3}, 0x20000
        v_cndmask_b32 v{t1}, v{t2}, v{t1}, vcc
        s_lshr_b32 s{sKh}, s{sW}, 1
        s_and_b32 s{sNh}, s{sW}, 1
        s_and_b32 s3, s2, 0xfe
        s_add_u32 s3, s3, s{sKh}
        s_lshl_b32 s3, s3, 1
        s_and_b32 s{sCnt}, s2, 1
        s_add_u32 s3, s3, s{sCnt}
        s_lshl_b32 s3, s3, 1
        s_add_u32 s3, s3, s{sNh}
        s_mul_i32 s3, s3, {2 * 896}
    """)
    e.wait_all(vm=False, lg=True, force=True)
    if P['stamps'] or P['probe'] == 98:
        e(f's_memtime s[0:1]')
        e.wait_all(vm=False, lg=True, force=True)
        e(f's_mov_b32 s{sStamp + 13}, s0')
    e(f'buffer_load_dwordx4 {v(vX, 4)}, v{t1}, {srd(X)}, s3 offen')
    e(f'buffer_load_dwordx4 {v(vX + 4, 4)}, v{t1}, {srd(X)}, s3 offen offset:448')
    if P['stamps'] or P['probe'] >= 0:
        e(f's_mov_b32 s{sStamp}, s{sClk}')
        nst[0] = 1
    if P['jitter']:
        e(f's_lshl_b32 s3, s2, 2')
        e(f's_add_u32 s3, s3, s{sW}')
        e(f's_mul_i32 s3, s3, 0x9e3779b1')
        e(f's_add_u32 s{sStamp}, s3, s{sClk}')
    sPair, sOdd, sXcd = sT2, sT3, sBg
    e.many(f"""
        v_and_b32 v{vLane}, 63, v0
        s_mov_b32 s{DBG + 2}, 256
        s_mov_b32 s{DBG + 3}, 0x20000
        s_lshl_b32 s3, s{sW}, 8
        s_add_u32 s3, s3, s2
        s_cmp_lt_u32 s3, 8
        s_cselect_b32 s3, 0, {OOB}
        s_or_b32 s{sClk}, s{sClk}, 1
        v_mov_b32 v{tp}, s{sClk}
        v_mov_b32 v{tp + 1}, 0
        v_lshlrev_b32 v{vFl}, 25, v{vLane}
        buffer_atomic_cmpswap {v(tp, 2)}, v{vFl}, {srd(DBG)}, s3 offen sc1
        s_bfe_u32 s{sPair}, s2, 0x20001
        s_and_b32 s{sOdd}, s2, 1
        s_and_b32 s{sXcd}, s2, 7
        s_lshr_b32 s{sIdx}, s2, 3
        s_mul_i32 s{sD}, s{sOdd}, 25
        s_add_u32 s{sD}, s{sD}, s{sIdx}
        s_mul_i32 s{sFT}, s{sD}, 37
        s_lshr_b32 s{sFT}, s{sFT}, 8
        s_mul_i32 s3, s{sFT}, 7
        s_sub_u32 s{sD}, s{sD}, s3
    """)
    e.many(f"""
        s_and_b32 s3, s{sPair}, 1
        s_mul_i32 s3, s3, 6
        s_add_u32 s{sFT}, s{sFT}, s3
        s_add_u32 s{sFT}, s{sFT}, 1
        s_add_u32 s3, s3, s{sFT}
        s_cmp_eq_u32 s3, 7
        s_cselect_b32 s{sFT}, 0, s{sFT}
        s_lshr_b32 s{sM3}, s{sPair}, 1
        s_lshl_b32 s{sFT}, s{sFT}, 1
        s_add_u32 s{sFT}, s{sFT}, s{sM3}
        s_max_u32 s{sCnt}, s{sIdx}, 25
        s_sub_u32 s{sCnt}, s{sCnt}, 25
        s_add_u32 s3, s{sIdx}, s{sOdd}
        s_cmp_lt_u32 s3, 25
        s_cselect_b32 s{sG1}, 1, 0
        s_cselect_b32 s{sD}, s{sD}, s{sCnt}
        s_mov_b32 s{W1 + 2}, {2048 * 3584}
        s_mov_b32 s{W1 + 3}, 0x20000
        s_lshl_b32 s3, s{sD}, 1
        s_sub_u32 s{sCnt}, s3, 7
        s_cmp_ge_u32 s3, 7
        s_cselect_b32 s3, s{sCnt}, s3
        s_and_b32 s3, s3, {P['rmask']}
        s_mul_i32 s{sCnt}, s{sXcd}, {P['xrot']}
        s_add_u32 s3, s3, s{sCnt}
        s_and_b32 s3, s3, 7
        s_mul_i32 s{sGsW}, s3, {128 * 3584}
        s_lshl_b32 s{sGsH}, s3, 13
        s_lshl_b32 s{sM}, s{sW}, 12
        v_lshrrev_b32 v{vG}, 4, v{vLane}
        v_lshrrev_b32 v{vR8}, 3, v{vLane}
        v_and_b32 v{vC8}, 7, v{vLane}
        v_lshlrev_b32 v{t1}, 1, v{vG}
        v_xor_b32 v{t1}, v{t1}, v{vC8}
        v_lshlrev_b32 v{vSw}, 4, v{t1}
        s_cmp_eq_u32 s{sG1}, 0
        s_cbranch_scc1 L_nog1
    """)
    save0 = (e.vm_n, e.vm_done, e.lg_n, e.lg_done, dict(e.pvm), dict(e.plg), dict(e.tok))
    e.many(f"""
        v_mul_u32_u24 v{t1}, 3584, v{vR8}
        s_lshl_b32 s3, s{sM3}, 5
        s_add_u32 s3, s3, s{sW}
        s_mul_i32 s3, s3, {32 * 3584}
        s_lshl_b32 s{sCnt}, s{sFT}, 7
        s_add_u32 s3, s3, s{sCnt}
        v_add3_u32 v{vD1[0]}, v{t1}, v{vSw}, s3
        v_add_u32 v{vD1[1]}, {16 * 3584 - 1024}, v{vD1[0]}
        v_add_u32 v{vD1[2]}, {8 * 3584 - 2048}, v{vD1[0]}
        v_add_u32 v{vD1[3]}, {3 * (8 * 3584 - 1024)}, v{vD1[0]}
    """)

    def w1_dma(q, gap):
        for k in range(4):
            pre = [f's_add_u32 m0, s{sM}, {slot_of(q)}'] + wrap(sGsW, 128 * 3584, 8) * (0 if P['xp'] & 8192 else ({0: 0} if P['gord'] else {8: 0, 0: 0, 9: 2}).get(q, 1)) if k == 0 else []
            if q in ((0, 8) if P['gord'] else (0, 9)):
                pre = pre + [f'v_xor_b32 v{vD1[k]}, 128, v{vD1[k]}']
            bg_dma(('s', q, k), pre, W1, vD1[k], sGsW, k * 1024, gap)

    vB1 = vBig + 64
    e.many(f"""
        s_mov_b32 s{B1 + 2}, 3584
        s_mov_b32 s{B1 + 3}, 0x20000
        v_lshlrev_b32 v{t0}, 3, v{vG}
        s_lshl_b32 s3, s{sFT}, 1
        s_add_u32 s3, s3, s{sKh}
        s_lshl_b32 s3, s3, 6
    """)
    for j in range(2):
        e(f'buffer_load_dwordx2 {v(vB1 + 2 * j, 2)}, v{t0}, {srd(B1)}, s3 offen offset:{32 * j}')
    e.bg_on = False
    for q in (range(9) if P['gord'] else (8, 0, 1, 2, 3, 4, 5, 6, 7)):
        w1_dma(q, 64)
    if P['w1late'] == 0:
        pop(P['w1pre'])
    sHs0, sHs1, sHfl, sEps, sInv, sOnes = 70, 71, 74, 75, 76, 77
    sRs, sHf2 = 72, 73
    def b2_loads():
        for q_ in range(2):
            e(f'buffer_load_ushort v{vBo[q_]}, v{vBa}, {srd(B2)}, 0 offen offset:{16 * q_}')

    def res_loads():
        for q_ in range(2):
            e(f'buffer_load_dwordx4 {v(vXo[q_], 4)}, v{vOo[q_]}, {srd(X)}, 0 offen')
        if not P['b2e']:
            b2_loads()

    def p0_body(sets):
        e.many(f"""
            s_mul_i32 s{sS}, s{sIdx}, 37
            s_lshr_b32 s{sS}, s{sS}, 8
            s_mul_i32 s{sD2}, s{sS}, 7
            s_sub_u32 s{sD2}, s{sIdx}, s{sD2}
            s_and_b32 s{sS}, s{sS}, 3
            s_xor_b32 s{sS}, s{sS}, {P['sflip']}
            s_lshl_b32 s3, s{sPair}, 2
            s_add_u32 s{sS}, s{sS}, s3
            s_lshl_b32 s{sS}, s{sS}, 1
            s_add_u32 s{sS}, s{sS}, s{sOdd}
        """)
        e.many(f"""
            s_mov_b32 s{B2 + 2}, 4096
            s_mov_b32 s{B2 + 3}, 0x20000
            s_lshl_b32 s3, s{sS}, 2
            s_add_u32 s3, s3, s{sW}
            s_lshl_b32 s{sCnt}, s3, 5
            v_lshl_add_u32 v{vBa}, v{vR8}, 1, s{sCnt}
            s_mul_i32 s3, s3, {16 * 896}
            s_lshl_b32 s{sCnt}, s{sD2}, 7
            s_add_u32 s3, s3, s{sCnt}
            v_mul_u32_u24 v{t1}, 896, v{vR8}
            v_lshl_add_u32 v{t1}, v{vC8}, 4, v{t1}
            v_add_u32 v{vOo[0]}, s3, v{t1}
            v_add_u32 v{vOo[1]}, {8 * 896}, v{vOo[0]}
        """)
        if P['b2e']:
            b2_loads()
        if P['rpos'] == 0:
            res_loads()
        if P['w1late'] == 1:
            pop(P['w1pre'])
        e.many(f"""
            s_cmp_lt_u32 s{sIdx}, 28
            s_cselect_b32 s{sF}, 1, 0
            s_lshl_b32 s{sJ}, s{sOdd}, 3
            s_and_b32 s3, s{sIdx}, 7
            s_add_u32 s{sJ}, s{sJ}, s3
            s_lshr_b32 s{sCnt}, s{sIdx}, 3
            s_lshl_b32 s{sK32}, s{sPair}, 2
            s_add_u32 s{sK32}, s{sK32}, s{sCnt}
            s_lshl_b32 s{sK32}, s{sK32}, 2
            s_add_u32 s{sK32}, s{sK32}, s{sW}
            s_mul_i32 s{sCnt}, s{sCnt}, {2 * P['qrot']}
            s_add_u32 s3, s3, s{sCnt}
            s_sub_u32 s{sCnt}, s3, 7
            s_cmp_ge_u32 s3, 7
            s_cselect_b32 s3, s{sCnt}, s3
            s_lshl_b32 s{sXs}, s3, 18
            s_mul_i32 s{sWs}, s3, 12288
            s_mov_b32 s{WS + 2}, {WS_SIZE}
            s_mov_b32 s{WS + 3}, 0x20000
            s_mov_b32 s{sEps}, {f32(1e-5)}
            s_mov_b32 s{sInv}, {f32(1.0 / 448)}
            s_mov_b32 s{sOnes}, 0x3f803f80
            v_lshlrev_b32 v{vL16}, 4, v{vLane}
            v_bfe_u32 v{vR4}, v{vLane}, 2, 2
            v_and_b32 v{vC4}, 3, v{vLane}
            v_mul_u32_u24 v{t0}, 960, v{vHi}
            v_lshl_add_u32 v{t0}, v{vL31}, 4, v{t0}
            s_mul_i32 s3, s{sW}, 1920
            s_add_u32 s3, s3, {PH_B}
            v_add_u32 v{vLw}, s3, v{t0}
            v_mul_u32_u24 v{t0}, 960, v{vR4}
            v_lshl_add_u32 v{t0}, v{vG}, 5, v{t0}
            v_lshl_add_u32 v{t0}, v{vC4}, 3, v{t0}
            s_lshl_b32 s3, s{sW}, 8
            s_add_u32 s3, s3, {PH_B}
            v_add_u32 v{vLh}, s3, v{t0}
            s_lshl_b32 s3, s{sW}, 3
            s_add_u32 s3, s3, {PR_B}
            v_lshl_add_u32 v{vLx}, v{vHi}, 2, s3
            v_lshlrev_b32 v{vLr}, 2, v{vC8}
            v_and_b32 v{vL15}, 15, v{vLane}
            v_lshlrev_b32 v{vRo}, {14 - P['rs2']}, v{vG}
            v_add_lshl_u32 v{vRo}, v{vRo}, v{vL15}, {2 + P['rs2']}
            v_add_u32 v{vLr}, {PR_B}, v{vLr}
            v_lshlrev_b32 v{t0}, 17, v{vHi}
            v_lshl_add_u32 v{vHs}, v{vL31}, 4, v{t0}
            s_cmp_eq_u32 s{sW}, 3
            s_cselect_b32 s{sCnt}, {OOB}, 0
            s_lshl_b32 s{sHs0}, s{sW}, 10
            s_add_u32 s{sHs0}, s{sHs0}, s2
            s_lshl_b32 s{sHs0}, s{sHs0}, 9
            s_add_u32 s{sHs1}, s{sHs0}, 262144
            s_add_u32 s{sHs1}, s{sHs1}, s{sCnt}
            s_xor_b32 s{sCnt}, s{sCnt}, {OOB}
            s_lshl_b32 s{sRs}, s2, 7
            s_add_u32 s{sRs}, s{sRs}, s{sCnt}
            s_add_u32 s{sRs}, s{sRs}, {RS_OFF}
            s_lshr_b32 s{sHfl}, s2, {P['hk']}
            s_lshl_b32 s{sHfl}, s{sHfl}, {P['hb'] - 2}
            s_and_b32 s3, s2, {(1 << P['hk']) - 1}
            s_add_u32 s{sHfl}, s{sHfl}, s3
            s_lshl_b32 s{sHfl}, s{sHfl}, 2
            s_add_u32 s{sHfl}, s{sHfl}, {HF_OFF}
            v_cmp_gt_u32 vcc, {P['hrep']}, v0
            v_lshlrev_b32 v{vFr8}, 13, v0
            v_mov_b32 v{t0}, {OOB}
            s_and_b32 s3, s2, {P['hrep'] - 1}
            s_lshl_b32 s3, s3, 13
            s_add_u32 s3, s3, {HF_OFF}
            v_lshrrev_b32 v{t1}, {P['hk']}, v0
            v_lshl_add_u32 v{t1}, v{t1}, {P['hb']}, s3
            v_and_b32 v{t2}, {(1 << P['hk']) - 1}, v0
            v_lshl_add_u32 v{vFoH}, v{t2}, 2, v{t1}
            v_cndmask_b32 v{vFr8}, v{t0}, v{vFr8}, vcc
            v_mov_b32 v{t3}, 0
        """)
        if P['hsc']:
            e(f's_lshl_b32 s3, s{sW}, 14')
            e(f's_add_u32 s{sHfl}, s{sHfl}, s3')
            e(f's_add_u32 s{sHf2}, s{sHfl}, 8192')
            if P['hwarm']:
                e(f's_and_b32 s{sZero}, s2, 3')
                e(f's_cbranch_scc1 L_nowarm{len(sets)}')
                e(f's_atomic_or s{sZero}, s[{WS}:{WS + 1}], s{sHfl}')
                e(f's_atomic_or s{sZero}, s[{WS}:{WS + 1}], s{sHf2}')
                e.label(f'L_nowarm{len(sets)}')
                e.smem_out = 2
        if P['pread'] and sets == (6,):
            e(flag_load(vFoH, vFv + 1))
        if P['w1late'] == 2:
            pop(P['w1pre'])
        for k in range(8):
            e(f'v_dot2_f32_bf16 v{vS_}, v{vX + k}, s{sOnes}, {"0" if k == 0 else "v%d" % vS_}')
            if k == 0:
                stamp('x landed', sets)
            e(f'v_dot2_f32_bf16 v{vQ_}, v{vX + k}, v{vX + k}, {"0" if k == 0 else "v%d" % vQ_}')
        unp = []
        for k in range(8):
            unp += [f'v_lshlrev_b32 v{vF + 2 * k}, 16, v{vX + k}', f'v_and_b32 v{vF + 2 * k + 1}, 0xffff0000, v{vX + k}']
        e(f'buffer_load_dword v{vNon}, v{t3}, {srd(DBG)}, 0 offen sc1')
        if P['w1late'] == 3:
            pop(P['w1pre'])
        run(unp[:2])
        unp = unp[2:]
        for ctl in ('quad_perm:[1,0,3,2]', 'quad_perm:[2,3,0,1]', 'row_half_mirror', 'row_mirror'):
            for r in (vS_, vQ_):
                e(f'v_add_f32_dpp v{r}, v{r}, v{r} {ctl} row_mask:0xf bank_mask:0xf')
            e(unp.pop(0))
        e(f'v_mov_b32 v{vT_}, v{vS_}')
        e(f'v_mov_b32 v{vU_}, v{vQ_}')
        e(unp.pop(0))
        e(f'v_permlane16_swap_b32 v{vS_}, v{vT_}')
        e(f'v_permlane16_swap_b32 v{vQ_}, v{vU_}')
        e.many(f"""
            v_add_f32 v{vS_}, v{vS_}, v{vT_}
            v_add_f32 v{vQ_}, v{vQ_}, v{vU_}
            v_mul_f32_e64 v{vS_}, -v{vS_}, s{sInv}
            v_mul_f32 v{vT_}, v{vS_}, v{vS_}
            v_fma_f32 v{vQ_}, v{vQ_}, s{sInv}, -v{vT_}
            v_max_f32 v{vQ_}, 0, v{vQ_}
            v_add_f32 v{vT_}, s{sEps}, v{vQ_}
            v_rsq_f32 v{vAB}, v{vT_}
        """)
        e(unp.pop(0))
        e.many(f"""
            v_mul_f32 v{vT_}, v{vAB}, v{vAB}
            v_fma_f32 v{vU_}, v{vT_}, v{vQ_}, s{sEps}
            v_rsq_f32 v{vT_}, v{vU_}
            v_mul_f32 v{vAB + 1}, v{vS_}, v{vAB}
            v_mul_f32 v{vAB + 2}, v{vAB}, v{vT_}
            v_mul_f32 v{vAB + 3}, v{vAB + 1}, v{vT_}
            v_mul_f32 v{vU_}, v{vU_}, v{vT_}
            ds_write_b32 v{vLx}, v{vU_}
        """)
        run(unp)

        def normalise(ab, base):
            for hf in range(2):
                for k in range(4 * hf, 4 * hf + 4):
                    e(f'v_pk_fma_f32 {v(vG2 + 2 * k, 2)}, {v(vF + 2 * k, 2)}, {v(ab, 2)}, {v(ab, 2)} op_sel:[0,0,1] op_sel_hi:[1,0,1]')
                for k in range(4 * hf, 4 * hf + 4):
                    e(f'v_cvt_pk_bf16_f32 v{vX + k}, v{vG2 + 2 * k}, v{vG2 + 2 * k + 1}')
                e(f'ds_write_b128 v{vLw}, {v(vX + 4 * hf, 4)} offset:{base + 448 * hf}')

        normalise(vAB + 2, 0)
        e.wait_all(vm=False, lg=True)
        e('s_barrier')
        for z in range(2):
            for h in range(2):
                e(f'ds_read_b64_tr_b16 {v(vSt[z] + 2 * h, 2)}, v{vLh} offset:{z * 128 + h * 3840}')
        e(f'ds_read_b32 v{vU_}, v{vLr}')
        for z in range(2):
            e(f'buffer_store_dwordx4 {v(vSt[z], 4)}, v{vHs}, {srd(WS)}, s{sHs0 + z} offen sc1')
        e(f'v_cmp_gt_u32 vcc, 16, v{vLane}')
        e(f'v_cndmask_b32 v{vU_}, 0, v{vU_}, vcc')
        if P['rs2']:
            e(f'v_mov_b32 v{vT_}, v{vU_}')
            tokH = e(f'buffer_store_dwordx2 {v(vT_, 2)}, v{vRo}, {srd(WS)}, s{sRs} offen sc1')
        else:
            tokH = e(f'buffer_store_dword v{vU_}, v{vRo}, {srd(WS)}, s{sRs} offen sc1')
        stamp('h stored', sets)
        return tokH

    tokH = p0_body((1, 4))

    if P['rpos'] == 4:
        res_loads()
    pop(P['w1mid'])
    if P['iwarm']:
        e.comment('page-align the rest of the hot path (the padding is never executed)')
        e('s_branch L_anchor')
        e.raw('.p2align 12')
        e.label('L_anchor')

    setup = []
    for r, n in ((WO, 448 * 896), (W2, 1792 * 4096), (OUT, 2048 * 896)):
        setup.append(f's_mov_b32 s{r + 2}, {n}\ns_mov_b32 s{r + 3}, 0x20000')
    setup += f"""s_mov_b32 s{sOne1}, 1
        v_lshrrev_b32 v{t1}, 2, v{vLane}
        v_lshlrev_b32 v{t1}, 7, v{t1}
        v_lshl_add_u32 v{t1}, v{vC4}, 3, v{t1}
        v_and_b32 v{t2}, 3, v{vR8}
        v_lshl_add_u32 v{t1}, v{t2}, 5, v{t1}
        s_mul_i32 s3, s{sKh}, {8192 + 64}
        v_xor_b32 v{vPat[0][0]}, s3, v{t1}
        v_xor_b32 v{vPat[0][1]}, 32, v{vPat[0][0]}
        v_xor_b32 v{vPat[0][2]}, 64, v{vPat[0][0]}
        v_xor_b32 v{vPat[0][3]}, 96, v{vPat[0][0]}
        v_add_u32 v{vPat[1][0]}, 65536, v{vPat[0][0]}
        v_add_u32 v{vPat[1][1]}, 65536, v{vPat[0][1]}
        v_add_u32 v{vPat[1][2]}, 65536, v{vPat[0][2]}
        v_add_u32 v{vPat[1][3]}, 65536, v{vPat[0][3]}
        v_add_u32 v{vPat[2][0]}, 131072, v{vPat[0][0]}
        v_add_u32 v{vPat[2][1]}, 131072, v{vPat[0][1]}
        v_add_u32 v{vPat[2][2]}, 131072, v{vPat[0][2]}
        v_add_u32 v{vPat[2][3]}, 131072, v{vPat[0][3]}
        s_lshl_b32 s{sT2}, s{sD}, 1
        s_add_u32 s{sT2}, s{sT2}, s{sNh}
        s_lshl_b32 s3, s{sT2}, 1
        s_add_u32 s3, s3, s{sM3}
        s_lshl_b32 s3, s3, 4
        s_add_u32 s3, s3, s{sKh}
        s_lshl_b32 s3, s3, 12
        v_lshl_add_u32 v{vHo}, v{vG}, 8, v{vL16}
        v_add_u32 v{vHo}, s3, v{vHo}
        s_xor_b32 s{sGfl}, s{sFT}, 1
        s_lshl_b32 s{sGfl}, s{sGfl}, 3
        s_add_u32 s{sGfl}, s{sGfl}, s{sD}
        s_lshl_b32 s3, s{sGfl}, 14
        s_add_u32 s3, s3, s{sM}
        s_add_u32 s3, s3, {G_OFF + (OOB if P['xp'] & 1024 else 0)}
        v_add_u32 v{vGst}, s3, v{vL16}
        s_lshl_b32 s{sGfl}, s{sGfl}, 5
        s_add_u32 s{sGfl}, s{sGfl}, s{sNh}
        s_lshl_b32 s{sGfl}, s{sGfl}, 2
        s_add_u32 s{sGfl}, s{sGfl}, {GF_OFF}
        s_mul_i32 s{sUst}, s{sT2}, 56
        s_lshl_b32 s3, s{sFT}, 1
        s_add_u32 s3, s3, s{sKh}
        s_add_u32 s{sUst}, s{sUst}, s3
        s_lshl_b32 s{sUst}, s{sUst}, 11
        s_add_u32 s{sUst}, s{sUst}, {U_OFF + (OOB if P['xp'] & 2048 else 0)}
        v_add_u32 v{vEx}, s{sM}, v{vL16}
        s_lshl_b32 s{sUfl}, s{sD}, 2
        s_and_b32 s3, s{sFT}, 1
        s_add_u32 s{sUfl}, s{sUfl}, s3
        s_cmp_ge_u32 s{sFT}, 14
        s_cselect_b32 s3, 2, 0
        s_add_u32 s{sUfl}, s{sUfl}, s3
        s_lshl_b32 s{sUfl}, s{sUfl}, 7
        s_add_u32 s{sUfl}, s{sUfl}, {CN_OFF}
        v_add_u32 v{vLin[1]}, 65536, v{vL16}
        v_add_u32 v{vLin[2]}, 131072, v{vL16}
        s_mul_i32 s{sM3}, s{sW}, 3072
        s_mul_i32 s3, s{sJ}, 86016
        s_add_u32 s3, s3, s{sM3}
        s_add_u32 s3, s3, {WP_OFF}
        v_add_u32 v{vWp}, s3, v{vL16}
        v_lshlrev_b32 v{t1}, 7, v{vHi}
        v_xor_b32 v{t1}, v{t1}, v{vL16}
        s_lshl_b32 s3, s{sK32}, 11
        v_add_u32 v{vXd[0]}, s3, v{t1}
        v_add_u32 v{vXd[1]}, {131072 - 2048}, v{vXd[0]}
        s_lshr_b32 s3, s{sK32}, 2
        s_lshl_b32 s3, s3, 3
        s_max_u32 s3, s3, 1
        s_sub_u32 s3, s3, 1
        s_lshl_b32 s3, s3, 10
        s_lshl_b32 s{sT2}, s{sNh}, 17
        s_add_u32 s3, s3, s{sT2}
        s_lshl_b32 s{sT2}, s{sKh}, 28
        s_add_u32 s3, s3, s{sT2}
        v_add_u32 v{vXd[2]}, s3, v{t1}
        s_lshl_b32 s{sMh}, s{sNh}, 1
        s_add_u32 s{sMh}, s{sMh}, s{sKh}
        s_lshl_b32 s{sMh}, s{sMh}, 10
        v_and_b32 v{t1}, 1, v{vLane}
        v_mul_u32_u24 v{t1}, {512 + 128}, v{t1}
        v_lshrrev_b32 v{t2}, 2, v{vLane}
        v_lshlrev_b32 v{t2}, 4, v{t2}
        v_xor_b32 v{t1}, v{t1}, v{t2}
        v_bfe_u32 v{t2}, v{vLane}, 1, 1
        v_lshl_add_u32 v{t1}, v{t2}, 3, v{t1}
        s_add_u32 s3, s{sM}, 12288
        v_add_u32 v{vXr[0][0]}, s3, v{t1}
        s_sub_u32 s3, s3, 3072
        s_cmp_eq_u32 s{sW}, 0
        s_cselect_b32 s3, 28672, s3
        v_add_u32 v{vXr[0][1]}, s3, v{t1}
        v_add_u32 v{vXr[1][0]}, 65536, v{vXr[0][0]}
        v_add_u32 v{vXr[1][1]}, 65536, v{vXr[0][1]}
        v_add_u32 v{vXr[2][0]}, 131072, v{vXr[0][0]}
        v_add_u32 v{vXr[2][1]}, 131072, v{vXr[0][1]}
        s_lshl_b32 s3, s{sK32}, 1
        v_min_u32 v{t1}, 2, v{vG}
        v_add_u32 v{t1}, s3, v{t1}
        v_max_u32 v{t1}, 1, v{t1}
        v_lshlrev_b32 v{t1}, 1, v{t1}
        v_and_b32 v{t2}, 1, v{vR4}
        v_add_lshl_u32 v{t1}, v{t1}, v{t2}, 7
        v_lshrrev_b32 v{t2}, 1, v{vR4}
        v_lshl_add_u32 v{t2}, v{t2}, 2, v{vC4}
        v_lshl_add_u32 v{t1}, v{t2}, {2 + P['rs2']}, v{t1}
        v_add_u32 v{vRsa}, {RS_OFF - 256}, v{t1}
        s_min_u32 s{sWck}, s{sW}, 2
        s_lshl_b32 s{sWck}, s{sWck}, 6
        s_add_u32 s{sWck}, s{sWck}, 64
        s_lshl_b32 s{sOs}, s{sK32}, 5
        s_add_u32 s{sOs}, s{sOs}, s{sJ}
        s_lshl_b32 s{sOs}, s{sOs}, 10
        s_add_u32 s{sOs}, s{sOs}, {O_OFF + (OOB if P['xp'] & 4096 else 0)}
        s_lshr_b32 s{sOfl}, s{sK32}, 2
        s_lshl_b32 s{sOfl}, s{sOfl}, 1
        s_and_b32 s3, s{sJ}, 1
        s_add_u32 s{sOfl}, s{sOfl}, s3
        s_lshl_b32 s{sOfl}, s{sOfl}, 7
        s_add_u32 s{sOfl}, s{sOfl}, {CN_OFF + 32 * 128}
        s_and_b32 s{sT3}, s{sS}, 1
        s_mul_i32 s3, s{sT3}, 28
        s_add_u32 s3, s3, s{sW}
        s_lshl_b32 s3, s3, 17
        s_xor_b32 s{sT2}, s{sS}, 1
        s_lshl_b32 s{sPfl}, s{sT2}, 3
        s_lshl_b32 s{sT2}, s{sS}, 7
        s_add_u32 s3, s3, s{sT2}
        v_lshlrev_b32 v{t1}, 12, v{vR8}
        v_add3_u32 v{vD2[0]}, v{t1}, v{vSw}, s3
        v_add_u32 v{vD2[1]}, {1 * (8 * 4096 - 1024)}, v{vD2[0]}
        v_add_u32 v{vD2[2]}, {2 * (8 * 4096 - 1024)}, v{vD2[0]}
        v_add_u32 v{vD2[3]}, {3 * (8 * 4096 - 1024)}, v{vD2[0]}
        v_mul_u32_u24 v{t1}, 896, v{vR8}
        s_mul_i32 s3, s{sKh}, {28 * 896}
        s_mul_i32 s{sT2}, s{sNh}, {16 * 896}
        s_add_u32 s3, s3, s{sT2}
        s_lshl_b32 s{sT2}, s{sD2}, 7
        s_add_u32 s3, s3, s{sT2}
        v_add3_u32 v{vDo[0]}, v{t1}, v{vSw}, s3
        v_add_u32 v{vDo[1]}, {8 * 896 - 1024}, v{vDo[0]}
        s_lshl_b32 s{sT2}, s{sS}, 1
        s_add_u32 s{sT2}, s{sT2}, s{sNh}
        s_and_b32 s3, s{sS}, 30
        s_add_u32 s3, s3, s{sKh}
        s_lshl_b32 s3, s3, 7
        s_add_u32 s{sOck}, s3, {CN_OFF + 32 * 128}
        s_lshl_b32 s3, s{sT2}, 5
        s_add_u32 s3, s3, s{sKh}
        s_lshl_b32 s3, s3, 10
        s_add_u32 s3, s3, {O_OFF}
        v_add_u32 v{vOd[0]}, s3, v{vL16}
        v_add_u32 v{vOd[1]}, {16384 - 1024}, v{vOd[0]}
        s_xor_b32 s3, s{sKh}, s{sNh}
        s_lshl_b32 s3, s3, 6
        v_xor_b32 v{vPatW[0][0]}, s3, v{vPat[0][0]}
        v_xor_b32 v{vPatW[0][1]}, 32, v{vPatW[0][0]}
        v_add_u32 v{vPatW[1][0]}, 65536, v{vPatW[0][0]}
        v_add_u32 v{vPatW[1][1]}, 65536, v{vPatW[0][1]}
        s_mul_i32 s3, s{sKh}, {3 * 4096}
        v_add_u32 v{vOr[0][0]}, s3, v{vL16}
        v_xor_b32 v{vOr[0][1]}, 4096, v{vOr[0][0]}
        v_add_u32 v{vOr[1][0]}, 65536, v{vOr[0][0]}
        v_add_u32 v{vOr[1][1]}, 65536, v{vOr[0][1]}
        v_add_u32 v{vOr[2][0]}, 131072, v{vOr[0][0]}
        v_add_u32 v{vOr[2][1]}, 131072, v{vOr[0][1]}
        s_lshl_b32 s{sT2}, s{sD2}, 1
        s_add_u32 s{sT2}, s{sT2}, s{sNh}
        s_lshl_b32 s3, s{sT2}, 1
        s_add_u32 s3, s3, s{sT3}
        s_mul_i32 s3, s3, 14
        s_add_u32 s3, s3, s{sKh}
        s_lshl_b32 s3, s3, 12
        s_add_u32 s3, s3, {U_OFF}
        v_add_u32 v{vUo}, s3, v{vL16}
        s_lshl_b32 s3, s{sD2}, 1
        s_add_u32 s3, s3, s{sT3}
        s_lshl_b32 s3, s3, 1
        s_add_u32 s3, s3, s{sKh}
        s_lshl_b32 s3, s3, 7
        s_add_u32 s{sUck}, s3, {CN_OFF}
        s_and_b32 s3, s2, 6
        s_add_u32 s3, s3, s{sD2}
        s_sub_u32 s{sT2}, s3, 7
        s_cmp_ge_u32 s3, 7
        s_cselect_b32 s3, s{sT2}, s3
        s_lshl_b32 s{sGs2}, s3, 19
        s_lshl_b32 s{sGsU}, s3, 13
        s_add_u32 s{sPfl}, s{sPfl}, s{sD2}
        s_lshl_b32 s3, s{sPfl}, 14
        s_add_u32 s3, s3, s{sM}
        s_add_u32 s3, s3, {P_OFF + (OOB if P['xp'] & 512 else 0)}
        v_add_u32 v{vPst}, s3, v{vL16}
        s_lshl_b32 s{sPfl}, s{sPfl}, 5
        s_add_u32 s{sPfl}, s{sPfl}, s{sW}
        s_lshl_b32 s{sPfl}, s{sPfl}, 2
        s_add_u32 s{sPfl}, s{sPfl}, {PF_OFF}
        s_lshl_b32 s3, s{sNh}, 3
        v_add_u32 v{t0}, s3, v{vG}
        v_xor_b32 v{t0}, v{t0}, v{vC8}
        v_lshlrev_b32 v{t0}, 4, v{t0}
        v_lshl_add_u32 v{t0}, v{vL15}, 8, v{t0}
        s_lshl_b32 s3, s{sKh}, 14
        s_add_u32 s3, s3, {EPI_B}
        v_add_u32 v{vEw[0]}, s3, v{t0}
        v_xor_b32 v{vEw[1]}, 64, v{vEw[0]}
        s_lshr_b32 s3, s{sS}, 1
        s_add_u32 s{sRo}, s3, s{sD2}
        s_mov_b32 s{sR2}, s{sRo}
        v_lshlrev_b32 v{t0}, 1, v{vC8}
        v_xor_b32 v{t0}, v{t0}, v{vR8}
        v_lshlrev_b32 v{t0}, 4, v{t0}
        v_lshl_add_u32 v{t0}, v{vR8}, 8, v{t0}
        s_add_u32 s3, s{sM}, {EPI_B}
        v_add_u32 v{vEr[0]}, s3, v{t0}
        v_xor_b32 v{vEr[1]}, 16, v{vEr[0]}
        v_xor_b32 v{vEr[2]}, {16384 + 8192}, v{vEr[0]}
        v_xor_b32 v{vEr[3]}, {16384 + 8192 + 16}, v{vEr[0]}""".split('\n')
    par = lambda l: l & 1
    cur = lambda l, z: 4 * (l >> 4) + 2 * z + (l & 1) <= (l & 15)
    c0 = -2.0 * math.sqrt(2.0 / math.pi) * math.log2(math.e)
    setup2 = setmask(sPar, lanemask(par)) + setmask(sCur0, lanemask(lambda l: cur(l, 0))) + setmask(sCur1, lanemask(lambda l: cur(l, 1)))
    setup2 += [f's_cmp_eq_u32 s{sK32}, 0\ns_cselect_b64 {s(sInvd, 2)}, 0, -1',
               f'v_mov_b32 v{t0}, 0xffff', f'v_mov_b32 v{t1}, 0xffff0000',
               f'v_cndmask_b32 v{t0}, v{t0}, v{t1}, {s(sPar, 2)}']
    for z, sc in ((0, sCur0), (1, sCur1)):
        setup2 += [f'v_cndmask_b32 v{vMk + z}, v{t0}, 0, {s(sc, 2)}', f'v_cndmask_b32 v{vMk + 2 + z}, 0, v{t0}, {s(sc, 2)}']
    setup2 += [f'v_mov_b32 v{vNeg}, {f32(-1e30)}',
               f's_mov_b32 s{sC1}, {f32(28 ** -0.5 * math.log2(math.e))}',
               f's_mov_b32 s{sGc}, {f32(c0 * 0.044715)}\ns_mov_b32 s{sGc + 1}, {f32(c0 * 0.044715)}',
               f's_mov_b32 s{sOne}, 1.0\ns_mov_b32 s{sOne + 1}, 1.0',
               f'v_mov_b32 v{vC0}, {f32(c0)}', f'v_mov_b32 v{vC0 + 1}, {f32(c0)}']
    aSel = 248
    setup2 += [f'v_lshrrev_b32 v{t0}, 1, v{vL15}', f'v_lshlrev_b32 v{t1}, 1, v{vG}', f'v_sub_u32 v{t0}, v{t0}, v{t1}',
               f'v_mov_b32 v{t1}, 0x3f80', f'v_cndmask_b32 v{t1}, v{t1}, 1.0, {s(sPar, 2)}']
    for k in range(2):
        setup2 += [f'v_cmp_eq_i32 vcc, {k}, v{t0}', f'v_accvgpr_write_b32 a{aSel + k}, 0', f'v_accvgpr_write_b32 a{aSel + 4 + k}, 0',
                   f'v_cndmask_b32 v{t2}, 0, v{t1}, vcc', f'v_accvgpr_write_b32 a{aSel + 2 + k}, v{t2}']
    if P['sigall']:
        setup2.append(f"""s_and_b32 s3, s2, 127
            s_lshl_b32 s3, s3, 7
            s_add_u32 s3, s3, {CN_OFF + 128 * 128}
            s_cmp_eq_u32 s{sW}, 0
            s_cselect_b32 s{sUfl}, s{sUfl}, s3
            s_cselect_b32 s{sOfl}, s{sOfl}, s3""")
    NS1 = [i for i, t in enumerate(setup) if t.strip().startswith(f'v_add_u32 v{vLin[1]},')][0]

    def page_walk():
        e.comment('while waiting: touch the first fetch line of every later code page (no memory code on this walk)')
        e(f's_mov_b32 s3, s{sW}')
        e('s_mov_b64 exec, 0')
        e.label('L_warm')
        e.raw(';;PADJUMPS')
        e('s_mov_b64 exec, -1')

    def tlb_touch(bits):
        if bits & 1:
            e(f'v_min_u32 v{t1}, 9, v{vLane}')
            e(f'v_lshlrev_b32 v{t1}, 21, v{t1}')
            e(f's_mov_b32 s3, {(2 << 20) - 128}')
            e(f'buffer_load_dword v{vDum}, v{t1}, {srd(WS)}, s3 offen sc1')
            e.pvm.pop(('v', vDum))
        if bits & 2:
            e(f'buffer_load_dword v{vDum}, off, {srd(OUT)}, 0 sc1')
            e.pvm.pop(('v', vDum))
        if bits & 4:
            e(f'v_min_u32 v{t1}, 3, v{vLane}')
            e(f'v_lshlrev_b32 v{t1}, 21, v{t1}')
            e(f'buffer_load_dword v{vDum}, v{t1}, {srd(W2)}, 0 offen')
            e.pvm.pop(('v', vDum))
            e(f'buffer_load_dword v{vDum}, off, {srd(WO)}, 0')
            e.pvm.pop(('v', vDum))

    def h_publish(tag, tokH):
        run(setup[:NS1])
        if P['iwarm'] == 2 and not tag:
            page_walk()
        e(f'v_readfirstlane_b32 s{sNon}, v{vNon}')
        e(f's_mov_b32 s{sCnt}, 0')
        e(f's_cmp_lg_u32 s{sNon}, 0')
        e(f's_cbranch_scc0 L_nonce{tag}')
        e.cold_begin()
        e.label(f'L_nonce{tag}')
        e.raw(f'    buffer_load_dword v{vNon}, v{t3}, {srd(DBG)}, 0 offen sc1')
        e.raw(f'    s_add_u32 s{sCnt}, s{sCnt}, 1')
        e.raw(f'    s_waitcnt vmcnt(0)')
        e.raw(f'    v_readfirstlane_b32 s{sNon}, v{vNon}')
        e.raw(f'    s_cmp_ge_u32 s{sCnt}, {P["spin"]}')
        e.raw(f'    s_cbranch_scc1 L_nonce_ok{tag}')
        e.raw(f'    s_cmp_eq_u32 s{sNon}, 0')
        e.raw(f'    s_cbranch_scc1 L_nonce{tag}')
        e.raw(f'    s_branch L_nonce_ok{tag}')
        e.cold_end()
        e.label(f'L_nonce_ok{tag}')
        e.wait(vm=tokH, lg=e.lg_n)
        e('s_barrier')
        if P['hsc']:
            assert P['hrep'] == 8
            e(f's_atomic_swap s{sNon}, s[{WS}:{WS + 1}], s{sHfl}')
            e(f's_atomic_swap s{sNon}, s[{WS}:{WS + 1}], s{sHf2}')
            e.smem_out = 2
        else:
            e(f'buffer_store_dword v{vNon}, v{vFr8}, {srd(WS)}, s{sHfl} offen sc1')
        if P['rpos'] == 1 or (P['rpos'] >= 2 and tag == 'h'):
            res_loads()

    h_publish('', tokH)
    stamp('hflag', (1, 4))
    if P['xp'] & 1:
        e.wait_all(force=True)
        stamp('flag ack', (4,))
    w1_dma(9, 64)
    e.bg_on = True
    e.credit = 0
    hold = e.bg[max(0, P['w1flag'] - (40 - len(e.bg))):]
    del e.bg[len(e.bg) - len(hold):]
    run(setup[NS1:])
    for j in range(4):
        b = vB1 + 2 * (j & 1)
        e(f'v_lshlrev_b32 v{vAcc[0] + 4 * j}, 16, v{b}')
        e(f'v_and_b32 v{vAcc[0] + 4 * j + 1}, 0xffff0000, v{b}')
        e(f'v_lshlrev_b32 v{vAcc[0] + 4 * j + 2}, 16, v{b + 1}')
        e(f'v_and_b32 v{vAcc[0] + 4 * j + 3}, 0xffff0000, v{b + 1}')

    def bf(n, j):
        return a((n * 4 + j) * 4, 4)

    def h_load(n, gap):
        for j in range(4):
            pre = [f's_add_u32 s{sGsH}, s{sGsH}, 8192', f's_and_b32 s{sGsH}, s{sGsH}, 0xffff'] if (j == 0 and n and not P['xp'] & 128) else []
            bg_ins(('h', n, j), pre, f'buffer_load_dwordx4 {bf(n, j)}, v{vHo}, {srd(WS)}, s{sGsH} offen offset:{(j >> 1) * 2048 + (j & 1) * 256} sc1', gap)

    def u_load(n, gap):
        for j in range(4):
            pre = wrap(sGsU, 8192, 7) if (j == 0 and n and not P['xp'] & 64) else []
            bg_ins(('u', n, j), pre, f'buffer_load_dwordx4 {bf(n, j)}, v{vUo}, {srd(WS)}, s{sGsU} offen offset:{j * 1024} sc1', gap)

    def q_dma(st, gap):
        q = 16 + 2 * st
        b = slot_of(q)
        for k in range(3):
            pre = [f's_add_u32 m0, s{sM3}, {b}'] + (wrap(sWs, 12288, 7) if st and not P['xp'] & 8 else []) if k == 0 else []
            bg_dma(('s', q, k), pre, WS, vWp, sWs, k * 1024, gap, mod=' sc1')
        bg_dma(('s', q, 3), [f's_add_u32 m0, s{sMh}, {b + 28672}'] + (wrap(sXs, 1 << 18, 7) if st and not P['xp'] & 256 else []), WS, vXd[2], sXs, 0, gap, mod=' sc1')
        for k in range(4):
            pre = [f's_add_u32 m0, s{sM}, {b + 12288}'] if k == 0 else []
            if not (P['xp'] & 4 and k in (1, 2)):
                bg_dma(('s', q + 1, k), pre, WS, vXd[k >> 1], sXs, k * 1024, gap, mod=' sc1')

    QF = 30
    QW, QO = ((14, 15, 16, 20), (17, 18, 19, 21)) if P['oord'] else ((14, 15, 16, 17), (18, 19, 20, 21))
    fseq = [('u', n) for n in range(14)] + [('o', m) for m in range(8)]

    def f_dma(i, gap):
        kind, n = fseq[i]
        q = QF + i
        m0 = [f's_add_u32 m0, s{sM}, {slot_of(q)}']
        if kind == 'u':
            for k in range(4):
                pre = m0 + wrap(sGs2, 1 << 19, 7) * (0 if P['xp'] & 16 else {0: 0, 7: 0, 8: 2}.get(n, 1)) if k == 0 else []
                if n in (0, 8):
                    pre = pre + [f'v_xor_b32 v{vD2[k]}, 128, v{vD2[k]}']
                bg_dma(('s', q, k), pre, W2, vD2[k], sGs2, k * 1024, gap + (P['wpause'] if (n, k) == (0, P['wpk']) else 0))
        else:
            r = sRo if i in QW else sR2
            step = [f's_add_u32 s{r}, s{r}, {0 if P["xp"] & 32 else 1}', f's_and_b32 s{r}, s{r}, 3']
            if i in QW:
                bg_dma(('s', q, 0), m0 + step + [f's_mul_i32 s{sBg}, s{sRo}, {112 * 896}'], WO, vDo[0], sBg, 0, gap)
                bg_dma(('s', q, 1), [], WO, vDo[1], sBg, 1024, gap)
                bg_dma(('s', q, 2), [f's_add_u32 s{sBg}, s{sBg}, {56 * 896 - 2048}'], WO, vDo[0], sBg, 2048, gap)
                bg_dma(('s', q, 3), [], WO, vDo[1], sBg, 3072, gap)
            else:
                for k in range(4):
                    pre = m0 + step + [f's_lshl_b32 s{sBg}, s{sR2}, 12'] if k == 0 else []
                    bg_dma(('s', q, k), pre, WS, vOd[k & 1], sBg, k * 1024, gap, mod=' sc1')

    def bar(qlast):
        if qlast is not None:
            e.need(('s', qlast, 3))
        if not (P['xp'] & 16384 and qlast != 5):
            e('s_barrier')

    PH, DF = P['ph'], P['df']
    vWof = [vBig + 16 + 4 * k for k in range(6)]

    def fr(x, n=4, o=0):
        return a(200 + 4 * (x % NF) + o, n)

    def tr_reads(q, j, T_, x):
        r = []
        for h in range(2):
            ad = slot_of(q) + (j >> 1) * 4096 + h * 2048
            r.append(f'ds_read_b64_tr_b16 {fr(x, 2, 2 * h)}, v{vPat[ad >> 16][2 * T_ + (j & 1)]} offset:{ad & 65535}')
        return r

    def gemm32(seq, q0, at_stage, swap, fill, init, accs, amod, padd, checks, pre=None):
        items = []
        for i, (kind, n) in enumerate(seq):
            items += [(i, kind, n, j, T_) for j in range(4 if kind != 'o' else 2) for T_ in range(2)]
        tail = [t for t in items if t[0] >= len(seq) - 2]
        items = items[:len(items) - len(tail)]
        for T_ in (1, 0):
            items += [t for t in tail if t[4] == T_] + [(None, 'P', p, 0, T_) for p in padd if p[0] == T_]
        tk = {}
        left = [sum(1 for t in items if t[0] == i) for i in range(len(seq))]
        seen = set()
        init = set(init)
        lastrd = {}
        done = [-1]
        rq, fq = [], []

        def plan(x):
            i, kind, n, j, T_ = items[x]
            if kind == 'P':
                return
            r = []
            if i not in seen:
                seen.add(i)
                rq.append((x, None, False))
                if kind == 'o':
                    for cb in range(2):
                        for h in range(2):
                            ad = slot_of(q0 + QW[n >> 1]) + h * 4096 + (n & 1) * 2048
                            r.append(f'ds_read_b64_tr_b16 {v(vWof[(2 * n + cb) % 6] + 2 * h, 2)}, v{vPatW[ad >> 16][cb]} offset:{ad & 65535}')
            if pre and x in pre:
                tk[x] = lastrd[i] = pre[x]
                left[i] -= 1
            elif kind != 'o':
                r += tr_reads(q0 + i, j, T_, x)
            else:
                ad = slot_of(q0 + QO[n >> 1]) + (n & 1) * 2048 + j * 1024
                r.append(f'ds_read_b128 {fr(x)}, v{vOr[ad >> 16][T_]} offset:{ad & 65535}')
            rq.extend((x, t, t is r[-1]) for t in r)

        def rd1():
            while rq and rq[0][1] is None:
                i = items[rq.pop(0)[0]][0]
                while left[done[0] + 1] == 0 and e.lg_done >= lastrd[done[0] + 1]:
                    done[0] += 1
                at_stage(i, q0 + done[0])
            if not rq:
                return False
            x, t, last = rq.pop(0)
            tok = e(t)
            if last:
                tk[x] = lastrd[items[x][0]] = tok
                left[items[x][0]] -= 1
            return True

        def f1():
            f = fq.pop(0)
            if callable(f):
                f()
            else:
                e.many(f)
        e.ds_free = True
        e.bg_on = False
        for x in range(DF):
            plan(x)
        while rd1():
            pass
        nxt = DF
        for x, (i, kind, n, j, T_) in enumerate(items):
            if x % 4 == 0:
                stamp(f'{seq[0][0]}{x}', (20,))
            if kind == 'P':
                if n[1]:
                    e.bg_flush(n[1])
                ms = [mf16(vAcc[T_] + 8 * n[3] + 4 * rt, a(aSel + 2 - 2 * rt, 4), v(n[2], 4)) for rt in range(2)]
            else:
                vm = None
                if kind != 'o':
                    key = (kind, n % amod, j | 1)
                    e.bg_flush(key)
                    vm = e.tok[key]
                while x not in tk:
                    rd1()
                e.wait(vm=vm, lg=tk.get(x + 1, tk[x]) if x % 2 == 0 else None)
                ms = []
                for cb in range(2):
                    act = bf(n % amod, (j & 2) + cb) if kind != 'o' else v(vWof[(2 * n + cb) % 6], 4)
                    d = accs(i)[T_] + (8 * (j & 1) + 4 * cb if swap else 8 * cb + 4 * (j & 1))
                    c = None if d in init else '0'
                    init.add(d)
                    ms.append(mf16(d, act, fr(x), c) if swap else mf16(d, fr(x), act, c))
            f = fill.pop(0) if fill else None
            now = callable(f)
            if isinstance(f, list):
                fq.extend(f)
            elif now or (f and 's_cmp' in f):
                fq.append(f)
            elif f:
                fq.extend(f.split('\n'))
            for k, m in enumerate(ms):
                e(m)
                slots = 1 if (k == 1 and x % 2 == 1) else 2
                if k == 0:
                    if x in checks:
                        checks[x]()
                    if not any(x < c <= x + P['hold'] for c in checks):
                        for _ in range(2):
                            if nxt <= x + DF and nxt < len(items):
                                plan(nxt)
                                nxt += 1
                if rd1():
                    slots -= 1
                if len(rq) > 2 and rd1():
                    slots -= 1
                did = False
                while (slots > 0 or e.credit < -24) and e.bg_step():
                    slots -= 1
                while fq and (slots > 0 or (k == 1 and (now or len(fq) > P['fqmax'] or not did and x % 2 == 0))):
                    f1()
                    did = True
                    slots -= 1
        while fq:
            f1()
        e.ds_free = False
        e.bg_on = True
        assert not fill and not rq

    def xf(t, ks):
        return 176 + ((ks & 1) * 3 + t) * 4

    def wf(f, ks):
        return 128 + ((ks & 1) * 6 + f) * 4

    def q_reads(ks):
        st, ksl = ks >> 1, ks & 1
        b = slot_of(16 + 2 * st)

        def xr(t):
            r = []
            for h in range(2):
                ad = b + ksl * 2048 + (1024 if t == 2 else 0) + h * 256
                r.append(f'ds_read_b64_tr_b16 {a(xf(t, ks) + 2 * h, 2)}, v{vXr[ad >> 16][1 if t == 0 else 0]} offset:{ad & 65535}')
            return r

        def wr(f):
            ad = b + (ksl * 6 + f) * 1024
            return [f'ds_read_b128 {a(wf(f, ks), 4)}, v{vLin[ad >> 16]} offset:{ad & 65535}']
        return xr(1) + wr(0) + xr(2) + wr(1) + wr(2) + xr(0) + wr(3) + wr(4) + wr(5)

    e.bg_flush()
    stamp('flag rq', (4,))
    if P['xp'] & 65536:
        e(f'buffer_load_dword v{vFv}, v{t3}, {srd(DBG)}, 0 offen sc1')
    else:
        e(flag_load(vFoH, vFv))
    e.bg_on = False
    tlb_touch(P['tlb'] >> 3)
    if P['rpos'] == 3:
        res_loads()
    e.bg = hold[:P['w1chk']]
    hold = hold[P['w1chk']:]
    assert len(hold) % 4 == 0

    def h_spec():
        if P['hspec'] & 4:
            e.many(f"""
                s_mul_i32 s3, s{sIdx}, 37
                s_lshr_b32 s3, s3, 8
                s_lshl_b32 s3, s3, 14
                s_add_u32 s3, s3, s{sGsH}
            """)
        e.many(f"""
            v_and_b32 v{t0}, 0xfffff000, v{vHo}
            v_lshl_add_u32 v{t0}, v{vL31}, 7, v{t0}
            v_lshl_add_u32 v{t1}, v{vHi}, 13, s{3 if P['hspec'] & 4 else sGsH}
            v_and_b32 v{t1}, 0xffff, v{t1}
            v_add_u32 v{t0}, v{t0}, v{t1}
            buffer_load_dword v{vDum}, v{t0}, {srd(WS)}, 0 offen sc1
        """)
        e.pvm.pop(('v', vDum))
    e.bg_on = False
    if P['hspec'] & 1:
        h_spec()
    e.bg_flush()
    if P['hspec'] & 2:
        h_spec()
    e.bg_on = True
    stamp('w1 iss', (4,))
    if P['iwarm'] == 1:
        page_walk()
    if P['stamps'] == 4:
        e(f's_mov_b32 s{sCnt}, 0')
    flag_check(vFoH, vFv, P['hsleep'])
    if P['stamps'] == 4:
        e(f's_mov_b32 s{sStamp + 12}, s{sCnt}')
    stamp('chk', (20,))
    n_iss = 10 - len(hold) // 4
    bar(min(n_iss - 3, 5))
    e.smem_out = 0
    stamp('h ok', (1, 2, 4))
    for n in range(8):
        h_load(n, P['hgap'])
        if n == 0:
            bg_ins('rs', [], f'buffer_load_dword v{vRs}, v{vRsa}, {srd(WS)}, 0 offen sc1', 0)
            if P['rpos'] == 2:
                e.bg_flush()
                res_loads()
        if n < P['hinit']:
            e.bg_flush()
        if n >= P['hpos']:
            e.bg += [(k, f, P['hgap']) for k, f, _ in hold[:4]]
            del hold[:4]
    e.bg += [(k, f, P['hgap']) for k, f, _ in hold]

    rsfill = [f'v_lshlrev_b32 v{t0}, 2, v{vL15}',
            f'v_and_b32 v{t1}, 1, v{vLane}',
            f'v_lshl_add_u32 v{t1}, v{vG}, 2, v{t1}',
            f'v_lshlrev_b32 v{t1}, 2, v{t1}',
            f'v_add_u32 v{t2}, 64, v{t1}',
            f'v_cndmask_b32 v{t3}, v{t1}, v{t2}, {s(sCur0, 2)}',
            f'v_cndmask_b32 v{t1}, v{t1}, v{t2}, {s(sCur1, 2)}']
    for t in range(2):
        rsfill += [f'ds_bpermute_b32 v{vCa[t]}, v{t0}, v{vRs} offset:{64 * (t + 1)}',
                 f'ds_bpermute_b32 v{vAs[t][0]}, v{t3}, v{vRs} offset:{64 * t}',
                 f'ds_bpermute_b32 v{vAs[t][1]}, v{t1}, v{vRs} offset:{64 * t + 8}']
    rsfill += [None] * 6 + [f'v_mul_f32 v{vCa[t]}, s{sC1}, v{vCa[t]}' for t in range(2)]

    g1bar = {3: n_iss - 1, 5: None, 7: 9, 9: 11, 11: 13, 13: 15, 14: None}
    assert n_iss >= 8
    g1bar = {0: g1bar,
             1: {3: 7, 5: None, 8: 9, 10: 11, 12: 13, 14: 15},
             2: {3: 7, 5: None, 7: None, 8: 8, 9: 9, 10: 10, 11: 11, 12: 12, 13: 13, 14: 15},
             3: {3: 7, 5: None, 7: 8, 9: 10, 11: 12, 13: 13, 14: 15},
             4: {4: 7, 8: 9, 10: 11, 12: 13, 14: 15},
             5: {4: 7, 6: None, 8: 8, 9: 10, 11: 12, 13: 13, 14: 15}}[P['gb']]
    nw, nq1 = [10], [0]
    vGp = [vBig, vBig + 16]
    vGr = vBig + 32

    def g_check():
        cnt_check(sGfl, 0 if P['xp'] & 131072 else 2, P['sl1'], few=True)
        e(f'v_xor_b32 v{vGst}, {8 * 16384}, v{vGst}')
        e(f'v_xor_b32 v{vGs2}, 8192, v{vGst}')
        for j in (3, 2, 1, 0):
            e.bg.insert(0, (('gl', j), [f'buffer_load_dwordx4 {v(vGr + 4 * j, 4)}, v{vGs2 if j >= 2 else vGst}, {srd(WS)}, 0 offen offset:{j * 1024} sc1'], 32))

    def g1_stage(n, done):
        if P['xp'] & 65536 and n == 2:
            e(flag_load(vFoH, vFv))
        if P['xp'] & 65536 and n == 5:
            flag_check(vFoH, vFv, P['hsleep'])
        if n in g1bar:
            bar(g1bar[n])
        if n == P['gpub'] and not P['xp'] & 131072:
            e.need(('g', 3))
            signal(sGfl, False)
        if n in (0, 1, 2, 4, 6, 8, 10, 12, 14):
            stamp(f'g1 st{n}', (2, 4) if n in (1, 4) else (2,))
        if n >= 8:
            stamp(f'g1 st{n}', (9,))
        gap = P['ggap']
        if n == 14:
            assert done >= 12
        while n in g1bar and nw[0] < 16 and nw[0] <= done + 10:
            w1_dma(nw[0], gap)
            nw[0] += 1
        if n == P['wfq']:
            cnt_req(sWck, DBG)
        while n in g1bar and nq1[0] < 3 and done >= 7 + 2 * nq1[0]:
            assert n >= 9 and nw[0] == 16
            q_dma(nq1[0], P['qg1'])
            nq1[0] += 1
        if n == P['gfq']:
            e(f's_xor_b32 s{sGfl}, s{sGfl}, 1024')
            e.smem_out = 0
            cnt_req(sGfl)

    def part_fill(fl, end, acc, vst, key, pause):
        def st(j):
            e.bg.insert(0, ((key, j), [f'buffer_store_dwordx4 {v(acc[j >> 1] + 8 * (j & 1), 4)}, v{vst}, {srd(WS)}, 0 offen offset:{j * 1024} sc1'], 32))
            e.bg_flush((key, j))
            if j == 3:
                e.credit += pause
        assert len(fl) <= end + 1
        fl = fl + [None] * (end + 1 - len(fl))
        for j in range(4):
            src = acc[j >> 1] + 8 * (j & 1)
            fl += [[f'v_cvt_pk_bf16_f32 v{src + r}, v{src + 2 * r}, v{src + 2 * r + 1}' for r in range(4)] + [lambda j=j: st(j)]] + [None] * P['psp']
        return fl

    gf = ['\n'.join(setup2[:6] + [t for t in setup2 if f's{sC1},' in t])] + rsfill + setup2[6:]
    gf = part_fill(gf, 64 + P['gdel'], vGp, vGst, 'g', P['gpause'])
    xtk = {}

    XB = P['xbf']

    def xw(j):
        xtk[0] = e(f'ds_write_b128 v{vEx}, {v(vAcc[1] + (8 if XB else 4) * j, 4)} offset:{EXC_B + j * 1024}')

    def cvt8(src):
        return [f'v_cvt_pk_bf16_f32 v{src + r}, v{src + 2 * r}, v{src + 2 * r + 1}' for r in range(4)]

    def xr():
        e(f'v_xor_b32 v{vEx}, 8192, v{vEx}')
        e.wait(vm=e.tok[('s', 17, 3)], lg=xtk[0])
        e('s_barrier')
        stamp('exch', (9, 20))
        q_dma(3, P['qg1'])
        for j in range(2 if XB else 4):
            e(f'ds_read_b128 {v(vE + 4 * j, 4)}, v{vEx} offset:{EXC_B + j * 1024}')
    xws = [cvt8(vAcc[1]), lambda: xw(0), cvt8(vAcc[1] + 8), lambda: xw(1)] if XB else [lambda j=j: xw(j) for j in range(4)]
    gf += [None] * (121 - len(gf)) + xws + [None] * P['xdel'] + [xr]
    gemm32([('h', n) for n in range(16)], 0, g1_stage, False, gf, [vAcc[0] + 4 * k for k in range(4)], lambda i: vGp if i < 8 else vAcc, 8,
           [(0, ('gl', j), vGr + 4 * j, j & 1) for j in range(4)] + [(0, None, vE + 4 * j, j) for j in range(2 if XB else 0)],
           {P['wck']: lambda: cnt_check(sWck, 14, 8, DBG), P['gck']: g_check})
    stamp('g1 done', (1, 2, 9))
    for half in range(2):
        ps = [8 * half + 2 * k for k in range(4)]
        A_ = lambda p: v(vAcc[0] + p, 2)
        E_ = lambda p: v(vE + p, 2)
        for p in ps:
            if not XB:
                e(f'v_pk_add_f32 {A_(p)}, {A_(p)}, {E_(p)}')
        for p in ps:
            e(f'v_pk_mul_f32 {E_(p)}, {A_(p)}, {A_(p)}')
        for p in ps:
            e(f'v_pk_fma_f32 {E_(p)}, {E_(p)}, {s(sGc, 2)}, {v(vC0, 2)}')
        for p in ps:
            e(f'v_pk_mul_f32 {E_(p)}, {E_(p)}, {A_(p)}')
        for p in ps:
            e(f'v_exp_f32 v{vE + p}, v{vE + p}')
            e(f'v_exp_f32 v{vE + p + 1}, v{vE + p + 1}')
        for p in ps:
            e(f'v_pk_add_f32 {E_(p)}, {E_(p)}, {s(sOne, 2)}')
        for p in ps:
            e(f'v_rcp_f32 v{vE + p}, v{vE + p}')
            e(f'v_rcp_f32 v{vE + p + 1}, v{vE + p + 1}')
        for p in ps:
            e(f'v_pk_mul_f32 {E_(p)}, {E_(p)}, {A_(p)}')
        for k, p in enumerate(ps):
            e(f'v_cvt_pk_bf16_f32 v{vSt[half] + k}, v{vE + p}, v{vE + p + 1}')
    run(q_reads(0))
    e.bg_flush()
    for half in range(2):
        tokU = e(f'buffer_store_dwordx4 {v(vSt[half], 4)}, v{vL16}, {srd(WS)}, s{sUst} offen offset:{half * 1024} sc1')
    stamp('u stored', (1, 2, 5, 9))
    hist = list(e.hist)
    e.cold_begin()

    save = (e.vm_n, e.vm_done, e.lg_n, e.lg_done, dict(e.pvm), dict(e.plg), dict(e.tok), nst[0])
    e.label('L_nog1')
    e.vm_n, e.vm_done, e.lg_n, e.lg_done, e.pvm, e.plg, e.tok = save0
    assert not e.bg
    e.pad(2)
    vW, vWr = vBig + 60, vBig + 61
    vPk = vBig
    sPk, sPp, sPo = 79, 80, 81
    PITCH = 1056
    e.many(f"""
        s_mov_b32 s{WQ + 2}, {448 * 2688}
        s_mov_b32 s{WQ + 3}, 0x20000
        s_sub_u32 s3, s2, 200
        s_cmp_lt_u32 s3, 42
        s_cselect_b32 s{sPo}, 0, {OOB}
        s_cselect_b32 s3, s3, 0
        s_mul_i32 s{sPk}, s3, 43
        s_lshr_b32 s{sPk}, s{sPk}, 7
        s_mul_i32 s{sPp}, s{sPk}, 3
        s_sub_u32 s{sPp}, s3, s{sPp}
        v_min_u32 v{t0}, 55, v{vLane}
        s_lshl_b32 s3, s{sPk}, 2
        s_add_u32 s3, s3, s{sW}
        s_mul_i32 s3, s3, {8 * 2688}
        s_mul_i32 s{sCnt}, s{sPp}, 896
        s_add_u32 s3, s3, s{sCnt}
        s_add_u32 s3, s3, s{sPo}
        v_lshl_add_u32 v{vW}, v{t0}, 4, s3
        s_mul_i32 s{sCnt}, s{sW}, {8 * PITCH}
    """)
    for r in range(8):
        e(f's_add_u32 m0, s{sCnt}, {r * PITCH}')
        e(f's_mov_b32 s3, {r * 2688}')
        e(f'buffer_load_dwordx4 v{vW}, {srd(WQ)}, s3 offen lds')
    tokHh = p0_body((6,))
    e.many(f"""
        v_lshrrev_b32 v{t0}, 2, v{vLane}
        v_mul_u32_u24 v{t0}, {PITCH}, v{t0}
        v_lshl_add_u32 v{t0}, v{vC4}, 3, v{t0}
        s_mul_i32 s3, s{sW}, {4 * 56}
        v_add_u32 v{vWr}, s3, v{t0}
    """)
    h_publish('h', tokHh)
    stamp('hlp hflag', (6,))
    tlb_touch(P['tlb'] & 7)
    e.many(f"""
        v_cmp_gt_u32 vcc, 12, v{vL15}
        s_mul_i32 s3, s{sW}, {4 * 14}
        s_add_u32 s3, s3, s{sPk}
        s_mul_i32 s3, s3, 3
        s_add_u32 s3, s3, s{sPp}
        s_lshl_b32 s3, s3, 11
        s_add_u32 s3, s3, {WP_OFF}
        s_add_u32 s3, s3, s{sPo}
    """)
    for jj in range(4):
        for t in range(2):
            for h in range(2):
                e(f'ds_read_b64_tr_b16 {v(vPk + (2 * jj + t) * 4 + 2 * h, 2)}, v{vWr} offset:{jj * 56 + t * 32 + h * 16 * PITCH}')
    for jj in range(4):
        for r in range(4):
            d = vPk + (2 * jj + 1) * 4 + r
            e(f'v_cndmask_b32 v{d}, 0, v{d}, vcc')
        for t in range(2):
            tokP = e(f'buffer_store_dwordx4 {v(vPk + (2 * jj + t) * 4, 4)}, v{vL16}, {srd(WS)}, s3 offen offset:{t * 1024} sc1')
        e(f's_add_u32 s3, s3, 86016')
    e.many(f"""
        s_lshl_b32 s{sUst}, s{sPp}, 6
        s_add_u32 s{sUst}, s{sUst}, 64
        s_cmp_eq_u32 s{sPo}, 0
        s_cselect_b32 s{sGfl}, s{sW}, 1
        s_mov_b32 s{sUfl}, {CN_OFF + 100 * 128}
    """)
    if P['gord'] == 1:
        e.many(f"""
            s_and_b32 s3, s2, 1
            s_mul_i32 s3, s3, 3
            s_bfe_u32 s{sT2}, s2, 0x10001
            s_mul_i32 s{sT3}, s{sT2}, 6
            s_add_u32 s3, s3, s{sT3}
            s_add_u32 s3, s3, 1
            v_add_u32 v{t1}, s3, v{vC4}
            s_mul_i32 s{sT2}, s{sT2}, 64
            s_add_u32 s{sT2}, s{sT2}, 7
            v_cmp_ne_u32 vcc, s{sT2}, v{t1}
            v_lshrrev_b32 v{t2}, 2, v{vLane}
            v_mul_u32_u24 v{t2}, 3584, v{t2}
            v_cndmask_b32 v{t1}, 0, v{t1}, vcc
            v_lshl_add_u32 v{t1}, v{t1}, 8, v{t2}
            s_lshl_b32 s3, s{sD}, 2
            s_add_u32 s3, s3, s{sW}
            s_mul_i32 s3, s3, 37
            s_min_u32 s3, s3, {987 if P['t1x'] else 976}
            s_mul_i32 s3, s3, 3584
            s_mul_i32 s{sT2}, s{sM3}, {1024 * 3584 + 128}
            s_add_u32 s3, s3, s{sT2}
        """)
        for k in range(P['nt1']):
            if k == 2 and P['t1x']:
                e(f'v_cmp_gt_u32 vcc, 20, v{vLane}')
                e(f'v_mov_b32 v{t2}, {OOB}')
                e(f'v_cndmask_b32 v{t1}, v{t2}, v{t1}, vcc')
            e(f'buffer_load_dword v{vBig + 44 + k}, v{t1}, {srd(W1)}, s3 offen')
            e(f's_add_u32 s3, s3, {16 * 3584}')
    run(setup[NS1:])
    run(setup2)
    e.wait(vm=tokP)
    e('s_barrier')
    e(f's_cmp_lg_u32 s{sGfl}, 0')
    e(f's_cbranch_scc1 L_nowsig')
    signal(sUst, False, DBG)
    e.label('L_nowsig')
    e(flag_load(vFoH, vFv))

    def w2_touch():
        e.many(f"""
            s_mov_b32 s{W2 + 2}, {1792 * 4096}
            s_and_b32 s3, s2, 1
            s_mul_i32 s3, s3, 7
            s_add_u32 s3, s3, s{sD}
            s_lshl_b32 s3, s3, 2
            s_add_u32 s3, s3, s{sW}
            s_lshl_b32 s3, s3, 17
            s_and_b32 s{sT2}, s2, 6
            s_lshl_b32 s{sT2}, s{sT2}, 9
            s_add_u32 s3, s3, s{sT2}
            v_lshlrev_b32 v{vW}, 12, v{vL31}
        """)
        ts = str(P['tset'])
        for k in range(len(ts) // 2):
            lo, hi = sorted(int(c) % 8 for c in ts[2 * k:2 * k + 2])
            e(f'v_mul_u32_u24 v{vWr}, {(hi - lo) * 128}, v{vHi}')
            e(f'v_add_u32 v{vWr}, v{vW}, v{vWr}')
            e(f'buffer_load_dword v{vBig + 50 + k}, v{vWr}, {srd(W2)}, s3 offen offset:{lo * 128}')
        e(f's_cmp_eq_u32 s{sF}, 0')
        e(f's_cselect_b32 s{W2 + 2}, 0, s{W2 + 2}')
    if P['w2pos'] == 0:
        w2_touch()
    e.many(f"""
        s_cmp_eq_u32 s{sF}, 0
        s_cselect_b32 s{W2 + 2}, 0, s{W2 + 2}
        v_and_b32 v{t0}, 0xfffff000, v{vHo}
        v_lshl_add_u32 v{t0}, v{vL31}, 7, v{t0}
        s_add_u32 s3, s{sGsH}, {P['hlead'] * 8192}
        v_lshl_add_u32 v{t1}, v{vHi}, 13, s3
    """)
    flag_check(vFoH, vFv, 8)
    if P['w2pos'] != 1:
        cnt_req(sWck, DBG)
    assert e.vm_done >= tokP
    e('s_barrier')
    e(f'buffer_load_dword v{vRs}, v{vRsa}, {srd(WS)}, 0 offen sc1')
    stamp('hlp h ok', (6,))
    if P['touch'] & 4:
        for k in range((9 - P['hlead']) // 2):
            e(f'v_and_b32 v{t1}, 0xffff, v{t1}')
            e(f'v_add_u32 v{t2}, v{t0}, v{t1}')
            e(f'v_add_u32 v{t1}, 16384, v{t1}')
            e(f'buffer_load_dword v{vBig + 40 + k}, v{t2}, {srd(WS)}, 0 offen sc1')
    if P['w2pos'] == 1:
        w2_touch()
    if not P['rsl']:
        run([t for t in rsfill if t])
    if P['w2pos'] == 1:
        e.wait(vm=e.vm_n - 2)
        cnt_req(sWck, DBG)
    cnt_check(sWck, 14, 16, DBG)
    e('s_barrier')
    stamp('hlp touched', (6, 7))
    if P['touch'] & 1:
        e.many(f"""
            s_max_u32 s3, s{sIdx}, 25
            s_sub_u32 s3, s3, 25
            s_lshl_b32 s3, s3, 2
            s_add_u32 s{sT3}, s3, s{sW}
            v_lshlrev_b32 v{t0}, 7, v{vLane}
            s_and_b32 s3, s{sJ}, 8
            s_mul_i32 s3, s3, 86016
            s_mul_i32 s{sT3}, s{sT3}, 3072
            s_add_u32 s3, s3, s{sT3}
            s_add_u32 s3, s3, {WP_OFF}
            v_min_u32 v{t0}, {23 * 128}, v{t0}
            buffer_load_dword v{vBig + 2}, v{t0}, {srd(WS)}, s3 offen sc1
        """)
    if P['touch'] & 32:
        e.many(f"""
            v_lshl_add_u32 v{t1}, v0, 7, s{sWs}
            s_mul_i32 s3, s{sJ}, 86016
            s_add_u32 s3, s3, {WP_OFF}
        """)
        for k in range(3):
            e(f'v_subrev_u32 v{t2}, 86016, v{t1}')
            e(f'v_min_u32 v{t2}, v{t1}, v{t2}')
            e(f'v_add_u32 v{t1}, {32768 if k == 0 else 86016 - 65536}, v{t1}')
            e(f'buffer_load_dword v{vBig + 3 + k}, v{t2}, {srd(WS)}, s3 offen sc1')
    assert not e.bg
    e.many(f"""
        s_cmp_eq_u32 s{sF}, 0
        s_cselect_b32 s3, {OOB}, 0
        v_add_u32 v{vUo}, s3, v{vUo}
    """)
    if P['flead']:
        e.many(f"""
            s_mov_b32 s{W2 + 2}, {1792 * 4096}
            s_and_b32 s3, s{sD2}, 1
            s_lshl_b32 s3, s3, 2
            s_lshr_b32 s{sT2}, s{sD2}, 1
            s_add_u32 s3, s3, s{sT2}
            s_lshl_b32 s3, s3, 7
            s_cmp_eq_u32 s{sF}, 0
            s_cselect_b32 s3, s3, 0
        """)
        for k in range(4):
            e(f'v_xor_b32 v{vD2[k]}, s3, v{vD2[k]}')
    for st in range(4):
        q_dma(st, 0)
    if P['wfirst']:
        isw = lambda t: t[0][1] % 2 == 0 and t[0][2] < 3
        e.bg = sorted(e.bg, key=lambda t: isw(t) == (P['wfirst'] == 2))
    e.bg_flush()
    if P['wfirst'] == 2:
        e.wait(vm=e.vm_n)
    if P['w2pos'] == 2:
        w2_touch()
    e(f's_mov_b32 s3, {OOB}')
    for _ in range(2):
        e(f'buffer_store_dword v{vNon}, v{vFl}, {srd(WS)}, s3 offen')
    if P['rsl']:
        run([t for t in rsfill if t])
    safe = ('s', 16, 0)
    for st in range(4):
        k = ('s', 17 + 2 * st, 3)
        if not (e.vm_n - e.tok[k] >= save[0] - save[6][k] and save[1] < save[6][k]):
            safe = k
    e.wait(vm=max(e.tok[safe], e.tok[('s', 17, 3)]), lg=e.lg_n)
    e('s_barrier')
    run(q_reads(0))
    e.wait_all(vm=False, lg=True, force=True)
    e.pad(4)
    e('s_branch L_q')
    e.cold_end()
    e.hist = hist
    e.vm_n, e.vm_done, e.lg_n, e.lg_done, e.pvm, e.plg, e.tok, _ = save

    e.label('L_q')
    e.smem_out = 0
    QG = P['qgap']
    vQ = [None, [vBig, vBig + 4], [vBig + 8, vBig + 12]]
    vK = [[vBig + 16 + 8 * t, vBig + 20 + 8 * t] for t in range(3)]
    vV = [[vBig + 40 + 8 * t, vBig + 44 + 8 * t] for t in range(3)]
    nf = [0]

    def f_enq(limit_q, maxn, gap):
        while nf[0] < len(fseq) and QF + nf[0] <= limit_q and nf[0] < maxn:
            f_dma(FORD[nf[0]] if nf[0] < 10 else nf[0], gap)
            nf[0] += 1

    def u_point(pos):
        if pos == P['ureq'] - 13 and pos > 0:
            e.smem_out = 0
            cnt_req(sUck)
        if pos != P['uchk']:
            return
        cnt_check(sUck, 7, P['sl3'], unless0=sF)
        stamp('u ok', (1, 3))
        rest, e.bg = e.bg, []
        for n in range(PH):
            u_load(n, P['agap'])
        e.bg += rest

    def q_barrier(st):
        key = ('s', 17 + 2 * st, 3) if st < 7 else ('s', QF + 2, 3)
        e.bg_flush(key)
        e.wait(vm=max(e.tok[key], tokU if st == P['ust'] else 0), lg=e.lg_n)
        if not P['xp'] & 32768:
            e('s_barrier')
        if st == P['ust']:
            signal(sUfl, True)
            stamp('uflag', (1,))
        stamp(f'Q{st}', (5, 7))
        if st == 1:
            q_dma(4, QG)
        if st == 7:
            u_point(0)
        if st + 4 < 7:
            q_dma(st + 4, QG)
        else:
            f_enq(QF + 2 * (st - 3) + 1, 10, QG)

    e.ds_free = True
    e.bg_on = False
    for ks in range(14):
        c = '0' if ks == 0 else None
        ms = []
        for f in range(6):
            part, t = f >> 1, f & 1
            w_ = a(wf(f, ks), 4)
            if part == 0:
                ms += [mf16(vQ[k][t], w_, a(xf(k, ks), 4), c) for k in (1, 2)]
            elif part == 1:
                ms += [mf16(vK[k][t], w_, a(xf(k, ks), 4), c) for k in (1, 2, 0)]
            else:
                ms += [mf16(vV[k][t], a(xf(k, ks), 4), w_, c) for k in (1, 2, 0)]
        if P['xp'] & 2 and ks:
            ms = [m for i, m in enumerate(ms) if i not in (9, 12, 15)]
        if P['xp'] & 4 and ks:
            ms = [m for i, m in enumerate(ms) if i not in (1, 3, 5, 8, 11, 14)]
        last = e.lg_n
        stamp(f'q{ks}', (20,))
        if ks & 1:
            q_barrier((ks + 1) >> 1)
        if ks == P['ureq']:
            e.smem_out = 0
            cnt_req(sUck)
        fpre = {}
        rds = q_reads(ks + 1) if ks < 13 else [t for x in range(DF) for t in tr_reads(QF, x >> 1, x & 1, x)]
        for i, m in enumerate(ms):
            if i == 8:
                stamp(f'q{ks}.5', (20,))
            if i == 0:
                e.wait(lg=last - 6)
            if i == 4:
                e.wait(lg=last)
            e(m)
            n = 1 if i in (3, 15) else 2
            for _ in range(2 if ((ks % 2 == 0 and i < P['qrd']) or len(rds) > len(ms) - i) else 1):
                if rds:
                    x_ = (2 * DF - len(rds)) >> 1
                    fpre[x_] = e(rds.pop(0))
                    n -= 1
            while n > 0 and e.bg_step():
                n -= 1
    e.ds_free = False
    e.bg_on = True
    stamp('qkv done', (1, 5, 6, 7))

    u_point(1)
    vQf = [None, vFr[0], vFr[1]]
    vKf = [vFr[2], vFr[3], vFr[4]]
    vPf = [vFr[5], vFr[6]]
    vVf = [vAcc[1], vAcc[1] + 6]
    vS = [[vAcc[0], vAcc[0] + 4], [vAcc[0] + 8, vAcc[0] + 12]]
    vTm = [[vBig + 64 + 4 * t + k for k in range(4)] for t in range(2)]

    def pack_T(acc, dst):
        for n in range(2):
            for r in range(2):
                e(f'v_cvt_pk_bf16_f32 v{dst + 2 * n + r}, v{acc[n] + 2 * r}, v{acc[n] + 2 * r + 1}')

    for t in (1, 2):
        pack_T(vQ[t], vQf[t])
    for t in (1, 2, 0):
        pack_T(vK[t], vKf[t])
    e(mf16(vS[0][1], v(vKf[1], 4), v(vQf[1], 4), '0'))
    e(mf16(vS[1][0], v(vKf[1], 4), v(vQf[2], 4), '0'))
    e(mf16(vS[1][1], v(vKf[2], 4), v(vQf[2], 4), '0'))
    e(mf16(vS[0][0], v(vKf[0], 4), v(vQf[1], 4), '0'))
    vnorm = []
    for n in range(2):
        for t in range(3):
            for r in range(2):
                vnorm.append(f'v_cvt_pk_bf16_f32 v{vVf[n] + 2 * t + r}, v{vV[t][n] + 2 * r}, v{vV[t][n] + 2 * r + 1}')
    run(vnorm[:6])
    u_point(2)
    vnorm = vnorm[6:]
    L = [[vTm[0][0], vTm[0][1]], [vTm[1][0], vTm[1][1]]]
    Mx = [vTm[0][2], vTm[1][2]]
    Tm = [vTm[0][3], vTm[1][3]]
    T = range(2)
    for t in (1, 0):
        for z, sc in ((0, sCur0), (1, sCur1)):
            e(f'v_cndmask_b32 v{L[t][z]}, v{vS[t][0] + 2 * z}, v{vS[t][0] + 2 * z + 1}, {s(sPar, 2)}')
            if t == 0:
                e(f'v_cndmask_b32 v{L[t][z]}, v{vNeg}, v{L[t][z]}, {s(sInvd, 2)}')
            e(f'v_cndmask_b32 v{Tm[t]}, v{vS[t][1] + 2 * z}, v{vS[t][1] + 2 * z + 1}, {s(sPar, 2)}')
            e(f'v_cndmask_b32 v{L[t][z]}, v{L[t][z]}, v{Tm[t]}, {s(sc, 2)}')
            e(f'v_mul_f32 v{L[t][z]}, v{L[t][z]}, v{vAs[t][z]}')

    def tree(op):
        for t in T:
            e(f'{op} v{Mx[t]}, v{L[t][0]}, v{L[t][1]}')
        for sw in ('v_permlane16_swap_b32', 'v_permlane32_swap_b32'):
            for t in T:
                e(f'v_mov_b32 v{Tm[t]}, v{Mx[t]}')
            if vnorm:
                e(vnorm.pop(0))
            for t in T:
                e(f'{sw} v{Mx[t]}, v{Tm[t]}')
            for t in T:
                e(f'{op} v{Mx[t]}, v{Mx[t]}, v{Tm[t]}')

    tree('v_max_f32')
    u_point(3)
    for t in T:
        e(f'v_mul_f32 v{Mx[t]}, v{vCa[t]}, v{Mx[t]}')
    for t in T:
        for z in range(2):
            e(f'v_fma_f32 v{L[t][z]}, v{L[t][z]}, v{vCa[t]}, -v{Mx[t]}')
    for t in T:
        for z in range(2):
            e(f'v_exp_f32 v{L[t][z]}, v{L[t][z]}')
    tree('v_add_f32')
    u_point(4)
    for t in T:
        e(f'v_rcp_f32 v{Mx[t]}, v{Mx[t]}')
    run(vnorm)
    for t in T:
        for z in range(2):
            e(f'v_mul_f32 v{L[t][z]}, v{L[t][z]}, v{vAs[t][z]}')
    for t in T:
        for z in range(2):
            e(f'v_mul_f32 v{L[t][z]}, v{L[t][z]}, v{Mx[t]}')
    for t in T:
        for z in range(2):
            e(f'v_cvt_pk_bf16_f32 v{L[t][z]}, v{L[t][z]}, v{L[t][z]}')
    for t in T:
        for k in range(4):
            e(f'v_and_b32 v{vPf[t] + k}, v{L[t][k & 1]}, v{vMk + k}')
    vO = [vQ[1], vQ[2]]
    for t in T:
        for n in range(2):
            e(mf16(vO[t][n], v(vVf[n] + 2 * t, 4), v(vPf[t], 4), '0'))
    e(f's_add_u32 s{sC1}, s{sOs}, 16384')
    u_point(5)
    for t in T:
        pack_T(vO[t], vSt[t])

    def o_stores():
        for t in T:
            tok = e(f'buffer_store_dwordx4 {v(vSt[t], 4)}, v{vL16}, {srd(WS)}, s{sOs + t} offen sc1')
        return tok
    e.bg_flush(('u', P['uo'], 3))
    tokO = o_stores()
    stamp('attn done', (1, 5, 7))
    e(f's_cmp_lg_u32 s{sF}, 0')
    e(f's_cbranch_scc0 L_nof')
    hist = list(e.hist)
    e.cold_begin()
    e.label('L_nof')
    save = (e.vm_n, e.vm_done, e.lg_n, e.lg_done, dict(e.pvm), dict(e.plg), dict(e.tok), nst[0])
    bgs, e.bg = e.bg, []
    e.many(f"""
        v_min_u32 v{t1}, 48, v{vLane}
        s_lshl_b32 s3, s{sD2}, 2
        s_add_u32 s3, s3, s{sW}
        s_mul_i32 s3, s3, {196 * 128}
        v_lshl_add_u32 v{t1}, v{t1}, 7, s3
    """)

    def wo_touch(k):
        if P['touch'] & 2:
            e(f's_add_u32 s3, s2, {k}')
            e(f's_and_b32 s3, s3, 3')
            e(f's_mul_i32 s3, s3, {49 * 128}')
            e(f'buffer_load_dword v{vBig + k}, v{t1}, {srd(WO)}, s3 offen')
    for k in range(P['wopre']):
        wo_touch(k)
    e.wait(vm=tokO)
    e('s_barrier')
    signal(sOfl, True)
    e.smem_out = 0
    for k in range(P['wopre'], 4):
        wo_touch(k)
    e.bg = bgs
    e('s_branch L_fin')
    e.cold_end()
    e.hist = hist
    e.vm_n, e.vm_done, e.lg_n, e.lg_done, e.pvm, e.plg, e.tok, nst[0] = save

    e.label('L_f')
    vE2 = vBig + 40
    vAp = [vBig, vBig + 56]
    assert nf[0] == 10
    fbar = {3: 6, 5: None, 7: 9, 9: 13, 11: None, 13: None}
    if P['flazy']:
        fbar = {3: 6, 5: None, 8: 9, 10: 11, 12: 13, 13: None}
        if P['flazy'] == 2:
            fbar.update({3: 4, 5: 6})
    fbar.update({14 + 2 * g: QO[g] for g in range(4)})
    free = [QF + 9, False]

    def f_more(gap):
        f_enq(free[0], 22 if free[1] else QO[0], gap)

    def o_check():
        cnt_check(sOck, 8, P['sl2'])
        free[1] = True
        e.bg = [(k, f, P['ogap']) for k, f, _ in e.bg]
        f_more(P['ogap'])
    opub = [False]
    nu = [PH]

    def f_stage(i, done):
        if i == P['osig']:
            e.wait(vm=tokO)
        if i in fbar:
            bar(None if fbar[i] is None else QF + fbar[i])
            if i == 20:
                assert done >= QF + 15
            if not opub[0] and e.vm_done >= tokO:
                opub[0] = True
                signal(sOfl, True)
        if i in (0, 2, 4, 6, 8, 10, 12, 14, 18):
            stamp(f'f st{i}', (3,))
        if i in (7, 8, 9, 10, 11, 12, 13, 14, 16, 18, 20):
            stamp(f'f st{i}', (8,))
        gap = P['ogap'] if free[1] else P['fgap']
        rest = [t for t in e.bg if t[0][0] != 'u'] if P['flazy'] else []
        e.bg_settle()
        rest = [t for t in e.bg if t[0][0] != 'u'] if P['flazy'] else []
        e.bg = [t for t in e.bg if t not in rest]
        if nu[0] < 7:
            u_load(nu[0], gap)
            nu[0] += 1
        e.bg += rest
        if i == P['ofq']:
            e.smem_out = 0
            cnt_req(sOck)
        if i == P['ppub'] and not P['xp'] & 262144:
            e.need(('p', 3))
            signal(sPfl, False)
        if i in fbar and i <= 13:
            free[0] = done + 10
            f_more(gap)
        if i == P['pfq']:
            e(f's_xor_b32 s{sPfl}, s{sPfl}, 1024')
            e.smem_out = 0
            cnt_req(sPfl)

    def p_check():
        cnt_check(sPfl, 0 if P['xp'] & 262144 else 1, P['sl1'], few=True)
        e(f'v_xor_b32 v{vPst}, {8 * 16384}, v{vPst}')
        for j in (2, 3, 0, 1):
            bg_ins(('pl', j), [], f'buffer_load_dwordx4 {v(vPr + 4 * j, 4)}, v{vPst}, {srd(WS)}, 0 offen offset:{j * 1024} sc1', 32)

    rs = []
    for q_ in range(2):
        rs.append(f'v_lshlrev_b32 v{vBo[q_]}, 16, v{vBo[q_]}')
        for k in range(4):
            d = vE2 + 8 * q_ + 2 * k
            rs += [f'v_lshlrev_b32 v{d}, 16, v{vXo[q_] + k}', f'v_and_b32 v{d + 1}, 0xffff0000, v{vXo[q_] + k}',
                   f'v_add_f32 v{d}, v{d}, v{vBo[q_]}', f'v_add_f32 v{d + 1}, v{d + 1}, v{vBo[q_]}']
    vPr = vAp[1]

    rs = part_fill(rs, 56 + P['fdel'], vAp, vPst, 'p', P['fpause'])
    rs += [None] * (143 - len(rs)) + [lambda j=j: e(f'ds_write_b128 v{vEw[j & 1]}, {v(vAcc[1] + 4 * j, 4)} offset:{8192 + (j >> 1) * 4096}') for j in range(4)]
    gemm32(fseq, QF, f_stage, True, rs, [], lambda i: vAp if i < 7 else vAcc, 7,
           [(j >> 1, ('pl', j), vPr + 4 * j, j & 1) for j in range(4)],
           {P['ock']: o_check, P['pck']: p_check}, fpre)
    assert opub[0] and not e.bg
    stamp('f done', (1, 3, 8))
    for j in range(4):
        e(f'ds_write_b128 v{vEw[j & 1]}, {v(vAcc[0] + 4 * j, 4)} offset:{(j >> 1) * 4096}')
    e.wait_all(vm=False, lg=True)
    e('s_barrier')
    stamp('epi bar', (3, 20))
    if P['pert']:
        e(f'v_cmp_eq_u32 vcc, 0, v{vOo[0]}')
        e(f'v_mov_b32 v{t0}, {f32(P["pert"] / 1000.0)}')
        e(f'v_cndmask_b32 v{t0}, 0, v{t0}, vcc')
        e(f'v_add_f32 v{vE2 + P["pel"]}, v{vE2 + P["pel"]}, v{t0}')
    for q_ in range(2):
        for k in range(4):
            e(f'ds_read_b128 {v(vFr[4 * q_ + k], 4)}, v{vEr[k]} offset:{q_ * 2048}')
    for q_ in range(2):
        for k in range(4):
            for r in (0, 2):
                d = vE2 + 8 * q_ + 4 * (k & 1) + r
                e(f'v_pk_add_f32 {v(d, 2)}, {v(d, 2)}, {v(vFr[4 * q_ + k] + r, 2)}')
        for k in range(4):
            d = vE2 + 8 * q_ + 2 * k
            e(f'v_cvt_pk_bf16_f32 v{vSt[q_] + k}, v{d}, v{d + 1}')
        e(f'buffer_store_dwordx4 {v(vSt[q_], 4)}, v{vOo[q_]}, {srd(OUT)}, 0 offen' + ('', ' sc1', ' nt', ' sc0 sc1', ' sc1 nt')[P['outsc']])
    e.label('L_fin')
    if P['stamps']:
        e.wait_all(force=True)
        if nst[0] > 1:
            e(f's_mov_b32 s{sStamp + nst[0] - 1}, s{WQ}')
        e(f's_memrealtime s[{sT2}:{sT3}]')
        e(f's_memtime s[0:1]')
        e.wait_all(vm=False, lg=True, force=True)
        e(f's_mov_b32 s{sStamp + 15}, s{sT2}')
        e(f's_mov_b32 s{sStamp + 14}, s0')
        e(f's_lshl_b32 s3, s2, 2')
        e(f's_add_u32 s3, s3, s{sW}')
        e(f's_lshl_b32 s3, s3, 7')
        e(f's_add_u32 s3, s3, {ST_OFF}')
        if P['stamps'] == 20:
            for k in (ntr[0] - 2, ntr[0] - 1):
                e.raw(f'    v_writelane_b32 v{254 + k // 64}, s{86 + 2 * (k % 3)}, {k % 64}')
            e(f's_sub_u32 s{sT2}, s3, {ST_OFF}')
            e(f's_lshl_b32 s{sT2}, s{sT2}, 3')
            e(f's_add_u32 s{sT2}, s{sT2}, {7 << 20}')
            e(f'v_lshlrev_b32 v{t0}, 2, v{vLane}')
            for k in range(2):
                e(f'buffer_store_dword v{254 + k}, v{t0}, {srd(WS)}, s{sT2} offen offset:{256 * k}')
        for k in range(16):
            e(f'v_mov_b32 v{t0}, s{sStamp + k}')
            e(f'buffer_store_dword v{t0}, v{vFl}, {srd(WS)}, s3 offen offset:{4 * k}')
    if P['probe'] >= 0:
        e.wait_all(force=True)
        if P['probe'] >= 98:
            e(f'{"s_memtime" if P["probe"] == 98 else "s_memrealtime"} s[{sT2}:{sT3}]')
            e.wait_all(vm=False, lg=True, force=True)
            e(f's_mov_b32 s{sStamp}, s{sT2}')
        if P['probe'] == 98:
            e(f's_sub_u32 s{sStamp}, s{sStamp}, s{sStamp + 13}')
            e(f's_lshr_b32 s{sStamp}, s{sStamp}, 4')
            e(f's_add_u32 s{sStamp}, s{sStamp}, s{sNon}')
        e(f's_sub_u32 s{sCnt}, s{sStamp}, s{sNon}')
        e(f's_max_i32 s{sCnt}, s{sCnt}, 0')
        e(f's_min_i32 s{sCnt}, s{sCnt}, 4000')
        e(f's_lshl_b32 s{sCnt}, s{sCnt}, 2')
        e(f's_add_u32 s{sCnt}, s{sCnt}, 4000')
        e.label('L_fix')
        e(f's_memrealtime s[{sT2}:{sT3}]')
        e.wait_all(vm=False, lg=True, force=True)
        e(f's_sub_u32 s3, s{sT2}, s{sNon}')
        e(f's_cmp_lt_u32 s3, s{sCnt}')
        e(f's_cbranch_scc1 L_fix')
    e.label('L_end')
    e('s_endpgm')
    if P['iwarm']:
        e.lines = page_pads(e.lines, e.cold)
    e.lines += e.cold + ['L_last:', '    s_endpgm']

    if P['align']:
        e.lines = align_pass(e.lines, P['align'])
    hdr = open(os.path.join(os.path.dirname(os.path.abspath(__file__)), '..', NAME + '.s.ref')).read().split('; Override launch')[0]
    out = hdr + f"""; Generated by gen/gen.py (hand-written generator).{' cyc' if P['cyc'] else ''}
; One persistent launch, 256 workgroups (one per CU) x 4 waves:
;   P0  8 rows each: LayerNorm twice (h = LN(LN(x)); mean(LN(x)) = 0 and var(LN(x)) = var/(var+eps) in closed form) -> h, row scale
;   G1  196 workgroups: u = gelu(h^T w1 + b1), 64x64 tiles; two workgroups share two tiles, one K half each, partials via d_ws
;       the other 60 re-tile wqkv per head and pull weights towards their L2
;   Q   (128 rows, head): QKV from h (row scale folded into logits / probabilities), dilated window softmax, o -> d_ws
;   F   224 workgroups: out = x + b2 + (u w2)^T + o wo, paired like G1
; Hand-offs: write-through stores, acknowledged, then a flag (launch nonce kept in d_debug[0]) or an arrival counter zeroed in P0;
; every wait is a bounded poll.  Workgroup-id -> role mapping only aims at L2 locality.
; @launch grid=(256,1,1) block=(256,1,1) lds={LDS_SIZE}
.amdgcn_target "amdgcn-amd-amdhsa--gfx950"
.text
.globl {NAME}_kernel
.p2align 8
.type {NAME}_kernel,@function
{NAME}_kernel:
""" + e.text() + f""".section .rodata,"a"
.p2align 6
.amdhsa_kernel {NAME}_kernel
  .amdhsa_next_free_vgpr 512
  .amdhsa_next_free_sgpr 102
  .amdhsa_accum_offset 256
  .amdhsa_group_segment_fixed_size 0
  .amdhsa_kernarg_size 88
  .amdhsa_user_sgpr_count 2
  .amdhsa_user_sgpr_kernarg_segment_ptr 1
  .amdhsa_system_sgpr_workgroup_id_x 1
.end_amdhsa_kernel
"""
    sys.stderr.write(f'vgpr hi {V.hi}, nops {e.nnop}, lines {len(e.lines)}\n')
    return out


def ins_sizes(lines):
    import subprocess, tempfile, re
    with tempfile.TemporaryDirectory() as d:
        open(d + '/a.s', 'w').write('.amdgcn_target "amdgcn-amd-amdhsa--gfx950"\n.text\n' + '\n'.join(lines) + '\n')
        subprocess.run(['clang', '-x', 'assembler', '-target', 'amdgcn-amd-amdhsa', '-mcpu=gfx950', '-c', d + '/a.s', '-o', d + '/a.o'], check=True)
        dis = subprocess.run(['llvm-objdump', '-d', '--mcpu=gfx950', d + '/a.o'], capture_output=True, text=True, check=True).stdout
    sizes = [4 * len(m.group(1).split()) for m in re.finditer(r'// [0-9A-F]+: ((?:[0-9A-F]{8} ?)+)', dis)]
    idx = [i for i, l in enumerate(lines) if l.startswith('    ') and not l.strip().startswith(';')]
    assert len(idx) == len(sizes), (len(idx), len(sizes))
    return dict(zip(idx, sizes))


def page_pads(lines, cold):
    NP = 7 if len(lines) > 4000 else 5
    jumps = ['    s_add_u32 s3, s3, 4']
    for k in range(NP):
        jumps += [f'    s_cmp_eq_u32 s3, {k + 4}', f'    s_cbranch_scc1 L_pad{k}']
    i = lines.index(';;PADJUMPS')
    lines = lines[:i] + jumps + lines[i + 1:]
    is_al = lambda l: l.startswith('.p2align')
    sz = ins_sizes([';' if is_al(l) else l for l in lines] + cold + ['L_last:'] + [f'L_pad{k}:' for k in range(NP)])
    out, off, k = [], None, 0
    for i, l in enumerate(lines):
        if is_al(l):
            off = 0
        if off is not None and i in sz:
            if off >= 4096 * (k + 1):
                out += [f'L_pad{k}:', '    s_cbranch_execz L_warm']
                off += 4
                k += 1
            off += sz[i]
        out.append(l)
    assert k <= NP, k
    for kk in range(k, NP):
        j = out.index(f'    s_cbranch_scc1 L_pad{kk}')
        out[j] = '    s_nop 0'
    sys.stderr.write(f'{k} page pads, hot path behind the anchor {off} bytes\n')
    return out


def align_pass(lines, minrun):
    import subprocess, tempfile, re
    with tempfile.TemporaryDirectory() as d:
        open(d + '/a.s', 'w').write('.amdgcn_target "amdgcn-amd-amdhsa--gfx950"\n.text\n' + '\n'.join(lines) + '\n')
        subprocess.run(['clang', '-x', 'assembler', '-target', 'amdgcn-amd-amdhsa', '-mcpu=gfx950', '-c', d + '/a.s', '-o', d + '/a.o'], check=True)
        dis = subprocess.run(['llvm-objdump', '-d', '--mcpu=gfx950', d + '/a.o'], capture_output=True, text=True, check=True).stdout
    sizes = [4 * len(m.group(1).split()) for m in re.finditer(r'// [0-9A-F]+: ((?:[0-9A-F]{8} ?)+)', dis)]
    idx = [i for i, l in enumerate(lines) if l.startswith('    ') and not l.strip().startswith(';')]
    assert len(idx) == len(sizes), (len(idx), len(sizes))
    ok = re.compile(r'^\s+(v_(?:mov|add|sub|subrev|mul|max|min|and|or|xor|lshlrev|lshrrev|exp|rcp|rsq|cndmask|fmac|mul_u32)_?[a-z0-9_]*) ')
    off, last, n, bad = 0, None, 0, 0
    out = list(lines)
    for k, i in enumerate(idx):
        if sizes[k] == 8 and off % 8:
            if last is not None:
                m = ok.match(out[last])
                out[last] = out[last].replace(m.group(1), m.group(1) + '_e64', 1)
                off += 4
                n += 1
            else:
                run = 0
                while k + run < len(sizes) and sizes[k + run] == 8:
                    run += 1
                if minrun > 1 and run >= minrun:
                    out[i] = '    s_nop 0\n' + out[i]
                    off += 4
                    n += 1000
                else:
                    bad += 1
        if sizes[k] == 8 and off % 8 == 0:
            last = None
        elif sizes[k] == 4 and ok.match(lines[i]):
            last = i
        off += sizes[k]
    sys.stderr.write(f'align: {n} promoted, {bad} 8-byte instructions left misaligned\n')
    return out


if __name__ == '__main__':
    kw = {}
    path = os.path.join(os.path.dirname(os.path.abspath(__file__)), '..', NAME + '.s')
    for arg in sys.argv[1:]:
        k, val = arg.split('=')
        if k == 'out':
            path = val
        else:
            kw[k] = int(val)
    open(path, 'w').write(build(**kw))
```
